```python
import torch

def _softmax(x, axis=-1):
    return torch.softmax(x, dim=axis)

def _gelu(x):
    return torch.nn.functional.gelu(x, approximate='tanh')

def _silu(x):
    return torch.nn.functional.silu(x)

def _sigmoid(x):
    return torch.sigmoid(x)

def _layernorm(x, axis=-1, eps=1e-05):
    m = x.mean(dim=axis, keepdim=True)
    v = x.var(dim=axis, keepdim=True, unbiased=False)
    return (x - m) / torch.sqrt(v + eps)

def _scatter_add(tgt, idx, src, axis=0):
    return tgt.clone().index_add_(axis, idx, src)

def _segment_sum(src, seg, n):
    out = torch.zeros((n,) + src.shape[1:], dtype=src.dtype)
    return out.index_add_(0, seg, src)

def _pad(x, pw):
    flat = tuple((v for pair in reversed(pw) for v in pair))
    return torch.nn.functional.pad(x, flat)
kernel_name = 'concat_heads__memory_aug_recurrent_mem_tr__sliding_local_dilated__prompt'

def setup_inputs():

    _w = lambda a: (lambda t: t.to(torch.bfloat16) if t.is_floating_point() else t)(torch.as_tensor(a))

    def _A_setup():
        B, S, Dm = (1, 2048, 1024)
        H, Dh = (32, 128)
        M, seg = (8, 32)
        seg = min(seg, S)
        S = S // seg * seg
        return {'x': _w((lambda *s: torch.randn(*s, dtype=torch.bfloat16) * 0.05)(B, S, Dm)), 'mem0': _w((lambda *s: torch.randn(*s, dtype=torch.bfloat16) * 1.6)(B, M, Dm)), 'Wq': _w((lambda *s: torch.randn(*s, dtype=torch.bfloat16) * 0.8)(Dm, H, Dh) * Dm ** (-0.5)), 'Wk': _w((lambda *s: torch.randn(*s, dtype=torch.bfloat16) * 0.8)(Dm, H, Dh) * Dm ** (-0.5)), 'Wv': _w((lambda *s: torch.randn(*s, dtype=torch.bfloat16) * 1.6)(Dm, H, Dh) * Dm ** (-0.5)), 'Wo': _w((lambda *s: torch.randn(*s, dtype=torch.bfloat16) * 1.6)(H, Dh, Dm) * (H * Dh) ** (-0.5)), 'seg_len': seg}
    _A_in = _A_setup()

    def _B_setup():
        B, S, D = (1, 2048, 1024)
        return {'x': _w((lambda *s: torch.randn(*s, dtype=torch.bfloat16) * 0.2)(B, S, D)), 'wqkv': _w((lambda *s: torch.randn(*s, dtype=torch.bfloat16) * 0.2)(D, 3 * D)), 'wo': _w((lambda *s: torch.randn(*s, dtype=torch.bfloat16) * 0.05)(D, D))}
    _B_in = _B_setup()
    return {'A_x': _A_in['x'], 'A_mem0': _A_in['mem0'], 'A_Wq': _A_in['Wq'], 'A_Wk': _A_in['Wk'], 'A_Wv': _A_in['Wv'], 'A_Wo': _A_in['Wo'], 'A_seg_len': _A_in['seg_len'], 'B_x': _B_in['x'], 'B_wqkv': _B_in['wqkv'], 'B_wo': _B_in['wo']}

def reference(A_x, A_mem0, A_Wq, A_Wk, A_Wv, A_Wo, A_seg_len, B_x, B_wqkv, B_wo):

    def _A_ref(x, mem0, Wq, Wk, Wv, Wo, seg_len):
        B, S, Dm = x.shape
        H, Dh = (Wq.shape[1], Wq.shape[2])
        M = mem0.shape[1]
        scale = Dh ** (-0.5)
        n_seg = S // seg_len
        L = M + seg_len
        idx = torch.arange(L)
        mask = (idx[:, None] < M) | (idx[:, None] >= idx[None, :])
        mem = mem0
        outs = []
        for s in range(n_seg):
            xs = x[:, s * seg_len:(s + 1) * seg_len, :].clone()
            h = torch.concatenate([mem, xs], axis=1)
            q = torch.einsum('btd,dhe->bhte', h, Wq)
            k = torch.einsum('btd,dhe->bhte', h, Wk)
            v = torch.einsum('btd,dhe->bhte', h, Wv)
            scores = torch.einsum('bhqe,bhke->bhqk', q, k) * scale
            scores = torch.where(mask[None, None], scores, -1000000000.0)
            p = _softmax(scores, axis=-1)
            o = torch.einsum('bhqk,bhke->bhqe', p, v)
            o = torch.einsum('bhte,hed->btd', o, Wo)
            mem = o[:, :M, :].clone()
            outs.append(o[:, M:, :])
        return torch.concatenate(outs, axis=1)

    def _B_ref(x, wqkv, wo):
        B, S, D = x.shape
        H = 32
        Dh = D // H
        W, dil = (8, 2)
        qkv = (lambda x, *d: x.permute(*d))((x @ wqkv).reshape(B, S, 3, H, Dh), 2, 0, 3, 1, 4)
        q, k, v = (qkv[0], qkv[1], qkv[2])
        scale = Dh ** (-0.5)
        pos = torch.arange(S)
        off = torch.arange(W) * dil
        idx = pos[:, None] - off[None, :]
        mask = idx >= 0
        idx_c = torch.where(mask, idx, 0).reshape(-1)
        kg = k[:, :, idx_c, :].reshape(B, H, S, W, Dh)
        vg = v[:, :, idx_c, :].reshape(B, H, S, W, Dh)
        logits = torch.einsum('bhsd,bhswd->bhsw', q, kg) * scale
        logits = torch.where(mask[None, None, :, :], logits, -1000000000.0)
        attn = _softmax(logits, axis=-1)
        o = torch.einsum('bhsw,bhswd->bhsd', attn, vg)
        return (lambda x, *d: x.permute(*d))(o, 0, 2, 1, 3).reshape(B, S, D) @ wo
    a = _A_ref(A_x, A_mem0, A_Wq, A_Wk, A_Wv, A_Wo, A_seg_len)
    b = _B_ref(B_x, B_wqkv, B_wo)
    return torch.concatenate([a, b], axis=-1)
```

```python
import re

REG_RE = re.compile(r'^(-|\|)?(abs\()?([vas])(\d+|\[(\d+):(\d+)\])\)?\|?$')

def regs_of(tok):
    tok = tok.strip()
    if tok in ('vcc',): return {('s', 106), ('s', 107)}
    if tok == 'vcc_lo': return {('s', 106)}
    if tok == 'vcc_hi': return {('s', 107)}
    if tok == 'exec': return {('s', 126), ('s', 127)}
    if tok == 'exec_lo': return {('s', 126)}
    if tok == 'exec_hi': return {('s', 127)}
    if tok == 'm0': return {('s', 124)}
    m = REG_RE.match(tok)
    if not m: return set()
    c = m.group(3)
    if m.group(5) is not None:
        return {(c, i) for i in range(int(m.group(5)), int(m.group(6)) + 1)}
    return {(c, int(m.group(4)))}

TRANS = ('v_exp_f32', 'v_log_f32', 'v_rcp_f32', 'v_rsq_f32', 'v_sqrt_f32', 'v_sin_f32', 'v_cos_f32', 'v_rcp_iflag_f32')
VCC = {('s', 106), ('s', 107)}
EXEC = {('s', 126), ('s', 127)}
M0 = {('s', 124)}

def mfma_passes(op):
    if '32x32x16' in op or '32x32x8' in op or '32x32x32' in op: return 8
    if '16x16x32' in op or '16x16x16' in op or '16x16x64' in op: return 4
    raise ValueError('unknown mfma ' + op)

class Ins:
    __slots__ = ('text', 'op', 'kind', 'w', 'r', 'srcc', 'ab', 'passes', 'dpp', 'states', 'target', 'label', 'stdata', 'wide', 'lds', 'maskr')
    def __init__(self, text):
        self.text = text
        self.label = None
        self.target = None
        self.w = set(); self.r = set(); self.srcc = set(); self.ab = set(); self.stdata = set(); self.maskr = set()
        self.passes = 0; self.dpp = False; self.states = 1; self.wide = False; self.lds = False
        t = text.split(';')[0].strip()
        if t.endswith(':'):
            self.kind = 'label'; self.label = t[:-1]; self.op = ''; self.states = 0; return
        if t == '' or t.startswith('.'):
            self.kind = 'dir'; self.op = ''; self.states = 0; return
        parts = t.split(None, 1)
        op = parts[0]; self.op = op
        rest = parts[1] if len(parts) > 1 else ''
        brk = re.findall(r'\b[a-z_0-9]+:\[[^\]]*\]', rest)
        rest = re.sub(r'\b[a-z_0-9]+:\[[^\]]*\]', '', rest)
        rest = re.sub(r'hwreg\([^)]*\)', 'hwreg', rest)
        ops = [o.strip() for o in rest.split(',')] if rest else []
        mods = ''
        if ops:
            last = ops[-1].split(None, 1)
            if last:
                ops[-1] = last[0]
                mods = last[1] if len(last) > 1 else ''
        mods += ' ' + ' '.join(brk)
        R = [regs_of(o) for o in ops]
        def U(l):
            s = set()
            for x in l: s |= x
            return s
        if op.startswith('v_mfma') or op.startswith('v_smfmac'):
            self.kind = 'mfma'; self.passes = mfma_passes(op)
            self.w = R[0]
            if op.startswith('v_smfmac'):
                self.srcc = R[0]; self.ab = R[1] | R[2] | R[3]
            else:
                self.srcc = R[3]; self.ab = R[1] | R[2]
            self.r = self.srcc | self.ab
        elif op.startswith('v_'):
            self.kind = 'valu'
            self.dpp = ('_dpp' in op) or ('quad_perm' in mods) or ('row_' in mods) or ('wave_' in mods)
            base = op.replace('_e32', '').replace('_e64', '').replace('_dpp', '')
            if base.startswith('v_permlane') and 'swap' in base:
                self.w = R[0] | R[1]; self.r = R[0] | R[1]
            elif base.startswith('v_cmpx'):
                self.w = R[0] | EXEC; self.r = U(R[1:])
            elif base in ('v_add_co_u32', 'v_sub_co_u32', 'v_subrev_co_u32', 'v_addc_co_u32', 'v_subb_co_u32', 'v_mad_u64_u32', 'v_div_scale_f32'):
                self.w = R[0] | R[1]; self.r = U(R[2:])
            elif base == 'v_nop':
                pass
            else:
                self.w = R[0]; self.r = U(R[1:])
                if base.startswith('v_fmac') or base.startswith('v_pk_fmac') or base.startswith('v_dot2c') or base == 'v_writelane_b32' or self.dpp:
                    self.r |= R[0]
        elif op.startswith('buffer_') or op.startswith('global_') or op.startswith('flat_'):
            self.kind = 'vmem'
            allm = ' ' + mods + ' '
            if ' lds ' in allm or '_lds_' in op:
                self.lds = True; self.r = U(R) | M0
            elif '_load_' in op:
                self.w = R[0]; self.r = U(R[1:])
            elif '_atomic_' in op:
                if ' sc0 ' in allm:
                    self.w = R[0]; self.r = U(R) if op.startswith('buffer_') else U(R[1:])
                else:
                    self.r = U(R)
            elif '_store_' in op:
                self.r = U(R)
                self.stdata = R[0] if op.startswith('buffer_') else R[1]
                self.wide = ('x3' in op or 'x4' in op)
            else:
                self.r = U(R)
        elif op.startswith('ds_'):
            self.kind = 'ds'
            if op.startswith('ds_read') or 'permute' in op or 'swizzle' in op or '_rtn' in op:
                self.w = R[0]; self.r = U(R[1:])
            else:
                self.r = U(R)
        elif op.startswith('s_'):
            self.kind = 'salu'
            if op == 's_nop':
                self.states = int(ops[0], 0) + 1
            elif op.startswith('s_cbranch') or op == 's_branch':
                self.target = ops[0]
            elif op.startswith('s_cmp') or op in ('s_waitcnt', 's_barrier', 's_endpgm', 's_sleep', 's_setprio', 's_bitcmp0_b32', 's_bitcmp1_b32', 's_setreg_b32', 's_setreg_imm32_b32'):
                self.r = U(R)
            elif op.startswith('s_load') or op.startswith('s_buffer_load') or op in ('s_memtime', 's_memrealtime'):
                self.kind = 'smem'; self.w = R[0]; self.r = U(R[1:])
            elif op.startswith('s_atomic'):
                self.kind = 'smem'; self.w = R[0]; self.r = U(R)
            else:
                self.w = R[0] if R else set(); self.r = U(R[1:])
                if 'saveexec' in op: self.w |= EXEC; self.r |= EXEC
        else:
            raise ValueError('unknown instruction: ' + text)

def vg(s):
    return {x for x in s if x[0] != 's'}
def sg(s):
    return {x for x in s if x[0] == 's'}

XDL_VALU = {2: 5, 4: 8, 8: 12, 16: 20}
XDL_SRCC_OVL = {2: 4, 4: 6, 8: 10, 16: 18}
XDL_WAR = {2: 1, 4: 3, 8: 7, 16: 15}

def need(p, c):
    n = 0
    if p.kind == 'valu':
        pw_v = vg(p.w); pw_s = sg(p.w)
        if c.kind == 'mfma' and pw_v & c.r: n = max(n, 2)
        if c.kind == 'mfma' and (pw_s & EXEC): n = max(n, 4)
        if c.kind == 'valu':
            if c.dpp and pw_v & c.r: n = max(n, 2)
            if c.dpp and (pw_s & EXEC): n = max(n, 5)
            if c.op.startswith('v_permlane') and pw_v & c.r: n = max(n, 2)
            if c.op.startswith('v_permlane') and (pw_s & EXEC): n = max(n, 4)
            if (c.op.startswith('v_readlane') or c.op.startswith('v_readfirstlane')) and pw_v & c.r: n = max(n, 1)
            if (c.op.startswith('v_readlane') or c.op.startswith('v_writelane')) and pw_s & c.r: n = max(n, 4)
            if (c.op.startswith('v_readlane') or c.op.startswith('v_readfirstlane') or c.op.startswith('v_writelane')) and (pw_s & EXEC): n = max(n, 4)
            if pw_s & c.r: n = max(n, 2)
            if c.op.startswith('v_div_fmas') and pw_s & VCC: n = max(n, 4)
            pb = p.op.replace('_e32', '').replace('_e64', '')
            if pb in TRANS and pw_v & (c.r | c.w):
                cb = c.op.replace('_e32', '').replace('_e64', '')
                if cb not in TRANS: n = max(n, 1)
        if c.kind == 'vmem' and pw_s & c.r: n = max(n, 5)
        pb = p.op.replace('_e32', '').replace('_e64', '')
        if pb in TRANS and c.kind in ('vmem', 'ds') and pw_v & c.r: n = max(n, 1)
    elif p.kind == 'mfma':
        if c.kind == 'mfma':
            if p.w & c.ab: n = max(n, XDL_VALU[p.passes])
            if p.w & c.srcc:
                if p.w == c.srcc and p.passes == c.passes: n = max(n, 2 if p.passes == 2 else 0)
                else: n = max(n, XDL_SRCC_OVL[p.passes])
            elif p.w & c.w: n = max(n, XDL_SRCC_OVL[p.passes])
        elif c.kind == 'valu':
            if p.w & (c.r | c.w): n = max(n, XDL_VALU[p.passes])
            if p.srcc & c.w: n = max(n, XDL_WAR[p.passes])
        elif c.kind in ('vmem', 'ds'):
            if p.w & (c.r | c.w): n = max(n, XDL_VALU[p.passes])
            if p.srcc & c.w: n = max(n, XDL_WAR[p.passes])
    elif p.kind == 'vmem':
        if p.wide and p.stdata & c.w:
            n = max(n, 2 if c.kind in ('valu', 'mfma') else 1)
    elif p.kind == 'salu':
        if (p.w & M0) and c.kind == 'vmem' and c.lds: n = max(n, 1)
        if (p.w & M0) and c.kind == 'ds' and 'addtid' in c.op: n = max(n, 1)
    return n

MAXD = 20

class Asm:
    def __init__(self):
        self.ins = []
        self.uid = 0
    def __call__(self, text):
        for l in text.split('\n'):
            l = l.strip()
            if l: self.ins.append(Ins(l))
    def label(self, name):
        self.ins.append(Ins(name + ':'))
    def newlabel(self, base='L'):
        self.uid += 1
        return f'{base}_{self.uid}'
    def comment(self, t):
        self.ins.append(Ins('; ' + t))
    def nop(self, states):
        while states > 0:
            k = min(states, 16)
            self(f's_nop {k-1}'); states -= k
    def fix_hazards(self, verbose=False):
        total = 0
        for it in range(10):
            ins = self.ins
            out_extra = {}
            labpos = {x.label: i for i, x in enumerate(ins) if x.kind == 'label'}
            jumps = {}
            for i, x in enumerate(ins):
                if x.target is not None:
                    if x.target not in labpos: raise ValueError('undefined label ' + x.target)
                    jumps.setdefault(labpos[x.target], []).append(i)
            for i, c in enumerate(ins):
                if c.kind in ('label', 'dir', 'salu', 'smem'): continue
                worst = 0; why = None
                stack = [(i, 0)]; seen = {}
                while stack:
                    j, d = stack.pop()
                    preds = []
                    if j > 0 and ins[j-1].op not in ('s_branch', 's_endpgm', 's_setpc_b64'): preds.append(j-1)
                    if ins[j].kind == 'label': preds += jumps.get(j, [])
                    for p in preds:
                        if seen.get(p, 99) <= d: continue
                        seen[p] = d
                        P = ins[p]
                        if P.kind in ('valu', 'mfma', 'vmem', 'salu'):
                            n = need(P, c)
                            if n - d > worst: worst = n - d; why = P
                        nd = d + P.states + out_extra.get(p, 0)
                        if nd < MAXD: stack.append((p, nd))
                if worst > 0:
                    out_extra[i] = worst
                    if verbose: print(f'hazard: +{worst} before "{c.text}" due to "{why.text}"')
            if not out_extra: break
            new = []
            for i, x in enumerate(ins):
                w = out_extra.get(i, 0)
                while w > 0:
                    k = min(w, 16); new.append(Ins(f's_nop {k-1}')); w -= k
                new.append(x)
            total += len(out_extra)
            self.ins = new
        return total
    def text(self):
        out = []
        for x in self.ins:
            out.append(x.text if x.kind in ('label',) else '  ' + x.text)
        return '\n'.join(out) + '\n'

def vr(b, n=1, c='v'):
    return f'{c}{b}' if n == 1 else f'{c}[{b}:{b+n-1}]'
def ar(b, n=1): return vr(b, n, 'a')
def sr(b, n=1): return vr(b, n, 's')
```

```python
import math
from asmgen import *
from layout import *
from rec import lane_expr, f32bits
SW = 's[4:7]'
BQ, BK, BV = BQKV, BQKV + 4 * MB, BQKV + 8 * MB

def lane_masks(a, sbase, fn, nmask):
    for k in range(nmask):
        m = 0
        for l in range(64):
            if fn(k, l >> 4, l & 15): m |= 1 << l
        a(f's_mov_b32 s{sbase+2*k}, {m & 0xffffffff:#x}'); a(f's_mov_b32 s{sbase+2*k+1}, {m >> 32:#x}')

def xreduce(a, op, m, t):
    for sw in ('v_permlane32_swap_b32', 'v_permlane16_swap_b32'):
        a(f'v_mov_b32 {t}, {m}'); a(f'{sw} {m}, {t}'); a(f'{op} {m}, {m}, {t}')

def softmax(a, s, m, t, sC):
    rest = [f'v{x}' for x in s]
    a(f'v_max3_f32 {m}, {rest[0]}, {rest[1]}, {rest[2]}'); rest = rest[3:]
    while len(rest) >= 2:
        a(f'v_max3_f32 {m}, {m}, {rest[0]}, {rest[1]}'); rest = rest[2:]
    if rest: a(f'v_max_f32 {m}, {m}, {rest[0]}')
    xreduce(a, 'v_max_f32', m, t)
    a(f'v_mul_f32 {m}, {sC}, {m}')
    for x in s: a(f'v_fma_f32 v{x}, v{x}, {sC}, -{m}')
    for x in s: a(f'v_exp_f32 v{x}, v{x}')
    a(f'v_add_f32 {m}, v{s[0]}, v{s[1]}')
    for x in s[2:]: a(f'v_add_f32 {m}, {m}, v{x}')
    xreduce(a, 'v_add_f32', m, t)
    a(f'v_rcp_f32 {m}, {m}')
    for x in s: a(f'v_mul_f32 v{x}, v{x}, {m}')

def gen_attnA(a, sItem, ld_flags='', st_flags=''):
    scale = 128 ** -0.5
    kw = dict(lane='v1', tmp='v7')
    Q, K, V, KMr, VMr, S, O, P = 8, 40, 72, 104, 120, 136, 8, 148
    a(f's_lshl_b32 s90, {sItem}, 13'); a(f's_lshl_b32 s91, {sItem}, 11')
    lane_expr(a, 'v2', [(0, 6, 16)], **kw); a('v_add_u32 v3, 4096, v2')
    lane_expr(a, 'v4', [(0, 3, 16), (4, 2, 128)], const=KM, **kw)
    lane_expr(a, 'v5', [(0, 4, 16), (4, 1, 8)], const=VM, **kw)
    a(f's_add_u32 s92, s90, {KX}'); a(f's_add_u32 s93, s90, {VX}'); a(f's_add_u32 s94, s90, {QX}'); a(f's_add_u32 s95, s90, {OA}')
    for i in range(8): a(f'buffer_load_dwordx4 {vr(Q+4*i,4)}, v{2+(i>>2)}, {SW}, s94 offen offset:{(i&3)*1024} {ld_flags}')
    for i in range(4): a(f'buffer_load_dwordx4 {vr(KMr+4*i,4)}, v4, {SW}, s91 offen offset:{i*512} {ld_flags}')
    for i in range(8): a(f'buffer_load_dwordx4 {vr(K+4*i,4)}, v{2+(i>>2)}, {SW}, s92 offen offset:{(i&3)*1024} {ld_flags}')
    for i in range(8): a(f'buffer_load_dwordx4 {vr(V+4*i,4)}, v{2+(i>>2)}, {SW}, s93 offen offset:{(i&3)*1024} {ld_flags}')
    for i in range(8): a(f'buffer_load_dwordx2 {vr(VMr+2*i,2)}, v5, {SW}, s91 offen offset:{i*256} {ld_flags}')
    lane_masks(a, 40, lambda k, g, c: (4*g + k <= c) if k < 4 else g < 2, 5)
    a(f's_mov_b32 s50, {f32bits(scale * math.log2(math.e)):#x}')
    a(f'v_mov_b32 v6, {f32bits(-1e9 / scale):#x}')
    a('s_waitcnt vmcnt(16)')
    SS = {(0, 'm'): 136, (0, 0): 140, (1, 'm'): 144, (1, 0): 148, (1, 1): 152}
    for ks in range(4):
        for (qt, kt), d in SS.items():
            A = vr(KMr + 4*ks, 4) if kt == 'm' else vr(K + 16*kt + 4*ks, 4)
            a(f'v_mfma_f32_16x16x32_bf16 {vr(d,4)}, {A}, {vr(Q + 16*qt + 4*ks, 4)}, {vr(d,4) if ks else 0}')
    PP = 156
    for qt in range(2):
        for r in range(4):
            d = SS[(qt, 'm')] + r; a(f'v_cndmask_b32 v{d}, v6, v{d}, s[48:49]')
            d = SS[(qt, qt)] + r; a(f'v_cndmask_b32 v{d}, v6, v{d}, s[{40+2*r}:{41+2*r}]')
        regs = [SS[(qt, 'm')] + r for r in range(4)] + [SS[(qt, kt)] + r for kt in range(qt + 1) for r in range(4)]
        softmax(a, regs, 'v168', 'v169', 's50')
        p = PP + 6 * qt
        for q in range(2): a(f'v_cvt_pk_bf16_f32 v{p+4+q}, v{regs[2*q]}, v{regs[2*q+1]}')
        for q in range(4):
            if 4 + 2*q < len(regs): a(f'v_cvt_pk_bf16_f32 v{p+q}, v{regs[4+2*q]}, v{regs[5+2*q]}')
            else: a(f'v_mov_b32 v{p+q}, 0')
    a('s_waitcnt vmcnt(0)')
    for qt in range(2):
        p = PP + 6 * qt; o = 8 + 32 * qt
        for td in range(8): a(f'v_mfma_f32_16x16x32_bf16 {vr(o+4*td,4)}, {vr(V+4*td,4)}, {vr(p,4)}, 0')
        for td in range(8): a(f'v_mfma_f32_16x16x16_bf16 {vr(o+4*td,4)}, {vr(VMr+2*td,2)}, {vr(p+4,2)}, {vr(o+4*td,4)}')
    for qt in range(2):
        o = 8 + 32 * qt
        for j in range(4):
            e = 136 + 4 * ((4*qt + j) % 4)
            for q in range(4): a(f'v_cvt_pk_bf16_f32 v{e+q}, v{o+8*j+2*q}, v{o+8*j+2*q+1}')
            a(f'buffer_store_dwordx4 {vr(e,4)}, v{2+qt}, {SW}, s95 offen offset:{j*1024} {st_flags}')

def gen_attnB(a, sItem, ld_flags='', st_flags=''):
    scale = 32 ** -0.5
    kw = dict(lane='v1', tmp='v7')
    Q, K, V = 8, 40, 88
    a(f's_lshl_b32 s90, {sItem}, 13')
    a(f's_sub_u32 s91, s90, {64*KB}'); a(f's_cmp_lt_u32 {sItem}, 8'); a('s_cselect_b32 s91, s90, s91')
    lane_expr(a, 'v2', [(0, 6, 16)], **kw); a('v_add_u32 v3, 4096, v2')
    a(f's_add_u32 s92, s90, {BQ}'); a(f's_add_u32 s93, s90, {BK}'); a(f's_add_u32 s94, s91, {BK}')
    a(f's_add_u32 s95, s90, {BV}'); a(f's_add_u32 s96, s91, {BV}'); a(f's_add_u32 s97, s90, {OB}')
    for i in range(8): a(f'buffer_load_dwordx4 {vr(Q+4*i,4)}, v{2+(i>>2)}, {SW}, s92 offen offset:{(i&3)*1024} {ld_flags}')
    for i in range(4): a(f'buffer_load_dwordx4 {vr(K+4*i,4)}, v3, {SW}, s94 offen offset:{i*1024} {ld_flags}')
    for i in range(8): a(f'buffer_load_dwordx4 {vr(K+16+4*i,4)}, v{2+(i>>2)}, {SW}, s93 offen offset:{(i&3)*1024} {ld_flags}')
    for i in range(8): a(f'buffer_load_dwordx2 {vr(V+6*i,2)}, v{2+(i>>2)}, {SW}, s96 offen offset:{(i&3)*1024+8} {ld_flags}')
    for i in range(8): a(f'buffer_load_dwordx4 {vr(V+6*i+2,4)}, v{2+(i>>2)}, {SW}, s95 offen offset:{(i&3)*1024} {ld_flags}')
    lane_masks(a, 40, lambda k, g, c: ((4*g + k >= c + 2) and (4*g + k - c) % 2 == 0) if k < 4 else ((4*g + k - 4 <= c) and (c - 4*g - k) % 2 == 0), 8)
    a(f's_cmp_lt_u32 {sItem}, 8')
    for k in range(4): a(f's_cselect_b64 s[{56+2*k}:{57+2*k}], 0, s[{40+2*k}:{41+2*k}]')
    a(f's_mov_b32 s64, {f32bits(scale * math.log2(math.e)):#x}')
    a(f'v_mov_b32 v6, {f32bits(-1e9 / scale):#x}')
    a('s_waitcnt vmcnt(16)')
    S = 136
    for qt in range(2):
        for j in range(4):
            d = S + 8 * (4*qt + j)
            for e in range(2):
                a(f'v_mfma_f32_16x16x32_bf16 {vr(d+4*e,4)}, {vr(K + 16*(qt+e) + 4*j, 4)}, {vr(Q + 16*qt + 4*j, 4)}, 0')
    for u in range(8):
        qt = u >> 2; d = S + 8 * u
        for r in range(8):
            mb = (56 + 2*r) if (qt == 0 and r < 4) else (40 + 2*r)
            a(f'v_cndmask_b32 v{d+r}, v6, v{d+r}, s[{mb}:{mb+1}]')
        softmax(a, [d + r for r in range(8)], 'v4', 'v5', 's64')
        for q in range(4): a(f'v_cvt_pk_bf16_f32 v{Q+4*u+q}, v{d+2*q}, v{d+2*q+1}')
    a('s_waitcnt vmcnt(0)')
    for u in range(8):
        qt, j = u >> 2, u & 3; d = S + 8 * u
        for t1 in range(2):
            a(f'v_mfma_f32_16x16x32_bf16 {vr(d+4*t1,4)}, {vr(V + 6*(2*j+t1) + 2*qt, 4)}, {vr(Q+4*u,4)}, 0')
    for u in range(8):
        qt, j = u >> 2, u & 3; d = S + 8 * u; e = K + 4 * u
        for q in range(4): a(f'v_cvt_pk_bf16_f32 v{e+q}, v{d+2*q}, v{d+2*q+1}')
        a(f'buffer_store_dwordx4 {vr(e,4)}, v{2+qt}, {SW}, s97 offen offset:{j*1024} {st_flags}')
```

```python
from asmgen import *
from layout import *
from rec import lane_expr, srd

sXo, sWo, sOo, sLdx, sLdw, sNk, sSeg, sWv, sWstep, sM0x, sM0w = [f's{i}' for i in range(20, 31)]
SX, SWt, SO = 's[8:11]', 's[12:15]', 's[16:19]'

def gen_gemm(a, tag, BM, BN, xmode, orient, epi, st_flags=''):
    TM, TN = BM // 64, BN // 64
    XB, WB = BM * 128, BN * 128
    BUF = XB + WB
    NX, NW = XB // 4096, WB // 4096
    RB = BN * 2
    RPI = 1024 // RB
    lane = 'v1'
    p = 2
    XA = p; p += NX
    WA = p; p += NW
    XR = p; p += 8
    WR = p; p += 2 * TN
    TMP = p; p += 4
    p = (p + 3) // 4 * 4
    FX = [p, p + 4 * TM]; p += 8 * TM
    FW = [p, p + 4 * TN]; p += 8 * TN
    EP = p
    t0, t1 = f'v{TMP}', f'v{TMP+1}'
    def acc(i, j): return ar(16 * (i * TN + j), 16)
    L = lambda s: f'L_{tag}_{s}'
    a(f'v_and_b32 {lane}, 63, v0')
    a(f'v_lshrrev_b32 {t0}, 6, v0'); a('s_nop 0'); a(f'v_readfirstlane_b32 {sWv}, {t0}')
    kw = dict(lane=lane, tmp=t1)
    if xmode == 'row':
        a(f's_mul_i32 s90, {sWv}, {8*NX}')
        a(f'v_lshrrev_b32 {t0}, 3, {lane}'); a(f'v_add_u32 {t0}, s90, {t0}')
        a(f'v_mul_lo_u32 {t0}, {t0}, {sLdx}')
        a(f'v_lshrrev_b32 {t1}, 4, {lane}'); a(f'v_xor_b32 {t1}, {t1}, {lane}'); a(f'v_and_b32 {t1}, 7, {t1}')
        a(f'v_lshl_add_u32 v{XA}, {t1}, 4, {t0}')
        a(f's_lshl_b32 s91, {sLdx}, 3')
        for j in range(1, NX):
            a(f'v_add_u32 v{XA+j}, s91, v{XA+j-1}'); a(f'v_xor_b32 v{XA+j}, 64, v{XA+j}')
    else:
        a(f's_mul_i32 s90, {sWv}, {NX//4}'); a(f's_mul_i32 s90, s90, {sLdx}')
        for j in range(NX):
            if j % 4 == 0 and j: a(f's_add_u32 s90, s90, {sLdx}')
            lane_expr(a, f'v{XA+j}', [(0, 6, 16)], const=((j >> 1) & 1) * 4096 + (j & 1) * 1024, sadd=['s90'], **kw)
    LPR = RB // 16; sh = LPR.bit_length() - 1
    a(f's_mul_i32 s90, {sWv}, {NW*RPI}')
    for j in range(NW):
        a(f'v_lshrrev_b32 {t0}, {sh}, {lane}'); a(f'v_add_u32 {t0}, {RPI*j}, {t0}')
        a(f'v_and_b32 {t1}, 3, {t0}'); a(f'v_lshlrev_b32 {t1}, 2, {t1}'); a(f'v_xor_b32 {t1}, {t1}, {lane}'); a(f'v_and_b32 {t1}, {LPR-1}, {t1}')
        a(f'v_add_u32 {t0}, s90, {t0}'); a(f'v_mul_lo_u32 {t0}, {t0}, {sLdw}')
        a(f'v_lshl_add_u32 v{WA+j}, {t1}, 4, {t0}')
    a(f's_lshl_b32 {sWstep}, {sLdw}, 6')
    a(f's_mul_i32 {sM0x}, {sWv}, {NX*1024}'); a(f's_mul_i32 {sM0w}, {sWv}, {NW*1024}'); a(f's_add_u32 {sM0w}, {sM0w}, {XB}')
    def dma(b):
        out = []
        for j in range(NX):
            out.append([f's_add_u32 m0, {sM0x}, {b*BUF + j*1024}', f'buffer_load_dwordx4 v{XA+j}, {SX}, {sXo} offen lds'])
        for j in range(NW):
            out.append([f's_add_u32 m0, {sM0w}, {b*BUF + j*1024}', f'buffer_load_dwordx4 v{WA+j}, {SWt}, {sWo} offen lds'])
        return out
    def adv(b):
        if xmode == 'row': x = 128
        else: x = 2048 if b == 0 else 6144
        return [f's_add_u32 {sXo}, {sXo}, {x}', f's_add_u32 {sWo}, {sWo}, {sWstep}']
    for b in range(2):
        for g in dma(b):
            for x in g: a(x)
        for x in adv(b): a(x)
    a(f's_lshr_b32 s90, {sWv}, 1'); a(f's_and_b32 s91, {sWv}, 1')
    a(f's_mul_i32 s92, s90, {XB//2}')
    if xmode == 'row':
        lane_expr(a, t0, [(0, 5, 128)], sadd=['s92'], **kw)
        a(f'v_lshrrev_b32 {t1}, 1, {lane}'); a(f'v_and_b32 {t1}, 7, {t1}')
        a(f'v_lshrrev_b32 v{TMP+2}, 5, {lane}'); a(f'v_xor_b32 {t1}, {t1}, v{TMP+2}')
        a(f'v_lshl_add_u32 v{XR}, {t1}, 4, {t0}')
        for kk in range(1, 4): a(f'v_xor_b32 v{XR+kk}, {32*kk}, v{XR}')
        for kk in range(4): a(f'v_add_u32 v{XR+4+kk}, {BUF}, v{XR+kk}')
    else:
        lane_expr(a, f'v{XR}', [(0, 4, 16), (4, 1, 2048), (5, 1, 256)], sadd=['s92'], **kw)
        a(f'v_add_u32 v{XR+4}, {BUF}, v{XR}')
    hirow = 8 if xmode == 'row' else 4
    colterms = [(4, 1, 32), (0, 2, 8)] if epi != 'out' else [(0, 1, 32), (4, 1, 16), (1, 1, 8)]
    lane_expr(a, t0, [(2, 2, RB), (5, 1, hirow * RB)] + colterms, const=XB, **kw)
    a(f's_mul_i32 s92, s91, {TN}')
    for jn in range(TN):
        a(f's_add_u32 s93, s92, {jn}')
        a(f'v_bfe_u32 {t1}, {lane}, 2, 2'); a(f'v_xor_b32 {t1}, s93, {t1}')
        a(f'v_lshl_add_u32 v{WR+jn}, {t1}, 6, {t0}')
        a(f'v_add_u32 v{WR+TN+jn}, {BUF}, v{WR+jn}')
    for r in range(16 * TM * TN): a(f'v_accvgpr_write_b32 a{r}, 0')
    def frags(b, kk, f):
        out = []
        for i in range(TM):
            if xmode == 'row': out.append(f'ds_read_b128 {vr(FX[f] + 4*i, 4)}, v{XR + 4*b + kk} offset:{4096*i}')
            else: out.append(f'ds_read_b128 {vr(FX[f] + 4*i, 4)}, v{XR + 4*b} offset:{4096*i + 512*kk}')
        wl = []
        for jn in range(TN):
            for h in range(2):
                row = 16 * kk + 4 * h if xmode == 'row' else 32 * (kk >> 1) + 8 * (kk & 1) + 16 * h
                wl.append(f'ds_read_b64_tr_b16 {vr(FW[f] + 4*jn + 2*h, 2)}, v{WR + TN*b + jn} offset:{row*RB}')
        res = []
        while out or wl:
            if out: res.append(out.pop(0))
            res += wl[:2]; wl = wl[2:]
        return res
    def mfmas(f):
        out = []
        for i in range(TM):
            for j in range(TN):
                X, W = vr(FX[f] + 4*i, 4), vr(FW[f] + 4*j, 4)
                A, B = (W, X) if orient == 'T' else (X, W)
                out.append(f'v_mfma_f32_32x32x16_bf16 {acc(i,j)}, {A}, {B}, {acc(i,j)}')
        return out
    ND = NX + NW
    a(f's_waitcnt vmcnt({ND})'); a('s_barrier')
    for x in frags(0, 0, 0): a(x)
    def kstep(b, pend, do_dma, last):
        for kk in range(4):
            ms = mfmas(kk & 1)
            n = len(ms)
            fill = [[] for _ in range(n)]
            a('s_waitcnt lgkmcnt(0)')
            start = 0
            if kk == 3:
                if last:
                    for m in ms: a(m)
                    return []
                assert not pend
                a(ms[0]); start = 1
                a('s_waitcnt vmcnt(0)'); a('s_barrier')
                rd = frags(b ^ 1, 0, 0)
                if do_dma: pend = dma(b) + [adv(b)]
            else:
                rd = frags(b, kk + 1, (kk + 1) & 1)
            slots = n - start
            per = -(-len(rd) // max(1, slots - 2 if slots > 4 else slots))
            ndma = {3: -(-ND // 3) + 1, 0: -(-ND // 3) + 1, 1: 99, 2: 99}[kk]
            for q in range(start, n):
                a(ms[q])
                for x in rd[:per]: a(x)
                rd = rd[per:]
                k = -(-min(ndma, len(pend)) // (n - q))
                for _ in range(k):
                    if pend and ndma > 0:
                        for x in pend.pop(0): a(x)
                        ndma -= 1
            assert not rd
        return pend
    a(f's_sub_u32 {sNk}, {sNk}, 1')
    pend = kstep(0, [], True, False)
    a.label(L('loop'))
    p1 = kstep(1, list(pend), True, False)
    a(f's_sub_u32 {sNk}, {sNk}, 1'); a(f's_cmp_eq_u32 {sNk}, 0'); a(f's_cbranch_scc1 {L("fin")}')
    p0 = kstep(0, list(p1), True, False)
    assert p0 == pend
    a(f's_branch {L("loop")}')
    a.label(L('fin'))
    kstep(0, list(p1), False, False)
    kstep(1, [], False, True)
    a(f's_lshr_b32 s90, {sWv}, 1'); a(f's_and_b32 s91, {sWv}, 1')
    ad = f'v{TMP+2}'
    def rdacc(dst, i, j, regs):
        for q, r in enumerate(regs): a(f'v_accvgpr_read_b32 v{dst+q}, a{16*(i*TN+j)+r}')
    if epi in ('qk', 'v'):
        hs, ks = (4096, 1024) if epi == 'qk' else (1024, 2048)
        lane_expr(a, ad, [(0, 4, 16), (4, 1, hs), (5, 1, 256)], **kw)
        a(f's_mul_i32 s92, s90, {TM}'); a(f's_mul_i32 s92, s92, {sSeg}'); a(f's_add_u32 s92, s92, {sOo}')
        a(f's_mul_i32 s93, s91, {8192 if TN == 4 else TN*ks}'); a('s_add_u32 s92, s92, s93')
        cnt = 0
        for i in range(TM):
            for j in range(TN):
                a(f's_add_u32 s93, s92, {j*ks}')
                for ap in range(2):
                    e = EP + 12 * (cnt % 4); cnt += 1
                    rdacc(e + 4, i, j, [4*ap + q for q in range(4)] + [4*ap + 8 + q for q in range(4)])
                    for q in range(4): a(f'v_cvt_pk_bf16_f32 v{e+q}, v{e+4+2*q}, v{e+5+2*q}')
                    a(f'buffer_store_dwordx4 {vr(e,4)}, {ad}, {SO}, s93 offen offset:{512*ap} {st_flags}')
            a(f's_add_u32 s92, s92, {sSeg}')
    else:
        a(f'v_and_b32 {t0}, 31, {lane}'); a(f'v_mul_lo_u32 {t0}, {t0}, {sSeg}')
        a(f'v_lshrrev_b32 {t1}, 5, {lane}'); a(f'v_lshl_add_u32 {ad}, {t1}, 5, {t0}')
        a(f's_mul_i32 s92, s90, {TM*32}'); a(f's_mul_i32 s92, s92, {sSeg}'); a(f's_add_u32 s92, s92, {sOo}')
        a(f's_mul_i32 s93, s91, {TN*64}'); a('s_add_u32 s92, s92, s93')
        a(f's_lshl_b32 s94, {sSeg}, 5')
        cnt = 0
        for i in range(TM):
            for j in range(TN):
                for ap in range(2):
                    e = EP + 12 * (cnt % 4); cnt += 1
                    rdacc(e + 4, i, j, [8*ap + q for q in range(8)])
                    for q in range(4): a(f'v_cvt_pk_bf16_f32 v{e+q}, v{e+4+2*q}, v{e+5+2*q}')
                    a(f'buffer_store_dwordx4 {vr(e,4)}, {ad}, {SO}, s92 offen offset:{64*j + 16*ap} {st_flags}')
            a('s_add_u32 s92, s92, s94')
    return 2 * BUF
```

```python
MB = 1 << 20
KB = 1 << 10
WS_BYTES = 256 * MB
QX = 0 * MB
KX = 16 * MB
VX = 32 * MB
KM = 48 * MB
VM = 52 * MB
RING = 56 * MB
RING2 = 58 * MB
SLOT = 512 * KB
MEM_OFF = RING2 - RING
QKVR_OFF = RING2 - RING + 64 * KB
STAMP = 60 * MB
BQKV = 64 * MB
OA = 80 * MB
OB = 96 * MB
OOB = 0x80000000
KA = dict(x=0, mem0=8, Wq=16, Wk=24, Wv=32, Wo=40, seg=48, bx=56, bwqkv=64, bwo=72, out=80, dbg=88, ws=96)
D_TICK, D_POL, D_INIT, D_PROG, D_FIN, D_QUEUE, D_KV, D_Q, D_BQ, D_AB, D_AA = 0, 32, 36, 40, 44, 48, 64, 96, 128, 160, 192
```

```python
import math
from asmgen import *
from layout import *

SC = (128 ** -0.5) * math.log2(math.e)
import struct
def f32bits(x): return struct.unpack('<I', struct.pack('<f', x))[0]

def lane_expr(a, dst, terms, const=0, sadd=(), lane='v0', tmp='v31', stmp='s99'):
    a(f'v_mov_b32 {dst}, {const:#x}')
    for (lo, w, mult) in terms:
        a(f'v_bfe_u32 {tmp}, {lane}, {lo}, {w}')
        if mult & (mult - 1) == 0:
            a(f'v_lshl_add_u32 {dst}, {tmp}, {mult.bit_length()-1}, {dst}')
        else:
            a(f's_mov_b32 {stmp}, {mult}')
            a(f'v_mad_u32_u24 {dst}, {tmp}, {stmp}, {dst}')
    for s in sadd:
        a(f'v_add_u32 {dst}, {s}, {dst}')

def srd(a, d, base, size):
    a(f's_mov_b32 s{d}, s{base}')
    a(f's_and_b32 s{d+1}, s{base+1}, 0xffff')
    a(f's_mov_b32 s{d+2}, {size:#x}')
    a(f's_mov_b32 s{d+3}, 0x20000')

SW = 's[4:7]'
(aPartLd, aMemSt, aMemLd, aRedW, aRedWv, aRedR, aQ0, aQ1, aQkLd, aVLd, aKx, aVx0, aVx1, aOW0, aOW1, aOR, aPartSt, aE0, aE1) = [f'v{i}' for i in range(1, 20)]
vIdx = 'v20'
NEG = 22
WACC = 24
T = 28
GL = 32
MA = 40
QA = 56
RD = 80
LR = 92
PUB = 108
VMR = 110
KXR = 120
VB = 152
VXL = 216
ONES = 248
SA = 56
PA = 68
ET = 72
def OT(td): return 80 + 4 * td if td < 7 else 32
OSUM = 36
WA = 40
sW, sX, sI, sG, sU, sHQ, sJ = 's32', 's33', 's34', 's35', 's36', 's37', 's38'
sStep, sSlot, sPrev, sRst, sKV, sExp, sSpin, sC = 's40', 's41', 's42', 's43', 's44', 's45', 's46', 's47'
sHalf0, sOdd, sEven = 's[48:49]', 's[50:51]', 's[52:53]'
sGuard = 's54'
LDS_RED = 0
LDS_O = 12288
SPIN_MAX = 1 << 20

class Stamps:
    def __init__(self, a, on): self.a = a; self.on = on; self.n = 0; self.names = []
    def init(self):
        if not self.on: return
        for k in range(16): self.a(f's_mov_b32 s{64+k}, 0')
        self.calib(76)
        self.a('s_memtime s[60:61]'); self.a('s_waitcnt lgkmcnt(0)')
    def calib(self, d):
        if self.on != 2: return
        a = self.a; l = a.newlabel('L_cal')
        a('s_memrealtime s[60:61]'); a('s_waitcnt lgkmcnt(0)')
        a.label(l)
        a('s_memrealtime s[62:63]'); a('s_memtime s[56:57]'); a('s_waitcnt lgkmcnt(0)')
        a('s_cmp_eq_u32 s60, s62'); a(f's_cbranch_scc1 {l}')
        a(f's_mov_b32 s{d}, s62'); a(f's_mov_b32 s{d+1}, s56')
    def __call__(self, name):
        if not self.on: return
        if name not in self.names: self.names.append(name)
        k = self.names.index(name)
        a = self.a
        if self.on == 2:
            a('s_memtime s[62:63]'); a('s_waitcnt lgkmcnt(0)')
            a(f's_cmp_eq_u32 {sStep}, 40'); a(f's_cselect_b32 s{64+k}, s62, s{64+k}')
            return
        a('s_memtime s[62:63]'); a('s_waitcnt lgkmcnt(0)')
        a('s_sub_u32 s61, s62, s60'); a(f's_add_u32 s{64+k}, s{64+k}, s61'); a('s_mov_b32 s60, s62')

def check(a, base, n, bad):
    t = f'v{T+3}'
    regs = [f'v{base+i}' for i in range(n)]
    a(f'v_max3_u32 {t}, {regs[0]}, {regs[1]}, {regs[2]}')
    regs = regs[3:]
    while len(regs) >= 2:
        a(f'v_max3_u32 {t}, {t}, {regs[0]}, {regs[1]}'); regs = regs[2:]
    if regs: a(f'v_max_u32 {t}, {t}, {regs[0]}')
    a(f'v_cmp_eq_u32 vcc, -1, {t}')
    a(f's_cbranch_vccnz {bad}')

def gen_rec(a, nsteps=64, stamps=False, local_st='', exp_st='', exit_label='L_rec_exit', no_pf=False, no_exp=False, bigring=False, pol=0, dg=0, d1=0, d2=0):
    st = Stamps(a, stamps)
    RING = 100 * MB if bigring else globals()['RING']
    MEM_OFF = 32 * MB if bigring else globals()['MEM_OFF']
    QKVR_OFF = 32 * MB + 64 * KB if bigring else globals()['QKVR_OFF']
    cold = []
    a('s_load_dwordx4 s[80:83], s[0:1], 8')
    a('s_load_dwordx4 s[84:87], s[0:1], 24')
    a('s_load_dwordx2 s[88:89], s[0:1], 40')
    a('v_lshrrev_b32 v31, 6, v0')
    a('s_nop 0')
    a(f'v_readfirstlane_b32 {sW}, v31')
    a('v_and_b32 v0, 63, v0')
    a(f's_lshr_b32 {sG}, {sI}, 4'); a(f's_lshl_b32 s90, {sX}, 1'); a(f's_add_u32 {sG}, {sG}, s90')
    a(f's_and_b32 {sU}, {sI}, 15')
    a(f's_lshr_b32 {sHQ}, {sU}, 2'); a(f's_lshl_b32 s90, {sG}, 2'); a(f's_add_u32 {sHQ}, {sHQ}, s90')
    a(f's_and_b32 {sJ}, {sU}, 3')
    a('s_waitcnt lgkmcnt(0)')
    srd(a, 24, 80, 8 * 1024 * 2)
    srd(a, 8, 82, 8 << 20); srd(a, 12, 84, 8 << 20); srd(a, 16, 86, 8 << 20); srd(a, 20, 88, 8 << 20)
    a(f's_lshl_b32 s90, {sW}, 21'); a(f's_lshl_b32 s91, {sHQ}, 8'); a(f's_add_u32 s90, s90, s91')
    a(f's_lshl_b32 s91, {sJ}, 6'); a(f's_add_u32 s90, s90, s91')
    lane_expr(a, 'v1', [(5, 1, 16 * 8192), (4, 1, 4 * 8192), (0, 4, 4)], sadd=['s90'])
    a('v_add_u32 v2, 0x2000, v1')
    lane_expr(a, 'v3', [(5, 1, 16 * 8192), (4, 1, 4 * 8192), (1, 3, 4)], sadd=['s90'])
    a('v_add_u32 v4, 0x2000, v3')
    a(f's_lshl_b32 s90, {sG}, 20'); a(f's_lshl_b32 s91, {sU}, 7'); a(f's_add_u32 s90, s90, s91')
    a(f's_lshl_b32 s91, {sW}, 5'); a(f's_add_u32 s90, s90, s91')
    lane_expr(a, 'v5', [(4, 1, 64 * 2048), (5, 1, 2 * 2048), (1, 3, 4)], sadd=['s90'])
    a('v_add_u32 v6, 0x8000, v5')
    a('v_mov_b32 v7, 0x05040100'); a('v_mov_b32 v8, 0x07060302')
    a('v_and_b32 v31, 1, v0'); a('v_cmp_eq_u32 vcc, 1, v31'); a('v_cndmask_b32 v9, v7, v8, vcc')
    groups = []
    for ks in range(4):
        for r in range(8):
            row = 64 * ks + 32 * (r >> 2) + 8 * (r & 1) + 2 * ((r >> 1) & 1)
            for m in range(2):
                groups.append(('qk', 8 + 4 * m, row * 8192, 0, ks * 48 + (2 * m) * 8 + r))
            for t1 in range(2):
                groups.append(('v', 16, row * 8192, t1 * 32, ks * 48 + (4 + t1) * 8 + r))
    for kk in range(8):
        for r in range(8):
            row = (kk >> 1) * 128 + 32 * ((r >> 1) & 1) + 8 * (kk & 1) + 4 * (r >> 2) + (r & 1)
            groups.append(('o', 20, row * 2048, 0, 192 + kk * 8 + r))
    DEPTH = 28; RINGN = 30; LB = 40
    def issue(gi):
        kind, sd, soff, imm, dst = groups[gi]
        l = LB + 2 * (gi % RINGN)
        a0, a1 = {'qk': ('v1', 'v2'), 'v': ('v3', 'v4'), 'o': ('v5', 'v6')}[kind]
        a(f's_mov_b32 s90, {soff:#x}')
        a(f'buffer_load_dword v{l}, {a0}, s[{sd}:{sd+3}], s90 offen offset:{imm}')
        a(f'buffer_load_dword v{l+1}, {a1}, s[{sd}:{sd+3}], s90 offen offset:{imm}')
    n = len(groups)
    for gi in range(min(DEPTH, n)): issue(gi)
    for gi in range(n):
        if gi + DEPTH < n: issue(gi + DEPTH)
        out = min(n - 1 - gi, DEPTH)
        a(f's_waitcnt vmcnt({2*out})')
        kind, sd, soff, imm, dst = groups[gi]
        l = LB + 2 * (gi % RINGN)
        if kind == 'qk':
            a(f'v_perm_b32 v10, v{l+1}, v{l}, v7'); a(f'v_perm_b32 v11, v{l+1}, v{l}, v8')
            a(f'v_accvgpr_write_b32 a{dst}, v10'); a(f'v_accvgpr_write_b32 a{dst+8}, v11')
        else:
            a(f'v_perm_b32 v10, v{l+1}, v{l}, v9'); a(f'v_accvgpr_write_b32 a{dst}, v10')
    a(f's_lshl_b32 s90, {sI}, 2'); a(f's_add_u32 s90, s90, {sW}')
    a(f's_lshl_b32 s91, {sI}, 14'); a(f's_lshl_b32 s92, {sW}, 11'); a('s_add_u32 s91, s91, s92')
    lane_expr(a, aPartLd, [(0, 3, 16), (4, 1, 128), (3, 1, 256), (5, 1, 512)], sadd=['s91'], const=pol*8192)
    a(f's_lshl_b32 s91, {sX}, 14'); a('s_lshr_b32 s92, s90, 1'); a('s_lshl_b32 s92, s92, 8'); a('s_add_u32 s91, s91, s92')
    a('s_and_b32 s92, s90, 1'); a('s_lshl_b32 s92, s92, 5'); a('s_add_u32 s91, s91, s92')
    lane_expr(a, aMemSt, [(0, 2, 4), (2, 1, 64), (4, 1, 128), (5, 1, 16), (3, 1, OOB)], const=MEM_OFF, sadd=['s91'])
    a('s_lshl_b32 s92, s90, 4')
    lane_expr(a, 'v30', [(0, 2, 4), (2, 1, 2 * 2048), (4, 1, 4 * 2048), (5, 1, 2048)], sadd=['s92'])
    a(f'buffer_load_dword v{GL}, v30, s[24:27], 0 offen')
    a(f's_lshl_b32 s91, {sX}, 14'); a(f's_lshl_b32 s92, {sW}, 12'); a('s_add_u32 s91, s91, s92')
    lane_expr(a, aMemLd, [(0, 6, 16)], const=MEM_OFF, sadd=['s91'])
    a(f's_mul_i32 s91, {sW}, 3072')
    lane_expr(a, aRedW, [(0, 6, 16)], const=LDS_RED, sadd=['s91'])
    a('v_lshrrev_b32 v31, 5, v0'); a('v_lshlrev_b32 v31, 7, v31'); a(f'v_xor_b32 {aRedWv}, {aRedW}, v31')
    a(f'v_add_u32 {aRedWv}, 2048, {aRedWv}')
    a(f's_lshl_b32 s93, {sHQ}, 13')
    lq, lv, ldone = a.newlabel('L_aq'), a.newlabel('L_av'), a.newlabel('L_ad')
    a(f's_cmp_eq_u32 {sW}, 2'); a(f's_cbranch_scc1 {lv}')
    a(f's_lshl_b32 s91, {sW}, 10')
    lane_expr(a, aRedR, [(0, 1, 16), (2, 2, 32), (1, 1, 128), (4, 2, 256)], const=LDS_RED, sadd=['s91'])
    a(f's_lshl_b32 s91, {sJ}, 10'); a('s_add_u32 s91, s91, s93'); a(f's_lshl_b32 s92, {sW}, 5'); a('s_add_u32 s91, s91, s92')
    lane_expr(a, aQ0, [(0, 2, 4), (2, 2, 256), (4, 2, 64)], const=QKVR_OFF, sadd=['s91'])
    a(f'v_add_u32 {aQ1}, 16, {aQ0}')
    a(f's_lshl_b32 s91, {sHQ}, 11'); a(f's_lshl_b32 s92, {sJ}, 9'); a('s_add_u32 s91, s91, s92')
    lane_expr(a, aE0, [(0, 2, 4), (2, 2, 128), (4, 2, 32)], const=KM, sadd=['s91'])
    a(f'v_add_u32 {aE1}, 16, {aE0}')
    a(f's_branch {ldone}')
    a.label(lv)
    lane_expr(a, aRedR, [(1, 4, 16), (5, 1, 256), (0, 1, 512)], const=LDS_RED + 2048)
    a('v_and_b32 v31, 1, v0'); a('v_lshlrev_b32 v31, 7, v31'); a(f'v_xor_b32 {aRedR}, {aRedR}, v31')
    a(f's_lshr_b32 s91, {sJ}, 1'); a('s_lshl_b32 s91, s91, 10'); a('s_add_u32 s91, s91, s93')
    a(f's_and_b32 s92, {sJ}, 1'); a('s_lshl_b32 s92, s92, 8'); a('s_add_u32 s91, s91, s92')
    lane_expr(a, aQ0, [(0, 1, 8), (1, 4, 16), (5, 1, 512)], const=QKVR_OFF + 4096, sadd=['s91'])
    a(f'v_mov_b32 {aQ1}, {aQ0}')
    a(f's_lshl_b32 s91, {sHQ}, 11'); a(f's_lshl_b32 s92, {sJ}, 9'); a('s_add_u32 s91, s91, s92')
    lane_expr(a, aE0, [(1, 4, 16), (5, 1, 4), (0, 1, 8)], const=VM, sadd=['s91'])
    a(f'v_add_u32 {aE1}, 256, {aE0}')
    a.label(ldone)
    a(f's_lshl_b32 s94, {sG}, 2'); a(f's_add_u32 s94, s94, {sW}'); a('s_lshl_b32 s94, s94, 13')
    lane_expr(a, aQkLd, [(0, 6, 16)], const=QKVR_OFF, sadd=['s94'])
    a(f'v_add_u32 {aVLd}, 4096, {aQkLd}')
    lane_expr(a, aKx, [(0, 2, 16), (2, 1, 128), (3, 1, 4096), (4, 2, 256)], const=KX, sadd=['s94'])
    lane_expr(a, aVx0, [(0, 6, 16)], const=VX, sadd=['s94'])
    a(f'v_add_u32 {aVx1}, 4096, {aVx0}')
    a(f's_lshl_b32 s91, {sW}, 11')
    lane_expr(a, 'v30', [(2, 1, 64), (0, 1, 32), (1, 1, 16)])
    lane_expr(a, 'v29', [(4, 2, 32)])
    a('v_xor_b32 v30, v30, v29')
    lane_expr(a, aOW0, [(0, 4, 128)], const=LDS_O, sadd=['s91'])
    a(f'v_add_u32 {aOW0}, {aOW0}, v30')
    a(f'v_xor_b32 {aOW1}, 16, {aOW0}')
    lane_expr(a, 'v30', [(5, 1, 64), (1, 1, 32), (4, 1, 16)])
    lane_expr(a, 'v29', [(2, 2, 32), (0, 1, 16)])
    a('v_xor_b32 v30, v30, v29')
    lane_expr(a, aOR, [(4, 2, 256), (1, 1, 128)], const=LDS_O)
    a(f'v_add_u32 {aOR}, {aOR}, v30')
    a(f's_lshl_b32 s91, {sU}, 15'); a(f's_lshr_b32 s92, {sW}, 1'); a('s_lshl_b32 s92, s92, 14'); a('s_add_u32 s91, s91, s92')
    a(f's_and_b32 s92, {sW}, 1'); a('s_lshl_b32 s92, s92, 12'); a('s_add_u32 s91, s91, s92')
    a(f's_lshl_b32 s92, {sG}, 8'); a('s_add_u32 s91, s91, s92')
    lane_expr(a, aPartSt, [(0, 3, 8), (3, 1, 2048), (4, 2, 64)], sadd=['s91'], const=pol*8192)
    a('s_mov_b32 s48, 0x33333333'); a('s_mov_b32 s49, 0x33333333')
    a('s_mov_b32 s50, 0xffff0000'); a('s_mov_b32 s51, 0xffff0000')
    a('s_mov_b32 s52, 0x0000ffff'); a('s_mov_b32 s53, 0x0000ffff')
    a(f's_mov_b32 {sGuard}, 0xfffffffe')
    a(f's_mov_b32 {sC}, {f32bits(SC):#x}')
    a('v_mov_b32 v30, 0x4444'); a('v_mov_b32 v31, 0xeeee')
    a(f'v_cndmask_b32 {vIdx}, v31, v30, {sHalf0}')
    a(f'v_mov_b32 v{NEG}, -1'); a(f'v_mov_b32 v{NEG+1}, -1')
    a('v_mov_b32 v30, 0x3f803f80')
    for r in range(8):
        if r in (1, 5): a(f'v_cndmask_b32 v{ONES+r}, 0, v30, {sEven}')
        elif r in (3, 7): a(f'v_mov_b32 v{ONES+r}, 0')
        else: a(f'v_mov_b32 v{ONES+r}, v30')
    for r in range(64): a(f'v_mov_b32 v{VB+r}, 0')
    a(f's_mov_b32 {sStep}, 0'); a(f's_mov_b32 {sSlot}, {RING:#x}'); a(f's_mov_b32 {sRst}, {RING + 2*SLOT:#x}')
    a(f's_mov_b32 {sKV}, 0'); a(f's_mov_b32 {sExp}, 0'); a(f's_mov_b32 {sSpin}, 0')

    def ld_kx():
        for tt in range(2):
            for ks in range(4):
                a(f'buffer_load_dwordx4 {vr(KXR + 16*tt + 4*ks, 4)}, {aKx}, {SW}, {sKV} offen offset:{ks*1024 + tt*64}')
    def ld_vx():
        for td in range(8):
            a(f'buffer_load_dwordx4 {vr(VXL + 4*td, 4)}, {aVx0 if td < 4 else aVx1}, {SW}, {sKV} offen offset:{(td&3)*1024}')
    def spread_vx():
        for td in range(8):
            for q in range(4): a(f'v_mov_b32 v{VB + 8*td + 2*q}, v{VXL + 4*td + q}')
    def zero(b, n):
        for r in range(n): a(f'v_mov_b32 v{b+r}, 0')
    def retry(name, back, insts):
        cold.append((name, back, insts))

    ld_kx(); ld_vx()
    a(f's_add_u32 {sKV}, {sKV}, {256*KB:#x}')
    a('s_waitcnt vmcnt(0)')
    spread_vx(); zero(QA, 24); zero(WACC, 4)
    a(f'v_min_u32 v{GL}, {sGuard}, v{GL}')
    st.init()
    a('s_branch L_pubmem')

    a.label('L_step')
    gl = [f'buffer_load_dwordx4 {vr(GL + 4*k, 4)}, {aPartLd}, {SW}, {sPrev} offen offset:{1024*k} sc1' for k in range(2)]
    if dg:
        zero(QA, 24); zero(WACC, 4); a.nop(dg)
    for x in gl: a(x)
    a('s_waitcnt vmcnt(2)')
    spread_vx()
    if not dg: zero(QA, 24); zero(WACC, 4)
    a.label('L_g_wait')
    a('s_waitcnt vmcnt(0)')
    check(a, GL, 8, 'L_g_retry'); retry('L_g_retry', 'L_g_wait', gl)
    st('G wait')
    g = GL
    a(f'v_pk_add_f32 {vr(g,2)}, {vr(g,2)}, {vr(g+4,2)}')
    a(f'v_pk_add_f32 {vr(g+2,2)}, {vr(g+2,2)}, {vr(g+6,2)}')
    a(f'v_permlane32_swap_b32 v{g}, v{g+1}')
    a(f'v_permlane32_swap_b32 v{g+2}, v{g+3}')
    a(f'v_add_f32 v{g}, v{g}, v{g+1}')
    a(f'v_add_f32 v{g+2}, v{g+2}, v{g+3}')
    a(f'v_add_f32_dpp v{g+1}, v{g}, v{g} row_ror:8 row_mask:0xf bank_mask:0xf')
    a(f'v_add_f32_dpp v{g+3}, v{g+2}, v{g+2} row_ror:8 row_mask:0xf bank_mask:0xf')
    a(f'v_cvt_pk_bf16_f32 v{g}, v{g+1}, v{g+3}')
    a(f'v_min_u32 v{g}, {sGuard}, v{g}')
    a.label('L_pubmem')
    a(f'buffer_store_dword v{g}, {aMemSt}, {SW}, {sSlot} offen {local_st}')
    ml = [f'buffer_load_dwordx4 {vr(MA + 4*k, 4)}, {aMemLd}, {SW}, {sSlot} offen offset:{1024*k} sc1' for k in range(4)]
    a.nop(d1)
    for x in ml: a(x)
    st('G red')
    for ks in range(4):
        a.label(f'L_m_wait{ks}')
        a(f's_waitcnt vmcnt({3-ks})')
        check(a, MA + 4*ks, 4, f'L_m_retry{ks}'); retry(f'L_m_retry{ks}', f'L_m_wait{ks}', ml[ks:])
        if ks == 0: st('L1 first')
        for t in range(6):
            a(f'v_smfmac_f32_16x16x64_bf16 {vr(QA + 4*t, 4)}, {vr(MA + 4*ks, 4)}, {ar(ks*48 + t*8, 8)}, {vIdx}')
    st('QKV')
    for t in range(6):
        a(f'v_pk_add_f32 {vr(RD + 2*t, 2)}, {vr(QA + 4*t, 2)}, {vr(QA + 4*t + 2, 2)}')
        if t == 1: a(f'ds_write_b128 {aRedW}, {vr(RD, 4)}')
        if t == 3: a(f'ds_write_b128 {aRedW}, {vr(RD + 4, 4)} offset:1024')
        if t == 5: a(f'ds_write_b128 {aRedWv}, {vr(RD + 8, 4)}')
    a(f's_cmp_eq_u32 {sW}, 3'); a('s_cbranch_scc1 L_red3')
    a(f's_cmp_eq_u32 {sW}, 2'); a('s_cbranch_scc1 L_red2')
    def red_common():
        a('s_waitcnt lgkmcnt(0)'); a('s_barrier')
        for w in range(4): a(f'ds_read_b128 {vr(LR + 4*w, 4)}, {aRedR} offset:{3072*w}')
        a('s_waitcnt lgkmcnt(2)')
        a(f'v_pk_add_f32 {vr(LR,2)}, {vr(LR,2)}, {vr(LR+4,2)}')
        a(f'v_pk_add_f32 {vr(LR+2,2)}, {vr(LR+2,2)}, {vr(LR+6,2)}')
        a('s_waitcnt lgkmcnt(1)')
        a(f'v_pk_add_f32 {vr(LR,2)}, {vr(LR,2)}, {vr(LR+8,2)}')
        a(f'v_pk_add_f32 {vr(LR+2,2)}, {vr(LR+2,2)}, {vr(LR+10,2)}')
        a('s_waitcnt lgkmcnt(0)')
        a(f'v_pk_add_f32 {vr(LR,2)}, {vr(LR,2)}, {vr(LR+12,2)}')
        a(f'v_pk_add_f32 {vr(LR+2,2)}, {vr(LR+2,2)}, {vr(LR+14,2)}')
    red_common()
    a(f'v_cvt_pk_bf16_f32 v{PUB}, v{LR}, v{LR+2}')
    a(f'v_cvt_pk_bf16_f32 v{PUB+1}, v{LR+1}, v{LR+3}')
    a(f'v_min_u32 v{PUB}, {sGuard}, v{PUB}'); a(f'v_min_u32 v{PUB+1}, {sGuard}, v{PUB+1}')
    a(f'buffer_store_dword v{PUB}, {aQ0}, {SW}, {sSlot} offen {local_st}')
    a(f'buffer_store_dword v{PUB+1}, {aQ1}, {SW}, {sSlot} offen {local_st}')
    a('s_branch L_red_done')
    a.label('L_red2')
    red_common()
    a(f'v_cvt_pk_bf16_f32 v{PUB}, v{LR}, v{LR+1}')
    a(f'v_cvt_pk_bf16_f32 v{PUB+1}, v{LR+2}, v{LR+3}')
    a(f'v_min_u32 v{PUB}, {sGuard}, v{PUB}'); a(f'v_min_u32 v{PUB+1}, {sGuard}, v{PUB+1}')
    a(f'buffer_store_dwordx2 {vr(PUB,2)}, {aQ0}, {SW}, {sSlot} offen {local_st}')
    a('s_branch L_red_done')
    a.label('L_red3')
    a('s_waitcnt lgkmcnt(0)'); a('s_barrier')
    a.label('L_red_done')
    a(f's_cmp_eq_u32 {sStep}, {nsteps-1}'); a('s_cbranch_scc1 L_last')
    xl = [f'buffer_load_dwordx4 {vr(MA + 4*k, 4)}, {aQkLd}, {SW}, {sSlot} offen offset:{1024*k} sc1' for k in range(4)]
    xl += [f'buffer_load_dwordx4 {vr(VMR + 4*k, 4)}, {aVLd}, {SW}, {sSlot} offen offset:{1024*k} sc1' for k in range(2)]
    if d2:
        for td in range(8): zero(OT(td), 4)
        zero(OSUM, 4)
        a.nop(d2 - 1)
    for x in xl: a(x)
    st('QKV red')
    if not d2:
        for td in range(8): zero(OT(td), 4)
        zero(OSUM, 4)
    for ks in range(4):
        a.label(f'L_x_wait{ks}')
        a(f's_waitcnt vmcnt({5-ks})')
        check(a, MA + 4*ks, 4, f'L_x_retry{ks}'); retry(f'L_x_retry{ks}', f'L_x_wait{ks}', xl[ks:])
        if ks == 0: st('L2 first')
        X = vr(MA + 4*ks, 4)
        for tt in range(3):
            A = vr(KXR + 16*tt + 4*ks, 4) if tt < 2 else X
            C = vr(SA + 4*tt, 4) if ks else '0'
            a(f'v_mfma_f32_16x16x32_bf16 {vr(SA + 4*tt, 4)}, {A}, {X}, {C}')
    a.label('L_v_wait')
    a('s_waitcnt vmcnt(0)')
    check(a, VMR, 8, 'L_v_retry'); retry('L_v_retry', 'L_v_wait', xl[4:])
    st('scores')
    if not no_pf: ld_kx()
    s = [SA + i for i in range(8)] + [SA + 10, SA + 11]
    m, t2 = f'v{T}', f'v{T+1}'
    a(f'v_max3_f32 {m}, v{s[0]}, v{s[1]}, v{s[2]}')
    a(f'v_max3_f32 {t2}, v{s[3]}, v{s[4]}, v{s[5]}')
    a(f'v_max3_f32 {m}, {m}, v{s[6]}, v{s[7]}')
    a(f'v_max3_f32 {t2}, {t2}, v{s[8]}, v{s[9]}')
    a(f'v_max_f32 {m}, {m}, {t2}')
    vmov = []
    for td in range(8):
        t2_, b, t1 = td >> 2, (td >> 1) & 1, td & 1
        msk = sOdd if b else sEven
        vmov.append(f'v_cndmask_b32 v{VB + 8*td + 1}, 0, v{VMR + 4*t2_ + t1}, {msk}')
        vmov.append(f'v_cndmask_b32 v{VB + 8*td + 5}, 0, v{VMR + 4*t2_ + 2 + t1}, {msk}')
    for sw in ('v_permlane32_swap_b32', 'v_permlane16_swap_b32'):
        a(f'v_mov_b32 {t2}, {m}')
        a(vmov.pop(0)); a(vmov.pop(0))
        a(f'{sw} {m}, {t2}')
        a(f'v_max_f32 {m}, {m}, {t2}')
    a(f'v_mul_f32 {m}, {sC}, {m}')
    for i in range(10): a(f'v_fma_f32 v{s[i]}, v{s[i]}, {sC}, -{m}')
    a(f's_mov_b64 vcc, {sHalf0}')
    for i in (8, 9, 0, 1, 2, 3, 4, 5, 6, 7): a(f'v_exp_f32 v{s[i]}, v{s[i]}')
    a(f'v_cvt_pk_bf16_f32 v{ET+4}, v{s[8]}, v{s[9]}')
    for q in range(4): a(f'v_cvt_pk_bf16_f32 v{ET+q}, v{s[2*q]}, v{s[2*q+1]}')
    dppm = 'quad_perm:[0,1,0,1] row_mask:0xf bank_mask:0xf'
    a(f'v_cndmask_b32_dpp v{PA}, v{ET+4}, v{ET}, vcc {dppm}')
    a(f'v_cndmask_b32 v{PA+1}, 0, v{ET+1}, vcc')
    a(f'v_cndmask_b32_dpp v{PA+2}, v{ET+4}, v{ET+2}, vcc {dppm}')
    a(f'v_cndmask_b32 v{PA+3}, 0, v{ET+3}, vcc')
    a(vmov.pop(0)); a(vmov.pop(0))
    st('softmax')
    P = vr(PA, 4)
    a(f'v_smfmac_f32_16x16x64_bf16 {vr(OSUM,4)}, {P}, {vr(ONES,8)}, {vIdx}')
    rs = T
    post = []
    for td in range(8):
        a(f'v_smfmac_f32_16x16x64_bf16 {vr(OT(td),4)}, {P}, {vr(VB + 8*td, 8)}, {vIdx}')
        for _ in range(2):
            if vmov: a(vmov.pop(0))
        if td == 5:
            a(f'v_pk_add_f32 {vr(rs,2)}, {vr(OSUM,2)}, {vr(OSUM+2,2)}')
        if td == 6:
            a(f'v_rcp_f32 v{rs}, v{rs}')
        if td == 7:
            a(f'v_rcp_f32 v{rs+1}, v{rs+1}')
    for j in range(4):
        for t1 in range(2):
            o = OT(2*j + t1)
            a(f'v_pk_add_f32 {vr(o,2)}, {vr(o,2)}, {vr(o+2,2)}')
        for t1 in range(2):
            o = OT(2*j + t1)
            a(f'v_pk_mul_f32 {vr(o,2)}, {vr(o,2)}, {vr(rs,2)}')
        for par in range(2):
            a(f'v_cvt_pk_bf16_f32 v{ET + 4*par + j}, v{OT(2*j)+par}, v{OT(2*j+1)+par}')
    a(f'ds_write_b128 {aOW0}, {vr(ET,4)}')
    a(f'ds_write_b128 {aOW1}, {vr(ET+4,4)}')
    a('s_waitcnt lgkmcnt(0)'); a('s_barrier')
    st('PV')
    for kk in range(8): a(f'ds_read_b128 {vr(WA + 4*kk, 4)}, {aOR} offset:{1024*kk}')
    for kk in range(8):
        a(f's_waitcnt lgkmcnt({7-kk})')
        a(f'v_smfmac_f32_16x16x64_bf16 {vr(WACC,4)}, {vr(WA + 4*kk, 4)}, {ar(192 + 8*kk, 8)}, {vIdx}')
    a(f'v_pk_add_f32 {vr(T,2)}, {vr(WACC,2)}, {vr(WACC+2,2)}')
    a(f'v_min_u32 v{T}, {sGuard}, v{T}'); a(f'v_min_u32 v{T+1}, {sGuard}, v{T+1}')
    a(f'buffer_store_dwordx2 {vr(T,2)}, {aPartSt}, {SW}, {sSlot} offen sc1')
    st('Wo')
    if not no_pf: ld_vx()
    def exports():
        l = a.newlabel('L_noexp')
        a(f's_cmp_eq_u32 {sW}, 0'); a(f's_cbranch_scc1 {l}')
        a(f's_cmp_eq_u32 {sW}, 3'); a(f's_cbranch_scc1 {l}')
        a(f'buffer_store_dword v{PUB}, {aE0}, {SW}, {sExp} offen {exp_st}')
        a(f'buffer_store_dword v{PUB+1}, {aE1}, {SW}, {sExp} offen {exp_st}')
        a.label(l)
    if not no_exp: exports()
    lrs = a.newlabel('L_rs')
    if bigring: a(f's_branch {lrs}')
    a(f'buffer_store_dwordx2 {vr(NEG,2)}, {aPartSt}, {SW}, {sRst} offen sc1')
    a(f'buffer_store_dword v{NEG}, {aMemSt}, {SW}, {sRst} offen {local_st}')
    l3, l2 = a.newlabel('L_rs'), a.newlabel('L_rs')
    a(f's_cmp_eq_u32 {sW}, 3'); a(f's_cbranch_scc1 {l3}')
    a(f's_cmp_eq_u32 {sW}, 2'); a(f's_cbranch_scc1 {l2}')
    a(f'buffer_store_dword v{NEG}, {aQ0}, {SW}, {sRst} offen {local_st}')
    a(f'buffer_store_dword v{NEG}, {aQ1}, {SW}, {sRst} offen {local_st}')
    a(f's_branch {l3}')
    a.label(l2)
    a(f'buffer_store_dwordx2 {vr(NEG,2)}, {aQ0}, {SW}, {sRst} offen {local_st}')
    a.label(l3)
    a.label(lrs)
    a(f's_mov_b32 {sPrev}, {sSlot}')
    a(f's_add_u32 {sStep}, {sStep}, 1')
    a(f's_and_b32 s90, {sStep}, {63 if bigring else 3}'); a('s_lshl_b32 s90, s90, 19'); a(f's_add_u32 {sSlot}, s90, {RING:#x}')
    a(f's_xor_b32 {sRst}, {sSlot}, {2*SLOT:#x}')
    a(f's_add_u32 {sKV}, {sKV}, {256*KB:#x}')
    a(f's_min_u32 {sKV}, {sKV}, {63*256*KB:#x}')
    a(f's_add_u32 {sExp}, {sExp}, {64*KB:#x}')
    st('tail')
    a('s_branch L_step')
    a.label('L_last')
    exports()
    if stamps:
        a(f's_lshl_b32 s90, {sX}, 5'); a(f's_add_u32 s90, s90, {sI}'); a('s_lshl_b32 s90, s90, 2'); a(f's_add_u32 s90, s90, {sW}')
        a('s_lshl_b32 s90, s90, 6'); a(f's_add_u32 s90, s90, {STAMP:#x}')
        a(f's_mov_b32 s79, {sSpin}')
        st.calib(78)
        a('v_mov_b32 v30, 0')
        a('s_mov_b64 exec, 1')
        for k in range(16):
            a(f'v_mov_b32 v31, s{64+k}')
            a(f'buffer_store_dword v31, v30, {SW}, s90 offen offset:{4*k}')
        a('s_mov_b64 exec, -1')
    a('s_waitcnt vmcnt(0)')
    a(f's_branch {exit_label}')
    for (name, back, insts) in cold:
        a.label(name)
        for x in insts: a(x)
        a(f's_add_u32 {sSpin}, {sSpin}, 1')
        a(f's_cmp_lt_u32 {sSpin}, {SPIN_MAX}')
        a(f's_cbranch_scc1 {back}')
        a('s_branch L_rec_abort')
    a.label('L_rec_abort')
    a('s_waitcnt vmcnt(0)')
    a('s_endpgm')
    return st.names

def gen_rec_kernel(name='rec_kernel', **kw):
    a = Asm()
    a('s_load_dwordx4 s[92:95], s[0:1], 88')
    a('s_cmp_ge_u32 s2, 256'); a('s_cbranch_scc1 L_rec_exit')
    a(f's_getreg_b32 {sX}, hwreg(HW_REG_XCC_ID, 0, 4)')
    a(f's_cmp_ge_u32 {sX}, 4'); a('s_cbranch_scc1 L_rec_exit')
    a('s_waitcnt lgkmcnt(0)')
    srd(a, 4, 94, WS_BYTES); srd(a, 28, 92, 256)
    a('v_cmp_eq_u32 vcc, 0, v0')
    a('s_and_saveexec_b64 s[96:97], vcc')
    a('s_cbranch_execz L_tk')
    a(f's_lshl_b32 s90, {sX}, 6')
    a('v_mov_b32 v1, 1'); a('v_mov_b32 v2, 0')
    a('buffer_atomic_add v1, v2, s[28:31], s90 offen sc0 sc1')
    a('s_waitcnt vmcnt(0)')
    a('ds_write_b32 v2, v1')
    a('s_waitcnt lgkmcnt(0)')
    a.label('L_tk')
    a('s_mov_b64 exec, s[96:97]')
    a('s_barrier')
    a('v_mov_b32 v2, 0')
    a('ds_read_b32 v1, v2')
    a('s_waitcnt lgkmcnt(0)')
    a(f'v_readfirstlane_b32 {sI}, v1')
    a('s_barrier')
    a(f's_cmp_ge_u32 {sI}, 32'); a('s_cbranch_scc1 L_rec_exit')
    names = gen_rec(a, **kw)
    a.label('L_rec_exit')
    a('s_endpgm')
    a.fix_hazards()
    return a, names
```

```python
import sys, os
sys.path.insert(0, os.path.dirname(os.path.abspath(__file__)))
from asmgen import *
from layout import *
import rec, gemm, attn
from rec import srd, lane_expr
from gemm import *
NAME = 'concat_heads__memory_aug_recurrent_mem_tr__sliding_local_dilated__prompt'

def kd(name, vgpr, accum, sgpr=102):
    return f""".amdhsa_kernel {name}
  .amdhsa_next_free_vgpr {vgpr}
  .amdhsa_next_free_sgpr {sgpr}
  .amdhsa_accum_offset {accum}
  .amdhsa_group_segment_fixed_size 0
  .amdhsa_kernarg_size 104
  .amdhsa_user_sgpr_count 2
  .amdhsa_user_sgpr_kernarg_segment_ptr 1
  .amdhsa_system_sgpr_workgroup_id_x 1
  .amdhsa_float_denorm_mode_32 3
  .amdhsa_float_denorm_mode_16_64 3
.end_amdhsa_kernel
"""

def k1():
    a = Asm()
    a('s_cmp_ge_u32 s2, 480'); a('s_cbranch_scc1 L_k1_end')
    a('s_load_dwordx16 s[64:79], s[0:1], 0')
    a('s_load_dwordx2 s[80:81], s[0:1], 64')
    a('s_load_dwordx2 s[82:83], s[0:1], 96')
    a('s_waitcnt lgkmcnt(0)')
    srd(a, 16, 82, WS_BYTES)
    a('s_cmp_ge_u32 s2, 256'); a('s_cbranch_scc1 L_k1_noinit')
    a('s_lshl_b32 s90, s2, 14'); a(f's_add_u32 s90, s90, {RING:#x}')
    a('v_lshlrev_b32 v1, 4, v0')
    for r in range(4): a(f'v_mov_b32 v{4+r}, -1')
    for q in range(4):
        a(f'buffer_store_dwordx4 v[4:7], v1, s[16:19], s90 offen'); a('s_add_u32 s90, s90, 4096')
    a.label('L_k1_noinit')
    a(f's_mov_b32 {sLdx}, 2048'); a(f's_mov_b32 {sNk}, 8')
    a('s_cmp_ge_u32 s2, 384'); a('s_cbranch_scc1 L_k1_B')
    a('s_lshr_b32 s84, s2, 7'); a('s_lshr_b32 s85, s2, 4'); a('s_and_b32 s85, s85, 7'); a('s_and_b32 s86, s2, 15')
    srd(a, 8, 64, 4 * MB)
    a('s_cmp_eq_u32 s84, 0'); a('s_cselect_b64 s[88:89], s[68:69], s[70:71]')
    a('s_cmp_eq_u32 s84, 2'); a('s_cselect_b64 s[88:89], s[72:73], s[88:89]')
    srd(a, 12, 88, 8 * MB)
    a(f's_mov_b32 {sLdw}, 8192'); a(f's_mov_b32 {sSeg}, {256*KB}')
    a(f's_lshl_b32 {sXo}, s85, 19'); a(f's_lshl_b32 {sWo}, s86, 9')
    a(f's_lshl_b32 {sOo}, s84, 24'); a('s_lshl_b32 s90, s85, 21'); a(f's_add_u32 {sOo}, {sOo}, s90')
    a('s_lshl_b32 s90, s86, 14'); a(f's_add_u32 {sOo}, {sOo}, s90')
    a('s_branch L_k1_go')
    a.label('L_k1_B')
    a('s_sub_u32 s87, s2, 384'); a('s_and_b32 s85, s87, 7'); a('s_lshr_b32 s86, s87, 3'); a('s_lshr_b32 s84, s86, 2')
    srd(a, 8, 78, 4 * MB); srd(a, 12, 80, 6 * MB)
    a(f's_mov_b32 {sLdw}, 6144'); a(f's_mov_b32 {sSeg}, {64*KB}')
    a(f's_lshl_b32 {sXo}, s85, 19'); a(f's_lshl_b32 {sWo}, s86, 9')
    a(f's_lshl_b32 {sOo}, s84, 22'); a('s_lshl_b32 s90, s85, 19'); a(f's_add_u32 {sOo}, {sOo}, s90')
    a('s_and_b32 s90, s86, 3'); a('s_lshl_b32 s90, s90, 14'); a(f's_add_u32 {sOo}, {sOo}, s90'); a(f's_add_u32 {sOo}, {sOo}, {BQKV:#x}')
    a.label('L_k1_go')
    a('s_cmp_eq_u32 s84, 2'); a('s_cbranch_scc1 L_k1_V')
    lds = gen_gemm(a, 'g1', 256, 256, 'row', 'T', 'qk')
    a('s_endpgm')
    a.label('L_k1_V')
    gen_gemm(a, 'g2', 256, 256, 'row', 'N', 'v')
    a.label('L_k1_end')
    a('s_endpgm')
    a.fix_hazards()
    return a, lds

def k3():
    a = Asm()
    a('s_cmp_ge_u32 s2, 640'); a('s_cbranch_scc1 L_k3_end')
    a('s_load_dwordx2 s[82:83], s[0:1], 96')
    a('v_and_b32 v1, 63, v0'); a('v_lshrrev_b32 v2, 6, v0'); a('s_nop 0'); a('v_readfirstlane_b32 s84, v2')
    a('s_waitcnt lgkmcnt(0)')
    srd(a, 4, 82, WS_BYTES)
    a('s_lshl_b32 s85, s2, 2'); a('s_add_u32 s85, s85, s84')
    a('s_cmp_ge_u32 s2, 512'); a('s_cbranch_scc1 L_k3_B')
    attn.gen_attnA(a, 's85')
    a('s_endpgm')
    a.label('L_k3_B')
    a('s_sub_u32 s85, s85, 2048')
    attn.gen_attnB(a, 's85')
    a.label('L_k3_end')
    a('s_endpgm')
    a.fix_hazards()
    return a

def k4():
    a = Asm()
    a('s_cmp_ge_u32 s2, 256'); a('s_cbranch_scc1 L_k4_end')
    a('s_load_dwordx2 s[64:65], s[0:1], 40')
    a('s_load_dwordx4 s[68:71], s[0:1], 72')
    a('s_load_dwordx2 s[82:83], s[0:1], 96')
    a('s_waitcnt lgkmcnt(0)')
    srd(a, 8, 82, WS_BYTES); srd(a, 16, 70, 8 * MB)
    a('s_and_b32 s86, s2, 7'); a('s_lshr_b32 s85, s2, 3'); a('s_and_b32 s85, s85, 15')
    a(f's_mov_b32 {sLdw}, 2048'); a(f's_mov_b32 {sSeg}, 4096')
    a(f's_lshl_b32 {sWo}, s86, 8'); a(f's_lshl_b32 {sOo}, s85, 19'); a(f's_add_u32 {sOo}, {sOo}, {sWo}')
    a('s_cmp_ge_u32 s2, 128'); a('s_cbranch_scc1 L_k4_B')
    srd(a, 12, 64, 8 * MB)
    a(f's_mov_b32 {sLdx}, {256*KB}'); a(f's_mov_b32 {sNk}, 32')
    a(f's_lshl_b32 {sXo}, s85, 20'); a(f's_add_u32 {sXo}, {sXo}, {OA:#x}')
    a('s_branch L_k4_go')
    a.label('L_k4_B')
    srd(a, 12, 68, 2 * MB)
    a(f's_mov_b32 {sLdx}, {64*KB}'); a(f's_mov_b32 {sNk}, 8')
    a(f's_lshl_b32 {sXo}, s85, 18'); a(f's_add_u32 {sXo}, {sXo}, {OB:#x}'); a(f's_add_u32 {sOo}, {sOo}, 2048')
    a.label('L_k4_go')
    lds = gen_gemm(a, 'g3', 128, 128, 'packed', 'T', 'out')
    a.label('L_k4_end')
    a('s_endpgm')
    a.fix_hazards()
    return a, lds

def build(**kw):
    a1, lds1 = k1(); a2, _ = rec.gen_rec_kernel(**kw); a3 = k3(); a4, lds4 = k4()
    ref = open(os.path.join(os.path.dirname(os.path.abspath(__file__)), '..', NAME + '.s.ref')).read().split('\n')
    head = [l for l in ref if l.startswith(';') and '@launch' not in l and 'Override' not in l and 'grid=ceil' not in l][:14]
    ks = [('qkv_kernel', a1, 480, lds1, 512, 256), ('rec_kernel', a2, 256, 100 * 1024, 512, 256),
          ('attn_kernel', a3, 640, 0, 200, 200), ('outp_kernel', a4, 256, lds4, 256, 192)]
    t = '\n'.join(head) + '\n'
    for n, a, g, lds, v, acc in ks: t += f'; @launch kernel={n} grid=({g},1,1) block=(256,1,1) lds={lds}\n'
    t += '.amdgcn_target "amdgcn-amd-amdhsa--gfx950"\n.text\n'
    for n, a, g, lds, v, acc in ks:
        t += f'.globl {n}\n.p2align 8\n.type {n},@function\n{n}:\n' + a.text()
    t += '.section .rodata,"a"\n'
    for n, a, g, lds, v, acc in ks: t += '.p2align 6\n' + kd(n, v, acc)
    return t

if __name__ == '__main__':
    out = sys.argv[1] if len(sys.argv) > 1 else os.path.join(os.path.dirname(os.path.abspath(__file__)), '..', NAME + '.s')
    open(out, 'w').write(build(dg=30, d1=50, d2=40))
    print('written', out, os.path.getsize(out))
```

```python
import re

REG_RE = re.compile(r'^(-|\|)?(abs\()?([vas])(\d+|\[(\d+):(\d+)\])\)?\|?$')

def regs_of(tok):
    tok = tok.strip()
    if tok in ('vcc',): return {('s', 106), ('s', 107)}
    if tok == 'vcc_lo': return {('s', 106)}
    if tok == 'vcc_hi': return {('s', 107)}
    if tok == 'exec': return {('s', 126), ('s', 127)}
    if tok == 'exec_lo': return {('s', 126)}
    if tok == 'exec_hi': return {('s', 127)}
    if tok == 'm0': return {('s', 124)}
    m = REG_RE.match(tok)
    if not m: return set()
    c = m.group(3)
    if m.group(5) is not None:
        return {(c, i) for i in range(int(m.group(5)), int(m.group(6)) + 1)}
    return {(c, int(m.group(4)))}

TRANS = ('v_exp_f32', 'v_log_f32', 'v_rcp_f32', 'v_rsq_f32', 'v_sqrt_f32', 'v_sin_f32', 'v_cos_f32', 'v_rcp_iflag_f32')
VCC = {('s', 106), ('s', 107)}
EXEC = {('s', 126), ('s', 127)}
M0 = {('s', 124)}

def mfma_passes(op):
    if '32x32x16' in op or '32x32x8' in op or '32x32x32' in op: return 8
    if '16x16x32' in op or '16x16x16' in op or '16x16x64' in op: return 4
    raise ValueError('unknown mfma ' + op)

class Ins:
    __slots__ = ('text', 'op', 'kind', 'w', 'r', 'srcc', 'ab', 'passes', 'dpp', 'states', 'target', 'label', 'stdata', 'wide', 'lds', 'maskr')
    def __init__(self, text):
        self.text = text
        self.label = None
        self.target = None
        self.w = set(); self.r = set(); self.srcc = set(); self.ab = set(); self.stdata = set(); self.maskr = set()
        self.passes = 0; self.dpp = False; self.states = 1; self.wide = False; self.lds = False
        t = text.split(';')[0].strip()
        if t.endswith(':'):
            self.kind = 'label'; self.label = t[:-1]; self.op = ''; self.states = 0; return
        if t == '' or t.startswith('.'):
            self.kind = 'dir'; self.op = ''; self.states = 0; return
        parts = t.split(None, 1)
        op = parts[0]; self.op = op
        rest = parts[1] if len(parts) > 1 else ''
        brk = re.findall(r'\b[a-z_0-9]+:\[[^\]]*\]', rest)
        rest = re.sub(r'\b[a-z_0-9]+:\[[^\]]*\]', '', rest)
        rest = re.sub(r'hwreg\([^)]*\)', 'hwreg', rest)
        ops = [o.strip() for o in rest.split(',')] if rest else []
        mods = ''
        if ops:
            last = ops[-1].split(None, 1)
            if last:
                ops[-1] = last[0]
                mods = last[1] if len(last) > 1 else ''
        mods += ' ' + ' '.join(brk)
        R = [regs_of(o) for o in ops]
        def U(l):
            s = set()
            for x in l: s |= x
            return s
        if op.startswith('v_mfma') or op.startswith('v_smfmac'):
            self.kind = 'mfma'; self.passes = mfma_passes(op)
            self.w = R[0]
            if op.startswith('v_smfmac'):
                self.srcc = R[0]; self.ab = R[1] | R[2] | R[3]
            else:
                self.srcc = R[3]; self.ab = R[1] | R[2]
            self.r = self.srcc | self.ab
        elif op.startswith('v_'):
            self.kind = 'valu'
            self.dpp = ('_dpp' in op) or ('quad_perm' in mods) or ('row_' in mods) or ('wave_' in mods)
            base = op.replace('_e32', '').replace('_e64', '').replace('_dpp', '')
            if base.startswith('v_permlane') and 'swap' in base:
                self.w = R[0] | R[1]; self.r = R[0] | R[1]
            elif base.startswith('v_cmpx'):
                self.w = R[0] | EXEC; self.r = U(R[1:])
            elif base in ('v_add_co_u32', 'v_sub_co_u32', 'v_subrev_co_u32', 'v_addc_co_u32', 'v_subb_co_u32', 'v_mad_u64_u32', 'v_div_scale_f32'):
                self.w = R[0] | R[1]; self.r = U(R[2:])
            elif base == 'v_nop':
                pass
            else:
                self.w = R[0]; self.r = U(R[1:])
                if base.startswith('v_fmac') or base.startswith('v_pk_fmac') or base.startswith('v_dot2c') or base == 'v_writelane_b32' or self.dpp:
                    self.r |= R[0]
        elif op.startswith('buffer_') or op.startswith('global_') or op.startswith('flat_'):
            self.kind = 'vmem'
            allm = ' ' + mods + ' '
            if ' lds ' in allm or '_lds_' in op:
                self.lds = True; self.r = U(R) | M0
            elif '_load_' in op:
                self.w = R[0]; self.r = U(R[1:])
            elif '_atomic_' in op:
                if ' sc0 ' in allm:
                    self.w = R[0]; self.r = U(R) if op.startswith('buffer_') else U(R[1:])
                else:
                    self.r = U(R)
            elif '_store_' in op:
                self.r = U(R)
                self.stdata = R[0] if op.startswith('buffer_') else R[1]
                self.wide = ('x3' in op or 'x4' in op)
            else:
                self.r = U(R)
        elif op.startswith('ds_'):
            self.kind = 'ds'
            if op.startswith('ds_read') or 'permute' in op or 'swizzle' in op or '_rtn' in op:
                self.w = R[0]; self.r = U(R[1:])
            else:
                self.r = U(R)
        elif op.startswith('s_'):
            self.kind = 'salu'
            if op == 's_nop':
                self.states = int(ops[0], 0) + 1
            elif op.startswith('s_cbranch') or op == 's_branch':
                self.target = ops[0]
            elif op.startswith('s_cmp') or op in ('s_waitcnt', 's_barrier', 's_endpgm', 's_sleep', 's_setprio', 's_bitcmp0_b32', 's_bitcmp1_b32', 's_setreg_b32', 's_setreg_imm32_b32'):
                self.r = U(R)
            elif op.startswith('s_load') or op.startswith('s_buffer_load') or op in ('s_memtime', 's_memrealtime'):
                self.kind = 'smem'; self.w = R[0]; self.r = U(R[1:])
            elif op.startswith('s_atomic'):
                self.kind = 'smem'; self.w = R[0]; self.r = U(R)
            else:
                self.w = R[0] if R else set(); self.r = U(R[1:])
                if 'saveexec' in op: self.w |= EXEC; self.r |= EXEC
        else:
            raise ValueError('unknown instruction: ' + text)

def vg(s):
    return {x for x in s if x[0] != 's'}
def sg(s):
    return {x for x in s if x[0] == 's'}

XDL_VALU = {2: 5, 4: 8, 8: 12, 16: 20}
XDL_SRCC_OVL = {2: 4, 4: 6, 8: 10, 16: 18}
XDL_WAR = {2: 1, 4: 3, 8: 7, 16: 15}

def need(p, c):
    n = 0
    if p.kind == 'valu':
        pw_v = vg(p.w); pw_s = sg(p.w)
        if c.kind == 'mfma' and pw_v & c.r: n = max(n, 2)
        if c.kind == 'mfma' and (pw_s & EXEC): n = max(n, 4)
        if c.kind == 'valu':
            if c.dpp and pw_v & c.r: n = max(n, 2)
            if c.dpp and (pw_s & EXEC): n = max(n, 5)
            if c.op.startswith('v_permlane') and pw_v & c.r: n = max(n, 2)
            if c.op.startswith('v_permlane') and (pw_s & EXEC): n = max(n, 4)
            if (c.op.startswith('v_readlane') or c.op.startswith('v_readfirstlane')) and pw_v & c.r: n = max(n, 1)
            if (c.op.startswith('v_readlane') or c.op.startswith('v_writelane')) and pw_s & c.r: n = max(n, 4)
            if (c.op.startswith('v_readlane') or c.op.startswith('v_readfirstlane') or c.op.startswith('v_writelane')) and (pw_s & EXEC): n = max(n, 4)
            if pw_s & c.r: n = max(n, 2)
            if c.op.startswith('v_div_fmas') and pw_s & VCC: n = max(n, 4)
            pb = p.op.replace('_e32', '').replace('_e64', '')
            if pb in TRANS and pw_v & (c.r | c.w):
                cb = c.op.replace('_e32', '').replace('_e64', '')
                if cb not in TRANS: n = max(n, 1)
        if c.kind == 'vmem' and pw_s & c.r: n = max(n, 5)
        pb = p.op.replace('_e32', '').replace('_e64', '')
        if pb in TRANS and c.kind in ('vmem', 'ds') and pw_v & c.r: n = max(n, 1)
    elif p.kind == 'mfma':
        if c.kind == 'mfma':
            if p.w & c.ab: n = max(n, XDL_VALU[p.passes])
            if p.w & c.srcc:
                if p.w == c.srcc and p.op == c.op: n = max(n, 2 if p.passes == 2 else 0)
                else: n = max(n, XDL_SRCC_OVL[p.passes])
            elif p.w & c.w: n = max(n, XDL_SRCC_OVL[p.passes])
        elif c.kind == 'valu':
            if p.w & (c.r | c.w): n = max(n, XDL_VALU[p.passes])
            if p.srcc & c.w: n = max(n, XDL_WAR[p.passes])
        elif c.kind in ('vmem', 'ds'):
            if p.w & (c.r | c.w): n = max(n, XDL_VALU[p.passes])
            if p.srcc & c.w: n = max(n, XDL_WAR[p.passes])
    elif p.kind == 'vmem':
        if p.wide and p.stdata & c.w:
            n = max(n, 2 if c.kind in ('valu', 'mfma') else 1)
    elif p.kind == 'salu':
        if (p.w & M0) and c.kind == 'vmem' and c.lds: n = max(n, 1)
        if (p.w & M0) and c.kind == 'ds' and 'addtid' in c.op: n = max(n, 1)
    return n

MAXD = 20

class Asm:
    def __init__(self):
        self.ins = []
        self.uid = 0
    def __call__(self, text):
        for l in text.split('\n'):
            l = l.strip()
            if l: self.ins.append(Ins(l))
    def label(self, name):
        self.ins.append(Ins(name + ':'))
    def newlabel(self, base='L'):
        self.uid += 1
        return f'{base}_{self.uid}'
    def comment(self, t):
        self.ins.append(Ins('; ' + t))
    def nop(self, states):
        while states > 0:
            k = min(states, 16)
            self(f's_nop {k-1}'); states -= k
    def fix_hazards(self, verbose=False):
        total = 0
        for it in range(10):
            ins = self.ins
            out_extra = {}
            labpos = {x.label: i for i, x in enumerate(ins) if x.kind == 'label'}
            jumps = {}
            for i, x in enumerate(ins):
                if x.target is not None:
                    if x.target not in labpos: raise ValueError('undefined label ' + x.target)
                    jumps.setdefault(labpos[x.target], []).append(i)
            for i, c in enumerate(ins):
                if c.kind in ('label', 'dir', 'salu', 'smem'): continue
                worst = 0; why = None
                stack = [(i, 0)]; seen = {}
                while stack:
                    j, d = stack.pop()
                    preds = []
                    if j > 0 and ins[j-1].op not in ('s_branch', 's_endpgm', 's_setpc_b64'): preds.append(j-1)
                    if ins[j].kind == 'label': preds += jumps.get(j, [])
                    for p in preds:
                        if seen.get(p, 99) <= d: continue
                        seen[p] = d
                        P = ins[p]
                        if P.kind in ('valu', 'mfma', 'vmem', 'salu'):
                            n = need(P, c)
                            if n - d > worst: worst = n - d; why = P
                        nd = d + P.states + out_extra.get(p, 0)
                        if nd < MAXD: stack.append((p, nd))
                if worst > 0:
                    out_extra[i] = worst
                    if verbose: print(f'hazard: +{worst} before "{c.text}" due to "{why.text}"')
            if not out_extra: break
            new = []
            for i, x in enumerate(ins):
                w = out_extra.get(i, 0)
                while w > 0:
                    k = min(w, 16); new.append(Ins(f's_nop {k-1}')); w -= k
                new.append(x)
            total += len(out_extra)
            self.ins = new
        return total
    def absorb(self, other, pfx, keep=()):
        labs = {x.label for x in other.ins if x.kind == 'label'}
        for x in other.ins:
            if x.kind == 'label': self.ins.append(Ins(pfx + x.label + ':'))
            elif x.target is not None and x.target in labs: self.ins.append(Ins(x.text.replace(x.target, pfx + x.target)))
            else: self.ins.append(x)
    def text(self):
        out = []
        for x in self.ins:
            out.append(x.text if x.kind in ('label',) else '  ' + x.text)
        return '\n'.join(out) + '\n'

def vr(b, n=1, c='v'):
    return f'{c}{b}' if n == 1 else f'{c}[{b}:{b+n-1}]'
def ar(b, n=1): return vr(b, n, 'a')
def sr(b, n=1): return vr(b, n, 's')
```

```python
import math
from asmgen import *
from layout import *
from rec import lane_expr, f32bits
SW = 's[4:7]'
BQ, BK, BV = BQKV, BQKV + 4 * MB, BQKV + 8 * MB

def lane_masks(a, sbase, fn, nmask):
    for k in range(nmask):
        m = 0
        for l in range(64):
            if fn(k, l >> 4, l & 15): m |= 1 << l
        a(f's_mov_b32 s{sbase+2*k}, {m & 0xffffffff:#x}'); a(f's_mov_b32 s{sbase+2*k+1}, {m >> 32:#x}')

def xreduce(a, op, m, t):
    for sw in ('v_permlane32_swap_b32', 'v_permlane16_swap_b32'):
        a(f'v_mov_b32 {t}, {m}'); a(f'{sw} {m}, {t}'); a(f'{op} {m}, {m}, {t}')

def softmax(a, s, m, t, sC):
    rest = [f'v{x}' for x in s]
    a(f'v_max3_f32 {m}, {rest[0]}, {rest[1]}, {rest[2]}'); rest = rest[3:]
    while len(rest) >= 2:
        a(f'v_max3_f32 {m}, {m}, {rest[0]}, {rest[1]}'); rest = rest[2:]
    if rest: a(f'v_max_f32 {m}, {m}, {rest[0]}')
    xreduce(a, 'v_max_f32', m, t)
    a(f'v_mul_f32 {m}, {sC}, {m}')
    for x in s: a(f'v_fma_f32 v{x}, v{x}, {sC}, -{m}')
    for x in s: a(f'v_exp_f32 v{x}, v{x}')
    a(f'v_add_f32 {m}, v{s[0]}, v{s[1]}')
    for x in s[2:]: a(f'v_add_f32 {m}, {m}, v{x}')
    xreduce(a, 'v_add_f32', m, t)
    a(f'v_rcp_f32 {m}, {m}')
    for x in s: a(f'v_mul_f32 v{x}, v{x}, {m}')

def gen_attnA(a, sItem, ld_flags='', st_flags=''):
    scale = 128 ** -0.5
    kw = dict(lane='v1', tmp='v7')
    Q, K, V, KMr, VMr = 16, 48, 80, 112, 128
    a(f's_lshl_b32 s90, {sItem}, 13'); a(f's_lshl_b32 s91, {sItem}, 11')
    lane_expr(a, 'v2', [(0, 6, 16)], **kw); a('v_add_u32 v3, 4096, v2')
    lane_expr(a, 'v4', [(0, 1, 16), (2, 2, 32), (4, 2, 128)], const=KM, **kw)
    a(f'v_add_u32 v5, {VM:#x}, v2')
    lane_expr(a, 'v8', [(0, 3, 16), (3, 1, 2048), (4, 2, 256)], **kw); a('v_add_u32 v9, 4096, v8')
    lane_expr(a, 'v10', [(0, 4, 16), (4, 1, 256), (5, 1, 1024)], **kw); a('v_add_u32 v11, 4096, v10')
    a(f's_add_u32 s92, s90, {KX}'); a(f's_add_u32 s93, s90, {VX}'); a(f's_add_u32 s94, s90, {QX}'); a(f's_add_u32 s95, s90, {OA}')
    for i in range(8): a(f'buffer_load_dwordx4 {vr(Q+4*i,4)}, v{2+(i>>2)}, {SW}, s94 offen offset:{(i&3)*1024} {ld_flags}')
    for i in range(4): a(f'buffer_load_dwordx4 {vr(KMr+4*i,4)}, v4, {SW}, s91 offen offset:{i*512} {ld_flags}')
    for i in range(8): a(f'buffer_load_dwordx4 {vr(K+4*i,4)}, v{2+(i>>2)}, {SW}, s92 offen offset:{(i&3)*1024} {ld_flags}')
    for i in range(8): a(f'buffer_load_dwordx4 {vr(V+4*i,4)}, v{8+(i>>2)}, {SW}, s93 offen offset:{((i>>1)&1)*1024 + (i&1)*128} {ld_flags}')
    for i in range(2): a(f'buffer_load_dwordx4 {vr(VMr+4*i,4)}, v5, {SW}, s91 offen offset:{i*1024} {ld_flags}')
    lane_masks(a, 40, lambda k, g, c: 4*g + k <= c, 4)
    a(f's_mov_b32 s50, {f32bits(scale * math.log2(math.e)):#x}')
    a(f'v_mov_b32 v6, {f32bits(-1e9 / scale):#x}')
    a('s_waitcnt vmcnt(10)')
    SS = {(0, 'm'): 136, (0, 0): 140, (1, 'm'): 144, (1, 0): 148, (1, 1): 152}
    for ks in range(4):
        for (qt, kt), d in SS.items():
            A = vr(KMr + 4*ks, 4) if kt == 'm' else vr(K + 16*kt + 4*ks, 4)
            a(f'v_mfma_f32_16x16x32_bf16 {vr(d,4)}, {A}, {vr(Q + 16*qt + 4*ks, 4)}, {vr(d,4) if ks else 0}')
    PP = 156
    for qt in range(2):
        for r in range(4):
            d = SS[(qt, qt)] + r; a(f'v_cndmask_b32 v{d}, v6, v{d}, s[{40+2*r}:{41+2*r}]')
        regs = [SS[(qt, 'm')] + r for r in range(2)] + [SS[(qt, kt)] + r for kt in range(qt + 1) for r in range(4)]
        softmax(a, regs, 'v12', 'v13', 's50')
        p = PP + 8 * qt
        a(f'v_cvt_pk_bf16_f32 v{p+4}, v{regs[0]}, v{regs[1]}'); a(f'v_mov_b32 v{p+5}, 0'); a(f'v_mov_b32 v{p+6}, 0'); a(f'v_mov_b32 v{p+7}, v{p+4}')
        for q in range(4):
            if 2 + 2*q < len(regs): a(f'v_cvt_pk_bf16_f32 v{p+q}, v{regs[2+2*q]}, v{regs[3+2*q]}')
            else: a(f'v_mov_b32 v{p+q}, 0')
    a('s_waitcnt vmcnt(0)')
    for qt in range(2):
        p = PP + 8 * qt; o = Q + 32 * qt
        for td in range(8): a(f'v_mfma_f32_16x16x32_bf16 {vr(o+4*td,4)}, {vr(V+4*td,4)}, {vr(p,4)}, 0')
        for td in range(8): a(f'v_mfma_f32_16x16x16_bf16 {vr(o+4*td,4)}, {vr(VMr + (td & ~1), 2)}, {vr(p + 4 + 2*(td&1), 2)}, {vr(o+4*td,4)}')
    for qt in range(2):
        o = Q + 32 * qt
        for n in range(2):
            for q in range(2):
                e = 136 + 4 * (2*n + q)
                ta, tb = o + 4 * (4*n + q), o + 4 * (4*n + q + 2)
                a(f'v_cvt_pk_bf16_f32 v{e}, v{ta}, v{ta+1}'); a(f'v_cvt_pk_bf16_f32 v{e+1}, v{ta+2}, v{ta+3}')
                a(f'v_cvt_pk_bf16_f32 v{e+2}, v{tb}, v{tb+1}'); a(f'v_cvt_pk_bf16_f32 v{e+3}, v{tb+2}, v{tb+3}')
                a(f'buffer_store_dwordx4 {vr(e,4)}, v{10+qt}, {SW}, s95 offen offset:{n*2048 + q*512} {st_flags}')

def gen_attnB(a, sItem, ld_flags='', st_flags=''):
    scale = 32 ** -0.5
    kw = dict(lane='v1', tmp='v7')
    Q, K, V = 8, 40, 88
    a(f's_lshl_b32 s90, {sItem}, 13')
    a(f's_sub_u32 s91, s90, {64*KB}'); a(f's_cmp_lt_u32 {sItem}, 8'); a('s_cselect_b32 s91, s90, s91')
    lane_expr(a, 'v2', [(0, 6, 16)], **kw); a('v_add_u32 v3, 4096, v2')
    a(f's_add_u32 s92, s90, {BQ}'); a(f's_add_u32 s93, s90, {BK}'); a(f's_add_u32 s94, s91, {BK}')
    a(f's_add_u32 s95, s90, {BV}'); a(f's_add_u32 s96, s91, {BV}'); a(f's_add_u32 s97, s90, {OB}')
    for i in range(8): a(f'buffer_load_dwordx4 {vr(Q+4*i,4)}, v{2+(i>>2)}, {SW}, s92 offen offset:{(i&3)*1024} {ld_flags}')
    for i in range(4): a(f'buffer_load_dwordx4 {vr(K+4*i,4)}, v3, {SW}, s94 offen offset:{i*1024} {ld_flags}')
    for i in range(8): a(f'buffer_load_dwordx4 {vr(K+16+4*i,4)}, v{2+(i>>2)}, {SW}, s93 offen offset:{(i&3)*1024} {ld_flags}')
    for i in range(8): a(f'buffer_load_dwordx2 {vr(V+6*i,2)}, v{2+(i>>2)}, {SW}, s96 offen offset:{(i&3)*1024+8} {ld_flags}')
    for i in range(8): a(f'buffer_load_dwordx4 {vr(V+6*i+2,4)}, v{2+(i>>2)}, {SW}, s95 offen offset:{(i&3)*1024} {ld_flags}')
    lane_masks(a, 40, lambda k, g, c: ((4*g + k >= c + 2) and (4*g + k - c) % 2 == 0) if k < 4 else ((4*g + k - 4 <= c) and (c - 4*g - k) % 2 == 0), 8)
    a(f's_cmp_lt_u32 {sItem}, 8')
    for k in range(4): a(f's_cselect_b64 s[{56+2*k}:{57+2*k}], 0, s[{40+2*k}:{41+2*k}]')
    a(f's_mov_b32 s21, {f32bits(scale * math.log2(math.e)):#x}')
    a(f'v_mov_b32 v6, {f32bits(-1e9 / scale):#x}')
    a('s_waitcnt vmcnt(16)')
    S = 136
    for qt in range(2):
        for j in range(4):
            d = S + 8 * (4*qt + j)
            for e in range(2):
                a(f'v_mfma_f32_16x16x32_bf16 {vr(d+4*e,4)}, {vr(K + 16*(qt+e) + 4*j, 4)}, {vr(Q + 16*qt + 4*j, 4)}, 0')
    for u in range(8):
        qt = u >> 2; d = S + 8 * u
        for r in range(8):
            mb = (56 + 2*r) if (qt == 0 and r < 4) else (40 + 2*r)
            a(f'v_cndmask_b32 v{d+r}, v6, v{d+r}, s[{mb}:{mb+1}]')
        softmax(a, [d + r for r in range(8)], 'v4', 'v5', 's21')
        for q in range(4): a(f'v_cvt_pk_bf16_f32 v{Q+4*u+q}, v{d+2*q}, v{d+2*q+1}')
    a('s_waitcnt vmcnt(0)')
    for u in range(8):
        qt, j = u >> 2, u & 3; d = S + 8 * u
        for t1 in range(2):
            a(f'v_mfma_f32_16x16x32_bf16 {vr(d+4*t1,4)}, {vr(V + 6*(2*j+t1) + 2*qt, 4)}, {vr(Q+4*u,4)}, 0')
    for u in range(8):
        qt, j = u >> 2, u & 3; d = S + 8 * u; e = K + 4 * u
        for q in range(4): a(f'v_cvt_pk_bf16_f32 v{e+q}, v{d+2*q}, v{d+2*q+1}')
        a(f'buffer_store_dwordx4 {vr(e,4)}, v{2+qt}, {SW}, s97 offen offset:{j*1024} {st_flags}')
```

```python
import sys, os
sys.path.insert(0, os.path.dirname(os.path.abspath(__file__)))
from asmgen import *
from layout import *
import rec, gemm, attn
from rec import srd, lane_expr
from gemm import *
NAME = 'concat_heads__memory_aug_recurrent_mem_tr__sliding_local_dilated__prompt'

def kd(name, vgpr, accum, sgpr=102):
    return f""".amdhsa_kernel {name}
  .amdhsa_next_free_vgpr {vgpr}
  .amdhsa_next_free_sgpr {sgpr}
  .amdhsa_accum_offset {accum}
  .amdhsa_group_segment_fixed_size 0
  .amdhsa_kernarg_size 104
  .amdhsa_user_sgpr_count 2
  .amdhsa_user_sgpr_kernarg_segment_ptr 1
  .amdhsa_system_sgpr_workgroup_id_x 1
  .amdhsa_float_denorm_mode_32 3
  .amdhsa_float_denorm_mode_16_64 3
.end_amdhsa_kernel
"""

def k1(stamp=False, ldx=2048, ldw=8192, **g):
    a = Asm()
    a('s_cmp_ge_u32 s2, 480'); a('s_cbranch_scc1 L_k1_end')
    a('s_load_dwordx16 s[64:79], s[0:1], 0')
    a('s_load_dwordx2 s[80:81], s[0:1], 64')
    a('s_load_dwordx2 s[82:83], s[0:1], 96')
    a('s_waitcnt lgkmcnt(0)')
    srd(a, 16, 82, WS_BYTES)
    a('s_cmp_ge_u32 s2, 256'); a('s_cbranch_scc1 L_k1_noinit')
    a('s_lshl_b32 s90, s2, 14'); a(f's_add_u32 s90, s90, {RING:#x}')
    a('v_lshlrev_b32 v1, 4, v0')
    for r in range(4): a(f'v_mov_b32 v{4+r}, -1')
    for q in range(4):
        a(f'buffer_store_dwordx4 v[4:7], v1, s[16:19], s90 offen'); a('s_add_u32 s90, s90, 4096')
    a.label('L_k1_noinit')
    a(f's_mov_b32 {sLdx}, {ldx}'); a(f's_mov_b32 {sNk}, 8')
    a('s_cmp_ge_u32 s2, 384'); a('s_cbranch_scc1 L_k1_B')
    a('s_lshr_b32 s84, s2, 7'); a('s_lshr_b32 s85, s2, 4'); a('s_and_b32 s85, s85, 7'); a('s_and_b32 s86, s2, 15')
    srd(a, 8, 64, 4 * MB)
    a('s_cmp_eq_u32 s84, 0'); a('s_cselect_b64 s[88:89], s[68:69], s[70:71]')
    a('s_cmp_eq_u32 s84, 2'); a('s_cselect_b64 s[88:89], s[72:73], s[88:89]')
    srd(a, 12, 88, 8 * MB)
    a(f's_mov_b32 {sLdw}, {ldw}'); a(f's_mov_b32 {sSeg}, {256*KB}')
    a(f's_lshl_b32 {sXo}, s85, 19'); a(f's_lshl_b32 {sWo}, s86, 9')
    a(f's_lshl_b32 {sOo}, s84, 24'); a('s_lshl_b32 s90, s85, 21'); a(f's_add_u32 {sOo}, {sOo}, s90')
    a('s_lshl_b32 s90, s86, 14'); a(f's_add_u32 {sOo}, {sOo}, s90')
    a('s_branch L_k1_go')
    a.label('L_k1_B')
    a('s_sub_u32 s87, s2, 384'); a('s_and_b32 s85, s87, 7'); a('s_lshr_b32 s86, s87, 3'); a('s_lshr_b32 s84, s86, 2')
    srd(a, 8, 78, 4 * MB); srd(a, 12, 80, 6 * MB)
    a(f's_mov_b32 {sLdw}, 6144'); a(f's_mov_b32 {sSeg}, {64*KB}')
    a(f's_lshl_b32 {sXo}, s85, 19'); a(f's_lshl_b32 {sWo}, s86, 9')
    a(f's_lshl_b32 {sOo}, s84, 22'); a('s_lshl_b32 s90, s85, 19'); a(f's_add_u32 {sOo}, {sOo}, s90')
    a('s_and_b32 s90, s86, 3'); a('s_lshl_b32 s90, s90, 14'); a(f's_add_u32 {sOo}, {sOo}, s90'); a(f's_add_u32 {sOo}, {sOo}, {BQKV:#x}')
    a.label('L_k1_go')
    a('s_cmp_eq_u32 s84, 2'); a('s_cbranch_scc1 L_k1_V')
    lds = gen_gemm(a, 'g1', 256, 256, 'row', 'T', 'qk', stamp=stamp and 's[16:19]', **g)
    a('s_endpgm')
    a.label('L_k1_V')
    gen_gemm(a, 'g2', 256, 256, 'row', 'N', 'v', stamp=stamp and 's[16:19]', **g)
    a.label('L_k1_end')
    a('s_endpgm')
    a.fix_hazards()
    return a, lds

def k3():
    a = Asm()
    a('s_cmp_ge_u32 s2, 640'); a('s_cbranch_scc1 L_k3_end')
    a('s_load_dwordx2 s[82:83], s[0:1], 96')
    a('v_and_b32 v1, 63, v0'); a('v_lshrrev_b32 v2, 6, v0'); a('s_nop 0'); a('v_readfirstlane_b32 s84, v2')
    a('s_waitcnt lgkmcnt(0)')
    srd(a, 4, 82, WS_BYTES)
    a('s_lshl_b32 s85, s2, 2'); a('s_add_u32 s85, s85, s84')
    a('s_cmp_ge_u32 s2, 512'); a('s_cbranch_scc1 L_k3_B')
    attn.gen_attnA(a, 's85')
    a('s_endpgm')
    a.label('L_k3_B')
    a('s_sub_u32 s85, s85, 2048')
    attn.gen_attnB(a, 's85')
    a.label('L_k3_end')
    a('s_endpgm')
    a.fix_hazards()
    return a

def k4(stamp=False, ldx=0, ldw=0, **g):
    a = Asm()
    a('s_cmp_ge_u32 s2, 256'); a('s_cbranch_scc1 L_k4_end')
    a('s_load_dwordx2 s[64:65], s[0:1], 40')
    a('s_load_dwordx4 s[68:71], s[0:1], 72')
    a('s_load_dwordx2 s[82:83], s[0:1], 96')
    a('s_waitcnt lgkmcnt(0)')
    srd(a, 8, 82, WS_BYTES); srd(a, 16, 70, 8 * MB)
    a('s_and_b32 s86, s2, 7'); a('s_lshr_b32 s85, s2, 3'); a('s_and_b32 s85, s85, 15')
    a(f's_mov_b32 {sLdw}, 2048'); a(f's_mov_b32 {sSeg}, 4096')
    a(f's_lshl_b32 {sWo}, s86, 8'); a(f's_lshl_b32 {sOo}, s85, 19'); a(f's_add_u32 {sOo}, {sOo}, {sWo}')
    a('s_cmp_ge_u32 s2, 128'); a('s_cbranch_scc1 L_k4_B')
    srd(a, 12, 64, 8 * MB)
    a(f's_mov_b32 {sLdx}, {256*KB}'); a(f's_mov_b32 {sNk}, 32')
    a(f's_lshl_b32 {sXo}, s85, 20'); a(f's_add_u32 {sXo}, {sXo}, {OA:#x}')
    a('s_branch L_k4_go')
    a.label('L_k4_B')
    srd(a, 12, 68, 2 * MB)
    a(f's_mov_b32 {sLdx}, {64*KB}'); a(f's_mov_b32 {sNk}, 8')
    a(f's_lshl_b32 {sXo}, s85, 18'); a(f's_add_u32 {sXo}, {sXo}, {OB:#x}'); a(f's_add_u32 {sOo}, {sOo}, 2048')
    a.label('L_k4_go')
    lds = gen_gemm(a, 'g3', 128, 128, 'packed', 'T', 'out', stamp=stamp and 's[8:11]', **g)
    a.label('L_k4_end')
    a('s_endpgm')
    a.fix_hazards()
    return a, lds

def build(gst=0, g={}, only=None, grid1=480, **kw):
    a1, lds1 = k1(gst == 1, **g); a2, _ = rec.gen_rec_kernel(**kw); a3 = k3(); a4, lds4 = k4(gst == 4, **g)
    ref = open(os.path.join(os.path.dirname(os.path.abspath(__file__)), '..', NAME + '.s.ref')).read().split('\n')
    head = [l for l in ref if l.startswith(';') and '@launch' not in l and 'Override' not in l and 'grid=ceil' not in l][:14]
    ks = [('qkv_kernel', a1, grid1, lds1, 512, 256), ('rec_kernel', a2, 256, 128 * 1024, 512, 256),
          ('attn_kernel', a3, 640, 0, 200, 200), ('outp_kernel', a4, 256, lds4, 256, 192)]
    if only is not None: ks = [ks[i] for i in only]
    t = '\n'.join(head) + '\n'
    for n, a, g, lds, v, acc in ks: t += f'; @launch kernel={n} grid=({g},1,1) block=(256,1,1) lds={lds}\n'
    t += '.amdgcn_target "amdgcn-amd-amdhsa--gfx950"\n.text\n'
    for n, a, g, lds, v, acc in ks:
        t += f'.globl {n}\n.p2align 8\n.type {n},@function\n{n}:\n' + a.text()
    t += '.section .rodata,"a"\n'
    for n, a, g, lds, v, acc in ks: t += '.p2align 6\n' + kd(n, v, acc)
    return t

if __name__ == '__main__':
    out = sys.argv[1] if len(sys.argv) > 1 else os.path.join(os.path.dirname(os.path.abspath(__file__)), '..', NAME + '.s')
    open(out, 'w').write(build(**eval('dict(%s)' % (sys.argv[2] if len(sys.argv) > 2 else ''))))
    print('written', out, os.path.getsize(out))
```

```python
from asmgen import *
from layout import *
from rec import lane_expr, srd

sXo, sWo, sOo, sLdx, sLdw, sNk, sSeg, sWv, sWstep, sM0x, sM0w = [f's{i}' for i in list(range(20, 28)) + [51, 52, 53]]
SX, SWt, SO = 's[8:11]', 's[12:15]', 's[16:19]'

class Gemm:
    def __init__(self, BM, BN, BK, NS, xmode, perm_out=False, ld_flags=''):
        self.__dict__.update(locals())
        self.TM, self.TN = BM // 64, BN // 64
        self.XB, self.WB = BM * BK * 2, BN * BK * 2
        self.BUF = self.XB + self.WB
        self.NX, self.NW = self.XB // 4096, self.WB // 4096
        self.ND = self.NX + self.NW
        self.RB = BN * 2
        self.RPI = 1024 // self.RB
        self.KS = BK // 16
        p = 2
        self.XA = p; p += self.NX
        self.WA = p; p += self.NW
        self.nxr = self.KS if xmode == 'row' else 1
        self.NWIN = -(-NS * self.BUF // 65536)
        self.XR = p; p += self.nxr * self.NWIN
        self.WR = p; p += self.TN * self.NWIN
        self.TMP = p; p += 4
        p = (p + 3) // 4 * 4
        self.FX = [p, p + 4 * self.TM]; p += 8 * self.TM
        self.FW = [p, p + 4 * self.TN]; p += 8 * self.TN
        self.END = p
        self.lds = NS * self.BUF
    def acc(self, i, j): return ar(16 * (i * self.TN + j), 16)
    def dma(self, s):
        out = []
        xs = [[f's_add_u32 m0, {sM0x}, {s*self.BUF + j*1024}', f'buffer_load_dwordx4 v{self.XA+j}, {SX}, {sXo} offen {self.ld_flags} lds'] for j in range(self.NX)]
        ws = [[f's_add_u32 m0, {sM0w}, {s*self.BUF + j*1024}', f'buffer_load_dwordx4 v{self.WA+j}, {SWt}, {sWo} offen lds'] for j in range(self.NW)]
        while xs or ws:
            if xs: out.append(xs.pop(0))
            if ws: out.append(ws.pop(0))
        return out
    def adv(self, s):
        if self.xmode == 'row': x = self.BK * 2
        else:
            per = 128 // self.BK
            x = self.BK * 32 if (s + 1) % per else 8192 - (per - 1) * self.BK * 32
        return [f's_add_u32 {sXo}, {sXo}, {x}', f's_add_u32 {sWo}, {sWo}, {sWstep}']
    def setup(self, a):
        g = self; lane = 'v1'; t0, t1 = f'v{g.TMP}', f'v{g.TMP+1}'
        kw = dict(lane=lane, tmp=t1)
        a(f'v_and_b32 {lane}, 63, v0')
        a(f'v_lshrrev_b32 {t0}, 6, v0'); a('s_nop 0'); a(f'v_readfirstlane_b32 {sWv}, {t0}')
        CPR = g.BK // 8; sh = CPR.bit_length() - 1; RX = 64 // CPR
        if g.xmode == 'row':
            a(f's_mul_i32 s90, {sWv}, {RX*g.NX}')
            a(f'v_lshrrev_b32 {t0}, {sh}, {lane}'); a(f'v_add_u32 {t0}, s90, {t0}')
            a(f'v_mul_lo_u32 {t0}, {t0}, {sLdx}')
            a(f'v_lshrrev_b32 {t1}, 4, {lane}'); a(f'v_xor_b32 {t1}, {t1}, {lane}'); a(f'v_and_b32 {t1}, {CPR-1}, {t1}')
            a(f'v_lshl_add_u32 v{g.XA}, {t1}, 4, {t0}')
            a(f's_mul_i32 s91, {sLdx}, {RX}')
            for j in range(1, g.NX):
                a(f'v_add_u32 v{g.XA+j}, s91, v{g.XA+j-1}')
                if g.BK == 64: a(f'v_xor_b32 v{g.XA+j}, 64, v{g.XA+j}')
        else:
            bpt = g.BK // 32
            bps = 2 * bpt
            assert g.NX % bps == 0
            a(f's_mul_i32 s90, {sWv}, {g.NX//bps}'); a(f's_mul_i32 s90, s90, {sLdx}')
            for j in range(g.NX):
                if j % bps == 0 and j: a(f's_add_u32 s90, s90, {sLdx}')
                lane_expr(a, f'v{g.XA+j}', [(0, 6, 16)], const=((j // bpt) & 1) * 4096 + (j % bpt) * 1024, sadd=['s90'], **kw)
        LPR = g.RB // 16; sh = LPR.bit_length() - 1
        a(f's_mul_i32 s90, {sWv}, {g.NW*g.RPI}')
        for j in range(g.NW):
            a(f'v_lshrrev_b32 {t0}, {sh}, {lane}'); a(f'v_add_u32 {t0}, {g.RPI*j}, {t0}')
            a(f'v_and_b32 {t1}, 3, {t0}'); a(f'v_lshlrev_b32 {t1}, 2, {t1}'); a(f'v_xor_b32 {t1}, {t1}, {lane}'); a(f'v_and_b32 {t1}, {LPR-1}, {t1}')
            a(f'v_add_u32 {t0}, s90, {t0}'); a(f'v_mul_lo_u32 {t0}, {t0}, {sLdw}')
            a(f'v_lshl_add_u32 v{g.WA+j}, {t1}, 4, {t0}')
        a(f's_mul_i32 {sWstep}, {sLdw}, {g.BK}')
        a(f's_mul_i32 {sM0x}, {sWv}, {g.NX*1024}'); a(f's_mul_i32 {sM0w}, {sWv}, {g.NW*1024}'); a(f's_add_u32 {sM0w}, {sM0w}, {g.XB}')
        for s in range(g.NS):
            for grp in g.dma(s):
                for x in grp: a(x)
            for x in g.adv(s): a(x)
        a(f's_lshr_b32 s90, {sWv}, 1'); a(f's_and_b32 s91, {sWv}, 1')
        a(f's_mul_i32 s92, s90, {g.XB//2}')
        if g.xmode == 'row':
            lane_expr(a, t0, [(0, 5, g.BK * 2)], sadd=['s92'], **kw)
            a(f'v_lshrrev_b32 {t1}, {1 if g.BK == 64 else 2}, {lane}'); a(f'v_and_b32 {t1}, {CPR-1}, {t1}')
            a(f'v_lshrrev_b32 v{g.TMP+2}, 5, {lane}'); a(f'v_xor_b32 {t1}, {t1}, v{g.TMP+2}')
            a(f'v_lshl_add_u32 v{g.XR}, {t1}, 4, {t0}')
            for kk in range(1, g.KS): a(f'v_xor_b32 v{g.XR+kk}, {32*kk}, v{g.XR}')
        else:
            lane_expr(a, f'v{g.XR}', [(0, 4, 16), (4, 1, g.BK * 32), (5, 1, 256)], sadd=['s92'], **kw)
        for w in range(1, g.NWIN):
            for kk in range(g.nxr): a(f'v_add_u32 v{g.XR + w*g.nxr + kk}, {65536*w}, v{g.XR+kk}')
        hirow = 8 if g.xmode == 'row' else 4
        colterms = [(4, 1, 32), (0, 2, 8)] if not g.perm_out else [(0, 1, 32), (4, 1, 16), (1, 1, 8)]
        lane_expr(a, t0, [(2, 2, g.RB), (5, 1, hirow * g.RB)] + colterms, **kw)
        a(f's_mul_i32 s92, s91, {g.TN}')
        for jn in range(g.TN):
            a(f's_add_u32 s93, s92, {jn}')
            a(f'v_bfe_u32 {t1}, {lane}, 2, 2'); a(f'v_xor_b32 {t1}, s93, {t1}')
            a(f'v_lshl_add_u32 v{g.WR+jn}, {t1}, 6, {t0}')
            for w in range(1, g.NWIN): a(f'v_add_u32 v{g.WR + w*g.TN + jn}, {65536*w}, v{g.WR+jn}')
    def frags(self, s, kk, f):
        g = self
        xs, wl = [], []
        for i in range(g.TM):
            off = s * g.BUF + i * 32 * g.BK * 2 + (0 if g.xmode == 'row' else 512 * kk)
            w, off = off >> 16, off & 0xffff
            xs.append(f'ds_read_b128 {vr(g.FX[f] + 4*i, 4)}, v{g.XR + w*g.nxr + (kk if g.xmode == "row" else 0)} offset:{off}')
        for jn in range(g.TN):
            for h in range(2):
                row = 16 * kk + 4 * h if g.xmode == 'row' else 32 * (kk >> 1) + 8 * (kk & 1) + 16 * h
                off = s * g.BUF + g.XB + row * g.RB
                w, off = off >> 16, off & 0xffff
                wl.append(f'ds_read_b64_tr_b16 {vr(g.FW[f] + 4*jn + 2*h, 2)}, v{g.WR + w*g.TN + jn} offset:{off}')
        res = []
        while xs or wl:
            if xs: res.append(xs.pop(0))
            res += wl[:2]; wl = wl[2:]
        return res
    def mfmas(self, f, orient, first=False):
        g = self; out = []
        for i in range(g.TM):
            for j in range(g.TN):
                X, W = vr(g.FX[f] + 4*i, 4), vr(g.FW[f] + 4*j, 4)
                A, B = (W, X) if orient == 'T' else (X, W)
                out.append(f'v_mfma_f32_32x32x16_bf16 {g.acc(i,j)}, {A}, {B}, {0 if first else g.acc(i,j)}')
        return out
    def loop(self, a, tag, orient, younger=0, hook=None, exp=''):
        g = self; L = lambda s: f'L_{tag}_{s}'
        NS, KS, ND = g.NS, g.KS, g.ND
        a(f's_waitcnt vmcnt({min(63, (NS-1)*ND + younger)})'); a('s_barrier')
        for x in g.frags(0, 0, 0): a(x)
        def stage(s, pend, wait, do_dma, last=False, first=False, after=None):
            for kk in range(KS):
                ms = g.mfmas(kk & 1, orient, first and kk == 0)
                n = len(ms)
                a('s_waitcnt lgkmcnt(0)')
                start = 0
                if kk == KS - 1:
                    if last:
                        for m in ms: a(m)
                        return []
                    assert not pend
                    a(ms[0]); start = 1
                    a(f's_waitcnt vmcnt({wait})'); a('s_barrier')
                    if after: after(a)
                    rd = g.frags((s + 1) % NS, 0, 0)
                    if do_dma: pend = g.dma(s) + [g.adv(s)]
                    quota = -(-len(pend) // KS)
                    if 'front' in exp: quota = -(-len(pend) // 2)
                else:
                    rd = g.frags(s, kk + 1, (kk + 1) & 1)
                    quota = -(-len(pend) // (KS - 1 - kk))
                    if 'front' in exp: quota = len(pend)
                slots = n - start
                per = -(-len(rd) // max(1, slots - 2 if slots > 4 else slots))
                quota = min(quota, len(pend))
                pos = [start + (q * slots) // quota for q in range(quota)] if quota else []
                for q in range(start, n):
                    mine = [pend.pop(0) for _ in range(pos.count(q))]
                    pre = mine[0][:1] if mine else []
                    for x in pre: a(x)
                    a(ms[q])
                    for k, grp in enumerate(mine):
                        for x in (grp[1:] if k == 0 else grp): a(x)
                    for x in rd[:per]: a(x)
                    rd = rd[per:]
                assert not rd
            return pend
        W = (NS - 2) * ND
        pend = []
        a(f's_sub_u32 {sNk}, {sNk}, 1')
        for s in range(NS):
            w = W + younger if s < NS - 1 else W
            pend = stage(s, pend, min(63, w), True, first=(s == 0), after=hook if s == NS - 1 else None)
        p0 = [list(x) for x in pend]
        a.label(L('loop'))
        a(f's_sub_u32 {sNk}, {sNk}, 1'); a(f's_cmp_eq_u32 {sNk}, 0'); a(f's_cbranch_scc1 {L("fin")}')
        for s in range(NS): pend = stage(s, pend, W, True)
        assert pend == p0
        a(f's_branch {L("loop")}')
        a.label(L('fin'))
        pend = [list(x) for x in p0]
        for s in range(NS): pend = stage(s, pend, max(0, NS - 2 - s) * ND, False, last=(s == NS - 1))
    def epilogue(self, a, epi, EP, st_flags='', lane='v1'):
        g = self; TM, TN = g.TM, g.TN
        t0, t1, ad = f'v{EP}', f'v{EP+1}', f'v{EP+2}'
        EP += 4
        kw = dict(lane=lane, tmp=t1)
        a(f's_lshr_b32 s90, {sWv}, 1'); a(f's_and_b32 s91, {sWv}, 1')
        def rdacc(dst, i, j, regs):
            for q, r in enumerate(regs): a(f'v_accvgpr_read_b32 v{dst+q}, a{16*(i*TN+j)+r}')
        cnt = 0
        if epi in ('qk', 'v'):
            hs, ks = (4096, 1024) if epi == 'qk' else (1024, 2048)
            lane_expr(a, ad, [(0, 4, 16), (4, 1, hs), (5, 1, 256)], **kw)
            a(f's_mul_i32 s92, s90, {TM}'); a(f's_mul_i32 s92, s92, {sSeg}'); a(f's_add_u32 s92, s92, {sOo}')
            a(f's_mul_i32 s93, s91, {8192 if TN == 4 else TN*ks}'); a('s_add_u32 s92, s92, s93')
            for i in range(TM):
                for j in range(TN):
                    a(f's_add_u32 s93, s92, {j*ks}')
                    for ap in range(2):
                        e = EP + 12 * (cnt % 4); cnt += 1
                        if epi == 'qk': rdacc(e + 4, i, j, [4*ap + (q >> 1) + 8 * (q & 1) for q in range(8)])
                        else: rdacc(e + 4, i, j, [4*ap + q for q in range(4)] + [4*ap + 8 + q for q in range(4)])
                        for q in range(4): a(f'v_cvt_pk_bf16_f32 v{e+q}, v{e+4+2*q}, v{e+5+2*q}')
                        a(f'buffer_store_dwordx4 {vr(e,4)}, {ad}, {SO}, s93 offen offset:{512*ap} {st_flags}')
                a(f's_add_u32 s92, s92, {sSeg}')
        else:
            a(f'v_and_b32 {t0}, 31, {lane}'); a(f'v_mul_lo_u32 {t0}, {t0}, {sSeg}')
            a(f'v_lshrrev_b32 {t1}, 5, {lane}'); a(f'v_lshl_add_u32 {ad}, {t1}, 5, {t0}')
            a(f's_mul_i32 s92, s90, {TM*32}'); a(f's_mul_i32 s92, s92, {sSeg}'); a(f's_add_u32 s92, s92, {sOo}')
            a(f's_mul_i32 s93, s91, {TN*64}'); a('s_add_u32 s92, s92, s93')
            a(f's_lshl_b32 s94, {sSeg}, 5')
            for i in range(TM):
                for j in range(TN):
                    for ap in range(2):
                        e = EP + 12 * (cnt % 4); cnt += 1
                        rdacc(e + 4, i, j, [8*ap + q for q in range(8)])
                        for q in range(4): a(f'v_cvt_pk_bf16_f32 v{e+q}, v{e+4+2*q}, v{e+5+2*q}')
                        a(f'buffer_store_dwordx4 {vr(e,4)}, {ad}, {SO}, s92 offen offset:{64*j + 16*ap} {st_flags}')
                a('s_add_u32 s92, s92, s94')
        return cnt

def gen_gemm(a, tag, BM, BN, xmode, orient, epi, st_flags='', stamp=False, BK=None, NS=None, K=None, exp=''):
    BK = BK or (32 if BM * BN == 65536 else 64); NS = NS or 4
    g = Gemm(BM, BN, BK, NS, xmode, perm_out=(epi == 'out'))
    r = BK * NS // 128
    if r > 1: a(f's_lshr_b32 {sNk}, {sNk}, {r.bit_length()-1}')
    if stamp: a('s_memtime s[40:41]')
    g.setup(a)
    if stamp: a(f's_waitcnt vmcnt({(NS-1)*g.ND})'); a('s_barrier'); a('s_memtime s[42:43]')
    g.loop(a, tag, orient, exp=exp)
    if stamp: a('s_memtime s[44:45]')
    g.epilogue(a, epi, g.END, st_flags)
    if stamp:
        a('s_memtime s[46:47]'); a('s_waitcnt vmcnt(0)'); a('s_memtime s[48:49]'); a('s_waitcnt lgkmcnt(0)')
        a('s_sub_u32 s48, s48, s46'); a('s_sub_u32 s46, s46, s44'); a('s_sub_u32 s44, s44, s42'); a('s_sub_u32 s42, s42, s40')
        a('v_mov_b32 v4, s42'); a('v_mov_b32 v5, s44'); a('v_mov_b32 v6, s46'); a('v_mov_b32 v7, s48')
        a('s_lshl_b32 s90, s2, 2'); a(f's_add_u32 s90, s90, {sWv}'); a('s_lshl_b32 s90, s90, 4'); a(f's_add_u32 s90, s90, {STAMP:#x}')
        a('v_mov_b32 v8, 0'); a('s_mov_b64 exec, 1')
        a(f'buffer_store_dwordx4 v[4:7], v8, {stamp}, s90 offen')
    return g.lds
```

```python
import math
from asmgen import *
from layout import *

SC = (128 ** -0.5) * math.log2(math.e)
import struct
def f32bits(x): return struct.unpack('<I', struct.pack('<f', x))[0]

def lane_expr(a, dst, terms, const=0, sadd=(), lane='v0', tmp='v31', stmp='s99'):
    a(f'v_mov_b32 {dst}, {const:#x}')
    for (lo, w, mult) in terms:
        a(f'v_bfe_u32 {tmp}, {lane}, {lo}, {w}')
        if mult & (mult - 1) == 0:
            a(f'v_lshl_add_u32 {dst}, {tmp}, {mult.bit_length()-1}, {dst}')
        else:
            a(f's_mov_b32 {stmp}, {mult}')
            a(f'v_mad_u32_u24 {dst}, {tmp}, {stmp}, {dst}')
    for s in sadd:
        a(f'v_add_u32 {dst}, {s}, {dst}')

def srd(a, d, base, size):
    a(f's_mov_b32 s{d}, s{base}')
    a(f's_and_b32 s{d+1}, s{base+1}, 0xffff')
    a(f's_mov_b32 s{d+2}, {size:#x}')
    a(f's_mov_b32 s{d+3}, 0x20000')

SW = 's[4:7]'
(aPartLd, aMemSt, aMemLd, aRedW, aRedRv, aRedR, aQ0, aQ1, aQkLd, aVLd, aKx, aVx0, aVx1, aOW0, aOW1, aOR,
 aPartSt, aPartStL, aE0, aE1, aWarm) = [f'v{i}' for i in range(1, 22)]
aRR = ['v6', 'v240', 'v241', 'v242']
vNeg = 'v22'
vIdx = 'v23'
NEG = 24
SEL = 24
T = 28
WACC = 32
GL = 36
GD = 40
GT = 44
SA = 36
MA = 48
QA = 64
XR = 64
WA = 48
RD = 88
VMR = 88
YY = 96
LR = 100
PA = 100
ET = 104
KXR = 116
VB = 148
VL = 180
OB_ = 212
def OT(j): return OB_ + 4 * j
OSUM = 228
PM = 232
CT = 236
ONES = 248
PUB = 112
sW, sX, sI, sG, sU, sHQ, sJ, sPol = 's32', 's33', 's34', 's35', 's36', 's37', 's38', 's39'
sStep, sSlot, sPrev, sRst, sKV, sExp, sSpin, sC = 's40', 's41', 's42', 's43', 's44', 's45', 's46', 's47'
sHalf0, sOdd, sEven = 's[48:49]', 's[50:51]', 's[52:53]'
sGuard, sKV2 = 's54', 's55'
LDS_RED = 0
RM, RW = 1088, 3264
LDS_O = 13312
SPIN_MAX = 1 << 21

class Stamps:
    def __init__(self, a, on): self.a = a; self.on = on; self.n = 0; self.names = []
    def init(self):
        if not self.on: return
        for k in range(16): self.a(f's_mov_b32 s{64+k}, 0')
        self.calib(76)
        self.a('s_memtime s[60:61]'); self.a('s_waitcnt lgkmcnt(0)')
    def calib(self, d):
        if self.on not in (2, 4): return
        if self.on == 4: d += 20
        a = self.a; l = a.newlabel('L_cal')
        a('s_memrealtime s[60:61]'); a('s_waitcnt lgkmcnt(0)')
        a.label(l)
        a('s_memrealtime s[62:63]'); a('s_memtime s[56:57]'); a('s_waitcnt lgkmcnt(0)')
        a('s_cmp_eq_u32 s60, s62'); a(f's_cbranch_scc1 {l}')
        a(f's_mov_b32 s{d}, s62'); a(f's_mov_b32 s{d+1}, s56')
    def __call__(self, name, only4=False):
        if not self.on: return
        if only4 and self.on != 4: return
        if self.on == 4 and name == 'PV': return
        if self.on == 3 and name != 'tail': return
        if name not in self.names: self.names.append(name)
        k = self.names.index(name)
        a = self.a
        if self.on == 4:
            a(f's_memtime s[{64+2*k}:{65+2*k}]'); return
        if self.on == 2:
            a('s_memtime s[62:63]'); a('s_waitcnt lgkmcnt(0)')
            a(f's_cmp_eq_u32 {sStep}, 40'); a(f's_cselect_b32 s{64+k}, s62, s{64+k}')
            return
        a('s_memtime s[62:63]'); a('s_waitcnt lgkmcnt(0)')
        a('s_sub_u32 s61, s62, s60'); a(f's_add_u32 s{64+k}, s{64+k}, s61'); a('s_mov_b32 s60, s62')

def chk(base, n=4, dst='vcc', t=None):
    t = t or f'v{T+3}'
    regs = [f'v{base+i}' for i in range(n)]
    out = [f'v_max3_u32 {t}, {regs[0]}, {regs[1]}, {regs[2]}']
    regs = regs[3:]
    while len(regs) >= 2:
        out.append(f'v_max3_u32 {t}, {t}, {regs[0]}, {regs[1]}'); regs = regs[2:]
    if regs: out.append(f'v_max_u32 {t}, {t}, {regs[0]}')
    out.append(f'v_cmp_eq_u32 {dst}, -1, {t}')
    return out

def spin_guard(c):
    c(f's_add_u32 {sSpin}, {sSpin}, 1'); c(f's_cmp_ge_u32 {sSpin}, {SPIN_MAX}'); c('s_cbranch_scc1 L_rec_abort')

def signal(a, off, soff='0', wave=None):
    l = a.newlabel('L_sig')
    a(f's_cmp_lg_u32 {wave or sW}, 0'); a(f's_cbranch_scc1 {l}')
    a('v_mov_b32 v254, 1'); a('v_mov_b32 v255, 0')
    a('s_mov_b64 exec, 1')
    a(f'buffer_atomic_add v254, v255, s[28:31], {soff} offen offset:{off} sc1')
    a('s_mov_b64 exec, -1')
    a.label(l)

def gather(a, cold, name, loads, regs, work, extra=0, thr=2):
    n = len(loads)
    done = f'L_{name}_done'
    def mix(w, pre):
        return w[:1] + pre + w[1:]
    a(f's_waitcnt vmcnt({n-1+extra})')
    for x in chk(regs[0]): a(x)
    ex = [extra]
    for j in range(n):
        a(f's_cbranch_vccnz L_{name}_f{j}')
        if j + 1 < n:
            for x in mix(work[j], [f's_waitcnt vmcnt({n-2-j+ex[j]})'] + chk(regs[j+1])): a(x)
        else:
            for x in work[j]: a(x)
        ex.append(ex[j] + sum(x.startswith('buffer_') for x in work[j]))
    a.label(done)
    c = cold
    def key(S): return ''.join(map(str, S))
    def succ(S, j):
        later = [x for x in S if x > j]
        return later[0] if later else S[0]
    for j in range(n):
        S = tuple(range(j, n))
        c.label(f'L_{name}_f{j}')
        c('s_mov_b64 exec, vcc'); c(loads[j]); c('s_mov_b64 exec, -1')
        c(f's_waitcnt vmcnt({1+ex[j]})' if len(S) > 1 else f's_nop 7')
        c(f's_branch L_{name}_{key(S)}_c{succ(S, j)}')
    import itertools
    for r in range(1, n + 1):
        for S in itertools.combinations(range(n), r):
            for j in S:
                c.label(f'L_{name}_{key(S)}_c{j}')
                for x in chk(regs[j]): c(x)
                c(f's_cbranch_vccz L_{name}_{key(S)}_ok{j}')
                c.label(f'L_{name}_{key(S)}_x{j}')
                c('s_mov_b64 exec, vcc'); c(loads[j]); c('s_mov_b64 exec, -1')
            spin_guard(c)
            c(f's_waitcnt vmcnt({min(thr * len(S), 2 * thr)})')
            c(f's_branch L_{name}_{key(S)}_c{S[0]}')
            for j in S:
                c.label(f'L_{name}_{key(S)}_ok{j}')
                S2 = tuple(x for x in S if x != j)
                if not S2:
                    for x in work[j]: c(x)
                    c(f's_branch {done}')
                else:
                    nx = succ(S2, j)
                    for x in mix(work[j], chk(regs[nx])): c(x)
                    c(f's_cbranch_vccz L_{name}_{key(S2)}_ok{nx}')
                    c(f's_branch L_{name}_{key(S2)}_x{nx}')

def gather_all(a, cold, name, loads, regs, extra=0, thr=0):
    a(f's_waitcnt vmcnt({extra})')
    for x in chk(regs[0], 8): a(x)
    a(f's_cbranch_vccnz L_{name}_f')
    a.label(f'L_{name}_done')
    c = cold
    c.label(f'L_{name}_f')
    for x in chk(regs[0], 4, 's[56:57]', f'v{T+2}'): c(x)
    for x in chk(regs[1], 4, 'vcc'): c(x)
    c('s_or_b64 exec, s[56:57], 1'); c(loads[0])
    c('s_or_b64 exec, vcc, 1'); c(loads[1]); c('s_mov_b64 exec, -1')
    spin_guard(c)
    c(f's_waitcnt vmcnt({thr})')
    for x in chk(regs[0], 8): c(x)
    c(f's_cbranch_vccz L_{name}_done')
    c(f's_branch L_{name}_f')

def gen_rec(a, nsteps=64, stamps=False, local_st='', exp_st='', exit_label='L_rec_exit', no_pf=False, no_exp=False, pol=None,
            dg=0, d1=0, d2=0, thr=2, gthr=0, warm=True, npre=4, cut=0, f1=24, nv1=5, nv2=3, nA=3, nB=4, nr0=5, vat=0, allafter=0, fused=False, kvshift=3, kvneed=32):
    st = Stamps(a, stamps)
    cold = Asm(); cold.uid = 5000
    if cut == 1: a('s_endpgm')
    a('s_load_dwordx4 s[80:83], s[0:1], 8')
    a('s_load_dwordx4 s[84:87], s[0:1], 24')
    a('s_load_dwordx2 s[88:89], s[0:1], 40')
    a('v_lshrrev_b32 v31, 6, v0')
    a('s_nop 0')
    a(f'v_readfirstlane_b32 {sW}, v31')
    a('v_and_b32 v0, 63, v0')
    a(f's_lshr_b32 {sG}, {sI}, 4'); a(f's_lshl_b32 s90, {sX}, 1'); a(f's_add_u32 {sG}, {sG}, s90')
    a(f's_and_b32 {sU}, {sI}, 15')
    a(f's_lshr_b32 {sHQ}, {sU}, 2'); a(f's_lshl_b32 s90, {sG}, 2'); a(f's_add_u32 {sHQ}, {sHQ}, s90')
    a(f's_and_b32 {sJ}, {sU}, 3')
    a('s_waitcnt lgkmcnt(0)')
    srd(a, 24, 80, 8 * 1024 * 2)
    srd(a, 8, 82, 8 << 20); srd(a, 12, 84, 8 << 20); srd(a, 16, 86, 8 << 20); srd(a, 20, 88, 8 << 20)
    a(f's_lshl_b32 s90, {sW}, 21'); a(f's_lshl_b32 s91, {sHQ}, 8'); a(f's_add_u32 s90, s90, s91')
    a(f's_lshl_b32 s91, {sJ}, 6'); a(f's_add_u32 s90, s90, s91')
    lane_expr(a, 'v1', [(2, 4, 8192), (0, 2, 16)], sadd=['s90'])
    a(f's_lshl_b32 s90, {sG}, 2'); a(f's_add_u32 s90, s90, {sW}'); a('s_lshl_b32 s90, s90, 18'); a(f's_lshl_b32 s91, {sU}, 7'); a('s_add_u32 s90, s90, s91')
    lane_expr(a, 'v2', [(3, 3, 2048), (0, 3, 16)], sadd=['s90'])
    a(f's_lshl_b32 s96, {sW}, 15')
    lane_expr(a, 'v3', [(5, 1, 16 * 64), (4, 1, 8 * 64), (2, 2, 64), (0, 2, 8)], sadd=['s96'])
    a(f's_lshl_b32 s91, {sW}, 5')
    lane_expr(a, 'v4', [(4, 1, 64 * 128), (5, 1, 2 * 128), (2, 1, 8 * 128), (3, 1, 128), (0, 2, 8)], const=16384, sadd=['s91'])
    a('v_add_u32 v5, 0x10000, v4')
    units = [(ks, h, m) for ks in range(4) for h in range(2) for m in range(3)]
    def issue(u):
        for q in range(2):
            a(f's_add_u32 m0, s96, {(u % 16) * 2048 + q * 1024}')
            if u < 24:
                ks, h, m = units[u]
                a(f's_mov_b32 s90, {(64*ks + 32*h + 16*q) * 8192:#x}')
                a(f'buffer_load_dwordx4 v1, s[{8+4*m}:{11+4*m}], s90 offen lds')
            else:
                a(f's_mov_b32 s90, {(16*(u-24) + 8*q) * 2048:#x}')
                a('buffer_load_dwordx4 v2, s[20:23], s90 offen lds')
    NP = 8
    if fused:
        exp_st = 'sc1'
        a(f's_lshl_b32 s58, {sX}, 5'); a(f's_add_u32 s58, s58, {sI}')
        a(f's_lshl_b32 s59, {sW}, 19'); a(f's_add_u32 s59, s59, {RING:#x}')
        a('s_lshl_b32 s90, s58, 11'); a('s_add_u32 s90, s90, s59')
        a('s_mul_i32 s91, s58, 3072'); a('s_add_u32 s91, s91, s59'); a(f's_add_u32 s91, s91, {RING2-RING:#x}')
        a('v_lshlrev_b32 v6, 4, v0')
        for r in range(4): a(f'v_mov_b32 v{8+r}, -1')
        for q in range(2): a(f'buffer_store_dwordx4 v[8:11], v6, {SW}, s90 offen offset:{1024*q} sc1')
        for q in range(3): a(f'buffer_store_dwordx4 v[8:11], v6, {SW}, s91 offen offset:{1024*q} sc1')
    if pol is None:
        lp = a.newlabel('L_np')
        a(f's_lshl_b32 s58, {sX}, 5'); a(f's_add_u32 s58, s58, {sI}'); a(f's_lshl_b32 s58, s58, 2'); a(f's_add_u32 s58, s58, {sW}')
        a('s_cmp_lg_u32 s58, 3'); a(f's_cbranch_scc1 {lp}')
        lane_expr(a, 'v6', [(0, 1, 8192), (1, 1, 4096 + 256), (2, 2, 0x14000 + 512)], const=RING)
        a('v_mov_b32 v7, -1')
        a('s_mov_b64 exec, 0xffff')
        a(f'buffer_store_dword v7, v6, {SW}, 0 offen sc1')
        a('s_mov_b64 exec, -1')
        a('s_waitcnt vmcnt(0)')
        a.label(lp)
    for u in range(16): issue(u)
    if cut == 2: a('s_waitcnt vmcnt(0)'); a('s_endpgm')
    if pol is None:
        lp = a.newlabel('L_np')
        a('s_cmp_lg_u32 s58, 3'); a(f's_cbranch_scc1 {lp}')
        a(f's_add_u32 s92, s94, {RING:#x}'); a('s_addc_u32 s93, s95, 0')
        a('s_mov_b32 s62, -1'); a('s_mov_b32 s63, -1')
        for k in range(NP):
            for pp in range(2):
                a('s_memtime s[56:57]'); a('s_waitcnt lgkmcnt(0)')
                a(f's_load_dword s60, s[92:93], {pp*8192 + (k&1)*(4096+256) + (k>>1)*(0x14000+512):#x}'); a('s_waitcnt lgkmcnt(0)')
                a('s_memtime s[58:59]'); a('s_waitcnt lgkmcnt(0)')
                a('s_sub_u32 s58, s58, s56'); a(f's_min_u32 s{62+pp}, s{62+pp}, s58')
        a('s_cmp_lt_u32 s63, s62'); a('s_cselect_b32 s60, 2, 1')
        a('v_mov_b32 v6, s60'); a('v_mov_b32 v7, s62'); a('v_mov_b32 v8, s63'); a('v_mov_b32 v9, 0')
        a('s_mov_b64 exec, 1')
        a('buffer_store_dword v6, v9, s[28:31], 0 offen offset:32 sc1' if fused else 'buffer_store_dwordx3 v[6:8], v9, s[28:31], 0 offen offset:32 sc1')
        a('s_mov_b64 exec, -1')
        a('s_waitcnt vmcnt(0)')
        a.label(lp)
    for u0 in range(0, 24, 2):
        a(f's_waitcnt vmcnt({2 * (min(u0 + 15, 31) - (u0 + 1))})')
        if fused and u0 == 0:
            a('s_barrier'); signal(a, D_INIT)
        for u in (u0, u0 + 1):
            ks, h, m = units[u]
            for t1 in range(2):
                for rl in range(2):
                    d = ks * 48 + (2*m + t1) * 8 + 4*h + 2*rl
                    a(f'ds_read_b64_tr_b16 {ar(d,2)}, v3 offset:{(u % 16) * 2048 + rl*256 + t1*32}')
        if u0 + 16 < 32:
            a('s_waitcnt lgkmcnt(0)')
            issue(u0 + 16); issue(u0 + 17)
    a('s_waitcnt vmcnt(0)'); a('s_barrier')
    for kk in range(8):
        for rp in range(4):
            hd = kk >> 1
            off = (16*(rp & 1) + 32*(kk & 1) + 4*(rp >> 1)) * 128 + (hd & 1) * 32768
            a(f'ds_read_b64_tr_b16 {ar(192 + kk*8 + 2*rp, 2)}, {"v4" if hd < 2 else "v5"} offset:{off}')
        if kk & 1: a('s_waitcnt lgkmcnt(0)')
    a('s_barrier')
    a(f's_mov_b32 {sSpin}, 0')
    if cut == 3: a('s_endpgm')
    if pol is None:
        a('v_mov_b32 v9, 0')
        a.label('L_polwait')
        a('buffer_load_dwordx2 v[6:7], v9, s[28:31], 0 offen offset:32 sc1')
        if fused: a(f'buffer_load_dword v8, v9, s[28:31], 0 offen offset:{D_KV} sc1')
        a('s_waitcnt vmcnt(0)')
        a(f'v_readfirstlane_b32 {sPol}, v6')
        spin_guard(a)
        if fused:
            a('s_sleep 4')
            a('v_readfirstlane_b32 s90, v7'); a('v_readfirstlane_b32 s91, v8')
            a('s_cmp_lt_u32 s90, 128'); a('s_cbranch_scc1 L_polwait')
            a(f's_cmp_lt_u32 s91, {kvneed}'); a('s_cbranch_scc1 L_polwait')
        a(f's_cmp_eq_u32 {sPol}, 0'); a('s_cbranch_scc1 L_polwait')
        a(f's_sub_u32 {sPol}, {sPol}, 1'); a(f's_and_b32 {sPol}, {sPol}, 1'); a(f's_lshl_b32 {sPol}, {sPol}, 13')
    else:
        a(f's_mov_b32 {sPol}, {pol*8192}')
    a(f's_lshl_b32 s90, {sI}, 2'); a(f's_add_u32 s90, s90, {sW}')
    a('s_lshr_b32 s91, s90, 3'); a('s_lshl_b32 s91, s91, 14'); a('s_and_b32 s92, s90, 7'); a('s_lshl_b32 s92, s92, 10')
    a('s_add_u32 s91, s91, s92'); a(f's_add_u32 s91, s91, {sPol}')
    lane_expr(a, aPartLd, [(0, 6, 16)], sadd=['s91'])
    a('v_lshrrev_b32 v30, 4, v0'); a(f'v_cmp_eq_u32 vcc, {sX}, v30'); a(f'v_xor_b32 v29, 0x2000, {aPartLd}')
    a(f'v_cndmask_b32 {aPartLd}, {aPartLd}, v29, vcc')
    a(f's_lshl_b32 s91, {sX}, 14'); a('s_lshl_b32 s92, s90, 7'); a('s_add_u32 s91, s91, s92')
    lane_expr(a, aMemSt, [(0, 2, 4), (2, 1, 64), (4, 1, 16), (5, 1, 32), (3, 1, OOB)], const=MEM_OFF, sadd=['s91'])
    a('s_lshr_b32 s92, s90, 1'); a('s_lshl_b32 s92, s92, 5'); a('s_and_b32 s91, s90, 1'); a('s_lshl_b32 s91, s91, 13'); a('s_add_u32 s92, s92, s91')
    lane_expr(a, 'v30', [(2, 1, 2 * 2048), (4, 1, 2048), (0, 2, 8), (5, 1, 4)], sadd=['s92'])
    a(f'buffer_load_dword v{GT}, v30, s[24:27], 0 offen')
    a(f's_lshl_b32 s91, {sX}, 14'); a(f's_lshl_b32 s92, {sW}, 12'); a('s_add_u32 s91, s91, s92')
    lane_expr(a, aMemLd, [(0, 6, 16)], const=MEM_OFF, sadd=['s91'])
    a(f's_mul_i32 s91, {sW}, {RW}')
    lane_expr(a, aRedW, [(0, 6, 16)], const=LDS_RED, sadd=['s91'])
    a(f's_lshl_b32 s91, {sW}, 6')
    lane_expr(a, aRR[0], [(0, 2, 16), (2, 1, 4), (3, 1, RM), (4, 2, 256)], const=LDS_RED, sadd=['s91'])
    for w in range(1, 4): a(f'v_add_u32 {aRR[w]}, {RW*w}, {aRR[0]}')
    a(f's_lshl_b32 s93, {sHQ}, 13')
    a(f's_lshl_b32 s91, {sJ}, 10'); a('s_add_u32 s91, s91, s93'); a(f's_lshl_b32 s92, {sW}, 8'); a('s_add_u32 s91, s91, s92')
    lane_expr(a, aQ0, [(0, 6, 4)], const=QKVR_OFF, sadd=['s91'])
    a(f's_lshl_b32 s91, {sHQ}, 11'); a(f's_lshl_b32 s92, {sJ}, 9'); a('s_add_u32 s96, s91, s92')
    a(f's_lshl_b32 s92, {sW}, 7'); a('s_add_u32 s91, s96, s92')
    lane_expr(a, aE0, [(0, 3, 4), (4, 2, 32), (3, 1, OOB)], const=KM + OOB, sadd=['s91'])
    a(f's_lshl_b32 s91, {sW}, 8')
    lane_expr(a, aRedRv, [(0, 1, 128), (1, 1, 8), (2, 3, 16)], const=LDS_RED + 2 * RM, sadd=['s91'])
    a(f's_lshr_b32 s92, {sJ}, 1'); a('s_lshl_b32 s92, s92, 10'); a('s_add_u32 s91, s91, s92'); a('s_add_u32 s91, s91, s93')
    a(f's_and_b32 s92, {sJ}, 1'); a('s_lshl_b32 s92, s92, 7'); a('s_add_u32 s91, s91, s92')
    lane_expr(a, aQ1, [(0, 5, 4), (5, 1, OOB)], const=QKVR_OFF + 4096, sadd=['s91'])
    a('s_sub_u32 s91, s91, s93'); a(f's_lshl_b32 s92, {sHQ}, 11'); a('s_add_u32 s91, s91, s92')
    lane_expr(a, aE1, [(0, 5, 4), (5, 1, OOB)], const=VM, sadd=['s91'])
    a(f's_lshl_b32 s97, {sG}, 2'); a(f's_add_u32 s97, s97, {sW}'); a('s_lshl_b32 s97, s97, 13')
    lane_expr(a, aQkLd, [(0, 6, 16)], const=QKVR_OFF, sadd=['s97'])
    a(f'v_add_u32 {aVLd}, 4096, {aQkLd}')
    lane_expr(a, aKx, [(0, 2, 16), (2, 1, 128), (3, 1, 4096), (4, 2, 256)], const=KX, sadd=['s97'])
    lane_expr(a, aVx0, [(0, 3, 16), (3, 1, 2048), (4, 2, 256)], const=VX, sadd=['s97'])
    a(f'v_add_u32 {aVx1}, 4096, {aVx0}')
    a(f's_lshl_b32 s91, {sU}, 9'); a('s_add_u32 s91, s91, s97')
    lane_expr(a, aWarm, [(0, 3, 64), (3, 1, VX - KX)], const=KX, sadd=['s91'])
    a('v_cmp_gt_u32 vcc, 16, v0'); a(f'v_mov_b32 v30, {OOB:#x}'); a(f'v_cndmask_b32 {aWarm}, v30, {aWarm}, vcc')
    a(f's_lshl_b32 s91, {sW}, 11')
    lane_expr(a, 'v30', [(2, 1, 64), (0, 1, 32), (1, 1, 16)])
    lane_expr(a, 'v29', [(4, 2, 32)])
    a('v_xor_b32 v30, v30, v29')
    lane_expr(a, aOW0, [(0, 4, 128)], const=LDS_O, sadd=['s91'])
    a(f'v_add_u32 {aOW0}, {aOW0}, v30')
    a(f'v_xor_b32 {aOW1}, 16, {aOW0}')
    lane_expr(a, 'v30', [(5, 1, 64), (1, 1, 32), (4, 1, 16)])
    lane_expr(a, 'v29', [(2, 2, 32), (0, 1, 16)])
    a('v_xor_b32 v30, v30, v29')
    lane_expr(a, aOR, [(4, 2, 256), (1, 1, 128)], const=LDS_O)
    a(f'v_add_u32 {aOR}, {aOR}, v30')
    a(f's_lshl_b32 s98, {sU}, 14'); a(f's_lshl_b32 s92, {sG}, 7'); a('s_add_u32 s98, s98, s92'); a(f's_add_u32 s98, s98, {sPol}')
    a(f's_lshl_b32 s92, {sW}, 11'); a('s_add_u32 s91, s98, s92')
    lane_expr(a, aPartSt, [(0, 5, 4), (5, 1, 1024)], sadd=['s91'])
    a(f'v_xor_b32 {aPartStL}, 0x2000, {aPartSt}')
    a('s_mov_b32 s48, 0x33333333'); a('s_mov_b32 s49, 0x33333333')
    a('s_mov_b32 s50, 0xffff0000'); a('s_mov_b32 s51, 0xffff0000')
    a('s_mov_b32 s52, 0x0000ffff'); a('s_mov_b32 s53, 0x0000ffff')
    a(f's_mov_b32 {sGuard}, 0xfffffffe')
    a(f's_mov_b32 {sC}, {f32bits(SC):#x}')
    a('v_mov_b32 v30, 0x4444'); a('v_mov_b32 v31, 0xeeee')
    a(f'v_cndmask_b32 {vIdx}, v31, v30, {sHalf0}')
    a(f'v_mov_b32 {vNeg}, -1')
    for r in range(8): a(f'v_mov_b32 v{ONES+r}, 0x3f803f80')
    for r in range(4): a(f'v_mov_b32 v{PM+r}, 0')
    a(f'v_mov_b32 v{PUB}, 0'); a(f'v_mov_b32 v{PUB+1}, 0')
    def lanemask(fn):
        m = 0
        for l in range(16):
            if fn(l): m |= 1 << l
        return m * 0x00010001
    mk = lanemask(lambda r: (r >> 2) & 1)
    a(f's_mov_b32 s56, {mk:#x}'); a(f's_mov_b32 s57, {mk:#x}')
    a('v_mov_b32 v30, 0x3f80'); a('v_mov_b32 v31, 1.0'); a('v_cndmask_b32 v30, v30, v31, s[56:57]')
    for q in range(4):
        mk = lanemask(lambda r: (r & 2) == 0 and q == 2 * (r >> 3) + (r & 1))
        a(f's_mov_b32 s56, {mk:#x}'); a(f's_mov_b32 s57, {mk:#x}')
        a(f'v_cndmask_b32 v{SEL+q}, 0, v30, s[56:57]')
    a(f's_mov_b32 {sStep}, 0'); a(f's_mov_b32 {sSlot}, {RING:#x}'); a(f's_mov_b32 {sRst}, {RING + 2*SLOT:#x}')
    a(f's_mov_b32 {sKV}, 0'); a(f's_mov_b32 {sKV2}, {256*KB:#x}'); a(f's_mov_b32 {sExp}, 0')

    pv = [f'buffer_load_dwordx4 {vr(VL + 4*td, 4)}, {aVx0 if td < 4 else aVx1}, {SW}, {sKV} offen offset:{((td>>1)&1)*1024 + (td&1)*128}' for td in range(8)]
    pk = [f'buffer_load_dwordx4 {vr(KXR + 16*tt + 4*ks, 4)}, {aKx}, {SW}, {sKV} offen offset:{ks*1024 + tt*64}' for ks in range(4) for tt in range(2)]
    spread = [f'v_mov_b32 v{VB + 8*(td>>1) + 2*q + (td&1)}, v{VL + 4*td + q}' for td in range(8) for q in range(4)]
    def zl(b, n): return [f'v_mov_b64 {vr(b+r, 2)}, 0' for r in range(0, n, 2)]
    def emit(l):
        for x in l: a(x)
    def shadow(ms, fs):
        fs = list(fs)
        for x in ms:
            a(x)
            if fs:
                f = fs.pop(0)
                emit(f if isinstance(f, list) else [f])
        for f in fs: emit(f if isinstance(f, list) else [f])
    emit(pv); emit(pk)
    a(f's_add_u32 {sKV}, {sKV}, {256*KB:#x}')
    emit(zl(QA, 24)); emit(zl(WACC, 4)); emit(zl(OB_, 20))
    a('s_waitcnt vmcnt(0)')
    if no_pf: pv = []; pk = []
    pA, pB = pv[:nA], pk[:nB]
    rest = pv[nA:] + pk[nB:]
    pC, pD = rest[:npre], rest[npre:]
    nvD = len([x for x in pD if x in pv])
    a(f'v_min_u32 v{GT}, {sGuard}, v{GT}')
    if cut == 4: a('s_endpgm')
    if fused:
        a('v_mov_b32 v244, 0')
        a(f's_lshl_b32 s90, {sX}, 5'); a(f's_add_u32 s90, s90, {sI}'); a(f's_lshl_b32 s90, s90, 2'); a(f's_add_u32 s90, s90, {sW}')
        a('v_mbcnt_lo_u32_b32 v30, -1, 0'); a('v_mbcnt_hi_u32_b32 v30, -1, v30'); a('v_add_u32 v30, s90, v30')
        a('v_cmp_eq_u32 vcc, 0, v30'); a(f'v_mov_b32 v30, {OOB:#x}'); a(f'v_mov_b32 v31, {D_PROG}'); a('v_cndmask_b32 v245, v30, v31, vcc')
    st.init()
    a('s_branch L_pubmem')
    exps = [f'buffer_store_dword v{PUB}, {aE0}, {SW}, {sExp} offen {exp_st}', f'buffer_store_dword v{PUB+1}, {aE1}, {SW}, {sExp} offen {exp_st}']
    def exports(): emit(exps)
    vFlag, vZero, aProg, vProg = 'v243', 'v244', 'v245', 'v246'
    flagld = f'buffer_load_dword {vFlag}, {vZero}, s[28:31], s92 offen offset:{D_KV} sc1'

    a.label('L_step')
    emit(pC)
    emit(zl(QA, 24) + zl(WACC, 4))
    a.nop(dg)
    gl = f'buffer_load_dwordx4 {vr(GL, 4)}, {aPartLd}, {SW}, {sPrev} offen sc1'
    st('G issue', True)
    a(gl)
    post = pD + ([] if (no_exp or fused) else exps)
    emit(post)
    a(f's_add_u32 {sKV}, {sKV}, {256*KB:#x}'); a(f's_min_u32 {sKV}, {sKV}, {63*256*KB:#x}')
    a(f's_add_u32 {sExp}, {sExp}, {64*KB:#x}')
    if fused:
        a(f's_waitcnt vmcnt({len(pC) + len(post) + 3})')
        a.label('L_kv_chk')
        a(f'v_readfirstlane_b32 s90, {vFlag}')
        a(f's_cmp_lt_u32 s90, {kvneed}'); a('s_cbranch_scc1 L_kv_f')
        cold.label('L_kv_f')
        cold('s_sleep 8'); cold(flagld); spin_guard(cold); cold('s_waitcnt vmcnt(0)'); cold('s_branch L_kv_chk')
    a(f's_waitcnt vmcnt({len(post)})')
    a.label('L_g_chk')
    emit(chk(GL))
    a(f'v_mfma_f32_16x16x32_bf16 {vr(GD,4)}, {vr(SEL,4)}, {vr(GL,4)}, 0')
    a('s_cbranch_vccnz L_g_f')
    cold.label('L_g_f')
    cold('s_mov_b64 exec, vcc'); cold(gl); cold('s_mov_b64 exec, -1')
    spin_guard(cold); cold(f's_waitcnt vmcnt({gthr})'); cold('s_branch L_g_chk')
    st('G wait')
    h = GT
    a(f'v_add_f32_dpp v{h+1}, v{GD}, v{GD} row_ror:8 row_mask:0xf bank_mask:0xf')
    a(f'v_add_f32_dpp v{h+2}, v{GD+1}, v{GD+1} row_ror:8 row_mask:0xf bank_mask:0xf')
    a(f'v_cvt_pk_bf16_f32 v{h}, v{h+1}, v{h+2}')
    a(f'v_min_u32 v{h}, {sGuard}, v{h}')
    a.label('L_pubmem')
    a(f'buffer_store_dword v{h}, {aMemSt}, {SW}, {sSlot} offen {local_st}')
    st('M pub', True)
    ml = [f'buffer_load_dwordx4 {vr(MA + 4*k, 4)}, {aMemLd}, {SW}, {sSlot} offen offset:{1024*k} sc1' for k in range(4)]
    if nvD: a(f's_waitcnt vmcnt({min(len(post) - nvD, gthr) + 1 if gthr else len(post) - nvD + 1})')
    fill = list(spread)
    emit(fill[:f1]); fill = fill[f1:]
    a.nop(d1)
    for k in range(4):
        a(ml[k]); emit(fill[:2]); fill = fill[2:]
    emit(fill)
    st('G red')
    sm = lambda t, ks: f'v_smfmac_f32_16x16x64_bf16 {vr(QA + 4*t, 4)}, {vr(MA + 4*ks, 4)}, {ar(ks*48 + t*8, 8)}, {vIdx}'
    gather(a, cold, 'm', ml, [MA + 4*k for k in range(4)], [[sm(t, ks) for t in range(6)] for ks in range(4)], thr=thr)
    st('QK')
    for t in range(6):
        a(f'v_pk_add_f32 {vr(RD + 2*t, 2)}, {vr(QA + 4*t, 2)}, {vr(QA + 4*t + 2, 2)}')
        if t & 1: a(f'ds_write_b128 {aRedW}, {vr(RD + 2*t - 2, 4)} offset:{(t>>1)*RM}')
    xl = [f'buffer_load_dwordx4 {vr(XR + 4*k, 4)}, {aQkLd}, {SW}, {sSlot} offen offset:{1024*k} sc1' for k in range(4)]
    vl = [f'buffer_load_dwordx4 {vr(VMR + 4*k, 4)}, {aVLd}, {SW}, {sSlot} offen offset:{1024*k} sc1' for k in range(2)]
    def red_pub(L, dst, addr, n):
        a(f's_waitcnt lgkmcnt({n+2})')
        a(f'v_pk_add_f32 {vr(L,2)}, {vr(L,2)}, {vr(L+2,2)}')
        a(f's_waitcnt lgkmcnt({n})')
        a(f'v_pk_add_f32 {vr(L+4,2)}, {vr(L+4,2)}, {vr(L+6,2)}')
        a(f'v_pk_add_f32 {vr(L,2)}, {vr(L,2)}, {vr(L+4,2)}')
        a(f'v_cvt_pk_bf16_f32 v{dst}, v{L}, v{L+1}')
        a(f'v_min_u32 v{dst}, {sGuard}, v{dst}')
        a(f'buffer_store_dword v{dst}, {addr}, {SW}, {sSlot} offen {local_st}')
    emit(pA)
    emit(zl(SA, 12))
    a('s_waitcnt lgkmcnt(0)'); a('s_barrier')
    for w in range(4): a(f'ds_read2_b32 {vr(LR + 2*w, 2)}, {aRR[w]} offset0:0 offset1:2')
    for w in range(4): a(f'ds_read_b64 {vr(RD + 2*w, 2)}, {aRedRv} offset:{RW*w}')
    red_pub(LR, PUB, aQ0, 4)
    red_pub(RD, PUB + 1, aQ1, 0)
    st('Q pub', True)
    adv1 = [f's_mov_b32 {sPrev}, {sSlot}', f's_add_u32 s90, {sStep}, 1', 's_and_b32 s90, s90, 3', 's_lshl_b32 s90, s90, 19', f's_add_u32 s91, s90, {RING:#x}',
            f's_add_u32 {sKV2}, {sKV2}, {256*KB:#x}', f's_min_u32 {sKV2}, {sKV2}, {63*256*KB:#x}', 's_nop 0']
    emit(zl(OB_, 20))
    a.nop(d2)
    for k in range(4):
        a(xl[k]); emit(adv1[2*k:2*k+2])
    if vat < 0: emit(vl)
    st('QK red')
    a(f's_cmp_eq_u32 {sStep}, {nsteps-1}'); a('s_cbranch_scc1 L_last')
    def sc(ks):
        X = vr(XR + 4*ks, 4)
        return [f'v_mfma_f32_16x16x32_bf16 {vr(SA + 4*tt, 4)}, {vr(KXR + 16*tt + 4*ks, 4) if tt < 2 else X}, {X}, {vr(SA + 4*tt, 4)}' for tt in (2, 0, 1)]
    gather(a, cold, 'x', xl, [XR + 4*k for k in range(4)], [sc(k) for k in range(4)], thr=thr, extra=2 if vat < 0 else 0)
    st('scores')
    if vat == 0: emit(vl)
    dq = lambda p: f'quad_perm:[{p}] row_mask:0xf bank_mask:0xf'
    m, t2, mz = f'v{T}', f'v{T+1}', f'v{T+2}'
    z0, z1 = SA + 10, SA + 11
    a(f's_mov_b64 vcc, {sHalf0}')
    a(f'v_max_f32 {mz}, v{z0}, v{z1}')
    for r in range(4): a(f'v_cndmask_b32_dpp v{YY+r}, v{SA+4+r}, v{SA+r}, vcc {dq("0,1,0,1")}')
    a(f'v_max3_f32 {t2}, v{YY}, v{YY+1}, v{YY+2}')
    a(f'v_max_f32_dpp {m}, {mz}, v{YY+3} {dq("0,1,0,1")}')
    a(f'v_max_f32 {t2}, {t2}, {m}')
    a(f'v_max_f32_dpp {m}, {t2}, {t2} {dq("2,3,0,1")}')
    for n_, sw in enumerate(('v_permlane32_swap_b32', 'v_permlane16_swap_b32')):
        a(f'v_mov_b32 {t2}, {m}')
        if vat == n_ + 1: emit(vl)
        a(f'{sw} {m}, {t2}')
        a(f'v_max_f32 {m}, {m}, {t2}')
    a(f'v_mul_f32 {m}, {sC}, {m}')
    sv = [YY, YY+1, YY+2, YY+3, z0, z1]
    for x in sv: a(f'v_fma_f32 v{x}, v{x}, {sC}, -{m}')
    for x in sv[:4]: a(f'v_exp_f32 v{x}, v{x}')
    a(f'v_cvt_pk_bf16_f32 v{CT}, v{YY}, v{YY+1}')
    a(f'v_cvt_pk_bf16_f32 v{CT+1}, v{YY+2}, v{YY+3}')
    a(f'v_exp_f32 v{z0}, v{z0}')
    a(f'v_mov_b32_dpp v{PA}, v{CT} {dq("0,1,0,1")}')
    a(f'v_mov_b32_dpp v{PA+2}, v{CT} {dq("2,3,2,3")}')
    a(f'v_mov_b32_dpp v{PA+1}, v{CT+1} {dq("0,1,0,1")}')
    a(f'v_mov_b32_dpp v{PA+3}, v{CT+1} {dq("2,3,2,3")}')
    a(f'v_exp_f32 v{z1}, v{z1}')
    st('softmax')
    P = vr(PA, 4)
    xs = lambda d, b: f'v_smfmac_f32_16x16x64_bf16 {vr(d,4)}, {P}, {vr(b,8)}, {vIdx}'
    ms = lambda d, j, b: f'v_smfmac_f32_16x16x32_bf16 {vr(d,4)}, {vr(PM + 2*(j&1), 2)}, {vr(b,4)}, {vIdx}'
    rs = T
    wl = [f'buffer_load_dword v0, {aWarm}, {SW}, {sKV2} offen'] if (warm and not no_pf) else []
    rsts = [f'buffer_store_dword {vNeg}, {aPartSt}, {SW}, {sRst} offen sc1', f'buffer_store_dword {vNeg}, {aPartStL}, {SW}, {sRst} offen {local_st}',
            f'buffer_store_dword {vNeg}, {aMemSt}, {SW}, {sRst} offen {local_st}', f'buffer_store_dword {vNeg}, {aQ0}, {SW}, {sRst} offen {local_st}',
            f'buffer_store_dword {vNeg}, {aQ1}, {SW}, {sRst} offen {local_st}']
    ck = chk(VMR, 8)
    g1 = lambda k: pB[k:k+1]
    slow = wl + rsts[:1]
    late = pB[4:] + rsts[1:]
    if allafter: slow, late = slow + late, []
    if fused:
        pre = [f's_add_u32 s92, {sStep}, 3', 's_min_u32 s92, s92, 63', f's_lshr_b32 s92, s92, {kvshift}', 's_lshl_b32 s92, s92, 2',
               f's_max_u32 s93, {sStep}, 1', 's_sub_u32 s93, s93, 1', f'v_mov_b32 {vProg}, s93']
        slow = slow + exps + [f'buffer_store_dword {vProg}, {aProg}, s[28:31], 0 offen sc1', flagld]
    shadow([xs(OSUM, ONES), xs(OT(0), VB), xs(OT(1), VB + 8), xs(OT(2), VB + 16)],
           [[f'v_cvt_pk_bf16_f32 v{CT+2}, v{z0}, v{z1}'] + g1(0),
            g1(1) + [f'v_mov_b32_dpp v{PM}, v{CT+2} {dq("0,1,0,1")}'],
            g1(2) + [f'v_mov_b32_dpp v{PM+3}, v{CT+2} {dq("0,1,0,1")}'],
            g1(3) + [f's_waitcnt vmcnt({len(pB[:4])})'] + ck[0:2]])
    shadow([ms(OSUM, 0, ONES), xs(OT(3), VB + 24)], [ck[2:5]])
    a('s_cbranch_vccnz L_v_f')
    a.label('L_v_ok')
    cold.label('L_v_f')
    for x in vl: cold(x)
    spin_guard(cold); cold('s_waitcnt vmcnt(0)')
    for x in ck: cold(x)
    cold('s_cbranch_vccnz L_v_f'); cold('s_branch L_v_ok')
    st('V wait')
    shadow([ms(OT(j), j, VMR + 4*(j>>1)) for j in range(4)],
           [late[0:2], late[2:3] + [f'v_rcp_f32 v{rs}, v{OSUM}'], late[3:4] + [f'v_rcp_f32 v{rs+1}, v{OSUM+1}'], late[4:]])
    for j in range(4):
        o = OT(j)
        a(f'v_pk_mul_f32 {vr(o,2)}, {vr(o,2)}, {vr(rs,2)}')
        a(f'v_pk_mul_f32 {vr(o+2,2)}, {vr(o+2,2)}, {vr(rs,2)}')
        for par in range(2):
            a(f'v_cvt_pk_bf16_f32 v{ET + 4*par + j}, v{o+par}, v{o+2+par}')
    a(f'ds_write_b128 {aOW0}, {vr(ET,4)}')
    a(f'ds_write_b128 {aOW1}, {vr(ET+4,4)}')
    st('O write', True)
    if fused: emit(pre)
    adv2 = [f's_add_u32 {sStep}, {sStep}, 1', f's_mov_b32 {sSlot}, s91', f's_xor_b32 {sRst}, s91, {2*SLOT:#x}']
    a('s_waitcnt lgkmcnt(0)'); a('s_barrier')
    st('PV')
    rd = [f'ds_read_b128 {vr(WA + 4*kk, 4)}, {aOR} offset:{1024*kk}' for kk in range(8)]
    emit(rd[:nr0])
    emit(slow[:2]); slow = slow[2:] + adv2
    for kk in range(8):
        issued = min(8, nr0 + kk)
        a(f's_waitcnt lgkmcnt({issued - 1 - kk})')
        a(f'v_smfmac_f32_16x16x64_bf16 {vr(WACC,4)}, {vr(WA + 4*kk, 4)}, {ar(192 + 8*kk, 8)}, {vIdx}')
        emit(rd[nr0+kk:nr0+kk+1])
        emit(slow[kk:kk+1])
    a(f'v_pk_add_f32 {vr(T,2)}, {vr(WACC,2)}, {vr(WACC+2,2)}')
    a(f'v_cvt_pk_bf16_f32 v{T}, v{T}, v{T+1}')
    a(f'v_min_u32 v{T}, {sGuard}, v{T}')
    a(f'buffer_store_dword v{T}, {aPartSt}, {SW}, {sPrev} offen sc1')
    a(f'buffer_store_dword v{T}, {aPartStL}, {SW}, {sPrev} offen {local_st}')
    st('tail')
    if nsteps > 64 and stamps != 4:
        a(f's_min_u32 {sExp}, {sExp}, {62*64*KB:#x}')
        a(f's_cmp_eq_u32 {sStep}, {nsteps-64}')
        for k in range(12): a(f's_cselect_b32 s{64+k}, 0, s{64+k}')
        a(f's_cselect_b32 {sSpin}, 0, {sSpin}')
    a('s_branch L_step')
    a.label('L_last')
    exports()
    if stamps:
        a(f's_lshl_b32 s90, {sX}, 5'); a(f's_add_u32 s90, s90, {sI}'); a('s_lshl_b32 s90, s90, 2'); a(f's_add_u32 s90, s90, {sW}')
        a('s_lshl_b32 s90, s90, 6'); a(f's_add_u32 s90, s90, {STAMP:#x}')
        if stamps != 4: a(f's_mov_b32 s79, {sSpin}')
        st.calib(78)
        a('v_mov_b32 v30, 0')
        a('s_mov_b64 exec, 1')
        for k in range(16):
            a(f'v_mov_b32 v31, s{64+k if stamps != 4 else (64+2*k if k < 12 else 84+k)}')
            a(f'buffer_store_dword v31, v30, {SW}, s90 offen offset:{4*k}')
        a('s_mov_b64 exec, -1')
    a('s_waitcnt vmcnt(0)')
    if fused:
        a('s_barrier'); signal(a, D_FIN); a('s_waitcnt vmcnt(0)')
    a(f's_branch {exit_label}')
    a.ins += cold.ins
    a.label('L_rec_abort')
    a('s_waitcnt vmcnt(0)')
    a('s_endpgm')
    return st.names

def gen_rec_kernel(name='rec_kernel', **kw):
    a = Asm()
    a('s_load_dwordx4 s[92:95], s[0:1], 88')
    a('s_cmp_ge_u32 s2, 256'); a('s_cbranch_scc1 L_rec_exit')
    a(f's_getreg_b32 {sX}, hwreg(HW_REG_XCC_ID, 0, 4)')
    a(f's_cmp_ge_u32 {sX}, 4'); a('s_cbranch_scc1 L_rec_exit')
    a('s_waitcnt lgkmcnt(0)')
    srd(a, 4, 94, WS_BYTES); srd(a, 28, 92, 256)
    a('v_cmp_eq_u32 vcc, 0, v0')
    a('s_and_saveexec_b64 s[96:97], vcc')
    a('s_cbranch_execz L_tk')
    a(f's_lshl_b32 s90, {sX}, 6')
    a('v_mov_b32 v1, 1'); a('v_mov_b32 v2, 0')
    a('buffer_atomic_add v1, v2, s[28:31], s90 offen sc0 sc1')
    a('s_waitcnt vmcnt(0)')
    a('ds_write_b32 v2, v1')
    a('s_waitcnt lgkmcnt(0)')
    a.label('L_tk')
    a('s_mov_b64 exec, s[96:97]')
    a('s_barrier')
    a('v_mov_b32 v2, 0')
    a('ds_read_b32 v1, v2')
    a('s_waitcnt lgkmcnt(0)')
    a(f'v_readfirstlane_b32 {sI}, v1')
    a('s_barrier')
    a(f's_cmp_ge_u32 {sI}, 32'); a('s_cbranch_scc1 L_rec_exit')
    names = gen_rec(a, **kw)
    a.label('L_rec_exit')
    a('s_endpgm')
    a.fix_hazards()
    return a, names
```

```python
import sys, os
sys.path.insert(0, os.path.dirname(os.path.abspath(__file__)))
from asmgen import *
from layout import *
import rec, gemm, attn
from rec import srd, lane_expr, signal, sX, sI, SPIN_MAX
sSpin = 's3'
from gemm import *
from build import kd, NAME
LDS_X = 131072
DBG = 's[28:31]'
K_AQ, K_AK, K_AV, K_BQKV, K_ATB, K_BO, K_ATA, K_AO = range(8)
def ent(kind, p, q=0): return kind | (p << 8) | (q << 16)

def task_list():
    t = []
    kv = lambda rb: [ent(k, rb, c) for c in range(4) for k in (K_AK, K_AV)]
    for rb in range(4): t += kv(rb)
    for rb in range(8): t += [ent(K_BQKV, rb, c) for c in range(3)]
    for rb in range(8): t += [ent(K_AQ, rb, c) for c in range(4)]
    for rb in range(4, 8): t += kv(rb)
    for rb in range(8): t += [ent(K_ATB, rb, c) for c in range(4)]
    for hb in range(16): t += [ent(K_BO, hb, c) for c in range(2)]
    for hb in range(16):
        for s in range(4 * hb, 4 * hb + 4): t += [ent(K_ATA, s, c) for c in range(2)]
        t += [ent(K_AO, hb, c) for c in range(2)]
    return t

def gen(force_slow=False, sweep=True, wst=False, **kw):
    a = Asm()
    sW_ = 's32'; sXW, sT, sKind, sP, sQ_, sDone = 's33', 's34', 's35', 's36', 's37', 's38'
    a('s_cmp_ge_u32 s2, 256'); a('s_cbranch_scc1 L_exit')
    a('s_load_dwordx4 s[92:95], s[0:1], 88')
    a('s_load_dwordx16 s[64:79], s[0:1], 0')
    a('s_getreg_b32 s39, hwreg(HW_REG_XCC_ID, 0, 3)')
    a('v_lshrrev_b32 v2, 6, v0'); a('s_nop 0'); a(f'v_readfirstlane_b32 {sW_}, v2')
    a(f's_mov_b32 {sSpin}, 0')
    a('s_waitcnt lgkmcnt(0)')
    srd(a, 4, 94, WS_BYTES); srd(a, 28, 92, 256)
    a(f's_cmp_lg_u32 {sW_}, 0'); a('s_cbranch_scc1 L_sweep')
    a('s_lshl_b32 s90, s39, 2')
    a('v_mov_b32 v1, 1'); a('v_mov_b32 v2, 0'); a('v_lshlrev_b32 v3, 2, v0')
    a('s_mov_b64 exec, 1')
    a(f'buffer_atomic_add v1, v2, {DBG}, s90 offen sc0 sc1')
    a('s_mov_b64 exec, 0xff')
    a.label('L_tkw')
    a(f'buffer_load_dword v4, v3, {DBG}, 0 offen sc1')
    a('s_waitcnt vmcnt(0)')
    a('v_readfirstlane_b32 s40, v1')
    a('s_mov_b32 s41, 0'); a('s_mov_b32 s42, 0'); a('s_mov_b32 s43, 1')
    for x in range(8):
        a(f'v_readlane_b32 s44, v4, {x}')
        a('s_add_u32 s41, s41, s44')
        a(f's_cmp_gt_u32 s39, {x}'); a('s_cselect_b32 s45, s44, 0'); a('s_add_u32 s42, s42, s45')
        if x < 4: a('s_cmp_eq_u32 s44, 32'); a('s_cselect_b32 s43, s43, 0')
    a(f's_add_u32 {sSpin}, {sSpin}, 1'); a(f's_cmp_ge_u32 {sSpin}, {SPIN_MAX}'); a('s_cbranch_scc1 L_tkbad')
    a('s_cmp_lt_u32 s41, 256'); a('s_cbranch_scc1 L_tkw')
    a('s_add_u32 s40, s40, s42'); a('s_lshl_b32 s43, s43, 16'); a('s_or_b32 s40, s40, s43')
    a('s_branch L_tkok')
    a.label('L_tkbad')
    a('s_mov_b32 s40, 0xffff')
    a.label('L_tkok')
    a('s_mov_b64 exec, -1')
    a('v_mov_b32 v1, s40'); a(f'v_mov_b32 v2, {LDS_X}')
    a('ds_write_b32 v2, v1'); a('s_waitcnt lgkmcnt(0)')
    a('s_branch L_tkd')
    a.label('L_sweep')
    if sweep:
        srd(a, 8, 64, 4 * MB); srd(a, 12, 70, 8 * MB); srd(a, 16, 72, 8 * MB)
        a('v_and_b32 v1, 63, v0'); a('v_lshlrev_b32 v1, 6, v1')
        a('s_lshl_b32 s90, s2, 14'); a('s_lshl_b32 s91, s2, 15')
        for w, sd, so, n in ((1, 8, 's90', 4), (2, 12, 's91', 8), (3, 16, 's91', 8)):
            l = a.newlabel('L_sw')
            a(f's_cmp_lg_u32 {sW_}, {w}'); a(f's_cbranch_scc1 {l}')
            for q in range(n):
                a(f'buffer_load_dword v{200+q}, v1, s[{sd}:{sd+3}], {so} offen'); a(f's_add_u32 {so}, {so}, 4096')
            a.label(l)
    a.label('L_tkd')
    a('s_barrier')
    a(f'v_mov_b32 v2, {LDS_X}'); a('ds_read_b32 v1, v2'); a('s_waitcnt lgkmcnt(0)')
    a('v_readfirstlane_b32 s40, v1')
    a('s_barrier')
    a('s_lshr_b32 s43, s40, 16'); a('s_and_b32 s40, s40, 0xffff')
    a('s_cmp_ge_u32 s40, 256'); a('s_cbranch_scc1 L_exit')
    a('s_cmp_ge_u32 s40, 128'); a('s_cbranch_scc1 L_worker')
    a(f's_lshr_b32 {sX}, s40, 5'); a(f's_and_b32 {sI}, s40, 31')
    if force_slow: a('s_mov_b32 s43, 0')
    a('s_cmp_eq_u32 s43, 0'); a('s_cbranch_scc1 L_recslow')
    r1 = Asm(); names = rec.gen_rec(r1, fused=True, exit_label='L_exit', **kw); a.absorb(r1, 'F')
    a.label('L_recslow')
    r2 = Asm(); rec.gen_rec(r2, fused=True, exit_label='L_exit', local_st='sc1'); a.absorb(r2, 'S')
    a.label('L_worker')
    a('s_load_dwordx4 s[80:83], s[0:1], 64')
    a('s_load_dwordx2 s[84:85], s[0:1], 80')
    a(f's_sub_u32 {sXW}, s40, 128'); a(f's_lshr_b32 {sXW}, {sXW}, 5')
    a('s_mov_b32 s39, s40')
    a('s_getpc_b64 s[86:87]')
    a.label('L_pc')
    a('s_add_u32 s86, s86, L_table-L_pc'); a('s_addc_u32 s87, s87, 0')
    a('s_waitcnt lgkmcnt(0)')
    tl = task_list()
    G1 = Gemm(256, 256, 64, 2, 'row'); G3 = Gemm(128, 128, 64, 4, 'packed', perm_out=True, ld_flags='sc1')
    if wst: a('s_mov_b32 s98, 0')
    a.label('L_next')
    a(f's_cmp_lg_u32 {sW_}, 0'); a('s_cbranch_scc1 L_nx1')
    a(f's_lshl_b32 s90, {sXW}, 2')
    a('v_mov_b32 v1, 1'); a('v_mov_b32 v2, 0')
    a('s_mov_b64 exec, 1')
    a(f'buffer_atomic_add v1, v2, {DBG}, s90 offen offset:{D_QUEUE} sc0 sc1')
    a('s_waitcnt vmcnt(0)')
    a(f'v_mov_b32 v2, {LDS_X}'); a('ds_write_b32 v2, v1'); a('s_waitcnt lgkmcnt(0)')
    a('s_mov_b64 exec, -1')
    a.label('L_nx1')
    a('s_barrier')
    a(f'v_mov_b32 v2, {LDS_X}'); a('ds_read_b32 v1, v2'); a('s_waitcnt lgkmcnt(0)')
    a(f'v_readfirstlane_b32 {sT}, v1')
    a(f's_cmp_ge_u32 {sT}, {len(tl)}'); a('s_cbranch_scc1 L_exit')
    a(f's_lshl_b32 s90, {sT}, 2'); a('s_load_dword s91, s[86:87], s90'); a('s_waitcnt lgkmcnt(0)')
    a(f's_and_b32 {sKind}, s91, 255'); a(f's_lshr_b32 {sP}, s91, 8'); a(f's_and_b32 {sP}, {sP}, 255'); a(f's_lshr_b32 {sQ_}, s91, 16')
    def wstamp(k):
        if not wst: return
        a('s_memrealtime s[96:97]'); a('s_waitcnt lgkmcnt(0)')
        a(f's_lshl_b32 s90, {sXW}, 9'); a(f's_add_u32 s90, s90, {sT}'); a('s_lshl_b32 s90, s90, 4'); a(f's_add_u32 s90, s90, {STAMP + 65536 + 4*k:#x}')
        a('v_mov_b32 v2, 0'); a('v_mov_b32 v3, s96'); a('s_mov_b64 exec, 1')
        a(f'buffer_store_dword v3, v2, s[4:7], s90 offen'); a('s_mov_b64 exec, -1')
    wstamp(0)
    def wait(deps, prog=None):
        l, d = a.newlabel('L_dw'), a.newlabel('L_dd')
        a(f's_cmp_lg_u32 {sW_}, 0'); a(f's_cbranch_scc1 {d}')
        a('v_mov_b32 v2, 0')
        a.label(l)
        for n, (so, base, tgt) in enumerate(deps): a(f'buffer_load_dword v{4+n}, v2, {DBG}, {so} offen offset:{base} sc1')
        if prog: a(f'buffer_load_dwordx2 v[8:9], v2, {DBG}, 0 offen offset:{D_PROG} sc1')
        a('s_waitcnt vmcnt(0)')
        a('s_mov_b32 s44, 1')
        for n, (so, base, tgt) in enumerate(deps):
            a(f'v_readfirstlane_b32 s45, v{4+n}'); a(f's_cmp_ge_u32 s45, {tgt}'); a('s_cselect_b32 s44, s44, 0')
        if prog:
            a('v_readfirstlane_b32 s45, v8'); a('v_readfirstlane_b32 s47, v9')
            a('s_cmp_ge_u32 s47, 128'); a('s_cselect_b32 s45, 64, s45')
            a(f's_cmp_ge_u32 s45, {prog}'); a('s_cselect_b32 s44, s44, 0')
        a('s_cmp_eq_u32 s44, 1'); a(f's_cbranch_scc1 {d}')
        a('s_sleep 8')
        a(f's_add_u32 {sSpin}, {sSpin}, 1'); a(f's_cmp_lt_u32 {sSpin}, {SPIN_MAX}'); a(f's_cbranch_scc1 {l}')
        a.label(d)
        a('s_barrier')
        wstamp(1)
    for k, l in ((K_BQKV, 'L_bqkv'), (K_ATB, 'L_atb'), (K_BO, 'L_bo'), (K_ATA, 'L_ata'), (K_AO, 'L_ao')):
        a(f's_cmp_eq_u32 {sKind}, {k}'); a(f's_cbranch_scc1 {l}')
    srd(a, 8, 64, 4 * MB); srd(a, 16, 4, WS_BYTES)
    a(f's_cmp_eq_u32 {sKind}, 0'); a('s_cselect_b64 s[88:89], s[68:69], s[70:71]')
    a(f's_cmp_eq_u32 {sKind}, 2'); a('s_cselect_b64 s[88:89], s[72:73], s[88:89]')
    srd(a, 12, 88, 8 * MB)
    a(f's_lshl_b32 s91, {sXW}, 2'); a(f's_add_u32 s91, s91, {sQ_}')
    a(f's_mov_b32 {sLdw}, 8192'); a(f's_mov_b32 {sSeg}, {256*KB}')
    a(f's_lshl_b32 {sXo}, {sP}, 19'); a(f's_lshl_b32 {sWo}, s91, 9')
    a(f's_lshl_b32 {sOo}, {sKind}, 24'); a(f's_lshl_b32 s90, {sP}, 21'); a(f's_add_u32 {sOo}, {sOo}, s90')
    a('s_lshl_b32 s90, s91, 14'); a(f's_add_u32 {sOo}, {sOo}, s90')
    a(f's_cmp_eq_u32 {sKind}, 0'); a(f's_cselect_b32 {sDone}, {D_Q}, {D_KV}')
    a(f's_mov_b32 s47, {sKind}')
    a('s_branch L_g1')
    a.label('L_bqkv')
    srd(a, 8, 78, 4 * MB); srd(a, 12, 80, 6 * MB); srd(a, 16, 4, WS_BYTES)
    a(f's_lshl_b32 s91, {sQ_}, 2'); a(f's_add_u32 s91, s91, {sXW}')
    a(f's_mov_b32 {sLdw}, 6144'); a(f's_mov_b32 {sSeg}, {64*KB}')
    a(f's_lshl_b32 {sXo}, {sP}, 19'); a(f's_lshl_b32 {sWo}, s91, 9')
    a(f's_lshl_b32 {sOo}, {sQ_}, 22'); a(f's_lshl_b32 s90, {sP}, 19'); a(f's_add_u32 {sOo}, {sOo}, s90')
    a(f's_lshl_b32 s90, {sXW}, 14'); a(f's_add_u32 {sOo}, {sOo}, s90'); a(f's_add_u32 {sOo}, {sOo}, {BQKV:#x}')
    a(f's_mov_b32 {sDone}, {D_BQ}'); a(f's_mov_b32 s47, {sQ_}')
    a.label('L_g1')
    a(f's_lshl_b32 s90, {sP}, 2'); a(f's_add_u32 {sDone}, {sDone}, s90')
    a(f's_mov_b32 {sLdx}, 2048'); a(f's_mov_b32 {sNk}, 8')
    G1.setup(a)
    a('s_cmp_eq_u32 s47, 2'); a('s_cbranch_scc1 L_g2')
    G1.loop(a, 'g1', 'T', exp='front'); G1.epilogue(a, 'qk', G1.END, 'sc1')
    a('s_branch L_done')
    a.label('L_g2')
    G1.loop(a, 'g2', 'N', exp='front'); G1.epilogue(a, 'v', G1.END, 'sc1')
    a('s_branch L_done')
    a.label('L_atb')
    a(f's_lshl_b32 s40, {sP}, 2'); a(f's_max_u32 s41, {sP}, 1'); a('s_sub_u32 s41, s41, 1'); a('s_lshl_b32 s41, s41, 2')
    wait([('s40', D_BQ, 12), ('s41', D_BQ, 12)])
    a(f's_add_u32 {sDone}, s40, {D_AB}')
    a(f's_lshl_b32 s46, {sP}, 3'); a(f's_lshl_b32 s90, {sQ_}, 1'); a('s_add_u32 s99, s46, s90'); a(f's_lshr_b32 s90, {sW_}, 1'); a('s_add_u32 s99, s99, s90')
    a('s_lshl_b32 s99, s99, 3'); a(f's_lshl_b32 s90, {sXW}, 1'); a('s_add_u32 s99, s99, s90'); a(f's_and_b32 s90, {sW_}, 1'); a('s_add_u32 s20, s99, s90')
    a('v_and_b32 v1, 63, v0')
    attn.gen_attnB(a, 's20', ld_flags='sc1', st_flags='sc1')
    a('s_branch L_done')
    a.label('L_ata')
    a(f's_lshr_b32 s40, {sP}, 3'); a('s_lshl_b32 s40, s40, 2'); a(f's_add_u32 s41, {sP}, 1')
    wait([('s40', D_Q, 16), ('s40', D_KV, 32)], prog='s41')
    a(f's_lshr_b32 {sDone}, {sP}, 2'); a(f's_lshl_b32 {sDone}, {sDone}, 2'); a(f's_add_u32 {sDone}, {sDone}, {D_AA}')
    a(f's_lshl_b32 s20, {sP}, 5'); a(f's_lshl_b32 s90, {sXW}, 3'); a('s_add_u32 s20, s20, s90'); a(f's_lshl_b32 s90, {sQ_}, 2'); a('s_add_u32 s20, s20, s90'); a(f's_add_u32 s20, s20, {sW_}')
    a('v_and_b32 v1, 63, v0')
    attn.gen_attnA(a, 's20', ld_flags='sc1', st_flags='sc1')
    a('s_branch L_done')
    a.label('L_bo')
    a(f's_lshr_b32 s40, {sP}, 1'); a('s_lshl_b32 s40, s40, 2')
    wait([('s40', D_AB, 16)])
    srd(a, 12, 82, 2 * MB)
    a(f's_mov_b32 {sLdx}, {64*KB}'); a(f's_mov_b32 {sNk}, 4')
    a(f's_lshl_b32 {sXo}, {sP}, 18'); a(f's_add_u32 {sXo}, {sXo}, {OB:#x}'); a(f's_mov_b32 {sOo}, 2048')
    a('s_branch L_g3')
    a.label('L_ao')
    a(f's_lshl_b32 s40, {sP}, 2')
    wait([('s40', D_AA, 32)])
    srd(a, 12, 74, 8 * MB)
    a(f's_mov_b32 {sLdx}, {256*KB}'); a(f's_mov_b32 {sNk}, 16')
    a(f's_lshl_b32 {sXo}, {sP}, 20'); a(f's_add_u32 {sXo}, {sXo}, {OA:#x}'); a(f's_mov_b32 {sOo}, 0')
    a.label('L_g3')
    srd(a, 8, 4, WS_BYTES); srd(a, 16, 84, 8 * MB)
    a(f's_lshl_b32 s91, {sXW}, 1'); a(f's_add_u32 s91, s91, {sQ_}')
    a(f's_mov_b32 {sLdw}, 2048'); a(f's_mov_b32 {sSeg}, 4096')
    a(f's_lshl_b32 {sWo}, s91, 8'); a(f's_add_u32 {sOo}, {sOo}, {sWo}'); a(f's_lshl_b32 s90, {sP}, 19'); a(f's_add_u32 {sOo}, {sOo}, s90')
    G3.setup(a); G3.loop(a, 'g3', 'T'); G3.epilogue(a, 'out', G3.END)
    wstamp(2)
    a('s_barrier')
    a('s_branch L_next')
    a.label('L_done')
    a('s_waitcnt vmcnt(0)'); a('s_barrier')
    signal(a, 0, soff=sDone, wave=sW_)
    wstamp(2)
    a('s_branch L_next')
    a.label('L_exit')
    a('s_endpgm')
    a.fix_hazards()
    t = a.text() + '.p2align 2\nL_table:\n' + ''.join(f'.long {x:#x}\n' for x in tl)
    return t, names

def build(**kw):
    body, names = gen(**kw)
    ref = open(os.path.join(os.path.dirname(os.path.abspath(__file__)), '..', NAME + '.s.ref')).read().split('\n')
    head = [l for l in ref if l.startswith(';') and '@launch' not in l and 'Override' not in l and 'grid=ceil' not in l][:14]
    n = NAME + '_kernel'
    t = '\n'.join(head) + '\n'
    t += f'; @launch grid=(256,1,1) block=(256,1,1) lds={LDS_X + 64}\n'
    t += '.amdgcn_target "amdgcn-amd-amdhsa--gfx950"\n.text\n'
    t += f'.globl {n}\n.p2align 8\n.type {n},@function\n{n}:\n' + body
    t += '.section .rodata,"a"\n.p2align 6\n' + kd(n, 512, 256)
    return t

if __name__ == '__main__':
    out = sys.argv[1] if len(sys.argv) > 1 else os.path.join(os.path.dirname(os.path.abspath(__file__)), '..', NAME + '.s')
    open(out, 'w').write(build(**eval('dict(%s)' % (sys.argv[2] if len(sys.argv) > 2 else ''))))
    print('written', out, os.path.getsize(out))
```

```python
import math
from asmgen import *
from layout import *
from rec import lane_expr, f32bits
SW = 's[4:7]'
BQ, BK, BV = BQKV, BQKV + 4 * MB, BQKV + 8 * MB

def lane_masks(a, sbase, fn, nmask):
    for k in range(nmask):
        m = 0
        for l in range(64):
            if fn(k, l >> 4, l & 15): m |= 1 << l
        a(f's_mov_b32 s{sbase+2*k}, {m & 0xffffffff:#x}'); a(f's_mov_b32 s{sbase+2*k+1}, {m >> 32:#x}')

def xreduce(a, op, m, t):
    for sw in ('v_permlane32_swap_b32', 'v_permlane16_swap_b32'):
        a(f'v_mov_b32 {t}, {m}'); a(f'{sw} {m}, {t}'); a(f'{op} {m}, {m}, {t}')

def softmax(a, s, m, t, sC):
    rest = [f'v{x}' for x in s]
    a(f'v_max3_f32 {m}, {rest[0]}, {rest[1]}, {rest[2]}'); rest = rest[3:]
    while len(rest) >= 2:
        a(f'v_max3_f32 {m}, {m}, {rest[0]}, {rest[1]}'); rest = rest[2:]
    if rest: a(f'v_max_f32 {m}, {m}, {rest[0]}')
    xreduce(a, 'v_max_f32', m, t)
    a(f'v_mul_f32 {m}, {sC}, {m}')
    for x in s: a(f'v_fma_f32 v{x}, v{x}, {sC}, -{m}')
    for x in s: a(f'v_exp_f32 v{x}, v{x}')
    a(f'v_add_f32 {m}, v{s[0]}, v{s[1]}')
    for x in s[2:]: a(f'v_add_f32 {m}, {m}, v{x}')
    xreduce(a, 'v_add_f32', m, t)
    a(f'v_rcp_f32 {m}, {m}')
    for x in s: a(f'v_mul_f32 v{x}, v{x}, {m}')

def gen_attnA(a, sItem, ld_flags='', st_flags='', mid=None, n=1, after_loads=None):
    scale = 128 ** -0.5
    kw = dict(lane='v1', tmp='v7')
    Q, K, V, KMr, VMr, O = 0, 32, 64, 96, 112, 176
    R = lambda st, b, c: vr(16 + b, c) if st == 0 else ar(b, c)
    a(f's_lshl_b32 s90, {sItem}, 13'); a(f's_lshl_b32 s91, {sItem}, 11')
    lane_expr(a, 'v2', [(0, 6, 16)], **kw); a('v_add_u32 v3, 4096, v2')
    lane_expr(a, 'v4', [(0, 1, 16), (2, 2, 32), (4, 2, 128)], const=KM, **kw)
    a(f'v_add_u32 v5, {VM:#x}, v2')
    lane_expr(a, 'v8', [(0, 3, 16), (3, 1, 2048), (4, 2, 256)], **kw); a('v_add_u32 v9, 4096, v8')
    lane_expr(a, 'v10', [(0, 4, 16), (4, 1, 256), (5, 1, 1024)], **kw); a('v_add_u32 v11, 4096, v10')
    a(f's_add_u32 s92, s90, {KX}'); a(f's_add_u32 s93, s90, {VX}'); a(f's_add_u32 s94, s90, {QX}'); a(f's_add_u32 s95, s90, {OA}')
    def loads(st, mid=None):
        for i in range(8): a(f'buffer_load_dwordx4 {R(st,Q+4*i,4)}, v{2+(i>>2)}, {SW}, s94 offen offset:{(i&3)*1024} {ld_flags}')
        for i in range(8): a(f'buffer_load_dwordx4 {R(st,K+4*i,4)}, v{2+(i>>2)}, {SW}, s92 offen offset:{(i&3)*1024} {ld_flags}')
        for i in range(8): a(f'buffer_load_dwordx4 {R(st,V+4*i,4)}, v{8+(i>>2)}, {SW}, s93 offen offset:{((i>>1)&1)*1024 + (i&1)*128} {ld_flags}')
        if mid: mid()
        for i in range(4): a(f'buffer_load_dwordx4 {R(st,KMr+4*i,4)}, v4, {SW}, s91 offen offset:{i*512} {ld_flags}')
        for i in range(2): a(f'buffer_load_dwordx4 {R(st,VMr+4*i,4)}, v5, {SW}, s91 offen offset:{i*1024} {ld_flags}')
        for r in (92, 93, 94): a(f's_add_u32 s{r}, s{r}, {256*KB}')
        a(f's_add_u32 s91, s91, {64*KB}')
    SS = {(0, 'm'): 136, (0, 0): 140, (1, 'm'): 144, (1, 0): 148, (1, 1): 152}
    PP = 156
    def compute(st, refill):
        for ks in range(4):
            for (qt, kt), d in SS.items():
                A = R(st, KMr + 4*ks, 4) if kt == 'm' else R(st, K + 16*kt + 4*ks, 4)
                a(f'v_mfma_f32_16x16x32_bf16 {vr(d,4)}, {A}, {R(st, Q + 16*qt + 4*ks, 4)}, {vr(d,4) if ks else 0}')
        for qt in range(2):
            for r in range(4):
                d = SS[(qt, qt)] + r; a(f'v_cndmask_b32 v{d}, v6, v{d}, s[{40+2*r}:{41+2*r}]')
            regs = [SS[(qt, 'm')] + r for r in range(2)] + [SS[(qt, kt)] + r for kt in range(qt + 1) for r in range(4)]
            softmax(a, regs, 'v12', 'v13', 's50')
            p = PP + 8 * qt
            a(f'v_cvt_pk_bf16_f32 v{p+4}, v{regs[0]}, v{regs[1]}'); a(f'v_mov_b32 v{p+5}, 0'); a(f'v_mov_b32 v{p+6}, 0'); a(f'v_mov_b32 v{p+7}, v{p+4}')
            for q in range(4):
                if 2 + 2*q < len(regs): a(f'v_cvt_pk_bf16_f32 v{p+q}, v{regs[2+2*q]}, v{regs[3+2*q]}')
                else: a(f'v_mov_b32 v{p+q}, 0')
        for qt in range(2):
            p = PP + 8 * qt; o = O + 32 * qt
            for td in range(8): a(f'v_mfma_f32_16x16x32_bf16 {vr(o+4*td,4)}, {R(st,V+4*td,4)}, {vr(p,4)}, 0')
            for td in range(8): a(f'v_mfma_f32_16x16x16_bf16 {vr(o+4*td,4)}, {R(st, VMr + (td & ~1), 2)}, {vr(p + 4 + 2*(td&1), 2)}, {vr(o+4*td,4)}')
        if refill: loads(st)
        for qt in range(2):
            o = O + 32 * qt
            for n_ in range(2):
                for q in range(2):
                    e = 136 + 4 * (2*n_ + q)
                    ta, tb = o + 4 * (4*n_ + q), o + 4 * (4*n_ + q + 2)
                    a(f'v_cvt_pk_bf16_f32 v{e}, v{ta}, v{ta+1}'); a(f'v_cvt_pk_bf16_f32 v{e+1}, v{ta+2}, v{ta+3}')
                    a(f'v_cvt_pk_bf16_f32 v{e+2}, v{tb}, v{tb+1}'); a(f'v_cvt_pk_bf16_f32 v{e+3}, v{tb+2}, v{tb+3}')
                    a(f'buffer_store_dwordx4 {vr(e,4)}, v{10+qt}, {SW}, s95 offen offset:{n_*2048 + q*512} {st_flags}')
        a(f's_add_u32 s95, s95, {256*KB}')
    loads(0, mid)
    if n > 1: loads(1)
    lane_masks(a, 40, lambda k, g, c: 4*g + k <= c, 4)
    a(f's_mov_b32 s50, {f32bits(scale * math.log2(math.e)):#x}')
    a(f'v_mov_b32 v6, {f32bits(-1e9 / scale):#x}')
    for k in range(n):
        y = (30 if k + 1 < n else 0) + (8 if k >= 1 else 0) + (8 if k >= 2 else 0)
        a(f's_waitcnt vmcnt({y})')
        if k == n - 1 and after_loads: after_loads(a)
        compute(k & 1, k + 2 < n)

def gen_attnB(a, sItem, ld_flags='', st_flags='', after_loads=None):
    scale = 32 ** -0.5
    kw = dict(lane='v1', tmp='v7')
    Q, K, V = 8, 40, 88
    a(f's_lshl_b32 s90, {sItem}, 13')
    a(f's_sub_u32 s91, s90, {64*KB}'); a(f's_cmp_lt_u32 {sItem}, 8'); a('s_cselect_b32 s91, s90, s91')
    lane_expr(a, 'v2', [(0, 6, 16)], **kw); a('v_add_u32 v3, 4096, v2')
    a(f's_add_u32 s92, s90, {BQ}'); a(f's_add_u32 s93, s90, {BK}'); a(f's_add_u32 s94, s91, {BK}')
    a(f's_add_u32 s95, s90, {BV}'); a(f's_add_u32 s96, s91, {BV}'); a(f's_add_u32 s97, s90, {OB}')
    for i in range(8): a(f'buffer_load_dwordx4 {vr(Q+4*i,4)}, v{2+(i>>2)}, {SW}, s92 offen offset:{(i&3)*1024} {ld_flags}')
    for i in range(4): a(f'buffer_load_dwordx4 {vr(K+4*i,4)}, v3, {SW}, s94 offen offset:{i*1024} {ld_flags}')
    for i in range(8): a(f'buffer_load_dwordx4 {vr(K+16+4*i,4)}, v{2+(i>>2)}, {SW}, s93 offen offset:{(i&3)*1024} {ld_flags}')
    for i in range(8): a(f'buffer_load_dwordx2 {vr(V+6*i,2)}, v{2+(i>>2)}, {SW}, s96 offen offset:{(i&3)*1024+8} {ld_flags}')
    for i in range(8): a(f'buffer_load_dwordx4 {vr(V+6*i+2,4)}, v{2+(i>>2)}, {SW}, s95 offen offset:{(i&3)*1024} {ld_flags}')
    lane_masks(a, 40, lambda k, g, c: ((4*g + k >= c + 2) and (4*g + k - c) % 2 == 0) if k < 4 else ((4*g + k - 4 <= c) and (c - 4*g - k) % 2 == 0), 8)
    a(f's_cmp_lt_u32 {sItem}, 8')
    for k in range(4): a(f's_cselect_b64 s[{56+2*k}:{57+2*k}], 0, s[{40+2*k}:{41+2*k}]')
    a(f's_mov_b32 s21, {f32bits(scale * math.log2(math.e)):#x}')
    a(f'v_mov_b32 v6, {f32bits(-1e9 / scale):#x}')
    a('s_waitcnt vmcnt(16)')
    S = 136
    for qt in range(2):
        for j in range(4):
            d = S + 8 * (4*qt + j)
            for e in range(2):
                a(f'v_mfma_f32_16x16x32_bf16 {vr(d+4*e,4)}, {vr(K + 16*(qt+e) + 4*j, 4)}, {vr(Q + 16*qt + 4*j, 4)}, 0')
    for u in range(8):
        qt = u >> 2; d = S + 8 * u
        for r in range(8):
            mb = (56 + 2*r) if (qt == 0 and r < 4) else (40 + 2*r)
            a(f'v_cndmask_b32 v{d+r}, v6, v{d+r}, s[{mb}:{mb+1}]')
        softmax(a, [d + r for r in range(8)], 'v4', 'v5', 's21')
        for q in range(4): a(f'v_cvt_pk_bf16_f32 v{Q+4*u+q}, v{d+2*q}, v{d+2*q+1}')
    a('s_waitcnt vmcnt(0)')
    if after_loads: after_loads(a)
    for u in range(8):
        qt, j = u >> 2, u & 3; d = S + 8 * u
        for t1 in range(2):
            a(f'v_mfma_f32_16x16x32_bf16 {vr(d+4*t1,4)}, {vr(V + 6*(2*j+t1) + 2*qt, 4)}, {vr(Q+4*u,4)}, 0')
    for u in range(8):
        qt, j = u >> 2, u & 3; d = S + 8 * u; e = K + 4 * u
        for q in range(4): a(f'v_cvt_pk_bf16_f32 v{e+q}, v{d+2*q}, v{d+2*q+1}')
        a(f'buffer_store_dwordx4 {vr(e,4)}, v{2+qt}, {SW}, s97 offen offset:{j*1024} {st_flags}')
```

```python
from asmgen import *
from layout import *
from rec import lane_expr, srd

sXo, sWo, sOo, sLdx, sLdw, sNk, sSeg, sWv, sWstep, sM0x, sM0w = [f's{i}' for i in list(range(20, 28)) + [51, 52, 53]]
SX, SWt, SO = 's[8:11]', 's[12:15]', 's[16:19]'

class Gemm:
    def __init__(self, BM, BN, BK, NS, xmode, perm_out=False, ld_flags='', MS=32, w_flags=''):
        self.__dict__.update(locals())
        self.TM, self.TN = BM // (2 * MS), BN // (2 * MS)
        self.AR = MS * MS // 64
        self.XB, self.WB = BM * BK * 2, BN * BK * 2
        self.BUF = self.XB + self.WB
        self.NX, self.NW = self.XB // 4096, self.WB // 4096
        self.ND = self.NX + self.NW
        self.RB = BN * 2
        self.RPI = 1024 // self.RB
        self.KS = BK // (512 // MS)
        p = 2
        self.XA = p; p += self.NX
        self.WA = p; p += self.NW
        self.nxr = self.KS if xmode == 'row' else 1
        self.NWIN = -(-NS * self.BUF // 65536)
        self.XR = p; p += self.nxr * self.NWIN
        self.nwr = self.TN // 2 if (MS == 16 and perm_out) else self.TN
        self.WR = p; p += self.nwr * self.NWIN
        self.TMP = p; p += 4
        p = (p + 3) // 4 * 4
        self.FX = [p, p + 4 * self.TM]; p += 8 * self.TM
        self.FW = [p, p + 4 * self.TN]; p += 8 * self.TN
        self.END = p
        self.lds = NS * self.BUF
    def acc(self, i, j): return ar(self.AR * (i * self.TN + j), self.AR)
    def dma(self, s):
        out = []
        xs = [[f's_add_u32 m0, {sM0x}, {s*self.BUF + j*1024}', f'buffer_load_dwordx4 v{self.XA+j}, {SX}, {sXo} offen {self.ld_flags} lds'] for j in range(self.NX)]
        ws = [[f's_add_u32 m0, {sM0w}, {s*self.BUF + j*1024}', f'buffer_load_dwordx4 v{self.WA+j}, {SWt}, {sWo} offen {self.w_flags} lds'] for j in range(self.NW)]
        while xs or ws:
            if xs: out.append(xs.pop(0))
            if ws: out.append(ws.pop(0))
        return out
    def adv(self, s):
        if self.xmode == 'row': x = self.BK * 2
        else:
            per = 128 // self.BK
            x = self.BK * 32 if (s + 1) % per else 8192 - (per - 1) * self.BK * 32
        return [f's_add_u32 {sXo}, {sXo}, {x}', f's_add_u32 {sWo}, {sWo}, {sWstep}']
    def setup(self, a, mid=None):
        g = self; lane = 'v1'; t0, t1 = f'v{g.TMP}', f'v{g.TMP+1}'
        kw = dict(lane=lane, tmp=t1)
        a(f'v_and_b32 {lane}, 63, v0')
        a(f'v_lshrrev_b32 {t0}, 6, v0'); a('s_nop 0'); a(f'v_readfirstlane_b32 {sWv}, {t0}')
        CPR = g.BK // 8; sh = CPR.bit_length() - 1; RX = 64 // CPR
        if g.xmode == 'row':
            a(f's_mul_i32 s90, {sWv}, {RX*g.NX}')
            a(f'v_lshrrev_b32 {t0}, {sh}, {lane}'); a(f'v_add_u32 {t0}, s90, {t0}')
            a(f'v_mul_lo_u32 {t0}, {t0}, {sLdx}')
            a(f'v_lshrrev_b32 {t1}, 4, {lane}'); a(f'v_xor_b32 {t1}, {t1}, {lane}'); a(f'v_and_b32 {t1}, {CPR-1}, {t1}')
            a(f'v_lshl_add_u32 v{g.XA}, {t1}, 4, {t0}')
            a(f's_mul_i32 s91, {sLdx}, {RX}')
            for j in range(1, g.NX):
                a(f'v_add_u32 v{g.XA+j}, s91, v{g.XA+j-1}')
                if g.BK == 64: a(f'v_xor_b32 v{g.XA+j}, 64, v{g.XA+j}')
        else:
            bpt = g.BK // 32
            bps = 2 * bpt
            assert g.NX % bps == 0
            a(f's_mul_i32 s90, {sWv}, {g.NX//bps}'); a(f's_mul_i32 s90, s90, {sLdx}')
            for j in range(g.NX):
                if j % bps == 0 and j: a(f's_add_u32 s90, s90, {sLdx}')
                lane_expr(a, f'v{g.XA+j}', [(0, 6, 16)], const=((j // bpt) & 1) * 4096 + (j % bpt) * 1024, sadd=['s90'], **kw)
        LPR = g.RB // 16; sh = LPR.bit_length() - 1
        a(f's_mul_i32 s90, {sWv}, {g.NW*g.RPI}')
        for j in range(g.NW):
            a(f'v_lshrrev_b32 {t0}, {sh}, {lane}'); a(f'v_add_u32 {t0}, {g.RPI*j}, {t0}')
            a(f'v_add_u32 {t0}, s90, {t0}')
            if g.MS == 32:
                a(f'v_and_b32 {t1}, 3, {t0}'); a(f'v_lshlrev_b32 {t1}, 2, {t1}')
            elif g.xmode == 'row':
                a(f'v_and_b32 {t1}, 3, {t0}'); a(f'v_lshlrev_b32 {t1}, 1, {t1}'); a(f'v_and_b32 v{g.TMP+2}, 8, {t0}'); a(f'v_or_b32 {t1}, {t1}, v{g.TMP+2}')
            else:
                a(f'v_and_b32 {t1}, 7, {t0}'); a(f'v_lshlrev_b32 {t1}, 1, {t1}')
            a(f'v_xor_b32 {t1}, {t1}, {lane}'); a(f'v_and_b32 {t1}, {LPR-1}, {t1}')
            a(f'v_mul_lo_u32 {t0}, {t0}, {sLdw}')
            a(f'v_lshl_add_u32 v{g.WA+j}, {t1}, 4, {t0}')
        a(f's_mul_i32 {sWstep}, {sLdw}, {g.BK}')
        a(f's_mul_i32 {sM0x}, {sWv}, {g.NX*1024}'); a(f's_mul_i32 {sM0w}, {sWv}, {g.NW*1024}'); a(f's_add_u32 {sM0w}, {sM0w}, {g.XB}')
        if mid is None:
            for s in range(g.NS):
                for grp in g.dma(s):
                    for x in grp: a(x)
                for x in g.adv(s): a(x)
        else:
            for part in (1, 0):
                for s in range(g.NS):
                    for grp in g.dma(s):
                        if (SWt in grp[1]) == bool(part):
                            for x in grp: a(x)
                    a(g.adv(s)[part])
                if part: mid()
        a(f's_lshr_b32 s90, {sWv}, 1'); a(f's_and_b32 s91, {sWv}, 1')
        a(f's_mul_i32 s92, s90, {g.XB//2}')
        LB = 5 if g.MS == 32 else 4
        if g.xmode == 'row':
            lane_expr(a, t0, [(0, LB, g.BK * 2)], sadd=['s92'], **kw)
            a(f'v_lshrrev_b32 {t1}, {1 if g.BK == 64 else 2}, {lane}'); a(f'v_and_b32 {t1}, {CPR-1}, {t1}')
            a(f'v_lshrrev_b32 v{g.TMP+2}, {LB}, {lane}'); a(f'v_xor_b32 {t1}, {t1}, v{g.TMP+2}')
            a(f'v_lshl_add_u32 v{g.XR}, {t1}, 4, {t0}')
            for kk in range(1, g.KS): a(f'v_xor_b32 v{g.XR+kk}, {(1024 // g.MS)*kk}, v{g.XR}')
        elif g.MS == 32:
            lane_expr(a, f'v{g.XR}', [(0, 4, 16), (4, 1, g.BK * 32), (5, 1, 256)], sadd=['s92'], **kw)
        else:
            lane_expr(a, f'v{g.XR}', [(0, 6, 16)], sadd=['s92'], **kw)
        for w in range(1, g.NWIN):
            for kk in range(g.nxr): a(f'v_add_u32 v{g.XR + w*g.nxr + kk}, {65536*w}, v{g.XR+kk}')
        hirow = 8 if g.xmode == 'row' else 4
        t2 = f'v{g.TMP+2}'
        if g.MS == 32:
            colterms = [(4, 1, 32), (0, 2, 8)] if not g.perm_out else [(0, 1, 32), (4, 1, 16), (1, 1, 8)]
            lane_expr(a, t0, [(2, 2, g.RB), (5, 1, hirow * g.RB)] + colterms, **kw)
            a(f'v_bfe_u32 {t2}, {lane}, 2, 2'); ush = 6
        else:
            colterms = [(0, 2, 8)] if not g.perm_out else [(0, 1, 16)]
            lane_expr(a, t0, [(2, 2, g.RB), (4, 2, hirow * g.RB)] + colterms, **kw)
            a(f'v_bfe_u32 {t2}, {lane}, 2, 3'); ush = 5
            if g.perm_out: a(f'v_bfe_u32 {t1}, {lane}, 1, 1'); a(f'v_xor_b32 {t2}, {t2}, {t1}')
        a(f's_mul_i32 s92, s91, {g.TN}')
        for jn in range(g.nwr):
            a(f's_add_u32 s93, s92, {jn * (g.TN // g.nwr)}')
            a(f'v_xor_b32 {t1}, s93, {t2}')
            a(f'v_lshl_add_u32 v{g.WR+jn}, {t1}, {ush}, {t0}')
            for w in range(1, g.NWIN): a(f'v_add_u32 v{g.WR + w*g.nwr + jn}, {65536*w}, v{g.WR+jn}')
    def frags(self, s, kk, f):
        g = self
        xs, wl = [], []
        for i in range(g.TM):
            off = s * g.BUF + i * g.MS * g.BK * 2 + (0 if g.xmode == 'row' else (16384 // g.MS) * kk)
            w, off = off >> 16, off & 0xffff
            xs.append(f'ds_read_b128 {vr(g.FX[f] + 4*i, 4)}, v{g.XR + w*g.nxr + (kk if g.xmode == "row" else 0)} offset:{off}')
        for jn in range(g.TN):
            for h in range(2):
                if g.MS == 32: row = 16 * kk + 4 * h if g.xmode == 'row' else 32 * (kk >> 1) + 8 * (kk & 1) + 16 * h
                else: row = 32 * kk + (4 if g.xmode == 'row' else 16) * h
                off = s * g.BUF + g.XB + row * g.RB
                jr = jn
                if g.nwr != g.TN: jr = jn >> 1; off += (jn & 1) * 8
                w, off = off >> 16, off & 0xffff
                wl.append(f'ds_read_b64_tr_b16 {vr(g.FW[f] + 4*jn + 2*h, 2)}, v{g.WR + w*g.nwr + jr} offset:{off}')
        res = []
        while xs or wl:
            if xs: res.append(xs.pop(0))
            res += wl[:2]; wl = wl[2:]
        return res
    def mfmas(self, f, orient, first=False):
        g = self; out = []
        op = 'v_mfma_f32_32x32x16_bf16' if g.MS == 32 else 'v_mfma_f32_16x16x32_bf16'
        for i in range(g.TM):
            for j in range(g.TN):
                X, W = vr(g.FX[f] + 4*i, 4), vr(g.FW[f] + 4*j, 4)
                A, B = (W, X) if orient == 'T' else (X, W)
                out.append(f'{op} {g.acc(i,j)}, {A}, {B}, {0 if first else g.acc(i,j)}')
        return out
    def loop(self, a, tag, orient, younger=0, hook=None, exp='', fin_hook=None, xlast=False):
        g = self; L = lambda s: f'L_{tag}_{s}'
        NS, KS, ND = g.NS, g.KS, g.ND
        a(f's_waitcnt vmcnt({min(63, (NS-1)*(g.NX if xlast else ND) + younger)})'); a('s_barrier')
        for x in g.frags(0, 0, 0): a(x)
        def stage(s, pend, wait, do_dma, last=False, first=False, after=None):
            for kk in range(KS):
                ms = g.mfmas(kk & 1, orient, first and kk == 0)
                n = len(ms)
                a('s_waitcnt lgkmcnt(0)')
                start = 0
                if kk == KS - 1:
                    if last:
                        for m in ms: a(m)
                        return []
                    assert not pend
                    a(ms[0]); start = 1
                    a(f's_waitcnt vmcnt({wait})'); a('s_barrier')
                    if after: after(a)
                    rd = g.frags((s + 1) % NS, 0, 0)
                    if do_dma: pend = g.dma(s) + [g.adv(s)]
                    quota = -(-len(pend) // KS)
                    if 'front' in exp: quota = -(-len(pend) // (KS // 2))
                else:
                    rd = g.frags(s, kk + 1, (kk + 1) & 1)
                    quota = -(-len(pend) // (KS - 1 - kk))
                    if 'front' in exp: quota = len(pend)
                slots = n - start
                per = -(-len(rd) // max(1, slots - 2 if slots > 4 else slots))
                gap = max(1, (slots - 8) // len(rd)) if slots > 16 else 1
                quota = min(quota, len(pend))
                pos = [start + (q * slots) // quota for q in range(quota)] if quota else []
                for q in range(start, n):
                    mine = [pend.pop(0) for _ in range(pos.count(q))]
                    pre = mine[0][:1] if mine else []
                    for x in pre: a(x)
                    a(ms[q])
                    for k, grp in enumerate(mine):
                        for x in (grp[1:] if k == 0 else grp): a(x)
                    if (q - start) % gap == 0:
                        for x in rd[:per]: a(x)
                        rd = rd[per:]
                assert not rd
            return pend
        W = (NS - 2) * ND
        pend = []
        a(f's_sub_u32 {sNk}, {sNk}, 1')
        for s in range(NS):
            w = W + younger if s < NS - 1 else W
            if xlast and s < NS - 1: w = (NS - 2 - s) * g.NX + s * ND + younger
            pend = stage(s, pend, min(63, w), True, first=(s == 0), after=hook if s == NS - 1 else None)
        p0 = [list(x) for x in pend]
        a.label(L('loop'))
        a(f's_sub_u32 {sNk}, {sNk}, 1'); a(f's_cmp_eq_u32 {sNk}, 0'); a(f's_cbranch_scc1 {L("fin")}')
        for s in range(NS): pend = stage(s, pend, W, True)
        assert pend == p0
        a(f's_branch {L("loop")}')
        a.label(L('fin'))
        if fin_hook: fin_hook(a)
        pend = [list(x) for x in p0]
        for s in range(NS): pend = stage(s, pend, max(0, NS - 2 - s) * ND, False, last=(s == NS - 1))
    def epilogue(self, a, epi, EP, st_flags='', lane='v1', SO=SO, sOo=sOo, sSeg=sSeg):
        g = self; TM, TN = g.TM, g.TN
        t0, t1, ad = f'v{EP}', f'v{EP+1}', f'v{EP+2}'
        EP += 4
        kw = dict(lane=lane, tmp=t1)
        a(f's_lshr_b32 s90, {sWv}, 1'); a(f's_and_b32 s91, {sWv}, 1')
        def rdacc(dst, i, j, regs):
            for q, r in enumerate(regs): a(f'v_accvgpr_read_b32 v{dst+q}, a{16*(i*TN+j)+r}')
        cnt = 0
        if g.MS == 16:
            def rd2(dst, t1_, t2_, inter):
                ra, rb_ = 4 * (t1_[0] * TN + t1_[1]), 4 * (t2_[0] * TN + t2_[1])
                regs = [x for q in range(4) for x in (ra + q, rb_ + q)] if inter else [ra + q for q in range(4)] + [rb_ + q for q in range(4)]
                for q, r in enumerate(regs): a(f'v_accvgpr_read_b32 v{dst+q}, a{r}')
            if epi in ('qk', 'v'):
                lane_expr(a, ad, [(0, 6, 16)], **kw); a(f'v_add_u32 {t0}, 4096, {ad}')
                a(f's_mul_i32 s92, s90, {TM//2}'); a(f's_mul_i32 s92, s92, {sSeg}'); a(f's_add_u32 s92, s92, {sOo}')
                a(f's_mul_i32 s93, s91, {8192 if TN == 8 else (2048 if epi == "qk" else 4096)}'); a('s_add_u32 s92, s92, s93')
                for sg_ in range(TM // 2):
                    for u in range(TN):
                        e = EP + 12 * (cnt % 4); cnt += 1
                        if epi == 'qk':
                            tt, jj = u // (TN // 2), u % (TN // 2)
                            rd2(e + 4, (2*sg_ + tt, 2*jj), (2*sg_ + tt, 2*jj + 1), True); off = tt * 4096 + jj * 1024
                        else:
                            rd2(e + 4, (2*sg_, u), (2*sg_ + 1, u), False); off = u * 1024
                        for q in range(4): a(f'v_cvt_pk_bf16_f32 v{e+q}, v{e+4+2*q}, v{e+5+2*q}')
                        a(f'buffer_store_dwordx4 {vr(e,4)}, {t0 if off >= 4096 else ad}, {SO}, s92 offen offset:{off & 4095} {st_flags}')
                    a(f's_add_u32 s92, s92, {sSeg}')
            else:
                a(f'v_and_b32 {t0}, 15, {lane}'); a(f'v_mul_lo_u32 {t0}, {t0}, {sSeg}')
                a(f'v_lshrrev_b32 {t1}, 4, {lane}'); a(f'v_lshl_add_u32 {ad}, {t1}, 4, {t0}')
                a(f's_mul_i32 s92, s90, {TM*16}'); a(f's_mul_i32 s92, s92, {sSeg}'); a(f's_add_u32 s92, s92, {sOo}')
                a(f's_mul_i32 s93, s91, {TN*32}'); a('s_add_u32 s92, s92, s93')
                a(f's_lshl_b32 s94, {sSeg}, 4')
                for i in range(TM):
                    for jj in range(TN // 2):
                        e = EP + 12 * (cnt % 4); cnt += 1
                        rd2(e + 4, (i, 2*jj), (i, 2*jj + 1), False)
                        for q in range(4): a(f'v_cvt_pk_bf16_f32 v{e+q}, v{e+4+2*q}, v{e+5+2*q}')
                        a(f'buffer_store_dwordx4 {vr(e,4)}, {ad}, {SO}, s92 offen offset:{64*jj} {st_flags}')
                    a('s_add_u32 s92, s92, s94')
        elif epi in ('qk', 'v'):
            hs, ks = (4096, 1024) if epi == 'qk' else (1024, 2048)
            lane_expr(a, ad, [(0, 4, 16), (4, 1, hs), (5, 1, 256)], **kw)
            a(f's_mul_i32 s92, s90, {TM}'); a(f's_mul_i32 s92, s92, {sSeg}'); a(f's_add_u32 s92, s92, {sOo}')
            a(f's_mul_i32 s93, s91, {8192 if TN == 4 else TN*ks}'); a('s_add_u32 s92, s92, s93')
            for i in range(TM):
                for j in range(TN):
                    a(f's_add_u32 s93, s92, {j*ks}')
                    for ap in range(2):
                        e = EP + 12 * (cnt % 4); cnt += 1
                        if epi == 'qk': rdacc(e + 4, i, j, [4*ap + (q >> 1) + 8 * (q & 1) for q in range(8)])
                        else: rdacc(e + 4, i, j, [4*ap + q for q in range(4)] + [4*ap + 8 + q for q in range(4)])
                        for q in range(4): a(f'v_cvt_pk_bf16_f32 v{e+q}, v{e+4+2*q}, v{e+5+2*q}')
                        a(f'buffer_store_dwordx4 {vr(e,4)}, {ad}, {SO}, s93 offen offset:{512*ap} {st_flags}')
                a(f's_add_u32 s92, s92, {sSeg}')
        else:
            a(f'v_and_b32 {t0}, 31, {lane}'); a(f'v_mul_lo_u32 {t0}, {t0}, {sSeg}')
            a(f'v_lshrrev_b32 {t1}, 5, {lane}'); a(f'v_lshl_add_u32 {ad}, {t1}, 5, {t0}')
            a(f's_mul_i32 s92, s90, {TM*32}'); a(f's_mul_i32 s92, s92, {sSeg}'); a(f's_add_u32 s92, s92, {sOo}')
            a(f's_mul_i32 s93, s91, {TN*64}'); a('s_add_u32 s92, s92, s93')
            a(f's_lshl_b32 s94, {sSeg}, 5')
            for i in range(TM):
                for j in range(TN):
                    for ap in range(2):
                        e = EP + 12 * (cnt % 4); cnt += 1
                        rdacc(e + 4, i, j, [8*ap + q for q in range(8)])
                        for q in range(4): a(f'v_cvt_pk_bf16_f32 v{e+q}, v{e+4+2*q}, v{e+5+2*q}')
                        a(f'buffer_store_dwordx4 {vr(e,4)}, {ad}, {SO}, s92 offen offset:{64*j + 16*ap} {st_flags}')
                a('s_add_u32 s92, s92, s94')
        return cnt

def gen_gemm(a, tag, BM, BN, xmode, orient, epi, st_flags='', stamp=False, BK=None, NS=None, K=None, exp='', MS=32):
    BK = BK or (32 if BM * BN == 65536 else 64); NS = NS or 4
    g = Gemm(BM, BN, BK, NS, xmode, perm_out=(epi == 'out'), MS=MS)
    r = BK * NS // 128
    if r > 1: a(f's_lshr_b32 {sNk}, {sNk}, {r.bit_length()-1}')
    if stamp: a('s_memtime s[40:41]')
    g.setup(a)
    if stamp: a(f's_waitcnt vmcnt({(NS-1)*g.ND})'); a('s_barrier'); a('s_memtime s[42:43]')
    g.loop(a, tag, orient, exp=exp)
    if stamp: a('s_memtime s[44:45]')
    g.epilogue(a, epi, g.FX[0], st_flags)
    if stamp:
        a('s_memtime s[46:47]'); a('s_waitcnt vmcnt(0)'); a('s_memtime s[48:49]'); a('s_waitcnt lgkmcnt(0)')
        a('s_sub_u32 s48, s48, s46'); a('s_sub_u32 s46, s46, s44'); a('s_sub_u32 s44, s44, s42'); a('s_sub_u32 s42, s42, s40')
        a('v_mov_b32 v4, s42'); a('v_mov_b32 v5, s44'); a('v_mov_b32 v6, s46'); a('v_mov_b32 v7, s48')
        a('s_lshl_b32 s90, s2, 2'); a(f's_add_u32 s90, s90, {sWv}'); a('s_lshl_b32 s90, s90, 4'); a(f's_add_u32 s90, s90, {STAMP:#x}')
        a('v_mov_b32 v8, 0'); a('s_mov_b64 exec, 1')
        a(f'buffer_store_dwordx4 v[4:7], v8, {stamp}, s90 offen')
    return g.lds
```

```python
MB = 1 << 20
KB = 1 << 10
WS_BYTES = 256 * MB
QX = 0 * MB
KX = 16 * MB
VX = 32 * MB
KM = 48 * MB
VM = 52 * MB
RING = 56 * MB
RING2 = 58 * MB
SLOT = 512 * KB
MEM_OFF = RING2 - RING
QKVR_OFF = RING2 - RING + 64 * KB
STAMP = 60 * MB
BQKV = 64 * MB
OA = 80 * MB
OB = 96 * MB
OOB = 0x80000000
KA = dict(x=0, mem0=8, Wq=16, Wk=24, Wv=32, Wo=40, seg=48, bx=56, bwqkv=64, bwo=72, out=80, dbg=88, ws=96)
D_OR, D_FAIL, D_POL, D_INIT, D_TICK, D_INIT2 = 0, 32, 128, 132, 192, 136
CNT = 61 * MB
C_PROG, C_FIN, C_QUEUE, C_AB, C_AA = [128 * i for i in (0, 1, 4, 8, 16)]
C_KV, C_Q, C_BQ, C_SP, C_AF = [4096 * i for i in (1, 2, 3, 4, 5)]
CNT_BYTES = 24 * KB
PARTK = 100 * MB
```

```python
import math
from asmgen import *
from layout import *

SC = (128 ** -0.5) * math.log2(math.e)
import struct
def f32bits(x): return struct.unpack('<I', struct.pack('<f', x))[0]

def lane_expr(a, dst, terms, const=0, sadd=(), lane='v0', tmp='v31', stmp='s99'):
    a(f'v_mov_b32 {dst}, {const:#x}')
    for (lo, w, mult) in terms:
        a(f'v_bfe_u32 {tmp}, {lane}, {lo}, {w}')
        if mult & (mult - 1) == 0:
            a(f'v_lshl_add_u32 {dst}, {tmp}, {mult.bit_length()-1}, {dst}')
        else:
            a(f's_mov_b32 {stmp}, {mult}')
            a(f'v_mad_u32_u24 {dst}, {tmp}, {stmp}, {dst}')
    for s in sadd:
        a(f'v_add_u32 {dst}, {s}, {dst}')

def srd(a, d, base, size):
    a(f's_mov_b32 s{d}, s{base}')
    a(f's_and_b32 s{d+1}, s{base+1}, 0xffff')
    a(f's_mov_b32 s{d+2}, {size:#x}')
    a(f's_mov_b32 s{d+3}, 0x20000')

SW = 's[4:7]'
(aPartLd, aMemSt, aMemLd, aRedW, aRedRv, aRedR, aQ0, aQ1, aQkLd, aVLd, aKx, aVx0, aVx1, aOW0, aOW1, aOR,
 aPartSt, aPartStL, aE0, aE1, aWarm) = [f'v{i}' for i in range(1, 22)]
aRR = ['v6', 'v240', 'v241', 'v242']
vNeg = 'v22'
vIdx = 'v23'
NEG = 24
SEL = 24
T = 28
WACC = 32
GL = 36
GD = 40
GT = 44
SA = 36
MA = 48
QA = 64
XR = 64
WA = 48
RD = 88
VMR = 88
YY = 96
LR = 100
PA = 100
ET = 104
KXR = 116
VB = 148
VL = 180
OB_ = 212
def OT(j): return OB_ + 4 * j
OSUM = 228
PM = 232
CT = 236
ONES = 248
PUB = 112
sW, sX, sI, sG, sU, sHQ, sJ, sPol = 's32', 's33', 's34', 's35', 's36', 's37', 's38', 's39'
sStep, sSlot, sPrev, sRst, sKV, sExp, sSpin, sC = 's40', 's41', 's42', 's43', 's44', 's45', 's46', 's47'
sHalf0, sOdd, sEven = 's[48:49]', 's[50:51]', 's[52:53]'
sGuard, sKV2 = 's54', 's55'
LDS_RED = 0
RM, RW = 1088, 3264
LDS_O = 13312
SPIN_MAX = 1 << 17

class Stamps:
    def __init__(self, a, on): self.a = a; self.on = on; self.n = 0; self.names = []
    def init(self):
        if not self.on: return
        for k in range(16): self.a(f's_mov_b32 s{64+k}, 0')
        self.calib(76)
        self.a('s_memtime s[60:61]'); self.a('s_waitcnt lgkmcnt(0)')
    def calib(self, d):
        if self.on not in (2, 4): return
        if self.on == 4: d += 20
        a = self.a; l = a.newlabel('L_cal')
        a('s_memrealtime s[60:61]'); a('s_waitcnt lgkmcnt(0)')
        a.label(l)
        a('s_memrealtime s[62:63]'); a('s_memtime s[56:57]'); a('s_waitcnt lgkmcnt(0)')
        a('s_cmp_eq_u32 s60, s62'); a(f's_cbranch_scc1 {l}')
        a(f's_mov_b32 s{d}, s62'); a(f's_mov_b32 s{d+1}, s56')
    def __call__(self, name, only4=False):
        if not self.on: return
        if only4 and self.on != 4: return
        if self.on == 4 and name == 'PV': return
        if self.on == 3 and name != 'tail': return
        if name not in self.names: self.names.append(name)
        k = self.names.index(name)
        a = self.a
        if self.on == 4:
            a(f's_memtime s[{64+2*k}:{65+2*k}]'); return
        if self.on == 2:
            a('s_memtime s[62:63]'); a('s_waitcnt lgkmcnt(0)')
            a(f's_cmp_eq_u32 {sStep}, 40'); a(f's_cselect_b32 s{64+k}, s62, s{64+k}')
            return
        a('s_memtime s[62:63]'); a('s_waitcnt lgkmcnt(0)')
        a('s_sub_u32 s61, s62, s60'); a(f's_add_u32 s{64+k}, s{64+k}, s61'); a('s_mov_b32 s60, s62')

def chk(base, n=4, dst='vcc', t=None):
    t = t or f'v{T+3}'
    regs = [f'v{base+i}' for i in range(n)]
    out = [f'v_max3_u32 {t}, {regs[0]}, {regs[1]}, {regs[2]}']
    regs = regs[3:]
    while len(regs) >= 2:
        out.append(f'v_max3_u32 {t}, {t}, {regs[0]}, {regs[1]}'); regs = regs[2:]
    if regs: out.append(f'v_max_u32 {t}, {t}, {regs[0]}')
    out.append(f'v_cmp_eq_u32 {dst}, -1, {t}')
    return out

def spin_guard(c):
    c(f's_add_u32 {sSpin}, {sSpin}, 1'); c(f's_cmp_ge_u32 {sSpin}, {SPIN_MAX}'); c('s_cbranch_scc1 L_rec_abort')

sMode4 = 's100'
sBit = 's101'
vClaim = 'v247'
LDS_X = 131072

def signal(a, off, soff='0', srd_='s[28:31]', inc='1'):
    l = a.newlabel('L_sig')
    a(f's_cmp_lg_u32 {sW}, 0'); a(f's_cbranch_scc1 {l}')
    a(f'v_mov_b32 v254, {inc}'); a('v_mov_b32 v255, 0')
    a('s_mov_b64 exec, 1')
    a(f'buffer_atomic_add v254, v255, {srd_}, {soff} offen offset:{off} sc1')
    a('s_mov_b64 exec, -1')
    a.label(l)

def verify(a, want_pol=False, spin='s3'):
    lw, ld, lk = a.newlabel('L_vw'), a.newlabel('L_vd'), a.newlabel('L_vk')
    a(f's_cmp_lg_u32 {sW}, 0'); a(f's_cbranch_scc1 {ld}')
    a('v_mbcnt_lo_u32_b32 v250, -1, 0'); a('v_mbcnt_hi_u32_b32 v250, -1, v250'); a('v_lshlrev_b32 v250, 2, v250')
    a(f's_cmp_lg_u32 {sMode4}, 0'); a(f's_cbranch_scc1 {lw}')
    a(f'v_readfirstlane_b32 s90, {vClaim}'); a(f's_and_b32 s90, s90, {sBit}'); a(f's_cbranch_scc0 {lw}')
    a('v_mov_b32 v251, 1'); a('s_mov_b64 exec, 1')
    a(f'buffer_store_dword v251, v250, s[28:31], 0 offen offset:{D_FAIL} sc1'); a('s_mov_b64 exec, -1')
    a.label(lw)
    a('buffer_load_dword v251, v250, s[28:31], 0 offen sc1')
    a('s_waitcnt vmcnt(0)')
    a('v_cmp_eq_u32 vcc, -1, v251')
    a(f'v_readlane_b32 s91, v251, {D_FAIL//4}'); a(f'v_readlane_b32 s92, v251, {D_POL//4}')
    a(f'v_readlane_b32 s93, v251, {D_INIT//4}'); a(f'v_readlane_b32 s90, v251, {D_INIT2//4}')
    a(f's_cmp_lg_u32 {sMode4}, 0')
    a('s_cselect_b32 s93, s90, s93'); a('s_cselect_b32 s91, 0, s91'); a('s_cselect_b32 s92, 1, s92'); a('s_cselect_b32 s90, 0xff, vcc_lo')
    a('s_cmp_lg_u32 s91, 0'); a('s_cselect_b32 s92, 3, s92'); a(f's_cbranch_scc1 {lk}')
    a(f's_add_u32 {spin}, {spin}, 1'); a(f's_cmp_ge_u32 {spin}, {SPIN_MAX}'); a('s_cselect_b32 s92, 4, s92'); a(f's_cbranch_scc1 {lk}')
    a('s_sleep 8')
    a('s_and_b32 s90, s90, 0xff'); a('s_cmp_lg_u32 s90, 0xff'); a(f's_cbranch_scc1 {lw}')
    a('s_cmp_lt_u32 s93, 128'); a(f's_cbranch_scc1 {lw}')
    if want_pol: a('s_cmp_eq_u32 s92, 0'); a(f's_cbranch_scc1 {lw}')
    a.label(lk)
    a(f'v_mov_b32 v251, s92'); a(f'v_mov_b32 v250, {LDS_X}'); a('ds_write_b32 v250, v251'); a('s_waitcnt lgkmcnt(0)')
    a.label(ld)
    a('s_barrier')
    a(f'v_mov_b32 v250, {LDS_X}'); a('ds_read_b32 v251, v250'); a('s_waitcnt lgkmcnt(0)')
    a('v_readfirstlane_b32 s92, v251')
    a('s_barrier')
    a('s_cmp_eq_u32 s92, 3'); a('s_cbranch_scc1 L_fallback')
    a('s_cmp_eq_u32 s92, 4'); a('s_cbranch_scc1 L_exit')
    if want_pol: a(f's_sub_u32 {sPol}, s92, 1'); a(f's_and_b32 {sPol}, {sPol}, 1'); a(f's_lshl_b32 {sPol}, {sPol}, 13')

def gather(a, cold, name, loads, regs, work, extra=0, thr=2, per=0):
    n = len(loads)
    done = f'L_{name}_done'
    def mix(w, pre):
        if not per: return w[:1] + pre + w[1:]
        out = []; pre = list(pre)
        for x in w:
            out.append(x)
            k = 0
            while pre and k < per:
                y = pre.pop(0); out.append(y)
                if y.startswith('v_'): k += 1
        return out + pre
    a(f's_waitcnt vmcnt({n-1+extra})')
    for x in chk(regs[0]): a(x)
    ex = [extra]
    for j in range(n):
        a(f's_cbranch_vccnz L_{name}_f{j}')
        if j + 1 < n:
            for x in mix(work[j], [f's_waitcnt vmcnt({n-2-j+ex[j]})'] + chk(regs[j+1])): a(x)
        else:
            for x in work[j]: a(x)
        ex.append(ex[j] + sum(x.startswith('buffer_') for x in work[j]))
    a.label(done)
    c = cold
    def key(S): return ''.join(map(str, S))
    def succ(S, j):
        later = [x for x in S if x > j]
        return later[0] if later else S[0]
    for j in range(n):
        S = tuple(range(j, n))
        c.label(f'L_{name}_f{j}')
        c('s_mov_b64 exec, vcc'); c(loads[j]); c('s_mov_b64 exec, -1')
        c(f's_waitcnt vmcnt({1+ex[j]})' if len(S) > 1 else f's_nop 7')
        c(f's_branch L_{name}_{key(S)}_c{succ(S, j)}')
    import itertools
    for r in range(1, n + 1):
        for S in itertools.combinations(range(n), r):
            for j in S:
                c.label(f'L_{name}_{key(S)}_c{j}')
                for x in chk(regs[j]): c(x)
                c(f's_cbranch_vccz L_{name}_{key(S)}_ok{j}')
                c.label(f'L_{name}_{key(S)}_x{j}')
                c('s_mov_b64 exec, vcc'); c(loads[j]); c('s_mov_b64 exec, -1')
            spin_guard(c)
            c(f's_waitcnt vmcnt({min(thr * len(S), 2 * thr)})')
            c(f's_branch L_{name}_{key(S)}_c{S[0]}')
            for j in S:
                c.label(f'L_{name}_{key(S)}_ok{j}')
                S2 = tuple(x for x in S if x != j)
                if not S2:
                    for x in work[j]: c(x)
                    c(f's_branch {done}')
                else:
                    nx = succ(S2, j)
                    for x in mix(work[j], chk(regs[nx])): c(x)
                    c(f's_cbranch_vccz L_{name}_{key(S2)}_ok{nx}')
                    c(f's_branch L_{name}_{key(S2)}_x{nx}')

def gather_all(a, cold, name, loads, regs, extra=0, thr=0):
    a(f's_waitcnt vmcnt({extra})')
    for x in chk(regs[0], 8): a(x)
    a(f's_cbranch_vccnz L_{name}_f')
    a.label(f'L_{name}_done')
    c = cold
    c.label(f'L_{name}_f')
    for x in chk(regs[0], 4, 's[56:57]', f'v{T+2}'): c(x)
    for x in chk(regs[1], 4, 'vcc'): c(x)
    c('s_or_b64 exec, s[56:57], 1'); c(loads[0])
    c('s_or_b64 exec, vcc, 1'); c(loads[1]); c('s_mov_b64 exec, -1')
    spin_guard(c)
    c(f's_waitcnt vmcnt({thr})')
    for x in chk(regs[0], 8): c(x)
    c(f's_cbranch_vccz L_{name}_done')
    c(f's_branch L_{name}_f')

def gen_rec(a, nsteps=64, stamps=False, local_st='', exp_st='', exit_label='L_rec_exit', no_pf=False, no_exp=False, pol=None,
            dg=0, d1=0, d2=0, thr=2, gthr=0, warm=True, npre=4, cut=0, f1=24, nv1=5, nv2=3, nA=4, nB=6, nr0=5, vat=0, allafter=0, fused=False, kvneed=32, sweep=False, wtouch=None, wfl='', rt=False, xo='', defv=2, mper=0, xper=0, zsh=0):
    st = Stamps(a, stamps)
    def rts(k):
        if not rt: return
        a('s_memrealtime s[60:61]'); a('s_waitcnt lgkmcnt(0)')
        a(f's_lshl_b32 s62, s2, 5'); a(f's_add_u32 s62, s62, {STAMP + 131072 + 4*k:#x}')
        a('v_mov_b32 v28, 0'); a('v_mov_b32 v29, s60'); a('s_mov_b64 exec, 1')
        a(f'buffer_store_dword v29, v28, {SW}, s62 offen'); a('s_mov_b64 exec, -1')
    cold = Asm(); cold.uid = 5000
    if cut == 1: a('s_endpgm')
    a('s_load_dwordx4 s[80:83], s[0:1], 8')
    a('s_load_dwordx4 s[84:87], s[0:1], 24')
    a('s_load_dwordx2 s[88:89], s[0:1], 40')
    a('v_lshrrev_b32 v31, 6, v0')
    a('s_nop 0')
    a(f'v_readfirstlane_b32 {sW}, v31')
    a('v_and_b32 v0, 63, v0')
    a(f's_lshr_b32 {sG}, {sI}, 4'); a(f's_lshl_b32 s90, {sX}, 1'); a(f's_add_u32 {sG}, {sG}, s90')
    a(f's_and_b32 {sU}, {sI}, 15')
    a(f's_lshr_b32 {sHQ}, {sU}, 2'); a(f's_lshl_b32 s90, {sG}, 2'); a(f's_add_u32 {sHQ}, {sHQ}, s90')
    a(f's_and_b32 {sJ}, {sU}, 3')
    a('s_waitcnt lgkmcnt(0)')
    srd(a, 24, 80, 8 * 1024 * 2)
    srd(a, 8, 82, 8 << 20); srd(a, 12, 84, 8 << 20); srd(a, 16, 86, 8 << 20); srd(a, 20, 88, 8 << 20)
    a(f's_lshl_b32 s90, {sW}, 21'); a(f's_lshl_b32 s91, {sHQ}, 8'); a(f's_add_u32 s90, s90, s91')
    a(f's_lshr_b32 s91, {sJ}, 1'); a('s_lshl_b32 s91, s91, 7'); a(f's_add_u32 s90, s90, s91')
    lane_expr(a, 'v1', [(3, 3, 8192), (0, 3, 16)], sadd=['s90'])
    a(f's_lshl_b32 s90, {sG}, 2'); a(f's_add_u32 s90, s90, {sW}'); a('s_lshl_b32 s90, s90, 18'); a(f's_lshl_b32 s91, {sU}, 7'); a('s_add_u32 s90, s90, s91')
    lane_expr(a, 'v2', [(3, 3, 2048), (0, 3, 16)], sadd=['s90'])
    a(f's_lshl_b32 s96, {sW}, 15')
    a(f's_and_b32 s91, {sJ}, 1'); a('s_lshl_b32 s91, s91, 6'); a('s_add_u32 s91, s91, s96')
    lane_expr(a, 'v3', [(5, 1, 16 * 128), (4, 1, 8 * 128), (2, 2, 128), (0, 2, 8)], sadd=['s91'])
    a(f's_lshl_b32 s91, {sW}, 5')
    lane_expr(a, 'v4', [(4, 1, 64 * 128), (5, 1, 2 * 128), (2, 1, 8 * 128), (3, 1, 128), (0, 2, 8)], sadd=['s91'])
    a('v_add_u32 v5, 0x10000, v4')
    units = [(ks, h, m) for ks in range(4) for h in range(2) for m in (1, 2)] + [(ks, h, 0) for ks in range(4) for h in range(2)]
    def issue(u):
        for q in range(4):
            a(f's_add_u32 m0, s96, {(u % 8) * 4096 + q * 1024}')
            if u < 24:
                ks, h, m = units[u]
                a(f's_mov_b32 s90, {(64*ks + 32*h + 8*q) * 8192:#x}')
                a(f'buffer_load_dwordx4 v1, s[{8+4*m}:{11+4*m}], s90 offen {wfl} lds')
            else:
                a(f's_mov_b32 s90, {(32*(u-24) + 8*q) * 2048:#x}')
                a(f'buffer_load_dwordx4 v2, s[20:23], s90 offen {wfl} lds')
    NP = 4
    a(f's_lshl_b32 s97, {sI}, 2'); a(f's_add_u32 s97, s97, {sW}')
    a('s_lshl_b32 s98, s97, 14'); a(f's_lshl_b32 s91, {sX}, 21'); a('s_add_u32 s98, s98, s91')
    a('s_lshl_b32 s97, s97, 16'); a(f's_lshl_b32 s91, {sX}, 11'); a('s_add_u32 s97, s97, s91')
    lane_expr(a, 'v16', [(0, 4, 128), (4, 2, 8192)]); a('v_add_u32 v17, 0x8000, v16')
    a('v_lshlrev_b32 v18, 7, v0'); a('v_add_u32 v19, 0x2000, v18')
    def touch(m):
        if not wtouch: return
        for q in range(2):
            if m < 3: a(f'buffer_load_dword v{20+2*m+q}, v{16+q}, s[{8+4*m}:{11+4*m}], s97 offen')
            else: a(f'buffer_load_dword v{20+2*m+q}, v{18+q}, s[20:23], s98 offen')
    touch(1); touch(2)
    POLOFF = D_POL if fused else 32
    a(f's_lshl_b32 s58, {sX}, 5'); a(f's_add_u32 s58, s58, {sI}')
    if fused:
        exp_st = 'sc1'
        a(f's_lshl_b32 s59, {sW}, 19'); a(f's_add_u32 s59, s59, {RING:#x}')
        a('s_lshl_b32 s90, s58, 11'); a('s_add_u32 s90, s90, s59')
        a('s_mul_i32 s91, s58, 3072'); a('s_add_u32 s91, s91, s59'); a(f's_add_u32 s91, s91, {RING2-RING:#x}')
        a('v_lshlrev_b32 v6, 4, v0')
        for r in range(4): a(f'v_mov_b32 v{8+r}, -1'); a(f'v_mov_b32 v{12+r}, 0')
        for q in range(2): a(f'buffer_store_dwordx4 v[8:11], v6, {SW}, s90 offen offset:{1024*q} sc1')
        for q in range(3): a(f'buffer_store_dwordx4 v[8:11], v6, {SW}, s91 offen offset:{1024*q} sc1')
    a(f's_lshl_b32 s58, s58, 2'); a(f's_add_u32 s58, s58, {sW}')
    if fused:
        lz = a.newlabel('L_nz')
        a(f's_cmp_ge_u32 s58, {CNT_BYTES // 1024}'); a(f's_cbranch_scc1 {lz}')
        a('s_lshl_b32 s90, s58, 10'); a(f's_add_u32 s90, s90, {CNT:#x}')
        a(f'buffer_store_dwordx4 v[12:15], v6, {SW}, s90 offen sc1')
        a.label(lz)
    if pol is None:
        lp = a.newlabel('L_np')
        a('s_cmp_lg_u32 s58, 3'); a(f's_cbranch_scc1 {lp}')
        lane_expr(a, 'v6', [(0, 1, 8192), (1, 1, 4096 + 256), (2, 2, 0x14000 + 512)], const=RING + 256 * KB)
        a('v_mov_b32 v7, -1')
        a('s_mov_b64 exec, 0xffff')
        a(f'buffer_store_dword v7, v6, {SW}, 0 offen sc1')
        a('s_mov_b64 exec, -1')
        a('s_waitcnt vmcnt(0)')
        a.label(lp)
    for u in range(8): issue(u)
    if cut == 2: a('s_waitcnt vmcnt(0)'); a('s_endpgm')
    if pol is None:
        lp = a.newlabel('L_np')
        a('s_cmp_lg_u32 s58, 3'); a(f's_cbranch_scc1 {lp}')
        a(f's_add_u32 s92, s94, {RING + 256 * KB:#x}'); a('s_addc_u32 s93, s95, 0')
        a('s_mov_b32 s62, -1'); a('s_mov_b32 s63, -1')
        for k in range(NP):
            for pp in range(2):
                a('s_memtime s[56:57]'); a('s_waitcnt lgkmcnt(0)')
                a(f's_load_dword s60, s[92:93], {pp*8192 + (k&1)*(4096+256) + (k>>1)*(0x14000+512):#x}'); a('s_waitcnt lgkmcnt(0)')
                a('s_memtime s[58:59]'); a('s_waitcnt lgkmcnt(0)')
                a('s_sub_u32 s58, s58, s56'); a(f's_min_u32 s{62+pp}, s{62+pp}, s58')
        a('s_cmp_lt_u32 s63, s62'); a('s_cselect_b32 s60, 2, 1')
        a('v_mov_b32 v6, s60'); a('v_mov_b32 v7, s62'); a('v_mov_b32 v8, s63'); a('v_mov_b32 v9, 0')
        a('s_mov_b64 exec, 1')
        a(f'buffer_store_dword v6, v9, s[28:31], 0 offen offset:{POLOFF} sc1' if fused else 'buffer_store_dwordx3 v[6:8], v9, s[28:31], 0 offen offset:32 sc1')
        a('s_mov_b64 exec, -1')
        a.label(lp)
    if fused:
        a('s_waitcnt vmcnt(32)'); a('s_barrier'); signal(a, D_INIT, soff=sMode4)
    for u in range(24):
        a(f's_waitcnt vmcnt({4 * (min(u + 7, 27) - u)})')
        if u in (8, 16, 23) and rt: a(f's_memrealtime s[{64 + 2*(u//8 + (u == 23))}:{65 + 2*(u//8 + (u == 23))}]')
        ks, h, m = units[u]
        for t1 in range(2):
            for rl in range(2):
                d = ks * 48 + (2*m + t1) * 8 + 4*h + 2*rl
                a(f'ds_read_b64_tr_b16 {ar(d,2)}, v3 offset:{(u % 8) * 4096 + rl*512 + t1*32}')
        if u + 8 < 28:
            a('s_waitcnt lgkmcnt(0)')
            issue(u + 8)
            if wtouch and u == wtouch[0]: touch(0)
            if wtouch and u == wtouch[1]: touch(3)
    a('s_waitcnt vmcnt(0)'); a('s_barrier')
    for kk in range(8):
        for rp in range(4):
            hd = kk >> 1
            off = (16*(rp & 1) + 32*(kk & 1) + 4*(rp >> 1)) * 128 + (hd & 1) * 32768
            a(f'ds_read_b64_tr_b16 {ar(192 + kk*8 + 2*rp, 2)}, {"v4" if hd < 2 else "v5"} offset:{off}')
        if kk & 1: a('s_waitcnt lgkmcnt(0)')
    a('s_barrier')
    a(f's_mov_b32 {sSpin}, 0')
    if cut == 3: a('s_endpgm')
    rts(2)
    if rt:
        a('v_mov_b32 v32, s66'); a('v_mov_b32 v33, s68'); a('v_mov_b32 v34, s70'); a('s_mov_b64 exec, 1')
        a(f'buffer_store_dwordx3 v[32:34], v28, {SW}, s62 offen offset:12'); a('s_mov_b64 exec, -1')
    if fused:
        verify(a, want_pol=(pol is None))
        if pol is not None: a(f's_mov_b32 {sPol}, {pol*8192}')
    elif pol is None:
        a('v_mov_b32 v9, 0')
        a.label('L_polwait')
        a('buffer_load_dword v6, v9, s[28:31], 0 offen offset:32 sc1')
        a('s_waitcnt vmcnt(0)')
        a(f'v_readfirstlane_b32 {sPol}, v6')
        spin_guard(a)
        a(f's_cmp_eq_u32 {sPol}, 0'); a('s_cbranch_scc1 L_polwait')
        a(f's_sub_u32 {sPol}, {sPol}, 1'); a(f's_and_b32 {sPol}, {sPol}, 1'); a(f's_lshl_b32 {sPol}, {sPol}, 13')
    else:
        a(f's_mov_b32 {sPol}, {pol*8192}')
    a(f's_lshl_b32 s90, {sI}, 2'); a(f's_add_u32 s90, s90, {sW}')
    a('s_lshr_b32 s91, s90, 3'); a('s_lshl_b32 s91, s91, 14'); a('s_and_b32 s92, s90, 7'); a('s_lshl_b32 s92, s92, 10')
    a('s_add_u32 s91, s91, s92'); a(f's_add_u32 s91, s91, {sPol}')
    lane_expr(a, aPartLd, [(0, 6, 16)], sadd=['s91'])
    a('v_lshrrev_b32 v30, 4, v0'); a(f'v_cmp_eq_u32 vcc, {sX}, v30'); a(f'v_xor_b32 v29, 0x2000, {aPartLd}')
    a(f'v_cndmask_b32 {aPartLd}, {aPartLd}, v29, vcc')
    a(f's_lshl_b32 s91, {sX}, 14'); a('s_lshl_b32 s92, s90, 7'); a('s_add_u32 s91, s91, s92')
    lane_expr(a, aMemSt, [(0, 2, 4), (2, 1, 64), (4, 1, 16), (5, 1, 32), (3, 1, OOB)], const=MEM_OFF, sadd=['s91'])
    a('s_lshr_b32 s92, s90, 1'); a('s_lshl_b32 s92, s92, 5'); a('s_and_b32 s91, s90, 1'); a('s_lshl_b32 s91, s91, 13'); a('s_add_u32 s92, s92, s91')
    lane_expr(a, 'v30', [(2, 1, 2 * 2048), (4, 1, 2048), (0, 2, 8), (5, 1, 4)], sadd=['s92'])
    a(f'buffer_load_dword v{GT}, v30, s[24:27], 0 offen')
    a(f's_lshl_b32 s91, {sX}, 14'); a(f's_lshl_b32 s92, {sW}, 12'); a('s_add_u32 s91, s91, s92')
    lane_expr(a, aMemLd, [(0, 6, 16)], const=MEM_OFF, sadd=['s91'])
    a(f's_mul_i32 s91, {sW}, {RW}')
    lane_expr(a, aRedW, [(0, 6, 16)], const=LDS_RED, sadd=['s91'])
    a(f's_lshl_b32 s91, {sW}, 6')
    lane_expr(a, aRR[0], [(0, 2, 16), (2, 1, 4), (3, 1, RM), (4, 2, 256)], const=LDS_RED, sadd=['s91'])
    for w in range(1, 4): a(f'v_add_u32 {aRR[w]}, {RW*w}, {aRR[0]}')
    a(f's_lshl_b32 s93, {sHQ}, 13')
    a(f's_lshl_b32 s91, {sJ}, 10'); a('s_add_u32 s91, s91, s93'); a(f's_lshl_b32 s92, {sW}, 8'); a('s_add_u32 s91, s91, s92')
    lane_expr(a, aQ0, [(0, 6, 4)], const=QKVR_OFF, sadd=['s91'])
    a(f's_lshl_b32 s91, {sHQ}, 11'); a(f's_lshl_b32 s92, {sJ}, 9'); a('s_add_u32 s96, s91, s92')
    a(f's_lshl_b32 s92, {sW}, 7'); a('s_add_u32 s91, s96, s92')
    lane_expr(a, aE0, [(0, 3, 4), (4, 2, 32), (3, 1, OOB)], const=KM + OOB, sadd=['s91'])
    a(f's_lshl_b32 s91, {sW}, 8')
    lane_expr(a, aRedRv, [(0, 1, 128), (1, 1, 8), (2, 3, 16)], const=LDS_RED + 2 * RM, sadd=['s91'])
    a(f's_lshr_b32 s92, {sJ}, 1'); a('s_lshl_b32 s92, s92, 10'); a('s_add_u32 s91, s91, s92'); a('s_add_u32 s91, s91, s93')
    a(f's_and_b32 s92, {sJ}, 1'); a('s_lshl_b32 s92, s92, 7'); a('s_add_u32 s91, s91, s92')
    lane_expr(a, aQ1, [(0, 5, 4), (5, 1, OOB)], const=QKVR_OFF + 4096, sadd=['s91'])
    a('s_sub_u32 s91, s91, s93'); a(f's_lshl_b32 s92, {sHQ}, 11'); a('s_add_u32 s91, s91, s92')
    lane_expr(a, aE1, [(0, 5, 4), (5, 1, OOB)], const=VM, sadd=['s91'])
    a(f's_lshl_b32 s97, {sG}, 2'); a(f's_add_u32 s97, s97, {sW}'); a('s_lshl_b32 s97, s97, 13')
    lane_expr(a, aQkLd, [(0, 6, 16)], const=QKVR_OFF, sadd=['s97'])
    a(f'v_add_u32 {aVLd}, 4096, {aQkLd}')
    lane_expr(a, aKx, [(0, 2, 16), (2, 1, 128), (3, 1, 4096), (4, 2, 256)], const=KX, sadd=['s97'])
    lane_expr(a, aVx0, [(0, 3, 16), (3, 1, 2048), (4, 2, 256)], const=VX, sadd=['s97'])
    a(f'v_add_u32 {aVx1}, 4096, {aVx0}')
    a(f's_lshl_b32 s91, {sU}, 9'); a('s_add_u32 s91, s91, s97')
    a(f's_add_u32 s12, s91, {KX:#x}')
    lane_expr(a, aWarm, [(0, 2, 128), (2, 1, VX - KX)], const=KX, sadd=['s91'])
    a('v_cmp_gt_u32 vcc, 8, v0'); a(f'v_mov_b32 v30, {OOB:#x}'); a(f'v_cndmask_b32 {aWarm}, v30, {aWarm}, vcc')
    a(f's_lshl_b32 s91, {sW}, 11')
    lane_expr(a, 'v30', [(2, 1, 64), (0, 1, 32), (1, 1, 16)])
    lane_expr(a, 'v29', [(4, 2, 32)])
    a('v_xor_b32 v30, v30, v29')
    lane_expr(a, aOW0, [(0, 4, 128)], const=LDS_O, sadd=['s91'])
    a(f'v_add_u32 {aOW0}, {aOW0}, v30')
    a(f'v_xor_b32 {aOW1}, 16, {aOW0}')
    lane_expr(a, 'v30', [(5, 1, 64), (1, 1, 32), (4, 1, 16)])
    lane_expr(a, 'v29', [(2, 2, 32), (0, 1, 16)])
    a('v_xor_b32 v30, v30, v29')
    lane_expr(a, aOR, [(4, 2, 256), (1, 1, 128)], const=LDS_O)
    a(f'v_add_u32 {aOR}, {aOR}, v30')
    a(f's_lshl_b32 s98, {sU}, 14'); a(f's_lshl_b32 s92, {sG}, 7'); a('s_add_u32 s98, s98, s92'); a(f's_add_u32 s98, s98, {sPol}')
    a(f's_lshl_b32 s92, {sW}, 11'); a('s_add_u32 s91, s98, s92')
    lane_expr(a, aPartSt, [(0, 5, 4), (5, 1, 1024)], sadd=['s91'])
    a(f'v_xor_b32 {aPartStL}, 0x2000, {aPartSt}')
    a('s_mov_b32 s48, 0x33333333'); a('s_mov_b32 s49, 0x33333333')
    a('s_mov_b32 s50, 0xffff0000'); a('s_mov_b32 s51, 0xffff0000')
    a('s_mov_b32 s52, 0x0000ffff'); a('s_mov_b32 s53, 0x0000ffff')
    a(f's_mov_b32 {sGuard}, 0xfffffffe')
    a(f's_mov_b32 {sC}, {f32bits(SC):#x}')
    a('v_mov_b32 v30, 0x4444'); a('v_mov_b32 v31, 0xeeee')
    a(f'v_cndmask_b32 {vIdx}, v31, v30, {sHalf0}')
    a(f'v_mov_b32 {vNeg}, -1')
    for r in range(8): a(f'v_mov_b32 v{ONES+r}, 0x3f803f80')
    for r in range(4): a(f'v_mov_b32 v{PM+r}, 0')
    a(f'v_mov_b32 v{PUB}, 0'); a(f'v_mov_b32 v{PUB+1}, 0')
    def lanemask(fn):
        m = 0
        for l in range(16):
            if fn(l): m |= 1 << l
        return m * 0x00010001
    mk = lanemask(lambda r: (r >> 2) & 1)
    a(f's_mov_b32 s56, {mk:#x}'); a(f's_mov_b32 s57, {mk:#x}')
    a('v_mov_b32 v30, 0x3f80'); a('v_mov_b32 v31, 1.0'); a('v_cndmask_b32 v30, v30, v31, s[56:57]')
    for q in range(4):
        mk = lanemask(lambda r: (r & 2) == 0 and q == 2 * (r >> 3) + (r & 1))
        a(f's_mov_b32 s56, {mk:#x}'); a(f's_mov_b32 s57, {mk:#x}')
        a(f'v_cndmask_b32 v{SEL+q}, 0, v30, s[56:57]')
    a(f's_mov_b32 {sStep}, 0'); a(f's_mov_b32 {sSlot}, {RING:#x}'); a(f's_mov_b32 {sRst}, {RING + 2*SLOT:#x}')
    a(f's_mov_b32 {sKV}, 0'); a(f's_mov_b32 {sKV2}, {256*KB:#x}'); a(f's_mov_b32 {sExp}, 0')

    pv = [f'buffer_load_dwordx4 {vr(VL + 4*td, 4)}, {aVx0 if td < 4 else aVx1}, {SW}, {sKV} offen offset:{((td>>1)&1)*1024 + (td&1)*128}' for td in range(8)]
    pk = [f'buffer_load_dwordx4 {vr(KXR + 16*tt + 4*ks, 4)}, {aKx}, {SW}, {sKV} offen offset:{ks*1024 + tt*64}' for ks in range(4) for tt in range(2)]
    spread = [f'v_mov_b32 v{VB + 8*(td>>1) + 2*q + (td&1)}, v{VL + 4*td + q}' for td in range(8) for q in range(4)]
    def zl(b, n): return [f'v_mov_b64 {vr(b+r, 2)}, 0' for r in range(0, n, 2)]
    def emit(l):
        for x in l: a(x)
    def shadow(ms, fs):
        fs = list(fs)
        for x in ms:
            a(x)
            if fs:
                f = fs.pop(0)
                emit(f if isinstance(f, list) else [f])
        for f in fs: emit(f if isinstance(f, list) else [f])
    if fused:
        if sweep:
            a('s_load_dwordx2 s[80:81], s[0:1], 0'); a('s_load_dwordx4 s[84:87], s[0:1], 56'); a('s_load_dwordx2 s[88:89], s[0:1], 72')
            a(f's_lshl_b32 s90, {sX}, 5'); a(f's_add_u32 s90, s90, {sI}'); a('s_lshl_b32 s90, s90, 2'); a(f's_add_u32 s90, s90, {sW}')
            a('s_lshl_b32 s90, s90, 13'); a(f's_add_u32 s91, s90, {4*MB}')
            a('v_lshlrev_b32 v30, 7, v0')
            a('s_waitcnt lgkmcnt(0)')
            for n, (base, size, so) in enumerate(((80, 4, 's90'), (84, 4, 's90'), (86, 6, 's90'), (86, 6, 's91'), (88, 2, 's90'))):
                srd(a, 8, base, size * MB)
                a(f'buffer_load_dword v{MA+n}, v30, s[8:11], {so} offen')
        a(f's_cmp_lg_u32 {sW}, 0'); a('s_cbranch_scc1 L_kv0d')
        a(f's_lshl_b32 s90, {sX}, 7'); a(f's_add_u32 s90, s90, {CNT + C_KV:#x}'); a('v_mov_b32 v30, s90')
        a.label('L_kv0')
        a(f'buffer_load_dword v31, v30, {SW}, 0 offen sc1'); a('s_waitcnt vmcnt(0)')
        a('v_readfirstlane_b32 s90, v31')
        spin_guard(a)
        a('s_sleep 2')
        a(f's_cmp_lt_u32 s90, {kvneed}'); a('s_cbranch_scc1 L_kv0')
        a.label('L_kv0d')
        a('s_barrier')
        rts(3)
    emit(pv); emit(pk)
    a(f's_add_u32 {sKV}, {sKV}, {256*KB:#x}')
    emit(zl(QA, 24)); emit(zl(WACC, 4)); emit(zl(OB_, 20))
    a('s_waitcnt vmcnt(0)')
    if no_pf: pv = []; pk = []
    pA, pB = pv[:nA], pk[:nB]
    rest = pv[nA:] + pk[nB:]
    pC, pD = rest[:npre], rest[npre:]
    nvD = len([x for x in pD if x in pv])
    a(f'v_min_u32 v{GT}, {sGuard}, v{GT}')
    if cut == 4: a('s_endpgm')
    if fused:
        a(f's_lshl_b32 s90, {sX}, 7'); a(f's_add_u32 s90, s90, {CNT + C_KV:#x}'); a('v_mov_b32 v244, s90')
        a(f's_lshl_b32 s90, {sX}, 5'); a(f's_add_u32 s90, s90, {sI}'); a(f's_lshl_b32 s90, s90, 2'); a(f's_add_u32 s90, s90, {sW}')
        a('v_mbcnt_lo_u32_b32 v30, -1, 0'); a('v_mbcnt_hi_u32_b32 v30, -1, v30'); a('v_add_u32 v30, s90, v30')
        a('v_cmp_eq_u32 vcc, 0, v30'); a(f'v_mov_b32 v30, {OOB:#x}'); a(f'v_mov_b32 v31, {CNT + C_PROG:#x}'); a('v_cndmask_b32 v245, v30, v31, vcc')
    st.init()
    a('s_branch L_pubmem')
    exps = [f'buffer_store_dword v{PUB}, {aE0}, {SW}, {sExp} offen {exp_st}', f'buffer_store_dword v{PUB+1}, {aE1}, {SW}, {sExp} offen {exp_st}']
    def exports(): emit(exps)
    vFlag, vZero, aProg, vProg = 'v243', 'v244', 'v245', 'v246'
    flagld = f'buffer_load_dword {vFlag}, {vZero}, {SW}, s92 offen sc1'

    a.label('L_step')
    if warm == 2:
        a(f's_add_u32 s8, s94, {sKV2}'); a('s_addc_u32 s9, s95, 0'); a('s_add_u32 s8, s8, s12'); a('s_addc_u32 s9, s9, 0')
        a(f's_add_u32 s10, s8, {VX - KX:#x}'); a('s_addc_u32 s11, s9, 0')
        for q in range(4): a(f's_load_dword s{16+q}, s[8:9], {128*q}'); a(f's_load_dword s{20+q}, s[10:11], {128*q}')
    emit(pC)
    emit(zl(QA, 24) + zl(WACC, 4))
    a.nop(dg)
    gl = f'buffer_load_dwordx4 {vr(GL, 4)}, {aPartLd}, {SW}, {sPrev} offen sc1'
    st('G issue', True)
    a(gl)
    post = pD + ([] if (no_exp or fused) else exps)
    emit(post)
    a(f's_add_u32 {sKV}, {sKV}, {256*KB:#x}'); a(f's_min_u32 {sKV}, {sKV}, {63*256*KB:#x}')
    a(f's_add_u32 {sExp}, {sExp}, {64*KB:#x}')
    if fused:
        a(f's_waitcnt vmcnt({len(pC) + len(post) + 3})')
        a.label('L_kv_chk')
        a(f'v_readfirstlane_b32 s90, {vFlag}')
        a(f's_cmp_lt_u32 s90, {kvneed}'); a('s_cbranch_scc1 L_kv_f')
        cold.label('L_kv_f')
        cold('s_sleep 8'); cold(flagld); spin_guard(cold); cold('s_waitcnt vmcnt(0)'); cold('s_branch L_kv_chk')
    a(f's_waitcnt vmcnt({len(post)})')
    a.label('L_g_chk')
    emit(chk(GL))
    a(f'v_mfma_f32_16x16x32_bf16 {vr(GD,4)}, {vr(SEL,4)}, {vr(GL,4)}, 0')
    a('s_cbranch_vccnz L_g_f')
    cold.label('L_g_f')
    cold('s_mov_b64 exec, vcc'); cold(gl); cold('s_mov_b64 exec, -1')
    spin_guard(cold); cold(f's_waitcnt vmcnt({gthr})'); cold('s_branch L_g_chk')
    st('G wait')
    h = GT
    a(f'v_add_f32_dpp v{h+1}, v{GD}, v{GD} row_ror:8 row_mask:0xf bank_mask:0xf')
    a(f'v_add_f32_dpp v{h+2}, v{GD+1}, v{GD+1} row_ror:8 row_mask:0xf bank_mask:0xf')
    a(f'v_cvt_pk_bf16_f32 v{h}, v{h+1}, v{h+2}')
    a(f'v_min_u32 v{h}, {sGuard}, v{h}')
    a.label('L_pubmem')
    a(f'buffer_store_dword v{h}, {aMemSt}, {SW}, {sSlot} offen {local_st}')
    st('M pub', True)
    ml = [f'buffer_load_dwordx4 {vr(MA + 4*k, 4)}, {aMemLd}, {SW}, {sSlot} offen offset:{1024*k} sc1' for k in range(4)]
    if nvD: a(f's_waitcnt vmcnt({min(len(post) - nvD, gthr) + 1 if gthr else len(post) - nvD + 1})')
    fill = list(spread)
    emit(fill[:f1]); fill = fill[f1:]
    a.nop(d1)
    for k in range(4):
        a(ml[k]); emit(fill[:2]); fill = fill[2:]
    emit(fill)
    st('G red')
    sm = lambda t, ks: f'v_smfmac_f32_16x16x64_bf16 {vr(QA + 4*t, 4)}, {vr(MA + 4*ks, 4)}, {ar(ks*48 + t*8, 8)}, {vIdx}'
    gather(a, cold, 'm', ml, [MA + 4*k for k in range(4)], [[sm(t, ks) for t in range(4 if defv else 6)] for ks in range(4)], thr=thr, per=mper)
    st('QK')
    for t in range(4 if defv else 6):
        a(f'v_pk_add_f32 {vr(RD + 2*t, 2)}, {vr(QA + 4*t, 2)}, {vr(QA + 4*t + 2, 2)}')
        if t & 1: a(f'ds_write_b128 {aRedW}, {vr(RD + 2*t - 2, 4)} offset:{(t>>1)*RM}')
    xl = [f'buffer_load_dwordx4 {vr(XR + 4*k, 4)}, {aQkLd}, {SW}, {sSlot} offen offset:{1024*k} sc1' for k in range(4)]
    vl = [f'buffer_load_dwordx4 {vr(VMR + 4*k, 4)}, {aVLd}, {SW}, {sSlot} offen offset:{1024*k} sc1' for k in range(2)]
    def red_pub(L, dst, addr, n):
        a(f's_waitcnt lgkmcnt({n+2})')
        a(f'v_pk_add_f32 {vr(L,2)}, {vr(L,2)}, {vr(L+2,2)}')
        a(f's_waitcnt lgkmcnt({n})')
        a(f'v_pk_add_f32 {vr(L+4,2)}, {vr(L+4,2)}, {vr(L+6,2)}')
        a(f'v_pk_add_f32 {vr(L,2)}, {vr(L,2)}, {vr(L+4,2)}')
        a(f'v_cvt_pk_bf16_f32 v{dst}, v{L}, v{L+1}')
        a(f'v_min_u32 v{dst}, {sGuard}, v{dst}')
        a(f'buffer_store_dword v{dst}, {addr}, {SW}, {sSlot} offen {local_st}')
    adv1 = [f's_mov_b32 {sPrev}, {sSlot}', f's_add_u32 s90, {sStep}, 1', 's_and_b32 s90, s90, 3', 's_lshl_b32 s90, s90, 19', f's_add_u32 s91, s90, {RING:#x}',
            f's_add_u32 {sKV2}, {sKV2}, {256*KB:#x}', f's_min_u32 {sKV2}, {sKV2}, {63*256*KB:#x}', 's_nop 0']
    z32 = lambda b, n: [f'v_mov_b32 v{b+r}, 0' for r in range(n)]
    qr = [f'ds_read2_b32 {vr(LR + 2*w, 2)}, {aRR[w]} offset0:0 offset1:2' for w in range(4)]
    vrd = [f'ds_read_b64 {vr(RD + 2*w, 2)}, {aRedRv} offset:{RW*w}' for w in range(4)]
    if not defv:
        emit(pA)
        emit(zl(SA, 12))
        a('s_waitcnt lgkmcnt(0)'); a('s_barrier')
        emit(qr); emit(vrd)
        emit(zl(OB_, zsh))
        red_pub(LR, PUB, aQ0, 4)
        red_pub(RD, PUB + 1, aQ1, 0)
        st('Q pub', True)
        emit(zl(OB_ + zsh, 20 - zsh))
        a.nop(d2)
        for k in range(4):
            a(xl[k]); emit(adv1[2*k:2*k+2])
    else:
        vs = [sm(t, ks) for ks in range(4) for t in (4, 5)]
        zz = z32(SA, 12)
        assert len(pA) <= nv1
        shadow(vs[:nv1], [[pA[k]] + zz[k:k+1] if k < len(pA) else zz[k:k+1] for k in range(nv1)])
        a('s_waitcnt lgkmcnt(0)'); a('s_barrier')
        emit(qr)
        shadow(vs[nv1:nv1+nv2], [[x] for x in zz[nv1:nv1+nv2]])
        emit(zz[nv1+nv2:])
        red_pub(LR, PUB, aQ0, 0)
        st('Q pub', True)
        emit(vs[nv1+nv2:])
        for t in (4, 5): a(f'v_pk_add_f32 {vr(RD + 2*t, 2)}, {vr(QA + 4*t, 2)}, {vr(QA + 4*t + 2, 2)}')
        a(f'ds_write_b128 {aRedW}, {vr(RD + 8, 4)} offset:{2*RM}')
        emit(zl(OB_, 20))
        a.nop(d2)
        if defv == 1:
            a('s_waitcnt lgkmcnt(0)'); a('s_barrier')
            for k in range(4):
                a(vrd[k]); a(xl[k]); emit(adv1[2*k:2*k+2])
            red_pub(RD, PUB + 1, aQ1, 0)
        else:
            a('s_waitcnt lgkmcnt(0)'); a('s_barrier')
            emit(vrd); emit(adv1)
            red_pub(RD, PUB + 1, aQ1, 0)
            for k in range(4):
                a(xl[k]); a('s_nop 1')
    if vat < 0: emit(vl)
    st('QK red')
    a(f's_cmp_eq_u32 {sStep}, {nsteps-1}'); a('s_cbranch_scc1 L_last')
    def sc(ks):
        X = vr(XR + 4*ks, 4)
        return [f'v_mfma_f32_16x16x32_bf16 {vr(SA + 4*tt, 4)}, {vr(KXR + 16*tt + 4*ks, 4) if tt < 2 else X}, {X}, {vr(SA + 4*tt, 4)}' for tt in (2, 0, 1)]
    gather(a, cold, 'x', xl, [XR + 4*k for k in range(4)], [sc(k) for k in range(4)], thr=thr, extra=(2 if vat < 0 else 0) + (1 if defv == 1 else 0), per=xper)
    st('scores')
    if vat == 0: emit(vl)
    dq = lambda p: f'quad_perm:[{p}] row_mask:0xf bank_mask:0xf'
    m, t2, mz = f'v{T}', f'v{T+1}', f'v{T+2}'
    z0, z1 = SA + 10, SA + 11
    a(f's_mov_b64 vcc, {sHalf0}')
    a(f'v_max_f32 {mz}, v{z0}, v{z1}')
    for r in range(4): a(f'v_cndmask_b32_dpp v{YY+r}, v{SA+4+r}, v{SA+r}, vcc {dq("0,1,0,1")}')
    a(f'v_max3_f32 {t2}, v{YY}, v{YY+1}, v{YY+2}')
    a(f'v_max_f32_dpp {m}, {mz}, v{YY+3} {dq("0,1,0,1")}')
    a(f'v_max_f32 {t2}, {t2}, {m}')
    a(f'v_max_f32_dpp {m}, {t2}, {t2} {dq("2,3,0,1")}')
    for n_, sw in enumerate(('v_permlane32_swap_b32', 'v_permlane16_swap_b32')):
        a(f'v_mov_b32 {t2}, {m}')
        if vat == n_ + 1: emit(vl)
        a(f'{sw} {m}, {t2}')
        a(f'v_max_f32 {m}, {m}, {t2}')
    a(f'v_mul_f32 {m}, {sC}, {m}')
    sv = [YY, YY+1, YY+2, YY+3, z0, z1]
    for x in sv: a(f'v_fma_f32 v{x}, v{x}, {sC}, -{m}')
    for x in sv[:4]: a(f'v_exp_f32 v{x}, v{x}')
    a(f'v_cvt_pk_bf16_f32 v{CT}, v{YY}, v{YY+1}')
    a(f'v_cvt_pk_bf16_f32 v{CT+1}, v{YY+2}, v{YY+3}')
    a(f'v_exp_f32 v{z0}, v{z0}')
    a(f'v_mov_b32_dpp v{PA}, v{CT} {dq("0,1,0,1")}')
    a(f'v_mov_b32_dpp v{PA+2}, v{CT} {dq("2,3,2,3")}')
    a(f'v_mov_b32_dpp v{PA+1}, v{CT+1} {dq("0,1,0,1")}')
    a(f'v_mov_b32_dpp v{PA+3}, v{CT+1} {dq("2,3,2,3")}')
    a(f'v_exp_f32 v{z1}, v{z1}')
    st('softmax')
    P = vr(PA, 4)
    xs = lambda d, b: f'v_smfmac_f32_16x16x64_bf16 {vr(d,4)}, {P}, {vr(b,8)}, {vIdx}'
    ms = lambda d, j, b: f'v_smfmac_f32_16x16x32_bf16 {vr(d,4)}, {vr(PM + 2*(j&1), 2)}, {vr(b,4)}, {vIdx}'
    rs = T
    wl = [f'buffer_load_dword v0, {aWarm}, {SW}, {sKV2} offen'] if (warm == 1 and not no_pf) else []
    rsts = [f'buffer_store_dword {vNeg}, {aPartSt}, {SW}, {sRst} offen sc1', f'buffer_store_dword {vNeg}, {aPartStL}, {SW}, {sRst} offen {local_st}',
            f'buffer_store_dword {vNeg}, {aMemSt}, {SW}, {sRst} offen {local_st}', f'buffer_store_dword {vNeg}, {aQ0}, {SW}, {sRst} offen {local_st}',
            f'buffer_store_dword {vNeg}, {aQ1}, {SW}, {sRst} offen {local_st}']
    ck = chk(VMR, 8)
    g1 = lambda k: pB[k:k+1]
    slow = wl + rsts[:1]
    late = pB[4:] + rsts[1:]
    if allafter: slow, late = slow + late, []
    if fused:
        pre = [f's_add_u32 s92, {sStep}, 3', 's_min_u32 s92, s92, 63', f's_lshr_b32 s92, s92, 3', 's_lshl_b32 s92, s92, 9',
               f's_max_u32 s93, {sStep}, 1', 's_sub_u32 s93, s93, 1', f'v_mov_b32 {vProg}, s93']
        e_ = [] if no_exp else ([x.replace(' sc1', '') for x in exps] if 'plainexp' in xo else exps)
        slow = slow + e_ + [f'buffer_store_dword {vProg}, {aProg}, {SW}, 0 offen sc1', flagld]
    shadow([xs(OSUM, ONES), xs(OT(0), VB), xs(OT(1), VB + 8), xs(OT(2), VB + 16)],
           [[f'v_cvt_pk_bf16_f32 v{CT+2}, v{z0}, v{z1}'] + g1(0),
            g1(1) + [f'v_mov_b32_dpp v{PM}, v{CT+2} {dq("0,1,0,1")}'],
            g1(2) + [f'v_mov_b32_dpp v{PM+3}, v{CT+2} {dq("0,1,0,1")}'],
            g1(3) + [f's_waitcnt vmcnt({len(pB[:4])})'] + ck[0:2]])
    shadow([ms(OSUM, 0, ONES), xs(OT(3), VB + 24)], [ck[2:5]])
    a('s_cbranch_vccnz L_v_f')
    a.label('L_v_ok')
    cold.label('L_v_f')
    for x in vl: cold(x)
    spin_guard(cold); cold('s_waitcnt vmcnt(0)')
    for x in ck: cold(x)
    cold('s_cbranch_vccnz L_v_f'); cold('s_branch L_v_ok')
    st('V wait')
    shadow([ms(OT(j), j, VMR + 4*(j>>1)) for j in range(4)],
           [late[0:2], late[2:3] + [f'v_rcp_f32 v{rs}, v{OSUM}'], late[3:4] + [f'v_rcp_f32 v{rs+1}, v{OSUM+1}'], late[4:]])
    for j in range(4):
        o = OT(j)
        a(f'v_pk_mul_f32 {vr(o,2)}, {vr(o,2)}, {vr(rs,2)}')
        a(f'v_pk_mul_f32 {vr(o+2,2)}, {vr(o+2,2)}, {vr(rs,2)}')
        for par in range(2):
            a(f'v_cvt_pk_bf16_f32 v{ET + 4*par + j}, v{o+par}, v{o+2+par}')
    a(f'ds_write_b128 {aOW0}, {vr(ET,4)}')
    a(f'ds_write_b128 {aOW1}, {vr(ET+4,4)}')
    st('O write', True)
    if fused: emit(pre)
    adv2 = [f's_add_u32 {sStep}, {sStep}, 1', f's_mov_b32 {sSlot}, s91', f's_xor_b32 {sRst}, s91, {2*SLOT:#x}']
    a('s_waitcnt lgkmcnt(0)'); a('s_barrier')
    st('PV')
    rd = [f'ds_read_b128 {vr(WA + 4*kk, 4)}, {aOR} offset:{1024*kk}' for kk in range(8)]
    emit(rd[:nr0])
    emit(slow[:2]); slow = slow[2:] + adv2
    for kk in range(8):
        issued = min(8, nr0 + kk)
        a(f's_waitcnt lgkmcnt({issued - 1 - kk})')
        a(f'v_smfmac_f32_16x16x64_bf16 {vr(WACC,4)}, {vr(WA + 4*kk, 4)}, {ar(192 + 8*kk, 8)}, {vIdx}')
        emit(rd[nr0+kk:nr0+kk+1])
        emit(slow[kk:kk+1])
    emit(slow[8:])
    a(f'v_pk_add_f32 {vr(T,2)}, {vr(WACC,2)}, {vr(WACC+2,2)}')
    a(f'v_cvt_pk_bf16_f32 v{T}, v{T}, v{T+1}')
    a(f'v_min_u32 v{T}, {sGuard}, v{T}')
    a(f'buffer_store_dword v{T}, {aPartSt}, {SW}, {sPrev} offen sc1')
    a(f'buffer_store_dword v{T}, {aPartStL}, {SW}, {sPrev} offen {local_st}')
    st('tail')
    if rt == 2:
        a('s_memrealtime s[60:61]'); a('s_waitcnt lgkmcnt(0)')
        a(f's_lshl_b32 s62, {sStep}, 2'); a(f's_add_u32 s62, s62, {STAMP + 200000 - CNT - C_PROG + (1 << 32):#x}' if False else f's_add_u32 s62, s62, {2*MB:#x}')
        a(f'v_mov_b32 v30, s60')
        a(f'buffer_store_dword v30, {aProg}, {SW}, s62 offen')
    if nsteps > 64 and stamps != 4:
        a(f's_min_u32 {sExp}, {sExp}, {62*64*KB:#x}')
        a(f's_cmp_eq_u32 {sStep}, {nsteps-64}')
        for k in range(12): a(f's_cselect_b32 s{64+k}, 0, s{64+k}')
        a(f's_cselect_b32 {sSpin}, 0, {sSpin}')
    a('s_branch L_step')
    a.label('L_last')
    rts(4)
    exports()
    if stamps:
        a(f's_lshl_b32 s90, {sX}, 5'); a(f's_add_u32 s90, s90, {sI}'); a('s_lshl_b32 s90, s90, 2'); a(f's_add_u32 s90, s90, {sW}')
        a('s_lshl_b32 s90, s90, 6'); a(f's_add_u32 s90, s90, {STAMP:#x}')
        if stamps != 4: a(f's_mov_b32 s79, {sSpin}')
        st.calib(78)
        a('v_mov_b32 v30, 0')
        a('s_mov_b64 exec, 1')
        for k in range(16):
            a(f'v_mov_b32 v31, s{64+k if stamps != 4 else (64+2*k if k < 12 else 84+k)}')
            a(f'buffer_store_dword v31, v30, {SW}, s90 offen offset:{4*k}')
        a('s_mov_b64 exec, -1')
    a('s_waitcnt vmcnt(0)')
    if fused:
        a('s_barrier'); a(f's_mov_b32 s90, {CNT + C_FIN:#x}'); signal(a, 0, soff='s90', srd_=SW); a('s_waitcnt vmcnt(0)')
    a(f's_branch {exit_label}')
    a.ins += cold.ins
    a.label('L_rec_abort')
    a('s_waitcnt vmcnt(0)')
    a('s_endpgm')
    return st.names

def gen_rec_kernel(name='rec_kernel', **kw):
    a = Asm()
    a('s_load_dwordx4 s[92:95], s[0:1], 88')
    a('s_cmp_ge_u32 s2, 256'); a('s_cbranch_scc1 L_rec_exit')
    a(f's_getreg_b32 {sX}, hwreg(HW_REG_XCC_ID, 0, 4)')
    a(f's_cmp_ge_u32 {sX}, 4'); a('s_cbranch_scc1 L_rec_exit')
    a('s_waitcnt lgkmcnt(0)')
    srd(a, 4, 94, WS_BYTES); srd(a, 28, 92, 256)
    a('v_cmp_eq_u32 vcc, 0, v0')
    a('s_and_saveexec_b64 s[96:97], vcc')
    a('s_cbranch_execz L_tk')
    a(f's_lshl_b32 s90, {sX}, 6')
    a('v_mov_b32 v1, 1'); a('v_mov_b32 v2, 0')
    a('buffer_atomic_add v1, v2, s[28:31], s90 offen sc0 sc1')
    a('s_waitcnt vmcnt(0)')
    a('ds_write_b32 v2, v1')
    a('s_waitcnt lgkmcnt(0)')
    a.label('L_tk')
    a('s_mov_b64 exec, s[96:97]')
    a('s_barrier')
    a('v_mov_b32 v2, 0')
    a('ds_read_b32 v1, v2')
    a('s_waitcnt lgkmcnt(0)')
    a(f'v_readfirstlane_b32 {sI}, v1')
    a('s_barrier')
    a(f's_cmp_ge_u32 {sI}, 32'); a('s_cbranch_scc1 L_rec_exit')
    names = gen_rec(a, **kw)
    a.label('L_rec_exit')
    a('s_endpgm')
    a.fix_hazards()
    return a, names
```

```python
import sys, os
sys.path.insert(0, os.path.dirname(os.path.abspath(__file__)))
from asmgen import *
from layout import *
import rec, gemm, attn
from rec import srd, lane_expr, signal, verify, sX, sI, SPIN_MAX, sMode4, sBit, vClaim, LDS_X
sSpin = 's3'
from gemm import *
from build import kd, NAME
WS = 's[4:7]'
DBG = 's[28:31]'
K_AQ, K_AK, K_AV, K_BQKV, K_ATB, K_BO, K_ATA, K_AO, K_AOS, K_SK, K_SV, K_ATA4, K_SWP = range(13)
NSMALL = 2
NSWP = 4
FINE0 = 12
SPLIT0 = 13
def ent(kind, p, q=0): return kind | (p << 8) | (q << 16)

SIM = dict(go=22.0, step=2.23, skv1=18.0, skv2=10.0, big=23.5, atb=4.5, bo=8.5, ata=3.5, ao=28.5, aos=9.5, margin=0.0, kvlead=8.0, bstart=80.0, ata4=11.0, swp=18.0, gap=0.2, lat=3.0, early=4.0, earlyA=8.0)
def task_list(verbose=False, **over):
    import heapq
    P = dict(SIM); P.update(over)
    kv = lambda rb: [ent(k, rb, c) for c in range(4) for k in (K_AK, K_AV)]
    first = [ent(k, 2 * rb + h, c) for rb in range(NSMALL) for h in range(2) for c in range(8) for k in (K_SK, K_SV)]
    KVq = [e for rb in range(NSMALL, 8) for e in kv(rb)]
    Qq = [ent(K_AQ, rb, c) for rb in range(8) for c in range(4)]
    Bq = [ent(K_BQKV, rb, c) for rb in range(8) for c in range(3)]
    TBq = [ent(K_ATB, rb, c) for rb in range(8) for c in range(4)]
    BOq = [ent(K_BO, hb, c) for hb in range(16) for c in range(2)]
    TAq = [ent(K_ATA4, 4 * hb, c) for hb in range(FINE0) for c in range(2)] + [ent(K_ATA, s_, c) for s_ in range(4 * FINE0, 64) for c in range(2)]
    first += [ent(K_SWP, c) for c in range(NSWP)]
    AOq = [e for hb in range(16) for e in ([ent(K_AO, hb, c) for c in range(2)] if hb < SPLIT0 else [ent(K_AOS, hb, c) for c in range(16)])]
    done = {}
    def fin(key, n):
        c, t = done.get(key, (0, 0.0)); return t if c >= n else 1e9
    def seg_time(s_): return P['go'] + P['step'] * min(s_ + 2.8, 63.6)
    def ready(e):
        k, p = e & 255, (e >> 8) & 255
        if k == K_ATB: return max(fin(('B', p), 3), fin(('B', max(p - 1, 0)), 3))
        if k == K_BO: return fin(('TB', p >> 1), 4)
        if k == K_ATA: return max(fin(('Q', p >> 3), 4), seg_time(p))
        if k == K_ATA4: return max(fin(('Q', p >> 3), 4), seg_time(p + 3))
        if k in (K_AO, K_AOS): return fin(('TA', p), 8 if p >= FINE0 else 2)
        return 0.0
    def dur(e, n):
        k = e & 255
        return {K_SK: P['skv1'] if n < 32 else P['skv2'], K_SV: P['skv1'] if n < 32 else P['skv2'], K_ATB: P['atb'], K_BO: P['bo'], K_ATA: P['ata'], K_ATA4: P['ata4'], K_SWP: P['swp'], K_AO: P['ao'], K_AOS: P['aos']}.get(k, P['big'])
    def group(e):
        k, p = e & 255, (e >> 8) & 255
        return {K_AQ: ('Q', p), K_BQKV: ('B', p), K_ATB: ('TB', p), K_ATA: ('TA', p >> 2), K_ATA4: ('TA', p >> 2)}.get(k, ('x', 0))
    free = [(0.0, w) for w in range(32)] + [(P['go'] + P['step'] * 63.6, 32 + w) for w in range(32)]
    heapq.heapify(free)
    out = []; end = 0
    while first or KVq or Qq or Bq or TBq or BOq or TAq or AOq:
        t, w = heapq.heappop(free)
        ok = lambda q: q and ready(q[0]) + (P['margin'] if (q[0] & 255) not in (K_ATA, K_AOS) else -(P['early'] if (q[0] & 255) == K_AOS else P['earlyA'])) <= t
        q = None
        if first: q = first
        elif KVq and t + 2 * P['big'] + P['kvlead'] > P['go'] + P['step'] * (8 * ((KVq[0] >> 8) & 255) - 3): q = KVq
        elif ok(TAq): q = TAq
        elif ok(AOq): q = AOq
        elif Qq and t + P['big'] + 10 > seg_time(8 * ((Qq[0] >> 8) & 255)): q = Qq
        elif Bq and t > P['bstart']: q = Bq
        elif KVq: q = KVq
        elif Qq: q = Qq
        elif ok(BOq): q = BOq
        elif ok(TBq): q = TBq
        else:
            cand = [x for x in (AOq, TAq, BOq, TBq) if x and ready(x[0]) < 1e8]
            q = min(cand, key=lambda x: ready(x[0]))
        e = q.pop(0)
        st_ = max(t, ready(e)); en = st_ + dur(e, len(out))
        c, tt = done.get(group(e), (0, 0.0)); done[group(e)] = (c + 1, max(tt, en + (P['lat'] if (e & 255) in (K_AQ, K_BQKV) else 0.5)))
        out.append(e); end = max(end, en)
        if verbose: print(f'{t:6.1f} {st_:6.1f} {en:6.1f} kind {e & 255} p {(e >> 8) & 255} q {e >> 16}')
        heapq.heappush(free, (en + P['gap'], w))
    if verbose: print('sim end', end)
    return out

def setp(**k):
    globals().update(k)

def gen(force_slow=False, force_fb=False, sweep=True, wst=False, empty=False, codepf=True, MS=16, rot=0, gfl='', sim={}, glob={}, **kw):
    setp(**glob)
    a = Asm()
    sW_ = 's32'; sXW, sT, sKind, sP, sQ_, sDone = 's33', 's34', 's35', 's36', 's37', 's38'
    a('s_cmp_ge_u32 s2, 256'); a('s_cbranch_scc1 L_exit')
    if empty: a('s_endpgm')
    if wst: a('s_memrealtime s[56:57]'); kw['rt'] = wst
    a('s_load_dwordx4 s[92:95], s[0:1], 88')
    a('s_load_dwordx16 s[64:79], s[0:1], 0')
    a('s_getreg_b32 s39, hwreg(HW_REG_XCC_ID, 0, 3)')
    a('v_lshrrev_b32 v2, 6, v0'); a('s_nop 0'); a(f'v_readfirstlane_b32 {sW_}, v2')
    a(f's_mov_b32 {sSpin}, 0')
    if codepf:
        a('s_getpc_b64 s[86:87]')
        a.label('L_pc0')
        a('s_lshr_b32 s90, s2, 3'); a('s_lshl_b32 s90, s90, 2'); a(f's_add_u32 s90, s90, {sW_}'); a('s_and_b32 s90, s90, 31'); a('s_lshl_b32 s90, s90, 12')
        a('v_and_b32 v1, 63, v0'); a('v_lshlrev_b32 v1, 6, v1'); a('v_add_u32 v1, s90, v1')
        a('v_min_u32 v1, L_table-L_pc0, v1')
        a('global_load_dword v199, v1, s[86:87]')
    a('s_waitcnt lgkmcnt(0)')
    srd(a, 4, 94, WS_BYTES); srd(a, 28, 92, 256)
    a(f's_mov_b32 {sMode4}, 0')
    a('s_lshr_b32 s41, s2, 3')
    if force_fb: a('s_and_b32 s41, s41, 30')
    if rot: a(f's_add_u32 s41, s41, {rot}'); a('s_and_b32 s41, s41, 31')
    a(f's_lshl_b32 {sBit}, 1, s41')
    a(f's_cmp_lg_u32 {sW_}, 0'); a('s_cbranch_scc1 L_sweep')
    a('s_lshl_b32 s90, s39, 2')
    a(f'v_mov_b32 {vClaim}, {sBit}'); a('v_mov_b32 v2, 0')
    a('s_mov_b64 exec, 1')
    a(f'buffer_atomic_or {vClaim}, v2, {DBG}, s90 offen offset:{D_OR} sc0 sc1')
    a('s_mov_b64 exec, -1')
    a.label('L_sweep')
    a('s_lshl_b32 s40, s39, 5'); a('s_add_u32 s40, s40, s41'); a('s_mov_b32 s43, 1')
    a('s_branch L_role')
    a.label('L_fallback')
    a('s_load_dwordx4 s[92:95], s[0:1], 88')
    a('s_load_dwordx16 s[64:79], s[0:1], 0')
    a('s_getreg_b32 s39, hwreg(HW_REG_XCC_ID, 0, 3)')
    a(f's_mov_b32 {sMode4}, 4')
    a('v_mbcnt_lo_u32_b32 v0, -1, 0'); a('v_mbcnt_hi_u32_b32 v0, -1, v0'); a(f's_lshl_b32 s90, {sW_}, 6'); a('v_add_u32 v0, s90, v0')
    a('s_waitcnt vmcnt(0) lgkmcnt(0)')
    a('s_barrier')
    a(f's_cmp_lg_u32 {sW_}, 0'); a('s_cbranch_scc1 L_tkd')
    a('s_lshl_b32 s90, s39, 2')
    a('v_mov_b32 v1, 1'); a('v_mov_b32 v2, 0'); a('v_lshlrev_b32 v3, 2, v0')
    a('s_mov_b64 exec, 1')
    a(f'buffer_atomic_add v1, v2, {DBG}, s90 offen offset:{D_TICK} sc0 sc1')
    a('s_mov_b64 exec, 0xff')
    a.label('L_tkw')
    a(f'buffer_load_dword v4, v3, {DBG}, 0 offen offset:{D_TICK} sc1')
    a('s_waitcnt vmcnt(0)')
    a('v_readfirstlane_b32 s40, v1')
    a('s_mov_b32 s41, 0'); a('s_mov_b32 s42, 0'); a('s_mov_b32 s43, 1')
    for x in range(8):
        a(f'v_readlane_b32 s44, v4, {x}')
        a('s_add_u32 s41, s41, s44')
        a(f's_cmp_gt_u32 s39, {x}'); a('s_cselect_b32 s45, s44, 0'); a('s_add_u32 s42, s42, s45')
        if x < 4: a('s_cmp_eq_u32 s44, 32'); a('s_cselect_b32 s43, s43, 0')
    a(f's_add_u32 {sSpin}, {sSpin}, 1'); a(f's_cmp_ge_u32 {sSpin}, {SPIN_MAX}'); a('s_cbranch_scc1 L_tkbad')
    a('s_sleep 4')
    a('s_cmp_lt_u32 s41, 256'); a('s_cbranch_scc1 L_tkw')
    a('s_add_u32 s40, s40, s42'); a('s_lshl_b32 s43, s43, 16'); a('s_or_b32 s40, s40, s43')
    a('s_branch L_tkok')
    a.label('L_tkbad')
    a('s_mov_b32 s40, 0xffff')
    a.label('L_tkok')
    a('s_mov_b64 exec, -1')
    a('v_mov_b32 v1, s40'); a(f'v_mov_b32 v2, {LDS_X}')
    a('ds_write_b32 v2, v1'); a('s_waitcnt lgkmcnt(0)')
    a.label('L_tkd')
    a('s_barrier')
    a(f'v_mov_b32 v2, {LDS_X}'); a('ds_read_b32 v1, v2'); a('s_waitcnt lgkmcnt(0)')
    a('v_readfirstlane_b32 s40, v1')
    a('s_barrier')
    a('s_lshr_b32 s43, s40, 16'); a('s_and_b32 s40, s40, 0xffff')
    a('s_cmp_ge_u32 s40, 256'); a('s_cbranch_scc1 L_exit')
    if force_slow: a('s_mov_b32 s43, 0')
    a.label('L_role')
    if wst:
        a('s_memrealtime s[58:59]'); a('s_waitcnt lgkmcnt(0)')
        a(f's_lshl_b32 s62, s2, 5'); a(f's_add_u32 s62, s62, {STAMP + 131072:#x}')
        a('v_mov_b32 v251, 0'); a('v_mov_b32 v252, s56'); a('v_mov_b32 v253, s58'); a('s_mov_b64 exec, 1')
        a(f'buffer_store_dwordx2 v[252:253], v251, s[4:7], s62 offen'); a('s_mov_b64 exec, -1')
    a('s_cmp_ge_u32 s40, 128'); a('s_cbranch_scc1 L_worker')
    a(f's_lshr_b32 {sX}, s40, 5'); a(f's_and_b32 {sI}, s40, 31')
    a('s_cmp_eq_u32 s43, 0'); a('s_cbranch_scc1 L_recslow')
    r1 = Asm(); names = rec.gen_rec(r1, fused=True, exit_label='L_join', **kw); a.absorb(r1, 'F')
    a.label('L_recslow')
    r2 = Asm(); rec.gen_rec(r2, fused=True, exit_label='L_join', local_st='sc1', pol=0); a.absorb(r2, 'S')
    a.label('L_join')
    a('s_load_dwordx16 s[64:79], s[0:1], 0')
    a('v_mbcnt_lo_u32_b32 v0, -1, 0'); a('v_mbcnt_hi_u32_b32 v0, -1, v0'); a(f's_lshl_b32 s90, {sW_}, 6'); a('v_add_u32 v0, s90, v0')
    a(f's_lshl_b32 s40, {sX}, 5'); a('s_add_u32 s40, s40, 128'); a('s_mov_b32 s39, 1')
    a('s_barrier')
    a('s_branch L_worker1')
    a.label('L_worker')
    a('s_mov_b32 s39, 0')
    a.label('L_worker1')
    a('s_load_dwordx4 s[80:83], s[0:1], 64')
    a('s_load_dwordx2 s[84:85], s[0:1], 80')
    a(f's_sub_u32 {sXW}, s40, 128'); a(f's_lshr_b32 {sXW}, {sXW}, 5')
    a(f's_and_b32 {sT}, s40, 31')
    a('s_getpc_b64 s[86:87]')
    a.label('L_pc')
    a('s_add_u32 s86, s86, L_table-L_pc'); a('s_addc_u32 s87, s87, 0')
    a('s_waitcnt lgkmcnt(0)')
    tl = task_list(**sim)
    G1 = Gemm(256, 256, 64, 2, 'row', MS=MS, ld_flags=gfl, w_flags=gfl); G3 = Gemm(128, 128, 64, 4, 'packed', perm_out=True, ld_flags='sc1', MS=MS, w_flags=gfl)
    G2 = Gemm(128, 128, 64, 4, 'row', MS=MS, ld_flags=gfl, w_flags=gfl)
    pE, pOo, pSeg, pDone, pInc, sRet = 's59', 's60', 's61', 's62', 's63', 's58'
    EPI = 176
    srd(a, 16, 84, 8 * MB); srd(a, 8, 64, 4 * MB); srd(a, 12, 70, 8 * MB)
    for r in range(1, 18): a(f'v_mov_b32 v{r}, 0')
    a(f's_mov_b32 {pE}, 0')
    def request(a):
        l = a.newlabel('L_rq')
        a(f's_cmp_lg_u32 {sW_}, 0'); a(f's_cbranch_scc1 {l}')
        a('s_cmp_eq_u32 s39, 0'); a(f's_cbranch_scc1 {l}')
        a(f's_lshl_b32 s99, {sXW}, 7'); a(f's_add_u32 s99, s99, {CNT + C_QUEUE:#x}')
        a('v_mov_b32 v244, 1'); a('v_mov_b32 v245, 0')
        a('s_mov_b64 exec, 1')
        a(f'buffer_atomic_add v244, v245, {WS}, s99 offen sc0 sc1')
        a('s_mov_b64 exec, -1')
        a.label(l)
    a('s_cmp_eq_u32 s39, 0'); a('s_cbranch_scc1 L_have')
    a.label('L_next')
    request(a)
    a('s_waitcnt vmcnt(0)')
    a.label('L_got')
    a(f's_cmp_lg_u32 {sW_}, 0'); a('s_cbranch_scc1 L_nx1')
    a(f'v_mov_b32 v245, {LDS_X}'); a('s_mov_b64 exec, 1'); a('ds_write_b32 v245, v244'); a('s_mov_b64 exec, -1'); a('s_waitcnt lgkmcnt(0)')
    a.label('L_nx1')
    a('s_barrier')
    a(f'v_mov_b32 v245, {LDS_X}'); a('ds_read_b32 v246, v245'); a('s_waitcnt lgkmcnt(0)')
    a(f'v_readfirstlane_b32 {sT}, v246')
    a(f's_add_u32 {sT}, {sT}, 32')
    a.label('L_have')
    a('s_mov_b32 s98, 1')
    a(f's_min_u32 s90, {sT}, {len(tl)}')
    a(f's_lshl_b32 s90, s90, 2'); a('s_load_dword s91, s[86:87], s90'); a('s_waitcnt lgkmcnt(0)')
    a(f's_and_b32 {sKind}, s91, 255'); a(f's_lshr_b32 {sP}, s91, 8'); a(f's_and_b32 {sP}, {sP}, 255'); a(f's_lshr_b32 {sQ_}, s91, 16')
    def wstamp(k, a=a):
        if not wst: return
        a('s_memrealtime s[96:97]'); a('s_memtime s[54:55]'); a('s_waitcnt lgkmcnt(0)')
        a(f's_lshl_b32 s55, {sXW}, 9'); a(f's_add_u32 s55, s55, {sT}'); a('s_lshl_b32 s55, s55, 6'); a(f's_add_u32 s55, s55, {STAMP + 262144 + 8*k:#x}')
        a('v_mov_b32 v240, 0'); a('v_mov_b32 v242, s96'); a('v_mov_b32 v243, s54'); a('s_mov_b64 exec, 1')
        a(f'buffer_store_dwordx2 v[242:243], v240, s[4:7], s55 offen'); a('s_mov_b64 exec, -1')
    hk = (lambda a_: wstamp(3, a_)) if wst else None
    def do_sweep(a, t0, lst):
        a('v_lshlrev_b32 v174, 7, v1')
        a(f's_sub_u32 s42, {sT}, {t0}'); a('s_lshl_b32 s40, s42, 2'); a(f's_add_u32 s40, s40, {sXW}'); a('s_lshl_b32 s40, s40, 2'); a(f's_add_u32 s40, s40, {sW_}')
        a('s_lshl_b32 s40, s40, 13')
        a(f's_cmp_ge_u32 s42, 32'); a('s_cselect_b32 s40, 0x40000000, s40')
        a(f's_add_u32 s41, s40, {4*MB}')
        for n, (base, size, so) in enumerate(lst):
            srd(a, 44, base, size * MB)
            a(f'buffer_load_dword v{175}, v174, s[44:47], {so} offen')
    wstamp(0)
    def wait(deps, prog=None, slp=6, stamp=True):
        l, d = a.newlabel('L_dw'), a.newlabel('L_dd')
        a(f's_cmp_lg_u32 {sW_}, 0'); a(f's_cbranch_scc1 {d}')
        [a(f'v_mov_b32 v{228+q}, {CNT + 4096*q:#x}') for q in sorted({0} | {b >> 12 for _, b, _ in deps})]
        a.label(l)
        for n, (so, base, tgt) in enumerate(deps): a(f'buffer_load_dword v{234+n}, v{228 + (base >> 12)}, {WS}, {so} offen offset:{base & 4095} sc1')
        if prog: a(f'buffer_load_dword v238, v228, {WS}, 0 offen offset:{C_PROG} sc1'); a(f'buffer_load_dword v239, v228, {WS}, 0 offen offset:{C_FIN} sc1')
        a('s_waitcnt vmcnt(0)')
        a('s_mov_b32 s44, 1')
        for n, (so, base, tgt) in enumerate(deps):
            a(f'v_readfirstlane_b32 s45, v{234+n}'); a(f's_cmp_ge_u32 s45, {tgt}'); a('s_cselect_b32 s44, s44, 0')
        if prog:
            a('v_readfirstlane_b32 s45, v238'); a('v_readfirstlane_b32 s47, v239')
            a('s_cmp_ge_u32 s47, 128'); a('s_cselect_b32 s45, 64, s45')
            a(f's_cmp_ge_u32 s45, {prog}'); a('s_cselect_b32 s44, s44, 0')
        a('s_cmp_eq_u32 s44, 1'); a(f's_cbranch_scc1 {d}')
        a(f's_sleep {slp}')
        a(f's_add_u32 {sSpin}, {sSpin}, 1'); a(f's_cmp_lt_u32 {sSpin}, {SPIN_MAX}'); a(f's_cbranch_scc1 {l}')
        a.label(d)
        a('s_barrier')
        if stamp: wstamp(1)
    for k, l in ((K_AQ, 'L_aqkv'), (K_AK, 'L_aqkv'), (K_AV, 'L_aqkv'), (K_BQKV, 'L_bqkv'), (K_SK, 'L_small'), (K_SV, 'L_small')):
        a(f's_cmp_eq_u32 {sKind}, {k}'); a(f's_cbranch_scc1 {l}')
    a(f's_mov_b32 {sRet}, 0')
    a.label('L_epi')
    a(f's_cmp_eq_u32 {pE}, 0'); a('s_cbranch_scc1 L_epid')
    ekw = dict(sOo=pOo, sSeg=pSeg)
    for n_, (G, kind, so, fl) in enumerate(((G1, 'qk', WS, 'sc1'), (G1, 'v', WS, 'sc1'), (G2, 'qk', WS, 'sc1'), (G2, 'v', WS, 'sc1'), (G3, 'out', SO, ''))):
        a(f's_cmp_lg_u32 {pE}, {n_+1}'); a(f's_cbranch_scc1 L_e{n_}')
        G.epilogue(a, kind, EPI, fl, SO=so, **ekw)
        a('s_branch L_epid' if kind == 'out' else 's_branch L_esig')
        a.label(f'L_e{n_}')
    a.label('L_esig')
    a('s_waitcnt vmcnt(0)')
    a('s_cmp_lg_u32 s39, 0'); a('s_cbranch_scc1 L_vok')
    verify(a)
    a('s_mov_b32 s39, 1')
    a.label('L_vok')
    a('s_barrier')
    signal(a, 0, soff=pDone, srd_=WS, inc=pInc)
    a.label('L_epid')
    if wst:
        l = a.newlabel('L_ws'); a(f's_cmp_eq_u32 {pE}, 0'); a(f's_cbranch_scc1 {l}')
        a(f's_mov_b32 s57, {sT}'); a(f's_mov_b32 {sT}, s56'); wstamp(2); a(f's_mov_b32 {sT}, s57'); a.label(l)
    a(f's_mov_b32 {pE}, 0')
    for r_, l in ((1, 'L_r1'), (2, 'L_r2'), (3, 'L_next')):
        a(f's_cmp_eq_u32 {sRet}, {r_}'); a(f's_cbranch_scc1 {l}')
    for k, l in ((K_ATB, 'L_atb'), (K_BO, 'L_bo'), (K_ATA, 'L_ata'), (K_ATA4, 'L_ata4'), (K_AO, 'L_ao'), (K_AOS, 'L_aos'), (K_SWP, 'L_swp')):
        a(f's_cmp_eq_u32 {sKind}, {k}'); a(f's_cbranch_scc1 {l}')
    a('s_branch L_exit')
    def tile_end(e):
        wstamp(4)
        a(f's_mov_b32 {pE}, {e}'); a(f's_mov_b32 {pOo}, {sOo}'); a(f's_mov_b32 {pSeg}, {sSeg}')
        a(f's_add_u32 {pDone}, {sDone}, {CNT:#x}'); a(f's_mov_b32 {pInc}, s98')
        if wst: a(f's_mov_b32 s56, {sT}'); a('s_waitcnt vmcnt(0)')
        a('s_cmp_lg_u32 s39, 0'); a('s_cbranch_scc1 L_got')
        a(f's_mov_b32 {sRet}, 3'); a('s_branch L_epi')
    a.label('L_aqkv')
    srd(a, 8, 64, 4 * MB)
    a(f's_cmp_eq_u32 {sKind}, 0'); a('s_cselect_b64 s[88:89], s[68:69], s[70:71]')
    a(f's_cmp_eq_u32 {sKind}, 2'); a('s_cselect_b64 s[88:89], s[72:73], s[88:89]')
    srd(a, 12, 88, 8 * MB)
    a(f's_lshl_b32 s91, {sXW}, 2'); a(f's_add_u32 s91, s91, {sQ_}')
    a(f's_mov_b32 {sLdw}, 8192'); a(f's_mov_b32 {sSeg}, {256*KB}')
    a(f's_lshl_b32 {sXo}, {sP}, 19'); a(f's_lshl_b32 {sWo}, s91, 9')
    a(f's_lshl_b32 {sOo}, {sKind}, 24'); a(f's_lshl_b32 s90, {sP}, 21'); a(f's_add_u32 {sOo}, {sOo}, s90')
    a('s_lshl_b32 s90, s91, 14'); a(f's_add_u32 {sOo}, {sOo}, s90')
    a(f's_cmp_eq_u32 {sKind}, 0'); a(f's_mov_b32 {sDone}, {C_KV}'); a(f's_cselect_b32 {sDone}, {C_Q}, {sDone}'); a('s_cselect_b32 s98, 1, 4')
    a(f's_mov_b32 s48, {sKind}')
    a('s_branch L_g1')
    a.label('L_bqkv')
    srd(a, 8, 78, 4 * MB); srd(a, 12, 80, 6 * MB)
    a(f's_lshl_b32 s91, {sQ_}, 2'); a(f's_add_u32 s91, s91, {sXW}')
    a(f's_mov_b32 {sLdw}, 6144'); a(f's_mov_b32 {sSeg}, {64*KB}')
    a(f's_lshl_b32 {sXo}, {sP}, 19'); a(f's_lshl_b32 {sWo}, s91, 9')
    a(f's_lshl_b32 {sOo}, {sQ_}, 22'); a(f's_lshl_b32 s90, {sP}, 19'); a(f's_add_u32 {sOo}, {sOo}, s90')
    a(f's_lshl_b32 s90, {sXW}, 14'); a(f's_add_u32 {sOo}, {sOo}, s90'); a(f's_add_u32 {sOo}, {sOo}, {BQKV:#x}')
    a(f's_mov_b32 {sDone}, {C_BQ}'); a(f's_mov_b32 s48, {sQ_}')
    a.label('L_g1')
    a(f's_lshl_b32 s90, {sP}, 9'); a(f's_add_u32 {sDone}, {sDone}, s90'); a(f's_lshl_b32 s90, {sXW}, 7'); a(f's_add_u32 {sDone}, {sDone}, s90')
    a(f's_mov_b32 {sLdx}, 2048'); a(f's_mov_b32 {sNk}, 8')
    G1.setup(a)
    a(f's_mov_b32 {sRet}, 1'); a('s_branch L_epi')
    a.label('L_r1')
    a('s_cmp_eq_u32 s48, 2'); a('s_cbranch_scc1 L_g2')
    G1.loop(a, 'g1', 'T', exp='front', hook=hk, fin_hook=request); tile_end(1)
    a.label('L_g2')
    G1.loop(a, 'g2', 'N', exp='front', hook=hk, fin_hook=request); tile_end(2)
    a.label('L_small')
    srd(a, 8, 64, 4 * MB)
    a(f's_cmp_eq_u32 {sKind}, {K_SK}'); a('s_cselect_b64 s[88:89], s[70:71], s[72:73]')
    srd(a, 12, 88, 8 * MB)
    a(f's_lshl_b32 s91, {sXW}, 3'); a(f's_add_u32 s91, s91, {sQ_}')
    a(f's_mov_b32 {sLdw}, 8192'); a(f's_mov_b32 {sSeg}, {256*KB}'); a(f's_mov_b32 {sLdx}, 2048'); a(f's_mov_b32 {sNk}, 4')
    a(f's_lshl_b32 {sXo}, {sP}, 18'); a(f's_lshl_b32 {sWo}, s91, 8')
    a(f's_sub_u32 {sOo}, {sKind}, 8'); a(f's_lshl_b32 {sOo}, {sOo}, 24'); a(f's_lshl_b32 s90, {sP}, 20'); a(f's_add_u32 {sOo}, {sOo}, s90')
    a('s_lshl_b32 s90, s91, 13'); a(f's_add_u32 {sOo}, {sOo}, s90')
    a(f's_lshr_b32 {sDone}, {sP}, 1'); a(f's_lshl_b32 {sDone}, {sDone}, 9'); a(f's_add_u32 {sDone}, {sDone}, {C_KV}'); a(f's_lshl_b32 s90, {sXW}, 7'); a(f's_add_u32 {sDone}, {sDone}, s90')
    G2.setup(a)
    a(f's_mov_b32 {sRet}, 2'); a('s_branch L_epi')
    a.label('L_r2')
    NT = 1 if sweep else 0
    if sweep: do_sweep(a, 32, ((64, 4, 's40'),))
    a(f's_cmp_eq_u32 {sKind}, {K_SV}'); a('s_cbranch_scc1 L_g5')
    G2.loop(a, 'g4', 'T', younger=NT, hook=hk, fin_hook=request); tile_end(3)
    a.label('L_g5')
    G2.loop(a, 'g5', 'N', younger=NT, hook=hk, fin_hook=request); tile_end(4)
    a.label('L_swp')
    a('s_barrier')
    a('v_and_b32 v1, 63, v0'); a('v_lshlrev_b32 v2, 7, v1')
    a(f's_lshl_b32 s40, {sP}, 2'); a(f's_add_u32 s40, s40, {sXW}'); a('s_lshl_b32 s40, s40, 2'); a(f's_add_u32 s40, s40, {sW_}'); a('s_lshl_b32 s40, s40, 13')
    for base, size in ((78, 4), (80, 6), (82, 2)):
        srd(a, 44, base, size * MB)
        a('s_mov_b32 s41, s40')
        for q in range(size * 8 // NSWP):
            a(f'buffer_load_dword v{4+q}, v2, s[44:47], s41 offen'); a(f's_add_u32 s41, s41, {128*KB*NSWP}')
    wstamp(2)
    a('s_branch L_next')
    a.label('L_atb')
    a(f's_lshl_b32 s90, {sXW}, 7'); a(f's_lshl_b32 s40, {sP}, 9'); a('s_add_u32 s40, s40, s90'); a(f's_max_u32 s41, {sP}, 1'); a('s_sub_u32 s41, s41, 1'); a('s_lshl_b32 s41, s41, 9'); a('s_add_u32 s41, s41, s90')
    wait([('s40', C_BQ, 3), ('s41', C_BQ, 3)])
    a(f's_lshl_b32 {sDone}, {sP}, 7'); a(f's_add_u32 {sDone}, {sDone}, {C_AB}')
    a(f's_lshl_b32 s46, {sP}, 3'); a(f's_lshl_b32 s90, {sQ_}, 1'); a('s_add_u32 s99, s46, s90'); a(f's_lshr_b32 s90, {sW_}, 1'); a('s_add_u32 s99, s99, s90')
    a('s_lshl_b32 s99, s99, 3'); a(f's_lshl_b32 s90, {sXW}, 1'); a('s_add_u32 s99, s99, s90'); a(f's_and_b32 s90, {sW_}, 1'); a('s_add_u32 s20, s99, s90')
    a('v_and_b32 v1, 63, v0')
    attn.gen_attnB(a, 's20', ld_flags='sc1', st_flags='sc1', after_loads=request)
    a('s_branch L_done')
    for lab, n_ in (('L_ata', 1), ('L_ata4', 4)):
        a.label(lab)
        a(f's_lshr_b32 s40, {sP}, 3'); a('s_lshl_b32 s40, s40, 9'); a(f's_lshl_b32 s90, {sXW}, 7'); a('s_add_u32 s40, s40, s90'); a(f's_add_u32 s41, {sP}, {n_}')
        if n_ == 1: wait([('s40', C_Q, 4), ('s40', C_KV, 32)], stamp=False)
        else: wait([('s40', C_Q, 4), ('s40', C_KV, 32)], prog='s41')
        a(f's_mov_b32 s98, {n_}')
        a(f's_lshr_b32 {sDone}, {sP}, 2'); a(f's_lshl_b32 {sDone}, {sDone}, 7'); a(f's_add_u32 {sDone}, {sDone}, {C_AA}')
        if n_ == 1:
            assert FINE0 <= SPLIT0 and SPLIT0 >= 12
            a(f's_lshr_b32 s90, {sP}, 2'); a('s_sub_u32 s90, s90, 12'); a('s_lshl_b32 s90, s90, 2'); a(f's_add_u32 s90, s90, {sXW}'); a('s_lshl_b32 s90, s90, 1'); a(f's_add_u32 s90, s90, {sQ_}')
            a('s_lshl_b32 s90, s90, 7'); a(f's_add_u32 s90, s90, {C_AF}')
            a(f's_cmp_ge_u32 {sP}, {4*SPLIT0}'); a(f's_cselect_b32 {sDone}, s90, {sDone}')
        a(f's_lshl_b32 s20, {sP}, 5'); a(f's_lshl_b32 s90, {sXW}, 3'); a('s_add_u32 s20, s20, s90'); a(f's_lshl_b32 s90, {sQ_}, 2'); a('s_add_u32 s20, s20, s90'); a(f's_add_u32 s20, s20, {sW_}')
        a('v_and_b32 v1, 63, v0')
        attn.gen_attnA(a, 's20', ld_flags='sc1', st_flags='sc1', mid=(lambda: wait([], prog='s41', slp=3)) if n_ == 1 else None, n=n_, after_loads=request)
        a('s_branch L_done')
    a.label('L_bo')
    a(f's_lshr_b32 s40, {sP}, 1'); a('s_lshl_b32 s40, s40, 7'); a(f's_add_u32 s40, s40, {C_AB}'); a('s_mov_b32 s41, 16')
    srd(a, 12, 82, 2 * MB)
    a(f's_mov_b32 {sLdx}, {64*KB}'); a(f's_mov_b32 {sNk}, 4')
    a(f's_lshl_b32 {sXo}, {sP}, 18'); a(f's_add_u32 {sXo}, {sXo}, {OB:#x}'); a(f's_mov_b32 {sOo}, 2048')
    a('s_branch L_g3')
    a.label('L_aos')
    srd(a, 12, 74, 8 * MB)
    a(f's_and_b32 s48, {sQ_}, 7'); a(f's_lshr_b32 {sQ_}, {sQ_}, 3')
    a(f's_sub_u32 s40, {sP}, 12'); a('s_lshl_b32 s40, s40, 3'); a('s_add_u32 s40, s40, s48'); a('s_lshl_b32 s40, s40, 7'); a(f's_add_u32 s40, s40, {C_AF}'); a('s_mov_b32 s41, 4')
    a(f's_mov_b32 {sLdx}, {256*KB}'); a(f's_mov_b32 {sNk}, 2')
    a(f's_lshl_b32 {sXo}, {sP}, 20'); a(f's_add_u32 {sXo}, {sXo}, {OA:#x}'); a('s_lshl_b32 s90, s48, 15'); a(f's_add_u32 {sXo}, {sXo}, s90')
    a(f's_mov_b32 {sOo}, 0'); a('s_lshl_b32 s49, s48, 20')
    a('s_branch L_g3b')
    a.label('L_ao')
    a(f's_lshl_b32 s40, {sP}, 7'); a(f's_add_u32 s40, s40, {C_AA}'); a('s_mov_b32 s41, 32')
    srd(a, 12, 74, 8 * MB)
    a(f's_mov_b32 {sLdx}, {256*KB}'); a(f's_mov_b32 {sNk}, 16')
    a(f's_lshl_b32 {sXo}, {sP}, 20'); a(f's_add_u32 {sXo}, {sXo}, {OA:#x}'); a(f's_mov_b32 {sOo}, 0')
    a.label('L_g3')
    a('s_mov_b32 s49, 0')
    a.label('L_g3b')
    srd(a, 8, 4, WS_BYTES)
    a(f's_lshl_b32 s91, {sXW}, 1'); a(f's_add_u32 s91, s91, {sQ_}')
    a(f's_mov_b32 {sLdw}, 2048'); a(f's_mov_b32 {sSeg}, 4096')
    a(f's_lshl_b32 {sWo}, s91, 8'); a(f's_add_u32 {sOo}, {sOo}, {sWo}'); a(f's_lshl_b32 s90, {sP}, 19'); a(f's_add_u32 {sOo}, {sOo}, s90')
    a(f's_add_u32 {sWo}, {sWo}, s49'); a('s_mov_b32 s50, s91')
    def req3(a_):
        l = a_.newlabel('L_r3'); a_(f's_cmp_eq_u32 {sKind}, {K_AOS}'); a_(f's_cbranch_scc1 {l}'); request(a_); a_.label(l)
    G3.setup(a, mid=lambda: wait([('s40', 0, 's41')], slp=3)); G3.loop(a, 'g3', 'T', hook=hk, fin_hook=req3, xlast=True)
    a(f's_cmp_eq_u32 {sKind}, {K_AOS}'); a('s_cbranch_scc1 L_part')
    tile_end(5)
    a.label('L_part')
    wstamp(4)
    assert MS == 16
    a(f's_sub_u32 s40, {sP}, {SPLIT0}'); a('s_lshl_b32 s40, s40, 3'); a('s_add_u32 s40, s40, s50')
    a('s_lshl_b32 s41, s40, 19'); a(f's_add_u32 s41, s41, {PARTK:#x}'); a(f's_lshl_b32 s90, {sW_}, 14'); a('s_add_u32 s41, s41, s90')
    a('s_lshl_b32 s90, s48, 16'); a('s_add_u32 s42, s41, s90')
    a('v_lshlrev_b32 v2, 4, v1')
    for q in range(16):
        if q and q % 4 == 0: a('s_add_u32 s42, s42, 4096')
        a(f'buffer_store_dwordx4 {ar(4*q, 4)}, v2, {WS}, s42 offen offset:{(q&3)*1024} sc1')
    a('s_lshl_b32 s40, s40, 7')
    a(f's_add_u32 s43, s40, {CNT + C_SP:#x}')
    a('s_waitcnt vmcnt(0)'); a('s_barrier')
    signal(a, 0, soff='s43', srd_=WS)
    wait([('s40', C_SP, 8)], slp=1, stamp=False)
    request(a)
    a('s_lshl_b32 s90, s48, 11'); a('s_add_u32 s41, s41, s90')
    for p in range(8):
        for h in range(2): a(f'buffer_load_dwordx4 {vr(16 + 8*p + 4*h, 4)}, v2, {WS}, s41 offen offset:{1024*h} sc1')
        a('s_add_u32 s41, s41, 0x10000')
    lane_expr(a, 'v3', [(0, 4, 4096), (4, 2, 16)], lane='v1', tmp='v4')
    a(f's_lshr_b32 s90, {sW_}, 1'); a('s_lshl_b32 s90, s90, 18'); a(f's_add_u32 {sOo}, {sOo}, s90')
    a(f's_and_b32 s90, {sW_}, 1'); a('s_lshl_b32 s90, s90, 7'); a(f's_add_u32 {sOo}, {sOo}, s90')
    a('s_lshr_b32 s90, s48, 1'); a('s_lshl_b32 s90, s90, 16'); a(f's_add_u32 {sOo}, {sOo}, s90')
    a('s_and_b32 s90, s48, 1'); a('s_lshl_b32 s90, s90, 6'); a(f's_add_u32 {sOo}, {sOo}, s90')
    for p in range(1, 8):
        a(f's_waitcnt vmcnt({14 - 2*p})')
        for q in range(0, 8, 2): a(f'v_pk_add_f32 {vr(16+q,2)}, {vr(16+q,2)}, {vr(16+8*p+q,2)}')
    for q in range(4): a(f'v_cvt_pk_bf16_f32 v{8+q}, v{16+2*q}, v{17+2*q}')
    a(f'buffer_store_dwordx4 v[8:11], v3, {SO}, {sOo} offen')
    wstamp(2)
    a('s_branch L_got')
    a.label('L_done')
    a('s_waitcnt vmcnt(0)')
    a('s_barrier')
    a(f's_add_u32 {sDone}, {sDone}, {CNT:#x}')
    signal(a, 0, soff=sDone, srd_=WS, inc='s98')
    wstamp(2)
    a(f's_mov_b32 {pE}, 0')
    a('s_branch L_got')
    a.label('L_exit')
    a('s_endpgm')
    a.fix_hazards()
    t = a.text() + '.p2align 2\nL_table:\n' + ''.join(f'.long {x:#x}\n' for x in tl + [15, 0, 0, 0])
    return t, names

def build(**kw):
    body, names = gen(**kw)
    ref = open(os.path.join(os.path.dirname(os.path.abspath(__file__)), '..', NAME + '.s.ref')).read().split('\n')
    head = [l for l in ref if l.startswith(';') and '@launch' not in l and 'Override' not in l and 'grid=ceil' not in l][:14]
    n = NAME + '_kernel'
    t = '\n'.join(head) + '\n'
    t += f'; @launch grid=(256,1,1) block=(256,1,1) lds={LDS_X + 64}\n'
    t += '.amdgcn_target "amdgcn-amd-amdhsa--gfx950"\n.text\n'
    t += f'.globl {n}\n.p2align 8\n.type {n},@function\n{n}:\n' + body
    t += '.section .rodata,"a"\n.p2align 6\n' + kd(n, 512, 256)
    return t

if __name__ == '__main__':
    out = sys.argv[1] if len(sys.argv) > 1 else os.path.join(os.path.dirname(os.path.abspath(__file__)), '..', NAME + '.s')
    open(out, 'w').write(build(**eval('dict(%s)' % (sys.argv[2] if len(sys.argv) > 2 else ''))))
    print('written', out, os.path.getsize(out))
```

```python
from asmgen import *
from layout import *
from rec import lane_expr, srd

sXo, sWo, sOo, sLdx, sLdw, sNk, sSeg, sWv, sWstep, sM0x, sM0w = [f's{i}' for i in list(range(20, 28)) + [51, 52, 53]]
SX, SWt, SO = 's[8:11]', 's[12:15]', 's[16:19]'

class Gemm:
    def __init__(self, BM, BN, BK, NS, xmode, perm_out=False, ld_flags='', MS=32, w_flags=''):
        self.__dict__.update(locals())
        self.TM, self.TN = BM // (2 * MS), BN // (2 * MS)
        self.AR = MS * MS // 64
        self.XB, self.WB = BM * BK * 2, BN * BK * 2
        self.BUF = self.XB + self.WB
        self.NX, self.NW = self.XB // 4096, self.WB // 4096
        self.ND = self.NX + self.NW
        self.RB = BN * 2
        self.RPI = 1024 // self.RB
        self.KS = BK // (512 // MS)
        p = 2
        self.XA = p; p += self.NX
        self.WA = p; p += self.NW
        self.nxr = self.KS if xmode == 'row' else 1
        self.NWIN = -(-NS * self.BUF // 65536)
        self.XR = p; p += self.nxr * self.NWIN
        self.nwr = self.TN // 2 if (MS == 16 and perm_out) else self.TN
        self.WR = p; p += self.nwr * self.NWIN
        self.TMP = p; p += 4
        p = (p + 3) // 4 * 4
        self.FX = [p, p + 4 * self.TM]; p += 8 * self.TM
        self.FW = [p, p + 4 * self.TN]; p += 8 * self.TN
        self.END = p
        self.lds = NS * self.BUF
    def acc(self, i, j): return ar(self.AR * (i * self.TN + j), self.AR)
    def dma(self, s):
        out = []
        xs = [[f's_add_u32 m0, {sM0x}, {s*self.BUF + j*1024}', f'buffer_load_dwordx4 v{self.XA+j}, {SX}, {sXo} offen {self.ld_flags} lds'] for j in range(self.NX)]
        ws = [[f's_add_u32 m0, {sM0w}, {s*self.BUF + j*1024}', f'buffer_load_dwordx4 v{self.WA+j}, {SWt}, {sWo} offen {self.w_flags} lds'] for j in range(self.NW)]
        while xs or ws:
            if xs: out.append(xs.pop(0))
            if ws: out.append(ws.pop(0))
        return out
    def adv(self, s):
        if self.xmode == 'row': x = self.BK * 2
        else:
            per = 128 // self.BK
            x = self.BK * 32 if (s + 1) % per else 8192 - (per - 1) * self.BK * 32
        return [f's_add_u32 {sXo}, {sXo}, {x}', f's_add_u32 {sWo}, {sWo}, {sWstep}']
    def setup(self, a, mid=None):
        g = self; lane = 'v1'; t0, t1 = f'v{g.TMP}', f'v{g.TMP+1}'
        kw = dict(lane=lane, tmp=t1)
        a(f'v_and_b32 {lane}, 63, v0')
        a(f'v_lshrrev_b32 {t0}, 6, v0'); a('s_nop 0'); a(f'v_readfirstlane_b32 {sWv}, {t0}')
        CPR = g.BK // 8; sh = CPR.bit_length() - 1; RX = 64 // CPR
        if g.xmode == 'row':
            a(f's_mul_i32 s90, {sWv}, {RX*g.NX}')
            a(f'v_lshrrev_b32 {t0}, {sh}, {lane}'); a(f'v_add_u32 {t0}, s90, {t0}')
            a(f'v_mul_lo_u32 {t0}, {t0}, {sLdx}')
            a(f'v_lshrrev_b32 {t1}, 4, {lane}'); a(f'v_xor_b32 {t1}, {t1}, {lane}'); a(f'v_and_b32 {t1}, {CPR-1}, {t1}')
            a(f'v_lshl_add_u32 v{g.XA}, {t1}, 4, {t0}')
            a(f's_mul_i32 s91, {sLdx}, {RX}')
            for j in range(1, g.NX):
                a(f'v_add_u32 v{g.XA+j}, s91, v{g.XA+j-1}')
                if g.BK == 64: a(f'v_xor_b32 v{g.XA+j}, 64, v{g.XA+j}')
        else:
            bpt = g.BK // 32
            bps = 2 * bpt
            if g.NX % bps == 0:
                a(f's_mul_i32 s90, {sWv}, {g.NX//bps}'); a(f's_mul_i32 s90, s90, {sLdx}')
            else:
                assert g.NX == bpt
                a(f's_lshr_b32 s90, {sWv}, 1'); a(f's_mul_i32 s90, s90, {sLdx}'); a(f's_and_b32 s91, {sWv}, 1'); a('s_lshl_b32 s91, s91, 12'); a('s_add_u32 s90, s90, s91')
            for j in range(g.NX):
                if j % bps == 0 and j: a(f's_add_u32 s90, s90, {sLdx}')
                lane_expr(a, f'v{g.XA+j}', [(0, 6, 16)], const=((j // bpt) & 1) * 4096 + (j % bpt) * 1024, sadd=['s90'], **kw)
        LPR = g.RB // 16; sh = LPR.bit_length() - 1
        a(f's_mul_i32 s90, {sWv}, {g.NW*g.RPI}')
        for j in range(g.NW):
            a(f'v_lshrrev_b32 {t0}, {sh}, {lane}'); a(f'v_add_u32 {t0}, {g.RPI*j}, {t0}')
            a(f'v_add_u32 {t0}, s90, {t0}')
            if g.MS == 32:
                a(f'v_and_b32 {t1}, 3, {t0}'); a(f'v_lshlrev_b32 {t1}, 2, {t1}')
            elif g.xmode == 'row':
                a(f'v_and_b32 {t1}, 3, {t0}'); a(f'v_lshlrev_b32 {t1}, 1, {t1}'); a(f'v_and_b32 v{g.TMP+2}, 8, {t0}'); a(f'v_or_b32 {t1}, {t1}, v{g.TMP+2}')
            else:
                a(f'v_and_b32 {t1}, 7, {t0}'); a(f'v_lshlrev_b32 {t1}, 1, {t1}')
            a(f'v_xor_b32 {t1}, {t1}, {lane}'); a(f'v_and_b32 {t1}, {LPR-1}, {t1}')
            a(f'v_mul_lo_u32 {t0}, {t0}, {sLdw}')
            a(f'v_lshl_add_u32 v{g.WA+j}, {t1}, 4, {t0}')
        a(f's_mul_i32 {sWstep}, {sLdw}, {g.BK}')
        a(f's_mul_i32 {sM0x}, {sWv}, {g.NX*1024}'); a(f's_mul_i32 {sM0w}, {sWv}, {g.NW*1024}'); a(f's_add_u32 {sM0w}, {sM0w}, {g.XB}')
        if mid is None:
            for s in range(g.NS):
                for grp in g.dma(s):
                    for x in grp: a(x)
                for x in g.adv(s): a(x)
        else:
            for part in (1, 0):
                for s in range(g.NS):
                    for grp in g.dma(s):
                        if (SWt in grp[1]) == bool(part):
                            for x in grp: a(x)
                    a(g.adv(s)[part])
                if part: mid()
        a(f's_lshr_b32 s90, {sWv}, 1'); a(f's_and_b32 s91, {sWv}, 1')
        a(f's_mul_i32 s92, s90, {g.XB//2}')
        LB = 5 if g.MS == 32 else 4
        if g.xmode == 'row':
            lane_expr(a, t0, [(0, LB, g.BK * 2)], sadd=['s92'], **kw)
            a(f'v_lshrrev_b32 {t1}, {1 if g.BK == 64 else 2}, {lane}'); a(f'v_and_b32 {t1}, {CPR-1}, {t1}')
            a(f'v_lshrrev_b32 v{g.TMP+2}, {LB}, {lane}'); a(f'v_xor_b32 {t1}, {t1}, v{g.TMP+2}')
            a(f'v_lshl_add_u32 v{g.XR}, {t1}, 4, {t0}')
            for kk in range(1, g.KS): a(f'v_xor_b32 v{g.XR+kk}, {(1024 // g.MS)*kk}, v{g.XR}')
        elif g.MS == 32:
            lane_expr(a, f'v{g.XR}', [(0, 4, 16), (4, 1, g.BK * 32), (5, 1, 256)], sadd=['s92'], **kw)
        else:
            lane_expr(a, f'v{g.XR}', [(0, 6, 16)], sadd=['s92'], **kw)
        for w in range(1, g.NWIN):
            for kk in range(g.nxr): a(f'v_add_u32 v{g.XR + w*g.nxr + kk}, {65536*w}, v{g.XR+kk}')
        hirow = 8 if g.xmode == 'row' else 4
        t2 = f'v{g.TMP+2}'
        if g.MS == 32:
            colterms = [(4, 1, 32), (0, 2, 8)] if not g.perm_out else [(0, 1, 32), (4, 1, 16), (1, 1, 8)]
            lane_expr(a, t0, [(2, 2, g.RB), (5, 1, hirow * g.RB)] + colterms, **kw)
            a(f'v_bfe_u32 {t2}, {lane}, 2, 2'); ush = 6
        else:
            colterms = [(0, 2, 8)] if not g.perm_out else [(0, 1, 16)]
            lane_expr(a, t0, [(2, 2, g.RB), (4, 2, hirow * g.RB)] + colterms, **kw)
            a(f'v_bfe_u32 {t2}, {lane}, 2, 3'); ush = 5
            if g.perm_out: a(f'v_bfe_u32 {t1}, {lane}, 1, 1'); a(f'v_xor_b32 {t2}, {t2}, {t1}')
        a(f's_mul_i32 s92, s91, {g.TN}')
        for jn in range(g.nwr):
            a(f's_add_u32 s93, s92, {jn * (g.TN // g.nwr)}')
            a(f'v_xor_b32 {t1}, s93, {t2}')
            a(f'v_lshl_add_u32 v{g.WR+jn}, {t1}, {ush}, {t0}')
            for w in range(1, g.NWIN): a(f'v_add_u32 v{g.WR + w*g.nwr + jn}, {65536*w}, v{g.WR+jn}')
    def frags(self, s, kk, f):
        g = self
        xs, wl = [], []
        for i in range(g.TM):
            off = s * g.BUF + i * g.MS * g.BK * 2 + (0 if g.xmode == 'row' else (16384 // g.MS) * kk)
            w, off = off >> 16, off & 0xffff
            xs.append(f'ds_read_b128 {vr(g.FX[f] + 4*i, 4)}, v{g.XR + w*g.nxr + (kk if g.xmode == "row" else 0)} offset:{off}')
        for jn in range(g.TN):
            for h in range(2):
                if g.MS == 32: row = 16 * kk + 4 * h if g.xmode == 'row' else 32 * (kk >> 1) + 8 * (kk & 1) + 16 * h
                else: row = 32 * kk + (4 if g.xmode == 'row' else 16) * h
                off = s * g.BUF + g.XB + row * g.RB
                jr = jn
                if g.nwr != g.TN: jr = jn >> 1; off += (jn & 1) * 8
                w, off = off >> 16, off & 0xffff
                wl.append(f'ds_read_b64_tr_b16 {vr(g.FW[f] + 4*jn + 2*h, 2)}, v{g.WR + w*g.nwr + jr} offset:{off}')
        res = []
        while xs or wl:
            if xs: res.append(xs.pop(0))
            res += wl[:2]; wl = wl[2:]
        return res
    def mfmas(self, f, orient, first=False):
        g = self; out = []
        op = 'v_mfma_f32_32x32x16_bf16' if g.MS == 32 else 'v_mfma_f32_16x16x32_bf16'
        for i in range(g.TM):
            for j in range(g.TN):
                X, W = vr(g.FX[f] + 4*i, 4), vr(g.FW[f] + 4*j, 4)
                A, B = (W, X) if orient == 'T' else (X, W)
                out.append(f'{op} {g.acc(i,j)}, {A}, {B}, {0 if first else g.acc(i,j)}')
        return out
    def loop(self, a, tag, orient, younger=0, hook=None, exp='', fin_hook=None, xlast=False, extra=()):
        g = self; L = lambda s: f'L_{tag}_{s}'
        NS, KS, ND = g.NS, g.KS, g.ND
        a(f's_waitcnt vmcnt({min(63, (NS-1)*(g.NX if xlast else ND) + younger)})'); a('s_barrier')
        for x in g.frags(0, 0, 0): a(x)
        def stage(s, pend, wait, do_dma, last=False, first=False, after=None):
            for kk in range(KS):
                ms = g.mfmas(kk & 1, orient, first and kk == 0)
                n = len(ms)
                a('s_waitcnt lgkmcnt(0)')
                start = 0
                if kk == KS - 1:
                    if last:
                        for m in ms: a(m)
                        return []
                    assert not pend
                    a(ms[0]); start = 1
                    a(f's_waitcnt vmcnt({wait})'); a('s_barrier')
                    if after: after(a)
                    rd = g.frags((s + 1) % NS, 0, 0)
                    if do_dma: pend = g.dma(s) + [g.adv(s)]
                    quota = -(-len(pend) // KS)
                    if 'front' in exp: quota = -(-len(pend) // (KS // 2))
                else:
                    rd = g.frags(s, kk + 1, (kk + 1) & 1)
                    quota = -(-len(pend) // (KS - 1 - kk))
                    if 'front' in exp: quota = len(pend)
                slots = n - start
                per = -(-len(rd) // max(1, slots - 2 if slots > 4 else slots))
                gap = max(1, (slots - 8) // len(rd)) if slots > 16 else 1
                quota = min(quota, len(pend))
                pos = [start + (q * slots) // quota for q in range(quota)] if quota else []
                for q in range(start, n):
                    mine = [pend.pop(0) for _ in range(pos.count(q))]
                    pre = mine[0][:1] if mine else []
                    for x in pre: a(x)
                    a(ms[q])
                    for k, grp in enumerate(mine):
                        for x in (grp[1:] if k == 0 else grp): a(x)
                    if (q - start) % gap == 0:
                        for x in rd[:per]: a(x)
                        rd = rd[per:]
                assert not rd
            return pend
        W = (NS - 2) * ND
        pend = [['s_nop 0', x] for x in extra]
        younger += len(extra)
        a(f's_sub_u32 {sNk}, {sNk}, 1')
        for s in range(NS):
            w = W + younger if s < NS - 1 else W
            if xlast and s < NS - 1: w = (NS - 2 - s) * g.NX + s * ND + younger
            pend = stage(s, pend, min(63, w), True, first=(s == 0), after=hook if s == NS - 1 else None)
        p0 = [list(x) for x in pend]
        a.label(L('loop'))
        a(f's_sub_u32 {sNk}, {sNk}, 1'); a(f's_cmp_eq_u32 {sNk}, 0'); a(f's_cbranch_scc1 {L("fin")}')
        for s in range(NS): pend = stage(s, pend, W, True)
        assert pend == p0
        a(f's_branch {L("loop")}')
        a.label(L('fin'))
        if fin_hook: fin_hook(a)
        pend = [list(x) for x in p0]
        for s in range(NS): pend = stage(s, pend, max(0, NS - 2 - s) * ND, False, last=(s == NS - 1))
    def once(self, a, orient):
        g = self
        steps = [(s, kk) for s in range(g.NS) for kk in range(g.KS)]
        a(f's_waitcnt vmcnt({(g.NS//2)*g.NX})'); a('s_barrier')
        for x in g.frags(0, 0, 0): a(x)
        for n, (s, kk) in enumerate(steps):
            a('s_waitcnt lgkmcnt(0)')
            if n + 1 == len(steps) // 2: a('s_waitcnt vmcnt(0)'); a('s_barrier')
            rd = g.frags(*steps[n + 1], (n + 1) & 1) if n + 1 < len(steps) else []
            for m in g.mfmas(n & 1, orient, n == 0):
                a(m)
                for x in rd[:2]: a(x)
                rd = rd[2:]
            assert not rd
    def epilogue(self, a, epi, EP, st_flags='', lane='v1', SO=SO, sOo=sOo, sSeg=sSeg, defer=None):
        g = self; TM, TN = g.TM, g.TN
        t0, t1, ad = f'v{EP}', f'v{EP+1}', f'v{EP+2}'
        if defer: ad, t0 = defer['ad'], defer['ad2']
        EP += 4
        kw = dict(lane=lane, tmp=t1)
        a(f's_lshr_b32 s90, {sWv}, 1'); a(f's_and_b32 s91, {sWv}, 1')
        def rdacc(dst, i, j, regs):
            for q, r in enumerate(regs): a(f'v_accvgpr_read_b32 v{dst+q}, a{16*(i*TN+j)+r}')
        cnt = 0
        if g.MS == 16:
            def rd2(dst, t1_, t2_, inter):
                ra, rb_ = 4 * (t1_[0] * TN + t1_[1]), 4 * (t2_[0] * TN + t2_[1])
                regs = [x for q in range(4) for x in (ra + q, rb_ + q)] if inter else [ra + q for q in range(4)] + [rb_ + q for q in range(4)]
                for q, r in enumerate(regs): a(f'v_accvgpr_read_b32 v{dst+q}, a{r}')
            if epi in ('qk', 'v'):
                lane_expr(a, ad, [(0, 6, 16)], **kw); a(f'v_add_u32 {t0}, 4096, {ad}')
                a(f's_mul_i32 s92, s90, {TM//2}'); a(f's_mul_i32 s92, s92, {sSeg}'); a(f's_add_u32 s92, s92, {sOo}')
                a(f's_mul_i32 s93, s91, {8192 if TN == 8 else (2048 if epi == "qk" else 4096)}'); a('s_add_u32 s92, s92, s93')
                def unit(sg_, u, dst=None):
                    nonlocal cnt
                    e = EP + 12 * (cnt % 4); cnt += 1
                    if epi == 'qk':
                        tt, jj = u // (TN // 2), u % (TN // 2)
                        rd2(e + 4, (2*sg_ + tt, 2*jj), (2*sg_ + tt, 2*jj + 1), True); off = tt * 4096 + jj * 1024
                    else:
                        rd2(e + 4, (2*sg_, u), (2*sg_ + 1, u), False); off = u * 1024
                    d = e if dst is None else dst
                    for q in range(4): a(f'v_cvt_pk_bf16_f32 v{d+q}, v{e+4+2*q}, v{e+5+2*q}')
                    if dst is None: a(f'buffer_store_dwordx4 {vr(e,4)}, {t0 if off >= 4096 else ad}, {SO}, s92 offen offset:{off & 4095} {st_flags}')
                nd = TM // 4 if defer else TM // 2
                for sg_ in range(nd):
                    for u in range(TN):
                        unit(sg_, u)
                        if defer: unit(sg_ + nd, u, defer['base'] + 4 * (sg_ * TN + u))
                    a(f's_add_u32 s92, s92, {sSeg}')
                if defer:
                    a(f's_mov_b32 {defer["s0"]}, s92'); a(f's_add_u32 {defer["s1"]}, s92, {sSeg}')
            else:
                a(f'v_and_b32 {t0}, 15, {lane}'); a(f'v_mul_lo_u32 {t0}, {t0}, {sSeg}')
                a(f'v_lshrrev_b32 {t1}, 4, {lane}'); a(f'v_lshl_add_u32 {ad}, {t1}, 4, {t0}')
                a(f's_mul_i32 s92, s90, {TM*16}'); a(f's_mul_i32 s92, s92, {sSeg}'); a(f's_add_u32 s92, s92, {sOo}')
                a(f's_mul_i32 s93, s91, {TN*32}'); a('s_add_u32 s92, s92, s93')
                a(f's_lshl_b32 s94, {sSeg}, 4')
                for i in range(TM):
                    for jj in range(TN // 2):
                        e = EP + 12 * (cnt % 4); cnt += 1
                        rd2(e + 4, (i, 2*jj), (i, 2*jj + 1), False)
                        for q in range(4): a(f'v_cvt_pk_bf16_f32 v{e+q}, v{e+4+2*q}, v{e+5+2*q}')
                        a(f'buffer_store_dwordx4 {vr(e,4)}, {ad}, {SO}, s92 offen offset:{64*jj} {st_flags}')
                    a('s_add_u32 s92, s92, s94')
        elif epi in ('qk', 'v'):
            hs, ks = (4096, 1024) if epi == 'qk' else (1024, 2048)
            lane_expr(a, ad, [(0, 4, 16), (4, 1, hs), (5, 1, 256)], **kw)
            a(f's_mul_i32 s92, s90, {TM}'); a(f's_mul_i32 s92, s92, {sSeg}'); a(f's_add_u32 s92, s92, {sOo}')
            a(f's_mul_i32 s93, s91, {8192 if TN == 4 else TN*ks}'); a('s_add_u32 s92, s92, s93')
            for i in range(TM):
                for j in range(TN):
                    a(f's_add_u32 s93, s92, {j*ks}')
                    for ap in range(2):
                        e = EP + 12 * (cnt % 4); cnt += 1
                        if epi == 'qk': rdacc(e + 4, i, j, [4*ap + (q >> 1) + 8 * (q & 1) for q in range(8)])
                        else: rdacc(e + 4, i, j, [4*ap + q for q in range(4)] + [4*ap + 8 + q for q in range(4)])
                        for q in range(4): a(f'v_cvt_pk_bf16_f32 v{e+q}, v{e+4+2*q}, v{e+5+2*q}')
                        a(f'buffer_store_dwordx4 {vr(e,4)}, {ad}, {SO}, s93 offen offset:{512*ap} {st_flags}')
                a(f's_add_u32 s92, s92, {sSeg}')
        else:
            a(f'v_and_b32 {t0}, 31, {lane}'); a(f'v_mul_lo_u32 {t0}, {t0}, {sSeg}')
            a(f'v_lshrrev_b32 {t1}, 5, {lane}'); a(f'v_lshl_add_u32 {ad}, {t1}, 5, {t0}')
            a(f's_mul_i32 s92, s90, {TM*32}'); a(f's_mul_i32 s92, s92, {sSeg}'); a(f's_add_u32 s92, s92, {sOo}')
            a(f's_mul_i32 s93, s91, {TN*64}'); a('s_add_u32 s92, s92, s93')
            a(f's_lshl_b32 s94, {sSeg}, 5')
            for i in range(TM):
                for j in range(TN):
                    for ap in range(2):
                        e = EP + 12 * (cnt % 4); cnt += 1
                        rdacc(e + 4, i, j, [8*ap + q for q in range(8)])
                        for q in range(4): a(f'v_cvt_pk_bf16_f32 v{e+q}, v{e+4+2*q}, v{e+5+2*q}')
                        a(f'buffer_store_dwordx4 {vr(e,4)}, {ad}, {SO}, s92 offen offset:{64*j + 16*ap} {st_flags}')
                a('s_add_u32 s92, s92, s94')
        return cnt

def gen_gemm(a, tag, BM, BN, xmode, orient, epi, st_flags='', stamp=False, BK=None, NS=None, K=None, exp='', MS=32):
    BK = BK or (32 if BM * BN == 65536 else 64); NS = NS or 4
    g = Gemm(BM, BN, BK, NS, xmode, perm_out=(epi == 'out'), MS=MS)
    r = BK * NS // 128
    if r > 1: a(f's_lshr_b32 {sNk}, {sNk}, {r.bit_length()-1}')
    if stamp: a('s_memtime s[40:41]')
    g.setup(a)
    if stamp: a(f's_waitcnt vmcnt({(NS-1)*g.ND})'); a('s_barrier'); a('s_memtime s[42:43]')
    g.loop(a, tag, orient, exp=exp)
    if stamp: a('s_memtime s[44:45]')
    g.epilogue(a, epi, g.FX[0], st_flags)
    if stamp:
        a('s_memtime s[46:47]'); a('s_waitcnt vmcnt(0)'); a('s_memtime s[48:49]'); a('s_waitcnt lgkmcnt(0)')
        a('s_sub_u32 s48, s48, s46'); a('s_sub_u32 s46, s46, s44'); a('s_sub_u32 s44, s44, s42'); a('s_sub_u32 s42, s42, s40')
        a('v_mov_b32 v4, s42'); a('v_mov_b32 v5, s44'); a('v_mov_b32 v6, s46'); a('v_mov_b32 v7, s48')
        a('s_lshl_b32 s90, s2, 2'); a(f's_add_u32 s90, s90, {sWv}'); a('s_lshl_b32 s90, s90, 4'); a(f's_add_u32 s90, s90, {STAMP:#x}')
        a('v_mov_b32 v8, 0'); a('s_mov_b64 exec, 1')
        a(f'buffer_store_dwordx4 v[4:7], v8, {stamp}, s90 offen')
    return g.lds
```

```python
MB = 1 << 20
KB = 1 << 10
WS_BYTES = 256 * MB
QX = 0 * MB
KX = 16 * MB
VX = 32 * MB
KM = 48 * MB
VM = 52 * MB
RING = 56 * MB
RING2 = 58 * MB
SLOT = 512 * KB
MEM_OFF = RING2 - RING
QKVR_OFF = RING2 - RING + 64 * KB
STAMP = 60 * MB
BQKV = 64 * MB
OA = 80 * MB
OB = 96 * MB
OOB = 0x80000000
KA = dict(x=0, mem0=8, Wq=16, Wk=24, Wv=32, Wo=40, seg=48, bx=56, bwqkv=64, bwo=72, out=80, dbg=88, ws=96)
D_OR, D_FAIL, D_POL, D_INIT, D_TICK, D_INIT2 = 0, 32, 128, 132, 192, 136
CNT = 61 * MB
C_PROG, C_QUEUE, C_AB, C_AA = [128 * i for i in (0, 4, 8, 16)]
C_FIN = 1 * 4096
C_KV, C_Q, C_BQ, C_SP, C_AF = [4096 * i for i in (7, 2, 3, 4, 5)]
CNT_BYTES = 36 * KB
PARTK = 100 * MB
```

```python
import math
from asmgen import *
from layout import *

SC = (128 ** -0.5) * math.log2(math.e)
import struct
def f32bits(x): return struct.unpack('<I', struct.pack('<f', x))[0]

def lane_expr(a, dst, terms, const=0, sadd=(), lane='v0', tmp='v31', stmp='s99'):
    a(f'v_mov_b32 {dst}, {const:#x}')
    for (lo, w, mult) in terms:
        a(f'v_bfe_u32 {tmp}, {lane}, {lo}, {w}')
        if mult & (mult - 1) == 0:
            a(f'v_lshl_add_u32 {dst}, {tmp}, {mult.bit_length()-1}, {dst}')
        else:
            a(f's_mov_b32 {stmp}, {mult}')
            a(f'v_mad_u32_u24 {dst}, {tmp}, {stmp}, {dst}')
    for s in sadd:
        a(f'v_add_u32 {dst}, {s}, {dst}')

def srd(a, d, base, size):
    a(f's_mov_b32 s{d}, s{base}')
    a(f's_and_b32 s{d+1}, s{base+1}, 0xffff')
    a(f's_mov_b32 s{d+2}, {size:#x}')
    a(f's_mov_b32 s{d+3}, 0x20000')

SW = 's[4:7]'
(aPartLd, aMemSt, aMemLd, aRedW, aRedRv, aRedR, aQ0, aQ1, aQkLd, aVLd, aKx, aVx0, aVx1, aOW0, aOW1, aOR,
 aPartSt, aPartStL, aE0, aE1, aWarm) = [f'v{i}' for i in range(1, 22)]
aRR = ['v6', 'v240', 'v241', 'v242']
vNeg = 'v22'
vIdx = 'v23'
NEG = 24
SEL = 24
T = 28
WACC = 32
GL = 36
GD = 40
GT = 44
SA = 36
MA = 48
QA = 64
XR = 64
WA = 48
RD = 88
VMR = 88
YY = 96
LR = 100
PA = 100
ET = 104
KXR = 116
VB = 148
VL = 180
OB_ = 212
def OT(j): return OB_ + 4 * j
OSUM = 228
PM = 232
CT = 236
ONES = 248
PUB = 112
sW, sX, sI, sG, sU, sHQ, sJ, sPol = 's32', 's33', 's34', 's35', 's36', 's37', 's38', 's39'
sStep, sSlot, sPrev, sRst, sKV, sExp, sSpin, sC = 's40', 's41', 's42', 's43', 's44', 's45', 's46', 's47'
sHalf0, sOdd, sEven = 's[48:49]', 's[50:51]', 's[52:53]'
sGuard, sKV2 = 's54', 's55'
LDS_RED = 0
RM, RW = 1088, 3264
LDS_O = 13312
SPIN_MAX = 1 << 17

class Stamps:
    def __init__(self, a, on): self.a = a; self.on = on; self.n = 0; self.names = []
    def init(self):
        if not self.on: return
        for k in range(16): self.a(f's_mov_b32 s{64+k}, 0')
        self.calib(76)
        self.a('s_memtime s[60:61]'); self.a('s_waitcnt lgkmcnt(0)')
    def calib(self, d):
        if self.on not in (2, 4): return
        if self.on == 4: d += 20
        a = self.a; l = a.newlabel('L_cal')
        a('s_memrealtime s[60:61]'); a('s_waitcnt lgkmcnt(0)')
        a.label(l)
        a('s_memrealtime s[62:63]'); a('s_memtime s[56:57]'); a('s_waitcnt lgkmcnt(0)')
        a('s_cmp_eq_u32 s60, s62'); a(f's_cbranch_scc1 {l}')
        a(f's_mov_b32 s{d}, s62'); a(f's_mov_b32 s{d+1}, s56')
    def __call__(self, name, only4=False):
        if not self.on: return
        if only4 and self.on != 4: return
        if self.on == 4 and name == 'PV': return
        if self.on == 3 and name != 'tail': return
        if name not in self.names: self.names.append(name)
        k = self.names.index(name)
        a = self.a
        if self.on == 4:
            a(f's_memtime s[{64+2*k}:{65+2*k}]'); return
        if self.on == 2:
            a('s_memtime s[62:63]'); a('s_waitcnt lgkmcnt(0)')
            a(f's_cmp_eq_u32 {sStep}, 40'); a(f's_cselect_b32 s{64+k}, s62, s{64+k}')
            return
        a('s_memtime s[62:63]'); a('s_waitcnt lgkmcnt(0)')
        a('s_sub_u32 s61, s62, s60'); a(f's_add_u32 s{64+k}, s{64+k}, s61'); a('s_mov_b32 s60, s62')

def chk(base, n=4, dst='vcc', t=None):
    t = t or f'v{T+3}'
    regs = [f'v{base+i}' for i in range(n)]
    out = [f'v_max3_u32 {t}, {regs[0]}, {regs[1]}, {regs[2]}']
    regs = regs[3:]
    while len(regs) >= 2:
        out.append(f'v_max3_u32 {t}, {t}, {regs[0]}, {regs[1]}'); regs = regs[2:]
    if regs: out.append(f'v_max_u32 {t}, {t}, {regs[0]}')
    out.append(f'v_cmp_eq_u32 {dst}, -1, {t}')
    return out

def spin_guard(c):
    c(f's_add_u32 {sSpin}, {sSpin}, 1'); c(f's_cmp_ge_u32 {sSpin}, {SPIN_MAX}'); c('s_cbranch_scc1 L_rec_abort')

sMode4 = 's100'
sBit = 's101'
vClaim = 'v247'
LDS_X = 131072

def signal(a, off, soff='0', srd_='s[28:31]', inc='1', two=False):
    l = a.newlabel('L_sig')
    a(f's_cmp_lg_u32 {sW}, 0'); a(f's_cbranch_scc1 {l}')
    a(f'v_mov_b32 v254, {inc}'); a('v_mov_b32 v255, 0')
    if two:
        a('v_mbcnt_lo_u32_b32 v255, -1, 0'); a('v_lshlrev_b32 v255, 9, v255')
        a(f's_cmp_eq_u32 {inc}, 2'); a('s_cselect_b64 exec, 3, 1')
    else: a('s_mov_b64 exec, 1')
    a(f'buffer_atomic_add v254, v255, {srd_}, {soff} offen offset:{off} sc1')
    a('s_mov_b64 exec, -1')
    a.label(l)

def verify(a, want_pol=False, spin='s3', kv=False):
    lw, ld, lk = a.newlabel('L_vw'), a.newlabel('L_vd'), a.newlabel('L_vk')
    a(f's_cmp_lg_u32 {sW}, 0'); a(f's_cbranch_scc1 {ld}')
    a('v_mbcnt_lo_u32_b32 v250, -1, 0'); a('v_mbcnt_hi_u32_b32 v250, -1, v250'); a('v_lshlrev_b32 v250, 2, v250')
    a(f's_cmp_lg_u32 {sMode4}, 0'); a(f's_cbranch_scc1 {lw}')
    a(f'v_readfirstlane_b32 s90, {vClaim}'); a(f's_and_b32 s90, s90, {sBit}'); a(f's_cbranch_scc0 {lw}')
    a('v_mov_b32 v251, 1'); a('s_mov_b64 exec, 1')
    a(f'buffer_store_dword v251, v250, s[28:31], 0 offen offset:{D_FAIL} sc1'); a('s_mov_b64 exec, -1')
    a.label(lw)
    a('buffer_load_dword v251, v250, s[28:31], 0 offen sc1')
    a('s_waitcnt vmcnt(0)')
    a('v_cmp_eq_u32 vcc, -1, v251')
    a(f'v_readlane_b32 s91, v251, {D_FAIL//4}'); a(f'v_readlane_b32 s92, v251, {D_POL//4}')
    a(f'v_readlane_b32 s93, v251, {D_INIT//4}'); a(f'v_readlane_b32 s90, v251, {D_INIT2//4}')
    a(f's_cmp_lg_u32 {sMode4}, 0')
    a('s_cselect_b32 s93, s90, s93'); a('s_cselect_b32 s91, 0, s91'); a('s_cselect_b32 s92, 1, s92'); a('s_cselect_b32 s90, 0xff, vcc_lo')
    a('s_cmp_lg_u32 s91, 0'); a('s_cselect_b32 s92, 3, s92'); a(f's_cbranch_scc1 {lk}')
    a(f's_add_u32 {spin}, {spin}, 1'); a(f's_cmp_ge_u32 {spin}, {SPIN_MAX}'); a('s_cselect_b32 s92, 4, s92'); a(f's_cbranch_scc1 {lk}')
    a('s_sleep 8')
    a('s_and_b32 s90, s90, 0xff'); a('s_cmp_lg_u32 s90, 0xff'); a(f's_cbranch_scc1 {lw}')
    a('s_cmp_lt_u32 s93, 128'); a(f's_cbranch_scc1 {lw}')
    if want_pol: a('s_cmp_eq_u32 s92, 0'); a(f's_cbranch_scc1 {lw}')
    a.label(lk)
    a(f'v_mov_b32 v251, s92'); a(f'v_mov_b32 v250, {LDS_X}'); a('ds_write_b32 v250, v251'); a('s_waitcnt lgkmcnt(0)')
    a.label(ld)
    a('s_barrier')
    a(f'v_mov_b32 v250, {LDS_X}'); a('ds_read_b32 v251, v250'); a('s_waitcnt lgkmcnt(0)')
    a('v_readfirstlane_b32 s92, v251')
    a('s_barrier')
    a('s_cmp_eq_u32 s92, 3'); a('s_cbranch_scc1 L_fallback')
    a('s_cmp_eq_u32 s92, 4'); a('s_cbranch_scc1 L_exit')
    if want_pol: a(f's_sub_u32 {sPol}, s92, 1'); a(f's_and_b32 {sPol}, {sPol}, 1'); a(f's_lshl_b32 {sPol}, {sPol}, 13')

def gather(a, cold, name, loads, regs, work, extra=0, thr=2, per=0):
    n = len(loads)
    done = f'L_{name}_done'
    def mix(w, pre):
        if not per: return w[:1] + pre + w[1:]
        out = []; pre = list(pre)
        for x in w:
            out.append(x)
            k = 0
            while pre and k < per:
                y = pre.pop(0); out.append(y)
                if y.startswith('v_'): k += 1
        return out + pre
    a(f's_waitcnt vmcnt({n-1+extra})')
    for x in chk(regs[0]): a(x)
    ex = [extra]
    for j in range(n):
        a(f's_cbranch_vccnz L_{name}_f{j}')
        if j + 1 < n:
            for x in mix(work[j], [f's_waitcnt vmcnt({n-2-j+ex[j]})'] + chk(regs[j+1])): a(x)
        else:
            for x in work[j]: a(x)
        ex.append(ex[j] + sum(x.startswith('buffer_') for x in work[j]))
    a.label(done)
    c = cold
    def key(S): return ''.join(map(str, S))
    def succ(S, j):
        later = [x for x in S if x > j]
        return later[0] if later else S[0]
    for j in range(n):
        S = tuple(range(j, n))
        c.label(f'L_{name}_f{j}')
        c('s_mov_b64 exec, vcc'); c(loads[j]); c('s_mov_b64 exec, -1')
        c(f's_waitcnt vmcnt({1+ex[j]})' if len(S) > 1 else f's_nop 7')
        c(f's_branch L_{name}_{key(S)}_c{succ(S, j)}')
    import itertools
    for r in range(1, n + 1):
        for S in itertools.combinations(range(n), r):
            for j in S:
                c.label(f'L_{name}_{key(S)}_c{j}')
                for x in chk(regs[j]): c(x)
                c(f's_cbranch_vccz L_{name}_{key(S)}_ok{j}')
                c.label(f'L_{name}_{key(S)}_x{j}')
                c('s_mov_b64 exec, vcc'); c(loads[j]); c('s_mov_b64 exec, -1')
            spin_guard(c)
            c(f's_waitcnt vmcnt({min(thr * len(S), 2 * thr)})')
            c(f's_branch L_{name}_{key(S)}_c{S[0]}')
            for j in S:
                c.label(f'L_{name}_{key(S)}_ok{j}')
                S2 = tuple(x for x in S if x != j)
                if not S2:
                    for x in work[j]: c(x)
                    c(f's_branch {done}')
                else:
                    nx = succ(S2, j)
                    for x in mix(work[j], chk(regs[nx])): c(x)
                    c(f's_cbranch_vccz L_{name}_{key(S2)}_ok{nx}')
                    c(f's_branch L_{name}_{key(S2)}_x{nx}')

def gather_all(a, cold, name, loads, regs, extra=0, thr=0):
    a(f's_waitcnt vmcnt({extra})')
    for x in chk(regs[0], 8): a(x)
    a(f's_cbranch_vccnz L_{name}_f')
    a.label(f'L_{name}_done')
    c = cold
    c.label(f'L_{name}_f')
    for x in chk(regs[0], 4, 's[56:57]', f'v{T+2}'): c(x)
    for x in chk(regs[1], 4, 'vcc'): c(x)
    c('s_or_b64 exec, s[56:57], 1'); c(loads[0])
    c('s_or_b64 exec, vcc, 1'); c(loads[1]); c('s_mov_b64 exec, -1')
    spin_guard(c)
    c(f's_waitcnt vmcnt({thr})')
    for x in chk(regs[0], 8): c(x)
    c(f's_cbranch_vccz L_{name}_done')
    c(f's_branch L_{name}_f')

def gen_rec(a, nsteps=64, stamps=False, local_st='', exp_st='', exit_label='L_rec_exit', no_pf=False, no_exp=False, pol=None,
            dg=0, d1=0, d2=0, thr=2, gthr=0, warm=2, npre=5, cut=0, f1=24, nv1=5, nv2=3, nA=5, nB=6, nr0=5, vat=0, allafter=0, fused=False, kvneed=16, sweep=False, wtouch=None, wfl='', rt=False, xo='', defv=1, mper=0, xper=0, zsh=0, wsp=(8, 8), spos=0, lr=1, ow2=0, zlate=0):
    st = Stamps(a, stamps)
    def rts(k):
        if not rt: return
        a('s_memrealtime s[60:61]'); a('s_waitcnt lgkmcnt(0)')
        a(f's_lshl_b32 s62, s2, 5'); a(f's_add_u32 s62, s62, {STAMP + 131072 + 4*k:#x}')
        a('v_mov_b32 v28, 0'); a('v_mov_b32 v29, s60'); a('s_mov_b64 exec, 1')
        a(f'buffer_store_dword v29, v28, {SW}, s62 offen'); a('s_mov_b64 exec, -1')
    cold = Asm(); cold.uid = 5000
    if cut == 1: a('s_endpgm')
    a('s_load_dwordx4 s[80:83], s[0:1], 8')
    a('s_load_dwordx4 s[84:87], s[0:1], 24')
    a('s_load_dwordx2 s[88:89], s[0:1], 40')
    a('v_lshrrev_b32 v31, 6, v0')
    a('s_nop 0')
    a(f'v_readfirstlane_b32 {sW}, v31')
    a('v_and_b32 v0, 63, v0')
    a(f's_lshr_b32 {sG}, {sI}, 4'); a(f's_lshl_b32 s90, {sX}, 1'); a(f's_add_u32 {sG}, {sG}, s90')
    a(f's_and_b32 {sU}, {sI}, 15')
    a(f's_lshr_b32 {sHQ}, {sU}, 2'); a(f's_lshl_b32 s90, {sG}, 2'); a(f's_add_u32 {sHQ}, {sHQ}, s90')
    a(f's_and_b32 {sJ}, {sU}, 3')
    a('s_waitcnt lgkmcnt(0)')
    srd(a, 24, 80, 8 * 1024 * 2)
    srd(a, 8, 82, 8 << 20); srd(a, 12, 84, 8 << 20); srd(a, 16, 86, 8 << 20); srd(a, 20, 88, 8 << 20)
    a(f's_lshl_b32 s90, {sW}, 21'); a(f's_lshl_b32 s91, {sHQ}, 8'); a(f's_add_u32 s90, s90, s91')
    a(f's_lshr_b32 s91, {sJ}, 1'); a('s_lshl_b32 s91, s91, 7'); a(f's_add_u32 s90, s90, s91')
    lane_expr(a, 'v180', [(3, 3, 8192), (0, 3, 16)], sadd=['s90'])
    a('v_xor_b32 v185, 128, v180')
    a(f's_lshl_b32 s90, {sG}, 2'); a(f's_add_u32 s90, s90, {sW}'); a('s_lshl_b32 s90, s90, 18'); a(f's_lshl_b32 s91, {sU}, 7'); a('s_add_u32 s90, s90, s91')
    lane_expr(a, 'v181', [(3, 3, 2048), (0, 3, 16)], sadd=['s90'])
    a(f's_lshl_b32 s96, {sW}, 15')
    a(f's_and_b32 s91, {sJ}, 1'); a('s_lshl_b32 s91, s91, 6'); a('s_add_u32 s91, s91, s96')
    lane_expr(a, 'v182', [(5, 1, 16 * 128), (4, 1, 8 * 128), (2, 2, 128), (0, 2, 8)], sadd=['s91'])
    a(f's_lshl_b32 s91, {sW}, 5')
    lane_expr(a, 'v183', [(4, 1, 64 * 128), (5, 1, 2 * 128), (2, 1, 8 * 128), (3, 1, 128), (0, 2, 8)], sadd=['s91'])
    a('v_add_u32 v184, 0x10000, v183')
    units = [(ks, h, m) for ks in range(4) for h in range(2) for m in (1, 2)] + [(ks, h, 0) for ks in range(4) for h in range(2)]
    def issue(u):
        for q in range(4):
            a(f's_add_u32 m0, s96, {(u % 8) * 4096 + q * 1024}')
            if u < 24:
                ks, h, m = units[u]
                a(f's_mov_b32 s90, {(64*ks + 32*h + 8*q) * 8192:#x}')
                a(f'buffer_load_dwordx4 v{185 if m == 2 else 180}, s[{8+4*m}:{11+4*m}], s90 offen {wfl} lds')
            else:
                a(f's_mov_b32 s90, {(32*(u-24) + 8*q) * 2048:#x}')
                a(f'buffer_load_dwordx4 v181, s[20:23], s90 offen {wfl} lds')
    NP = 4
    a(f's_lshl_b32 s97, {sI}, 2'); a(f's_add_u32 s97, s97, {sW}')
    a('s_lshl_b32 s98, s97, 14'); a(f's_lshl_b32 s91, {sX}, 21'); a('s_add_u32 s98, s98, s91')
    a('s_lshl_b32 s97, s97, 16'); a(f's_lshl_b32 s91, {sX}, 11'); a('s_add_u32 s97, s97, s91')
    lane_expr(a, 'v16', [(0, 4, 128), (4, 2, 8192)]); a('v_add_u32 v17, 0x8000, v16')
    a('v_lshlrev_b32 v18, 7, v0'); a('v_add_u32 v19, 0x2000, v18')
    def touch(m):
        if not wtouch: return
        for q in range(2):
            if m < 3: a(f'buffer_load_dword v{20+2*m+q}, v{16+q}, s[{8+4*m}:{11+4*m}], s97 offen')
            else: a(f'buffer_load_dword v{20+2*m+q}, v{18+q}, s[20:23], s98 offen')
    touch(1); touch(2)
    POLOFF = D_POL if fused else 32
    a(f's_lshl_b32 s58, {sX}, 5'); a(f's_add_u32 s58, s58, {sI}')
    if fused:
        exp_st = 'sc1'
        a(f's_lshl_b32 s59, {sW}, 19'); a(f's_add_u32 s59, s59, {RING:#x}')
        a('s_lshl_b32 s90, s58, 11'); a('s_add_u32 s90, s90, s59')
        a('s_mul_i32 s91, s58, 3072'); a('s_add_u32 s91, s91, s59'); a(f's_add_u32 s91, s91, {RING2-RING:#x}')
        a('v_lshlrev_b32 v6, 4, v0')
        for r in range(4): a(f'v_mov_b32 v{8+r}, -1'); a(f'v_mov_b32 v{12+r}, 0')
        for q in range(2): a(f'buffer_store_dwordx4 v[8:11], v6, {SW}, s90 offen offset:{1024*q} sc1')
        for q in range(3): a(f'buffer_store_dwordx4 v[8:11], v6, {SW}, s91 offen offset:{1024*q} sc1')
    a(f's_lshl_b32 s58, s58, 2'); a(f's_add_u32 s58, s58, {sW}')
    if fused:
        lz = a.newlabel('L_nz')
        a(f's_cmp_ge_u32 s58, {CNT_BYTES // 1024}'); a(f's_cbranch_scc1 {lz}')
        a('s_lshl_b32 s90, s58, 10'); a(f's_add_u32 s90, s90, {CNT:#x}')
        a(f'buffer_store_dwordx4 v[12:15], v6, {SW}, s90 offen sc1')
        a.label(lz)
    if pol is None:
        lp = a.newlabel('L_np')
        a('s_cmp_lg_u32 s58, 3'); a(f's_cbranch_scc1 {lp}')
        lane_expr(a, 'v6', [(0, 1, 8192), (1, 1, 4096 + 256), (2, 2, 0x14000 + 512)], const=RING + 256 * KB)
        a('v_mov_b32 v7, -1')
        a('s_mov_b64 exec, 0xffff')
        a(f'buffer_store_dword v7, v6, {SW}, 0 offen sc1')
        a('s_mov_b64 exec, -1')
        a('s_waitcnt vmcnt(0)')
        a.label(lp)
    for u in range(8): issue(u)
    if cut == 2: a('s_waitcnt vmcnt(0)'); a('s_endpgm')
    if pol is None:
        lp = a.newlabel('L_np')
        a('s_cmp_lg_u32 s58, 3'); a(f's_cbranch_scc1 {lp}')
        a(f's_add_u32 s92, s94, {RING + 256 * KB:#x}'); a('s_addc_u32 s93, s95, 0')
        a('s_mov_b32 s62, -1'); a('s_mov_b32 s63, -1')
        for k in range(NP):
            for pp in range(2):
                a('s_memtime s[56:57]'); a('s_waitcnt lgkmcnt(0)')
                a(f's_load_dword s60, s[92:93], {pp*8192 + (k&1)*(4096+256) + (k>>1)*(0x14000+512):#x}'); a('s_waitcnt lgkmcnt(0)')
                a('s_memtime s[58:59]'); a('s_waitcnt lgkmcnt(0)')
                a('s_sub_u32 s58, s58, s56'); a(f's_min_u32 s{62+pp}, s{62+pp}, s58')
        a('s_cmp_lt_u32 s63, s62'); a('s_cselect_b32 s60, 2, 1')
        a('v_mov_b32 v6, s60'); a('v_mov_b32 v7, s62'); a('v_mov_b32 v8, s63'); a('v_mov_b32 v9, 0')
        a('s_mov_b64 exec, 1')
        a(f'buffer_store_dword v6, v9, s[28:31], 0 offen offset:{POLOFF} sc1' if fused else 'buffer_store_dwordx3 v[6:8], v9, s[28:31], 0 offen offset:32 sc1')
        a('s_mov_b64 exec, -1')
        a.label(lp)
    a(f's_lshl_b32 s90, {sI}, 2'); a(f's_add_u32 s90, s90, {sW}')
    a('s_lshr_b32 s91, s90, 3'); a('s_lshl_b32 s91, s91, 14'); a('s_and_b32 s92, s90, 7'); a('s_lshl_b32 s92, s92, 10')
    a('s_add_u32 s91, s91, s92')
    lane_expr(a, aPartLd, [(0, 6, 16)], sadd=['s91'])
    a('v_lshrrev_b32 v30, 4, v0'); a(f'v_cmp_eq_u32 vcc, {sX}, v30'); a(f'v_xor_b32 v29, 0x2000, {aPartLd}')
    a(f'v_cndmask_b32 {aPartLd}, {aPartLd}, v29, vcc')
    a(f's_lshl_b32 s91, {sX}, 14'); a('s_lshl_b32 s92, s90, 7'); a('s_add_u32 s91, s91, s92')
    lane_expr(a, aMemSt, [(0, 2, 4), (2, 1, 64), (4, 1, 16), (5, 1, 32), (3, 1, OOB)], const=MEM_OFF, sadd=['s91'])
    a('s_lshr_b32 s92, s90, 1'); a('s_lshl_b32 s92, s92, 5'); a('s_and_b32 s91, s90, 1'); a('s_lshl_b32 s91, s91, 13'); a('s_add_u32 s92, s92, s91')
    lane_expr(a, 'v30', [(2, 1, 2 * 2048), (4, 1, 2048), (0, 2, 8), (5, 1, 4)], sadd=['s92'])
    a(f'buffer_load_dword v{GT}, v30, s[24:27], 0 offen')
    a(f's_lshl_b32 s91, {sX}, 14'); a(f's_lshl_b32 s92, {sW}, 12'); a('s_add_u32 s91, s91, s92')
    lane_expr(a, aMemLd, [(0, 6, 16)], const=MEM_OFF, sadd=['s91'])
    a(f's_mul_i32 s91, {sW}, {RW}')
    lane_expr(a, aRedW, [(0, 6, 16)], const=LDS_RED, sadd=['s91'])
    a(f's_lshl_b32 s91, {sW}, 6')
    lane_expr(a, aRR[0], [(0, 2, 16), (2, 1, 4), (3, 1, RM), (4, 2, 256)], const=LDS_RED, sadd=['s91'])
    for w in range(1, 4): a(f'v_add_u32 {aRR[w]}, {RW*w}, {aRR[0]}')
    a(f's_lshl_b32 s93, {sHQ}, 13')
    a(f's_lshl_b32 s91, {sJ}, 10'); a('s_add_u32 s91, s91, s93'); a(f's_lshl_b32 s92, {sW}, 8'); a('s_add_u32 s91, s91, s92')
    lane_expr(a, aQ0, [(0, 6, 4)], const=QKVR_OFF, sadd=['s91'])
    a(f's_lshl_b32 s91, {sHQ}, 11'); a(f's_lshl_b32 s92, {sJ}, 9'); a('s_add_u32 s59, s91, s92')
    a(f's_lshl_b32 s92, {sW}, 7'); a('s_add_u32 s91, s59, s92')
    lane_expr(a, aE0, [(0, 3, 4), (4, 2, 32), (3, 1, OOB)], const=KM + OOB, sadd=['s91'])
    a(f's_lshl_b32 s91, {sW}, 8')
    lane_expr(a, aRedRv, [(0, 1, 128), (1, 1, 8), (2, 3, 16)], const=LDS_RED + 2 * RM, sadd=['s91'])
    a(f's_lshr_b32 s92, {sJ}, 1'); a('s_xor_b32 s92, s92, 1'); a('s_lshl_b32 s92, s92, 10'); a('s_add_u32 s91, s91, s92'); a('s_add_u32 s91, s91, s93')
    a(f's_and_b32 s92, {sJ}, 1'); a('s_lshl_b32 s92, s92, 7'); a('s_add_u32 s91, s91, s92')
    lane_expr(a, aQ1, [(0, 5, 4), (5, 1, OOB)], const=QKVR_OFF + 4096, sadd=['s91'])
    a('s_sub_u32 s91, s91, s93'); a(f's_lshl_b32 s92, {sHQ}, 11'); a('s_add_u32 s91, s91, s92')
    lane_expr(a, aE1, [(0, 5, 4), (5, 1, OOB)], const=VM, sadd=['s91'])
    a(f's_lshl_b32 s97, {sG}, 2'); a(f's_add_u32 s97, s97, {sW}'); a('s_lshl_b32 s97, s97, 13')
    lane_expr(a, aQkLd, [(0, 6, 16)], const=QKVR_OFF, sadd=['s97'])
    a(f'v_add_u32 {aVLd}, 4096, {aQkLd}')
    lane_expr(a, aKx, [(0, 2, 16), (2, 1, 128), (3, 1, 4096), (4, 2, 256)], const=KX, sadd=['s97'])
    lane_expr(a, aVx0, [(0, 3, 16), (3, 1, 2048), (4, 2, 256)], const=VX, sadd=['s97'])
    a(f'v_add_u32 {aVx1}, 4096, {aVx0}')
    a(f's_lshl_b32 s91, {sU}, 9'); a('s_add_u32 s91, s91, s97')
    a(f's_add_u32 s63, s91, {KX:#x}')
    lane_expr(a, aWarm, [(0, 2, 128), (2, 1, VX - KX)], const=KX, sadd=['s91'])
    a('v_cmp_gt_u32 vcc, 8, v0'); a(f'v_mov_b32 v30, {OOB:#x}'); a(f'v_cndmask_b32 {aWarm}, v30, {aWarm}, vcc')
    a(f's_lshl_b32 s91, {sW}, 11')
    lane_expr(a, 'v30', [(2, 1, 64), (0, 1, 32), (1, 1, 16)])
    lane_expr(a, 'v29', [(4, 2, 32)])
    a('v_xor_b32 v30, v30, v29')
    lane_expr(a, aOW0, [(0, 4, 128)], const=LDS_O, sadd=['s91'])
    a(f'v_add_u32 {aOW0}, {aOW0}, v30')
    a(f'v_xor_b32 {aOW1}, 16, {aOW0}')
    lane_expr(a, 'v30', [(5, 1, 64), (1, 1, 32), (4, 1, 16)])
    lane_expr(a, 'v29', [(2, 2, 32), (0, 1, 16)])
    a('v_xor_b32 v30, v30, v29')
    lane_expr(a, aOR, [(4, 2, 256), (1, 1, 128)], const=LDS_O)
    a(f'v_add_u32 {aOR}, {aOR}, v30')
    a(f's_lshl_b32 s98, {sU}, 14'); a(f's_lshl_b32 s92, {sG}, 7'); a('s_add_u32 s98, s98, s92')
    a(f's_lshl_b32 s92, {sW}, 11'); a('s_add_u32 s91, s98, s92')
    lane_expr(a, aPartSt, [(0, 5, 4), (5, 1, 1024)], sadd=['s91'])
    a(f'v_xor_b32 {aPartStL}, 0x2000, {aPartSt}')
    a('s_mov_b32 s48, 0x33333333'); a('s_mov_b32 s49, 0x33333333')
    a('s_mov_b32 s50, 0xffff0000'); a('s_mov_b32 s51, 0xffff0000')
    a('s_mov_b32 s52, 0x0000ffff'); a('s_mov_b32 s53, 0x0000ffff')
    a(f's_mov_b32 {sGuard}, 0xfffffffe')
    a(f's_mov_b32 {sC}, {f32bits(SC):#x}')
    a('v_mov_b32 v30, 0x4444'); a('v_mov_b32 v31, 0xeeee')
    a(f'v_cndmask_b32 {vIdx}, v31, v30, {sHalf0}')
    a(f'v_mov_b32 {vNeg}, -1')
    for r in range(4): a(f'v_mov_b32 v{PM+r}, 0')
    a(f'v_mov_b32 v{PUB}, 0'); a(f'v_mov_b32 v{PUB+1}, 0')
    def lanemask(fn):
        m = 0
        for l in range(16):
            if fn(l): m |= 1 << l
        return m * 0x00010001
    mk = lanemask(lambda r: (r >> 2) & 1)
    a(f's_mov_b32 s56, {mk:#x}'); a(f's_mov_b32 s57, {mk:#x}')
    a('v_mov_b32 v30, 0x3f80'); a('v_mov_b32 v31, 1.0'); a('v_cndmask_b32 v30, v30, v31, s[56:57]')
    for q in range(4):
        mk = lanemask(lambda r: (r & 2) == 0 and q == 2 * (r >> 3) + (r & 1))
        a(f's_mov_b32 s56, {mk:#x}'); a(f's_mov_b32 s57, {mk:#x}')
        a(f'v_cndmask_b32 v{SEL+q}, 0, v30, s[56:57]')
    a(f's_mov_b32 {sStep}, 0'); a(f's_mov_b32 {sSlot}, {RING:#x}'); a(f's_mov_b32 {sRst}, {RING + 2*SLOT:#x}')
    a(f's_mov_b32 {sKV}, 0'); a(f's_mov_b32 {sKV2}, {256*KB:#x}'); a(f's_mov_b32 {sExp}, 0')

    if fused:
        a('s_waitcnt vmcnt(33)'); a('s_barrier'); signal(a, D_INIT, soff=sMode4)
    for u in range(24):
        a(f's_waitcnt vmcnt({4 * (min(u + 7, 27) - u)})')
        if u in (8, 16, 23) and rt: a(f's_memrealtime s[{64 + 2*(u//8 + (u == 23))}:{65 + 2*(u//8 + (u == 23))}]')
        ks, h, m = units[u]
        for t1 in range(2):
            for rl in range(2):
                d = ks * 48 + (2*m + t1) * 8 + 4*h + 2*rl
                a(f'ds_read_b64_tr_b16 {ar(d,2)}, v182 offset:{(u % 8) * 4096 + rl*512 + t1*32}')
        if u + 8 < 28:
            a('s_waitcnt lgkmcnt(0)')
            issue(u + 8)
            if wtouch and u == wtouch[0]: touch(0)
            if wtouch and u == wtouch[1]: touch(3)
    if fused: verify(a, want_pol=(pol is None), kv=True)
    a('s_waitcnt vmcnt(0)'); a('s_barrier')
    for kk in range(8):
        for rp in range(4):
            hd = kk >> 1
            off = (16*(rp & 1) + 32*(kk & 1) + 4*(rp >> 1)) * 128 + (hd & 1) * 32768
            a(f'ds_read_b64_tr_b16 {ar(192 + kk*8 + 2*rp, 2)}, {"v183" if hd < 2 else "v184"} offset:{off}')
        if kk & 1: a('s_waitcnt lgkmcnt(0)')
    a('s_barrier')
    a(f's_mov_b32 {sSpin}, 0')
    if cut == 3: a('s_endpgm')
    rts(2)
    if rt:
        a('v_mov_b32 v32, s66'); a('v_mov_b32 v33, s68'); a('v_mov_b32 v34, s70'); a('s_mov_b64 exec, 1')
        a(f'buffer_store_dwordx3 v[32:34], v28, {SW}, s62 offen offset:12'); a('s_mov_b64 exec, -1')
    if fused:
        if pol is not None: a(f's_mov_b32 {sPol}, {pol*8192}')
    elif pol is None:
        a('v_mov_b32 v30, 0')
        a.label('L_polwait')
        a('buffer_load_dword v31, v30, s[28:31], 0 offen offset:32 sc1')
        a('s_waitcnt vmcnt(0)')
        a(f'v_readfirstlane_b32 {sPol}, v31')
        spin_guard(a)
        a(f's_cmp_eq_u32 {sPol}, 0'); a('s_cbranch_scc1 L_polwait')
        a(f's_sub_u32 {sPol}, {sPol}, 1'); a(f's_and_b32 {sPol}, {sPol}, 1'); a(f's_lshl_b32 {sPol}, {sPol}, 13')
    else:
        a(f's_mov_b32 {sPol}, {pol*8192}')
    for r_ in (aPartLd, aPartSt, aPartStL): a(f'v_xor_b32 {r_}, {sPol}, {r_}')
    a('s_mov_b32 s12, s63')
    for r in range(8): a(f'v_mov_b32 v{ONES+r}, 0x3f803f80')
    pv = [f'buffer_load_dwordx4 {vr(VL + 4*td, 4)}, {aVx0 if td < 4 else aVx1}, {SW}, {sKV} offen offset:{((td>>1)&1)*1024 + (td&1)*128}' for td in range(8)]
    pk = [f'buffer_load_dwordx4 {vr(KXR + 16*tt + 4*ks, 4)}, {aKx}, {SW}, {sKV} offen offset:{ks*1024 + tt*64}' for ks in range(4) for tt in range(2)]
    spread = [f'v_mov_b32 v{VB + 8*(td>>1) + 2*q + (td&1)}, v{VL + 4*td + q}' for td in range(8) for q in range(4)]
    def zl(b, n): return [f'v_mov_b64 {vr(b+r, 2)}, 0' for r in range(0, n, 2)]
    def emit(l):
        for x in l: a(x)
    def shadow(ms, fs):
        fs = list(fs)
        for x in ms:
            a(x)
            if fs:
                f = fs.pop(0)
                emit(f if isinstance(f, list) else [f])
        for f in fs: emit(f if isinstance(f, list) else [f])
    if fused:
        if sweep:
            a('s_load_dwordx2 s[80:81], s[0:1], 0'); a('s_load_dwordx4 s[84:87], s[0:1], 56'); a('s_load_dwordx2 s[88:89], s[0:1], 72')
            a(f's_lshl_b32 s90, {sX}, 5'); a(f's_add_u32 s90, s90, {sI}'); a('s_lshl_b32 s90, s90, 2'); a(f's_add_u32 s90, s90, {sW}')
            a('s_lshl_b32 s90, s90, 13'); a(f's_add_u32 s91, s90, {4*MB}')
            a('v_lshlrev_b32 v30, 7, v0')
            a('s_waitcnt lgkmcnt(0)')
            for n, (base, size, so) in enumerate(((80, 4, 's90'), (84, 4, 's90'), (86, 6, 's90'), (86, 6, 's91'), (88, 2, 's90'))):
                srd(a, 8, base, size * MB)
                a(f'buffer_load_dword v{MA+n}, v30, s[8:11], {so} offen')
        a(f's_cmp_lg_u32 {sW}, 0'); a('s_cbranch_scc1 L_kv0d')
        a(f's_lshl_b32 s90, {sX}, 7'); a(f's_add_u32 s90, s90, {CNT + C_KV:#x}'); a('v_mov_b32 v30, s90')
        a.label('L_kv0')
        a(f'buffer_load_dword v31, v30, {SW}, 0 offen sc1'); a('s_waitcnt vmcnt(0)')
        a('v_readfirstlane_b32 s90, v31')
        spin_guard(a)
        a('s_sleep 2')
        a(f's_cmp_lt_u32 s90, {kvneed}'); a('s_cbranch_scc1 L_kv0')
        a.label('L_kv0d')
        a('s_barrier')
        rts(3)
    emit(pv); emit(pk)
    a(f's_add_u32 {sKV}, {sKV}, {256*KB:#x}')
    emit(zl(QA, 24)); emit(zl(WACC, 4)); emit(zl(OB_, 20))
    a('s_waitcnt vmcnt(0)')
    if no_pf: pv = []; pk = []
    pA, pB = pv[:nA], pk[:nB]
    rest = pv[nA:] + pk[nB:]
    pC, pD = rest[:npre], rest[npre:]
    nvD = len([x for x in pD if x in pv])
    a(f'v_min_u32 v{GT}, {sGuard}, v{GT}')
    if cut == 4: a('s_endpgm')
    if fused:
        a(f's_lshl_b32 s90, {sX}, 7'); a(f's_add_u32 s90, s90, {CNT + C_KV:#x}'); a('v_mov_b32 v244, s90')
        a(f's_lshl_b32 s90, {sI}, 2'); a(f's_add_u32 s90, s90, {sW}')
        a(f's_lshl_b32 s91, {sX}, 7'); a(f's_add_u32 s91, s91, {CNT + C_PROG:#x}')
        a('v_mbcnt_lo_u32_b32 v30, -1, 0'); a('v_mbcnt_hi_u32_b32 v30, -1, v30'); a('v_add_u32 v30, s90, v30')
        a('v_cmp_eq_u32 vcc, 0, v30'); a(f'v_mov_b32 v30, {OOB:#x}'); a('v_mov_b32 v31, s91'); a('v_cndmask_b32 v245, v30, v31, vcc')
    if warm >= 2: a('s_mov_b64 s[8:9], s[94:95]'); a('s_mov_b64 s[10:11], s[94:95]')
    st.init()
    a('s_branch L_pubmem')
    exps = [f'buffer_store_dword v{PUB}, {aE0}, {SW}, {sExp} offen {exp_st}', f'buffer_store_dword v{PUB+1}, {aE1}, {SW}, {sExp} offen {exp_st}']
    def exports(): emit(exps)
    vFlag, vZero, aProg, vProg = 'v243', 'v244', 'v245', 'v246'
    flagld = f'buffer_load_dword {vFlag}, {vZero}, {SW}, s92 offen sc1'

    a.label('L_step')
    sw_ = [f's_load_dword s{16+(n&7)}, s[{8+2*(n&1)}:{9+2*(n&1)}], {64*(n>>1)}' for n in range(16)]
    def swbase():
        a(f's_add_u32 s8, s94, {sKV2}'); a('s_addc_u32 s9, s95, 0'); a('s_add_u32 s8, s8, s12'); a('s_addc_u32 s9, s9, 0')
        a(f's_add_u32 s10, s8, {VX - KX:#x}'); a('s_addc_u32 s11, s9, 0')
    if warm >= 2: emit(sw_[wsp[0]:wsp[0]+wsp[1]])
    emit(pC)
    emit(zl(QA, 24) + zl(WACC, 4))
    a.nop(dg)
    gl = f'buffer_load_dwordx4 {vr(GL, 4)}, {aPartLd}, {SW}, {sPrev} offen sc1'
    st('G issue', True)
    a(gl)
    lrs = [f'buffer_store_dword {vNeg}, {ad_}, {SW}, s13 offen {local_st}' for ad_ in (aPartStL, aMemSt, aQ0, aQ1)] if lr else []
    post = pD + ([] if (no_exp or fused) else exps) + lrs
    emit(post)
    if 'fixkv' not in xo: a(f's_add_u32 {sKV}, {sKV}, {256*KB:#x}'); a(f's_min_u32 {sKV}, {sKV}, {63*256*KB:#x}')
    a(f's_add_u32 {sExp}, {sExp}, {64*KB:#x}')
    if fused:
        a(f's_waitcnt vmcnt({len(pC) + len(post) + (1 if spos else 3)})')
        a.label('L_kv_chk')
        a(f'v_readfirstlane_b32 s90, {vFlag}')
        a(f's_cmp_lt_u32 s90, {kvneed}'); a('s_cbranch_scc1 L_kv_f')
        cold.label('L_kv_f')
        cold('s_sleep 8'); cold(flagld); spin_guard(cold); cold('s_waitcnt vmcnt(0)'); cold('s_branch L_kv_chk')
    a(f's_waitcnt vmcnt({len(post)})')
    a.label('L_g_chk')
    emit(chk(GL))
    a(f'v_mfma_f32_16x16x32_bf16 {vr(GD,4)}, {vr(SEL,4)}, {vr(GL,4)}, 0')
    a('s_cbranch_vccnz L_g_f')
    cold.label('L_g_f')
    cold('s_mov_b64 exec, vcc'); cold(gl); cold('s_mov_b64 exec, -1')
    spin_guard(cold); cold(f's_waitcnt vmcnt({gthr})'); cold('s_branch L_g_chk')
    st('G wait')
    h = GT
    a(f'v_add_f32_dpp v{h+1}, v{GD}, v{GD} row_ror:8 row_mask:0xf bank_mask:0xf')
    a(f'v_add_f32_dpp v{h+2}, v{GD+1}, v{GD+1} row_ror:8 row_mask:0xf bank_mask:0xf')
    a(f'v_cvt_pk_bf16_f32 v{h}, v{h+1}, v{h+2}')
    a(f'v_min_u32 v{h}, {sGuard}, v{h}')
    a.label('L_pubmem')
    a(f'buffer_store_dword v{h}, {aMemSt}, {SW}, {sSlot} offen {local_st}')
    st('M pub', True)
    if warm >= 2: emit(sw_[wsp[0]+wsp[1]:])
    ml = [f'buffer_load_dwordx4 {vr(MA + 4*k, 4)}, {aMemLd}, {SW}, {sSlot} offen offset:{1024*k} sc1' for k in range(4)]
    if nvD: a(f's_waitcnt vmcnt({min(len(post) - nvD, gthr) + 1 if gthr else len(post) - nvD + 1})')
    fill = list(spread)
    emit(fill[:f1]); fill = fill[f1:]
    a.nop(d1)
    for k in range(4):
        a(ml[k]); emit(fill[:2]); fill = fill[2:]
    emit(fill)
    st('G red')
    sm = lambda t, ks: f'v_smfmac_f32_16x16x64_bf16 {vr(QA + 4*t, 4)}, {vr(MA + 4*ks, 4)}, {ar(ks*48 + t*8, 8)}, {vIdx}'
    gather(a, cold, 'm', ml, [MA + 4*k for k in range(4)], [[sm(t, ks) for t in range(4 if defv else 6)] for ks in range(4)], thr=thr, per=mper)
    st('QK')
    for t in range(4 if defv else 6):
        a(f'v_pk_add_f32 {vr(RD + 2*t, 2)}, {vr(QA + 4*t, 2)}, {vr(QA + 4*t + 2, 2)}')
        if t & 1: a(f'ds_write_b128 {aRedW}, {vr(RD + 2*t - 2, 4)} offset:{(t>>1)*RM}')
    xl = [f'buffer_load_dwordx4 {vr(XR + 4*k, 4)}, {aQkLd}, {SW}, {sSlot} offen offset:{1024*k} sc1' for k in range(4)]
    vl = [f'buffer_load_dwordx4 {vr(VMR + 4*k, 4)}, {aVLd}, {SW}, {sSlot} offen offset:{1024*k} sc1' for k in range(2)]
    def red_pub(L, dst, addr, n):
        a(f's_waitcnt lgkmcnt({n+2})')
        a(f'v_pk_add_f32 {vr(L,2)}, {vr(L,2)}, {vr(L+2,2)}')
        a(f's_waitcnt lgkmcnt({n})')
        a(f'v_pk_add_f32 {vr(L+4,2)}, {vr(L+4,2)}, {vr(L+6,2)}')
        a(f'v_pk_add_f32 {vr(L,2)}, {vr(L,2)}, {vr(L+4,2)}')
        a(f'v_cvt_pk_bf16_f32 v{dst}, v{L}, v{L+1}')
        a(f'v_min_u32 v{dst}, {sGuard}, v{dst}')
        a(f'buffer_store_dword v{dst}, {addr}, {SW}, {sSlot} offen {local_st}')
    adv1 = [f's_mov_b32 {sPrev}, {sSlot}', f's_add_u32 s90, {sStep}, 1', 's_and_b32 s90, s90, 3', 's_lshl_b32 s90, s90, 19', f's_add_u32 s91, s90, {RING:#x}',
            f's_add_u32 {sKV2}, {sKV2}, {256*KB:#x}', f's_min_u32 {sKV2}, {sKV2}, {63*256*KB:#x}', 's_nop 0']
    z32 = lambda b, n: [f'v_mov_b32 v{b+r}, 0' for r in range(n)]
    qr = [f'ds_read2_b32 {vr(LR + 2*w, 2)}, {aRR[w]} offset0:0 offset1:2' for w in range(4)]
    vrd = [f'ds_read_b64 {vr(RD + 2*w, 2)}, {aRedRv} offset:{RW*w}' for w in range(4)]
    if not defv:
        emit(pA)
        emit(zl(SA, 12))
        a('s_waitcnt lgkmcnt(0)'); a('s_barrier')
        emit(qr); emit(vrd)
        emit(zl(OB_, zsh))
        red_pub(LR, PUB, aQ0, 4)
        red_pub(RD, PUB + 1, aQ1, 0)
        st('Q pub', True)
        emit(zl(OB_ + zsh, 20 - zsh))
        a.nop(d2)
        for k in range(4):
            a(xl[k]); emit(adv1[2*k:2*k+2])
    else:
        vs = [sm(t, ks) for ks in range(4) for t in (4, 5)]
        zz = z32(SA, 12)
        pA2 = pA[nv1:]; pA = pA[:nv1]
        if defv == 3 or zlate: zz = []
        shadow(vs[:nv1], [[pA[k]] + zz[k:k+1] if k < len(pA) else zz[k:k+1] for k in range(nv1)])
        a('s_waitcnt lgkmcnt(0)'); a('s_barrier')
        emit(qr)
        shadow(vs[nv1:nv1+nv2], [[x] for x in zz[nv1:nv1+nv2]])
        emit(zz[nv1+nv2:])
        red_pub(LR, PUB, aQ0, 0)
        st('Q pub', True)
        shadow(vs[nv1+nv2:], pA2)
        if defv == 3 or zlate: emit(zl(SA, 12))
        for t in (4, 5): a(f'v_pk_add_f32 {vr(RD + 2*t, 2)}, {vr(QA + 4*t, 2)}, {vr(QA + 4*t + 2, 2)}')
        a(f'ds_write_b128 {aRedW}, {vr(RD + 8, 4)} offset:{2*RM}')
        if defv != 3: emit(zl(OB_, 20))
        a.nop(d2)
        if defv == 3:
            for k in range(4):
                a(xl[k]); emit(adv1[2*k:2*k+2])
            a('s_waitcnt lgkmcnt(0)'); a('s_barrier')
            emit(vrd)
            emit(zl(OB_, 20))
            red_pub(RD, PUB + 1, aQ1, 0)
        elif defv == 1:
            a('s_waitcnt lgkmcnt(0)'); a('s_barrier')
            for k in range(4):
                a(vrd[k]); a(xl[k]); emit(adv1[2*k:2*k+2])
            red_pub(RD, PUB + 1, aQ1, 0)
        else:
            a('s_waitcnt lgkmcnt(0)'); a('s_barrier')
            emit(vrd); emit(adv1)
            red_pub(RD, PUB + 1, aQ1, 0)
            for k in range(4):
                a(xl[k]); a('s_nop 1')
    if vat < 0: emit(vl)
    if warm >= 2:
        swbase(); emit(sw_[:wsp[0]])
    st('QK red')
    a(f's_cmp_eq_u32 {sStep}, {nsteps-1}'); a('s_cbranch_scc1 L_last')
    def sc(ks):
        X = vr(XR + 4*ks, 4)
        return [f'v_mfma_f32_16x16x32_bf16 {vr(SA + 4*tt, 4)}, {vr(KXR + 16*tt + 4*ks, 4) if tt < 2 else X}, {X}, {vr(SA + 4*tt, 4)}' for tt in (2, 0, 1)]
    gather(a, cold, 'x', xl, [XR + 4*k for k in range(4)], [sc(k) for k in range(4)], thr=thr, extra=(2 if vat < 0 else 0) + (1 if defv in (1, 3) else 0), per=xper)
    st('scores')
    if vat == 0: emit(vl)
    dq = lambda p: f'quad_perm:[{p}] row_mask:0xf bank_mask:0xf'
    m, t2, mz = f'v{T}', f'v{T+1}', f'v{T+2}'
    z0, z1 = SA + 10, SA + 11
    a(f's_mov_b64 vcc, {sHalf0}')
    a(f'v_max_f32 {mz}, v{z0}, v{z1}')
    for r in range(4): a(f'v_cndmask_b32_dpp v{YY+r}, v{SA+4+r}, v{SA+r}, vcc {dq("0,1,0,1")}')
    a(f'v_max3_f32 {t2}, v{YY}, v{YY+1}, v{YY+2}')
    a(f'v_max_f32_dpp {m}, {mz}, v{YY+3} {dq("0,1,0,1")}')
    a(f'v_max_f32 {t2}, {t2}, {m}')
    a(f'v_max_f32_dpp {m}, {t2}, {t2} {dq("2,3,0,1")}')
    for n_, sw in enumerate(('v_permlane32_swap_b32', 'v_permlane16_swap_b32')):
        a(f'v_mov_b32 {t2}, {m}')
        if vat == n_ + 1: emit(vl)
        a(f'{sw} {m}, {t2}')
        a(f'v_max_f32 {m}, {m}, {t2}')
    a(f'v_mul_f32 {m}, {sC}, {m}')
    sv = [YY, YY+1, YY+2, YY+3, z0, z1]
    for x in sv: a(f'v_fma_f32 v{x}, v{x}, {sC}, -{m}')
    for x in sv[:4]: a(f'v_exp_f32 v{x}, v{x}')
    a(f'v_cvt_pk_bf16_f32 v{CT}, v{YY}, v{YY+1}')
    a(f'v_cvt_pk_bf16_f32 v{CT+1}, v{YY+2}, v{YY+3}')
    a(f'v_exp_f32 v{z0}, v{z0}')
    a(f'v_mov_b32_dpp v{PA}, v{CT} {dq("0,1,0,1")}')
    a(f'v_mov_b32_dpp v{PA+2}, v{CT} {dq("2,3,2,3")}')
    a(f'v_mov_b32_dpp v{PA+1}, v{CT+1} {dq("0,1,0,1")}')
    a(f'v_mov_b32_dpp v{PA+3}, v{CT+1} {dq("2,3,2,3")}')
    a(f'v_exp_f32 v{z1}, v{z1}')
    st('softmax')
    P = vr(PA, 4)
    xs = lambda d, b: f'v_smfmac_f32_16x16x64_bf16 {vr(d,4)}, {P}, {vr(b,8)}, {vIdx}'
    ms = lambda d, j, b: f'v_smfmac_f32_16x16x32_bf16 {vr(d,4)}, {vr(PM + 2*(j&1), 2)}, {vr(b,4)}, {vIdx}'
    rs = T
    wl = [f'buffer_load_dword v0, {aWarm}, {SW}, {sKV2} offen'] if (warm == 1 and (not no_pf or 'keepwarm' in xo)) else []
    rsts = [f'buffer_store_dword {vNeg}, {aPartSt}, {SW}, {sRst} offen sc1', f'buffer_store_dword {vNeg}, {aPartStL}, {SW}, {sRst} offen {local_st}',
            f'buffer_store_dword {vNeg}, {aMemSt}, {SW}, {sRst} offen {local_st}', f'buffer_store_dword {vNeg}, {aQ0}, {SW}, {sRst} offen {local_st}',
            f'buffer_store_dword {vNeg}, {aQ1}, {SW}, {sRst} offen {local_st}']
    ck = chk(VMR, 8)
    g1 = lambda k: pB[k:k+1]
    slow = wl + rsts[:1]
    late = pB[4:] + (rsts[1:] if not lr else [])
    if allafter: slow, late = slow + late, []
    if fused:
        pre = [f's_add_u32 s92, {sStep}, 3', 's_min_u32 s92, s92, 63', f's_lshr_b32 s92, s92, 2', 's_lshl_b32 s92, s92, 9',
               f'v_mov_b32 {vProg}, {sStep}']
        e_ = [] if no_exp else ([x.replace(' sc1', '') for x in exps] if 'plainexp' in xo else exps)
        slow = slow + e_ + [f'buffer_store_dword {vProg}, {aProg}, {SW}, 0 offen sc1', flagld]
    shadow([xs(OSUM, ONES), xs(OT(0), VB), xs(OT(1), VB + 8), xs(OT(2), VB + 16)],
           [[f'v_cvt_pk_bf16_f32 v{CT+2}, v{z0}, v{z1}'] + g1(0),
            g1(1) + [f'v_mov_b32_dpp v{PM}, v{CT+2} {dq("0,1,0,1")}'],
            g1(2) + [f'v_mov_b32_dpp v{PM+3}, v{CT+2} {dq("0,1,0,1")}'],
            g1(3) + [f's_waitcnt vmcnt({len(pB[:4])})'] + ck[0:2]])
    shadow([ms(OSUM, 0, ONES), xs(OT(3), VB + 24)], [ck[2:5]])
    a('s_cbranch_vccnz L_v_f')
    a.label('L_v_ok')
    cold.label('L_v_f')
    for x in vl: cold(x)
    spin_guard(cold); cold('s_waitcnt vmcnt(0)')
    for x in ck: cold(x)
    cold('s_cbranch_vccnz L_v_f'); cold('s_branch L_v_ok')
    st('V wait')
    shadow([ms(OT(j), j, VMR + 4*(j>>1)) for j in range(4)],
           [late[0:2], late[2:3] + [f'v_rcp_f32 v{rs}, v{OSUM}'], late[3:4] + [f'v_rcp_f32 v{rs+1}, v{OSUM+1}'], late[4:]])
    for j in range(4):
        o = OT(j)
        a(f'v_pk_mul_f32 {vr(o,2)}, {vr(o,2)}, {vr(rs,2)}')
        a(f'v_pk_mul_f32 {vr(o+2,2)}, {vr(o+2,2)}, {vr(rs,2)}')
        for par in range(2):
            a(f'v_cvt_pk_bf16_f32 v{ET + 4*par + j}, v{o+par}, v{o+2+par}')
        if ow2 and (j & 1):
            a(f'ds_write_b64 {aOW0}, {vr(ET + j - 1, 2)} offset:{4*(j-1)}')
            a(f'ds_write_b64 {aOW1}, {vr(ET + 4 + j - 1, 2)} offset:{4*(j-1)}')
    if not ow2:
        a(f'ds_write_b128 {aOW0}, {vr(ET,4)}')
        a(f'ds_write_b128 {aOW1}, {vr(ET+4,4)}')
    st('O write', True)
    if fused: emit(pre)
    adv2 = [f's_add_u32 {sStep}, {sStep}, 1', f's_mov_b32 {sSlot}, s91', f's_xor_b32 {sRst}, s91, {2*SLOT:#x}']
    a('s_waitcnt lgkmcnt(0)'); a('s_barrier')
    st('PV')
    rd = [f'ds_read_b128 {vr(WA + 4*kk, 4)}, {aOR} offset:{1024*kk}' for kk in range(8)]
    emit(rd[:nr0])
    moved = [x.replace(sRst, 's13') for x in slow[len(slow)-spos:]] if spos else []
    if spos: slow = slow[:len(slow)-spos]
    if spos or lr: adv2 = [f's_mov_b32 s13, {sRst}'] + adv2
    emit(slow[:2]); slow = slow[2:] + adv2
    for kk in range(8):
        issued = min(8, nr0 + kk)
        a(f's_waitcnt lgkmcnt({issued - 1 - kk})')
        a(f'v_smfmac_f32_16x16x64_bf16 {vr(WACC,4)}, {vr(WA + 4*kk, 4)}, {ar(192 + 8*kk, 8)}, {vIdx}')
        emit(rd[nr0+kk:nr0+kk+1])
        emit(slow[kk:kk+1])
    emit(slow[8:])
    a(f'v_pk_add_f32 {vr(T,2)}, {vr(WACC,2)}, {vr(WACC+2,2)}')
    a(f'v_cvt_pk_bf16_f32 v{T}, v{T}, v{T+1}')
    a(f'v_min_u32 v{T}, {sGuard}, v{T}')
    a(f'buffer_store_dword v{T}, {aPartSt}, {SW}, {sPrev} offen sc1')
    a(f'buffer_store_dword v{T}, {aPartStL}, {SW}, {sPrev} offen {local_st}')
    emit(moved)
    st('tail')
    if rt == 2:
        a('s_memrealtime s[60:61]'); a('s_waitcnt lgkmcnt(0)')
        a(f's_lshl_b32 s62, {sStep}, 2'); a(f's_lshl_b32 s61, {sX}, 12'); a('s_add_u32 s62, s62, s61'); a(f's_add_u32 s62, s62, {2*MB:#x}')
        a(f'v_mov_b32 v30, s60')
        a(f'buffer_store_dword v30, {aProg}, {SW}, s62 offen')
    if nsteps > 64 and stamps != 4:
        a(f's_min_u32 {sExp}, {sExp}, {62*64*KB:#x}')
        a(f's_cmp_eq_u32 {sStep}, {nsteps-64}')
        for k in range(12): a(f's_cselect_b32 s{64+k}, 0, s{64+k}')
        a(f's_cselect_b32 {sSpin}, 0, {sSpin}')
    a('s_branch L_step')
    a.label('L_last')
    rts(4)
    exports()
    if stamps:
        a(f's_lshl_b32 s90, {sX}, 5'); a(f's_add_u32 s90, s90, {sI}'); a('s_lshl_b32 s90, s90, 2'); a(f's_add_u32 s90, s90, {sW}')
        a('s_lshl_b32 s90, s90, 6'); a(f's_add_u32 s90, s90, {STAMP:#x}')
        if stamps != 4: a(f's_mov_b32 s79, {sSpin}')
        st.calib(78)
        a('v_mov_b32 v30, 0')
        a('s_mov_b64 exec, 1')
        for k in range(16):
            a(f'v_mov_b32 v31, s{64+k if stamps != 4 else (64+2*k if k < 12 else 84+k)}')
            a(f'buffer_store_dword v31, v30, {SW}, s90 offen offset:{4*k}')
        a('s_mov_b64 exec, -1')
    a('s_waitcnt vmcnt(0)')
    if fused:
        a('s_barrier'); a(f's_lshl_b32 s90, {sG}, 7'); a(f's_add_u32 s90, s90, {CNT + C_FIN:#x}'); signal(a, 0, soff='s90', srd_=SW); a('s_waitcnt vmcnt(0)')
    a(f's_branch {exit_label}')
    a.ins += cold.ins
    a.label('L_rec_abort')
    a('s_waitcnt vmcnt(0)')
    a('s_endpgm')
    return st.names

def gen_rec_kernel(name='rec_kernel', **kw):
    a = Asm()
    a('s_load_dwordx4 s[92:95], s[0:1], 88')
    a('s_cmp_ge_u32 s2, 256'); a('s_cbranch_scc1 L_rec_exit')
    a(f's_getreg_b32 {sX}, hwreg(HW_REG_XCC_ID, 0, 4)')
    a(f's_cmp_ge_u32 {sX}, 4'); a('s_cbranch_scc1 L_rec_exit')
    a('s_waitcnt lgkmcnt(0)')
    srd(a, 4, 94, WS_BYTES); srd(a, 28, 92, 256)
    a('v_cmp_eq_u32 vcc, 0, v0')
    a('s_and_saveexec_b64 s[96:97], vcc')
    a('s_cbranch_execz L_tk')
    a(f's_lshl_b32 s90, {sX}, 6')
    a('v_mov_b32 v1, 1'); a('v_mov_b32 v2, 0')
    a('buffer_atomic_add v1, v2, s[28:31], s90 offen sc0 sc1')
    a('s_waitcnt vmcnt(0)')
    a('ds_write_b32 v2, v1')
    a('s_waitcnt lgkmcnt(0)')
    a.label('L_tk')
    a('s_mov_b64 exec, s[96:97]')
    a('s_barrier')
    a('v_mov_b32 v2, 0')
    a('ds_read_b32 v1, v2')
    a('s_waitcnt lgkmcnt(0)')
    a(f'v_readfirstlane_b32 {sI}, v1')
    a('s_barrier')
    a(f's_cmp_ge_u32 {sI}, 32'); a('s_cbranch_scc1 L_rec_exit')
    names = gen_rec(a, **kw)
    a.label('L_rec_exit')
    a('s_endpgm')
    a.fix_hazards()
    return a, names
```

```python
import sys, os
sys.path.insert(0, os.path.dirname(os.path.abspath(__file__)))
from asmgen import *
from layout import *
import rec, gemm, attn
from rec import srd, lane_expr, signal, verify, sX, sI, SPIN_MAX, sMode4, sBit, vClaim, LDS_X
sSpin = 's3'
from gemm import *
from build import kd, NAME
WS = 's[4:7]'
DBG = 's[28:31]'
K_AQ, K_AK, K_AV, K_BQKV, K_ATB, K_BO, K_ATA, K_AO, K_AOS, K_SK, K_SV, K_ATA4, K_SWP, K_AOF = range(14)
NSMALL = 2
NSWP = 4
USE_AOF = 0
FINE0 = 12
SPLIT0 = 13
def ent(kind, p, q=0): return kind | (p << 8) | (q << 16)

SIM = dict(go=21.0, step=2.17, skv1=18.0, skv2=10.0, big=23.5, atb=4.5, bo=8.5, ata=3.5, ao=25.0, aos=9.5, margin=0.0, kvlead=8.0, bstart=50.0, ata4=11.0, swp=18.0, gap=0.2, lat=3.0, early=4.0, plan='S48 K16 S16 W4 Q12 K16 Q4 B12 Q16 T4 B12 K16', aof=5.0, aob=(7,), look=3.0, earlyA=1.0)
def task_list(verbose=False, **over):
    import heapq
    P = dict(SIM); P.update(over)
    kv = lambda rb: [ent(k, rb, c) for c in range(4) for k in (K_AK, K_AV)]
    sm = lambda hb: [ent(k, hb, c) for c in range(8) for k in (K_SK, K_SV)]
    first = sm(0) + sm(1) + sm(2) + kv(2) + sm(3)
    KVq = [e for rb in range(3, 8) for e in kv(rb)]
    Qq = [ent(K_AQ, rb, c) for rb in range(8) for c in range(4)]
    Bq = [ent(K_BQKV, rb, c) for rb in range(8) for c in range(3)]
    TBq = [ent(K_ATB, rb, c) for rb in range(8) for c in range(4)]
    BOq = [ent(K_BO, hb, c) for hb in range(16) for c in range(2)]
    TAq = [ent(K_ATA4, 4 * hb, c) for hb in range(FINE0) for c in range(2)] + [ent(K_ATA, s_, c) for s_ in range(4 * FINE0, 64) for c in range(2)]
    first += [ent(K_SWP, c) for c in range(NSWP)]
    AOq = [e for hb in range(16) for e in ([ent(K_AO, hb, c) for c in range(2)] if hb < SPLIT0 else [ent(K_AOS, hb, c) for c in range(16)] if (hb < 15 or not USE_AOF) else [ent(K_AOF, hh, c) for hh in (30, 31) for c in range(32)])]
    if P['plan']:
        first = []
        KVq = [e for rb in range(2, 8) for e in kv(rb)]
        SWq = [ent(K_SWP, c) for c in range(NSWP)]
        Sq = sm(0) + sm(1) + sm(2) + sm(3)
        qs = dict(S=Sq, K=KVq, Q=Qq, B=Bq, W=SWq, T=TAq, O=AOq, U=TBq, P=BOq)
        for tok in P['plan'].split():
            q = qs[tok[0]]; n = int(tok[1:])
            assert len(q) >= n, tok
            first += q[:n]; del q[:n]
        assert not Sq and not SWq
    done = {}
    def fin(key, n):
        c, t = done.get(key, (0, 0.0)); return t if c >= n else 1e9
    def seg_time(s_): return P['go'] + P['step'] * (s_ + 1.9 if s_ < 62 else 63.9)
    def ready(e):
        k, p = e & 255, (e >> 8) & 255
        if k == K_ATB: return max(fin(('B', p), 3), fin(('B', max(p - 1, 0)), 3))
        if k == K_BO: return fin(('TB', p >> 1), 4)
        if k == K_ATA: return max(fin(('Q', p >> 3), 4), seg_time(p))
        if k == K_ATA4: return max(fin(('Q', p >> 3), 4), seg_time(p + 3))
        if k == K_AO:
            p = max(p, min([b for b in P['aob'] if b >= p] + [p]) if any(b >= p for b in P['aob']) else p)
            p = min([b for b in P['aob'] if b >= p], default=p)
        if k in (K_AO, K_AOS): return fin(('TA', p), 8 if p >= FINE0 else 2)
        if k == K_AOF: return fin(('TH', p), 4)
        return 0.0
    def dur(e, n):
        k = e & 255
        return {K_SK: P['skv1'] if n < 32 else P['skv2'], K_SV: P['skv1'] if n < 32 else P['skv2'], K_ATB: P['atb'], K_BO: P['bo'], K_ATA: P['ata'], K_ATA4: P['ata4'], K_SWP: P['swp'], K_AO: P['ao'], K_AOS: P['aos'], K_AOF: P['aof']}.get(k, P['big'])
    def group(e):
        k, p = e & 255, (e >> 8) & 255
        return {K_AQ: ('Q', p), K_BQKV: ('B', p), K_ATB: ('TB', p), K_ATA: ('TA', p >> 2), K_ATA4: ('TA', p >> 2)}.get(k, ('x', 0))
    free = [(0.0, w) for w in range(32)] + [(P['go'] + P['step'] * 63.6, 32 + w) for w in range(32)]
    heapq.heapify(free)
    out = []; end = 0
    while first or KVq or Qq or Bq or TBq or BOq or TAq or AOq:
        t, w = heapq.heappop(free)
        ok = lambda q: q and ready(q[0]) + (P['margin'] if (q[0] & 255) not in (K_ATA, K_AOS, K_AOF) else -(P['early'] if (q[0] & 255) != K_ATA else (P['earlyA'] if ((q[0] >> 8) & 255) < 60 else 8.0))) <= t
        q = None
        if first: q = first
        elif KVq and t + 2 * P['big'] + P['kvlead'] > P['go'] + P['step'] * (8 * ((KVq[0] >> 8) & 255) - 3): q = KVq
        elif ok(TAq): q = TAq
        elif ok(AOq): q = AOq
        elif Qq and t + P['big'] + 10 > seg_time(8 * ((Qq[0] >> 8) & 255)): q = Qq
        elif Bq and t > P['bstart']: q = Bq
        elif KVq: q = KVq
        elif Qq: q = Qq
        elif TAq and (TAq[0] & 255) == K_ATA4 and ready(TAq[0]) <= t + P['look']: q = TAq
        elif AOq and (AOq[0] & 255) == K_AO and ready(AOq[0]) <= t + P['look']: q = AOq
        elif ok(TBq): q = TBq
        elif ok(BOq): q = BOq
        else:
            cand = [x for x in (AOq, TAq, BOq, TBq) if x and ready(x[0]) < 1e8]
            q = min(cand, key=lambda x: ready(x[0]))
        e = q.pop(0)
        st_ = max(t, ready(e)); en = st_ + dur(e, len(out))
        c, tt = done.get(group(e), (0, 0.0)); done[group(e)] = (c + 1, max(tt, en + (P['lat'] if (e & 255) in (K_AQ, K_BQKV) else 0.5)))
        if (e & 255) == K_ATA:
            g2 = ('TH', ((e >> 8) & 255) >> 1); c, tt = done.get(g2, (0, 0.0)); done[g2] = (c + 1, max(tt, en + 0.5))
        out.append(e); end = max(end, en)
        if verbose: print(f'{t:6.1f} {st_:6.1f} {en:6.1f} kind {e & 255} p {(e >> 8) & 255} q {e >> 16}')
        heapq.heappush(free, (en + P['gap'], w))
    if verbose: print('sim end', end)
    return out

def setp(**k):
    globals().update(k)

def gen(force_slow=False, force_fb=False, sweep=True, wst=False, empty=False, codepf=True, MS=16, rot=0, gfl='', sim={}, glob={}, defer=True, **kw):
    setp(**glob)
    a = Asm()
    sW_ = 's32'; sXW, sT, sKind, sP, sQ_, sDone = 's33', 's34', 's35', 's36', 's37', 's38'
    a('s_cmp_ge_u32 s2, 256'); a('s_cbranch_scc1 L_exit')
    if empty: a('s_endpgm')
    if wst: a('s_memrealtime s[56:57]'); kw['rt'] = wst
    a('s_load_dwordx4 s[92:95], s[0:1], 88')
    a('s_load_dwordx16 s[64:79], s[0:1], 0')
    a('s_getreg_b32 s39, hwreg(HW_REG_XCC_ID, 0, 3)')
    a('v_lshrrev_b32 v2, 6, v0'); a('s_nop 0'); a(f'v_readfirstlane_b32 {sW_}, v2')
    a(f's_mov_b32 {sSpin}, 0')
    if codepf:
        a('s_getpc_b64 s[86:87]')
        a.label('L_pc0')
        a('s_lshr_b32 s90, s2, 3'); a('s_lshl_b32 s90, s90, 2'); a(f's_add_u32 s90, s90, {sW_}'); a('s_and_b32 s90, s90, 31'); a('s_lshl_b32 s90, s90, 12')
        a('v_and_b32 v1, 63, v0'); a('v_lshlrev_b32 v1, 6, v1'); a('v_add_u32 v1, s90, v1')
        a('v_min_u32 v1, L_table-L_pc0, v1')
        a('global_load_dword v199, v1, s[86:87]')
    a('s_waitcnt lgkmcnt(0)')
    srd(a, 4, 94, WS_BYTES); srd(a, 28, 92, 256)
    a(f's_mov_b32 {sMode4}, 0')
    a('s_lshr_b32 s41, s2, 3')
    if force_fb: a('s_and_b32 s41, s41, 30')
    if rot: a(f's_add_u32 s41, s41, {rot}'); a('s_and_b32 s41, s41, 31')
    a(f's_lshl_b32 {sBit}, 1, s41')
    a(f's_cmp_lg_u32 {sW_}, 0'); a('s_cbranch_scc1 L_sweep')
    a('s_lshl_b32 s90, s39, 2')
    a(f'v_mov_b32 {vClaim}, {sBit}'); a('v_mov_b32 v2, 0')
    a('s_mov_b64 exec, 1')
    a(f'buffer_atomic_or {vClaim}, v2, {DBG}, s90 offen offset:{D_OR} sc0 sc1')
    a('s_mov_b64 exec, -1')
    a.label('L_sweep')
    a('s_lshl_b32 s40, s39, 5'); a('s_add_u32 s40, s40, s41'); a('s_mov_b32 s43, 1')
    a('s_branch L_role')
    a.label('L_fallback')
    a('s_load_dwordx4 s[92:95], s[0:1], 88')
    a('s_load_dwordx16 s[64:79], s[0:1], 0')
    a('s_getreg_b32 s39, hwreg(HW_REG_XCC_ID, 0, 3)')
    a(f's_mov_b32 {sMode4}, 4')
    a('v_mbcnt_lo_u32_b32 v0, -1, 0'); a('v_mbcnt_hi_u32_b32 v0, -1, v0'); a(f's_lshl_b32 s90, {sW_}, 6'); a('v_add_u32 v0, s90, v0')
    a('s_waitcnt vmcnt(0) lgkmcnt(0)')
    a('s_barrier')
    a(f's_cmp_lg_u32 {sW_}, 0'); a('s_cbranch_scc1 L_tkd')
    a('s_lshl_b32 s90, s39, 2')
    a('v_mov_b32 v1, 1'); a('v_mov_b32 v2, 0'); a('v_lshlrev_b32 v3, 2, v0')
    a('s_mov_b64 exec, 1')
    a(f'buffer_atomic_add v1, v2, {DBG}, s90 offen offset:{D_TICK} sc0 sc1')
    a('s_mov_b64 exec, 0xff')
    a.label('L_tkw')
    a(f'buffer_load_dword v4, v3, {DBG}, 0 offen offset:{D_TICK} sc1')
    a('s_waitcnt vmcnt(0)')
    a('v_readfirstlane_b32 s40, v1')
    a('s_mov_b32 s41, 0'); a('s_mov_b32 s42, 0'); a('s_mov_b32 s43, 1')
    for x in range(8):
        a(f'v_readlane_b32 s44, v4, {x}')
        a('s_add_u32 s41, s41, s44')
        a(f's_cmp_gt_u32 s39, {x}'); a('s_cselect_b32 s45, s44, 0'); a('s_add_u32 s42, s42, s45')
        if x < 4: a('s_cmp_eq_u32 s44, 32'); a('s_cselect_b32 s43, s43, 0')
    a(f's_add_u32 {sSpin}, {sSpin}, 1'); a(f's_cmp_ge_u32 {sSpin}, {SPIN_MAX}'); a('s_cbranch_scc1 L_tkbad')
    a('s_sleep 4')
    a('s_cmp_lt_u32 s41, 256'); a('s_cbranch_scc1 L_tkw')
    a('s_add_u32 s40, s40, s42'); a('s_lshl_b32 s43, s43, 16'); a('s_or_b32 s40, s40, s43')
    a('s_branch L_tkok')
    a.label('L_tkbad')
    a('s_mov_b32 s40, 0xffff')
    a.label('L_tkok')
    a('s_mov_b64 exec, -1')
    a('v_mov_b32 v1, s40'); a(f'v_mov_b32 v2, {LDS_X}')
    a('ds_write_b32 v2, v1'); a('s_waitcnt lgkmcnt(0)')
    a.label('L_tkd')
    a('s_barrier')
    a(f'v_mov_b32 v2, {LDS_X}'); a('ds_read_b32 v1, v2'); a('s_waitcnt lgkmcnt(0)')
    a('v_readfirstlane_b32 s40, v1')
    a('s_barrier')
    a('s_lshr_b32 s43, s40, 16'); a('s_and_b32 s40, s40, 0xffff')
    a('s_cmp_ge_u32 s40, 256'); a('s_cbranch_scc1 L_exit')
    if force_slow: a('s_mov_b32 s43, 0')
    a.label('L_role')
    if wst:
        a('s_memrealtime s[58:59]'); a('s_waitcnt lgkmcnt(0)')
        a(f's_lshl_b32 s62, s2, 5'); a(f's_add_u32 s62, s62, {STAMP + 131072:#x}')
        a('v_mov_b32 v251, 0'); a('v_mov_b32 v252, s56'); a('v_mov_b32 v253, s58'); a('s_mov_b64 exec, 1')
        a(f'buffer_store_dwordx2 v[252:253], v251, s[4:7], s62 offen'); a('s_mov_b64 exec, -1')
    a('s_cmp_ge_u32 s40, 128'); a('s_cbranch_scc1 L_worker')
    a(f's_lshr_b32 {sX}, s40, 5'); a(f's_and_b32 {sI}, s40, 31')
    a('s_cmp_eq_u32 s43, 0'); a('s_cbranch_scc1 L_recslow')
    r1 = Asm(); names = rec.gen_rec(r1, fused=True, exit_label='L_join', **kw); a.absorb(r1, 'F')
    a.label('L_recslow')
    r2 = Asm(); rec.gen_rec(r2, fused=True, exit_label='L_join', local_st='sc1', pol=0); a.absorb(r2, 'S')
    a.label('L_join')
    a('s_load_dwordx16 s[64:79], s[0:1], 0')
    a('v_mbcnt_lo_u32_b32 v0, -1, 0'); a('v_mbcnt_hi_u32_b32 v0, -1, v0'); a(f's_lshl_b32 s90, {sW_}, 6'); a('v_add_u32 v0, s90, v0')
    a(f's_lshl_b32 s40, {sX}, 5'); a('s_add_u32 s40, s40, 128'); a('s_mov_b32 s39, 1')
    a('s_barrier')
    a('s_branch L_worker1')
    a.label('L_worker')
    a('s_mov_b32 s39, 0')
    a.label('L_worker1')
    a('s_load_dwordx4 s[80:83], s[0:1], 64')
    a('s_load_dwordx2 s[84:85], s[0:1], 80')
    a(f's_sub_u32 {sXW}, s40, 128'); a(f's_lshr_b32 {sXW}, {sXW}, 5')
    a(f's_and_b32 {sT}, s40, 31')
    a('s_getpc_b64 s[86:87]')
    a.label('L_pc')
    a('s_add_u32 s86, s86, L_table-L_pc'); a('s_addc_u32 s87, s87, 0')
    a('s_waitcnt lgkmcnt(0)')
    tl = task_list(**sim)
    G1 = Gemm(256, 256, 64, 2, 'row', MS=MS, ld_flags=gfl, w_flags=gfl); G3 = Gemm(128, 128, 64, 4, 'packed', perm_out=True, ld_flags='sc1', MS=MS, w_flags=gfl)
    G2 = Gemm(128, 128, 64, 4, 'row', MS=MS, ld_flags=gfl, w_flags=gfl)
    pE, pOo, pSeg, pDone, pInc, sRet = 's59', 's60', 's61', 's62', 's63', 's58'
    EPI = 176
    DF = dict(ad='v172', ad2='v173', base=176, s0='s46', s1='s47')
    dstores = [f'buffer_store_dwordx4 {vr(176 + 4*n, 4)}, {DF["ad2"] if (n & 7) >= 4 else DF["ad"]}, {WS}, {DF["s1"] if n >= 8 else DF["s0"]} offen offset:{(n&3)*1024} sc1' for n in range(16)] if defer else []
    pSig = 's49'
    srd(a, 16, 84, 8 * MB); srd(a, 8, 64, 4 * MB); srd(a, 12, 70, 8 * MB)
    for r in list(range(1, 18)) + [172, 173]: a(f'v_mov_b32 v{r}, 0')
    a(f's_mov_b32 {pE}, 0')
    def request(a):
        l = a.newlabel('L_rq')
        a(f's_cmp_lg_u32 {sW_}, 0'); a(f's_cbranch_scc1 {l}')
        a('s_cmp_eq_u32 s39, 0'); a(f's_cbranch_scc1 {l}')
        a(f's_lshl_b32 s99, {sXW}, 7'); a(f's_add_u32 s99, s99, {CNT + C_QUEUE:#x}')
        a('v_mov_b32 v244, 1'); a('v_mov_b32 v245, 0')
        a('s_mov_b64 exec, 1')
        a(f'buffer_atomic_add v244, v245, {WS}, s99 offen sc0 sc1')
        a('s_mov_b64 exec, -1')
        a.label(l)
    a('s_cmp_eq_u32 s39, 0'); a('s_cbranch_scc1 L_have')
    a.label('L_next')
    request(a)
    a('s_waitcnt vmcnt(0)')
    a.label('L_got')
    a(f's_cmp_lg_u32 {sW_}, 0'); a('s_cbranch_scc1 L_nx1')
    a(f'v_mov_b32 v245, {LDS_X}'); a('s_mov_b64 exec, 1'); a('ds_write_b32 v245, v244'); a('s_mov_b64 exec, -1'); a('s_waitcnt lgkmcnt(0)')
    a.label('L_nx1')
    a('s_barrier')
    a(f'v_mov_b32 v245, {LDS_X}'); a('ds_read_b32 v246, v245'); a('s_waitcnt lgkmcnt(0)')
    a(f'v_readfirstlane_b32 {sT}, v246')
    a(f's_add_u32 {sT}, {sT}, 32')
    a.label('L_have')
    a('s_mov_b32 s98, 1')
    a(f's_min_u32 s90, {sT}, {len(tl)}')
    a(f's_lshl_b32 s90, s90, 2'); a('s_load_dword s91, s[86:87], s90'); a('s_waitcnt lgkmcnt(0)')
    a(f's_and_b32 {sKind}, s91, 255'); a(f's_lshr_b32 {sP}, s91, 8'); a(f's_and_b32 {sP}, {sP}, 255'); a(f's_lshr_b32 {sQ_}, s91, 16')
    def wstamp(k, a=a):
        if not wst: return
        a('s_memrealtime s[96:97]'); a('s_memtime s[54:55]'); a('s_waitcnt lgkmcnt(0)')
        a(f's_lshl_b32 s55, {sXW}, 9'); a(f's_add_u32 s55, s55, {sT}'); a('s_lshl_b32 s55, s55, 6'); a(f's_add_u32 s55, s55, {STAMP + 262144 + 8*k:#x}')
        a('v_mov_b32 v240, 0'); a('v_mov_b32 v242, s96'); a('v_mov_b32 v243, s54'); a('s_mov_b64 exec, 1')
        a(f'buffer_store_dwordx2 v[242:243], v240, s[4:7], s55 offen'); a('s_mov_b64 exec, -1')
    hk = (lambda a_: wstamp(3, a_)) if wst else None
    def do_sweep(a, t0, lst):
        a('v_lshlrev_b32 v174, 7, v1')
        a(f's_sub_u32 s42, {sT}, {t0}'); a('s_lshl_b32 s40, s42, 2'); a(f's_add_u32 s40, s40, {sXW}'); a('s_lshl_b32 s40, s40, 2'); a(f's_add_u32 s40, s40, {sW_}')
        a('s_lshl_b32 s40, s40, 13')
        a(f's_cmp_ge_u32 s42, 16'); a('s_cselect_b32 s40, 0x40000000, s40')
        a(f's_add_u32 s41, s40, {2*MB}')
        for n, (base, size, so) in enumerate(lst):
            srd(a, 44, base, size * MB)
            a(f'buffer_load_dword v{175}, v174, s[44:47], {so} offen')
    wstamp(0)
    def wait(deps, prog=None, slp=6, stamp=True):
        l, d = a.newlabel('L_dw'), a.newlabel('L_dd')
        a(f's_cmp_lg_u32 {sW_}, 0'); a(f's_cbranch_scc1 {d}')
        [a(f'v_mov_b32 v{228+q}, {CNT + 4096*q:#x}') for q in sorted({0} | {b >> 12 for _, b, _ in deps})]
        a.label(l)
        for n, (so, base, tgt) in enumerate(deps): a(f'buffer_load_dword v{234+n}, v{228 + (base >> 12)}, {WS}, {so} offen offset:{base & 4095} sc1')
        if prog: a(f's_lshl_b32 s45, {sXW}, 7'); a(f'buffer_load_dword v238, v228, {WS}, s45 offen offset:{C_PROG} sc1'); a(f'buffer_load_dword v239, v228, {WS}, s42 offen sc1')
        a('s_waitcnt vmcnt(0)')
        a('s_mov_b32 s44, 1')
        for n, (so, base, tgt) in enumerate(deps):
            a(f'v_readfirstlane_b32 s45, v{234+n}'); a(f's_cmp_ge_u32 s45, {tgt}'); a('s_cselect_b32 s44, s44, 0')
        if prog:
            a('v_readfirstlane_b32 s45, v238'); a('v_readfirstlane_b32 s47, v239')
            a('s_cmp_ge_u32 s47, 16'); a('s_cselect_b32 s45, 64, s45')
            a(f's_cmp_ge_u32 s45, {prog}'); a('s_cselect_b32 s44, s44, 0')
        a('s_cmp_eq_u32 s44, 1'); a(f's_cbranch_scc1 {d}')
        a(f's_sleep {slp}')
        a(f's_add_u32 {sSpin}, {sSpin}, 1'); a(f's_cmp_lt_u32 {sSpin}, {SPIN_MAX}'); a(f's_cbranch_scc1 {l}')
        a.label(d)
        a('s_barrier')
        if stamp: wstamp(1)
    for k, l in ((K_AQ, 'L_aqkv'), (K_AK, 'L_aqkv'), (K_AV, 'L_aqkv'), (K_BQKV, 'L_bqkv'), (K_SK, 'L_small'), (K_SV, 'L_small')):
        a(f's_cmp_eq_u32 {sKind}, {k}'); a(f's_cbranch_scc1 {l}')
    a(f's_mov_b32 {sRet}, 0')
    a.label('L_epi')
    a(f's_mov_b32 {DF["s0"]}, 0x40000000'); a(f's_mov_b32 {DF["s1"]}, 0x40000000'); a(f's_mov_b32 {pSig}, 0')
    a(f's_cmp_eq_u32 {pE}, 0'); a('s_cbranch_scc1 L_epid')
    ekw = dict(sOo=pOo, sSeg=pSeg)
    for n_, (G, kind, so, fl) in enumerate(((G1, 'qk', WS, 'sc1'), (G1, 'v', WS, 'sc1'), (G2, 'qk', WS, 'sc1'), (G2, 'v', WS, 'sc1'), (G3, 'out', SO, ''))):
        a(f's_cmp_lg_u32 {pE}, {n_+1}'); a(f's_cbranch_scc1 L_e{n_}')
        if G is G1 and defer:
            G.epilogue(a, kind, G1.FX[0], fl, SO=so, defer=DF, **ekw)
            a('s_branch L_edef')
        else:
            G.epilogue(a, kind, EPI, fl, SO=so, **ekw)
            a('s_branch L_epid' if kind == 'out' else 's_branch L_esig')
        a.label(f'L_e{n_}')
    a.label('L_edef')
    a(f's_mov_b32 {pSig}, 1')
    a(f's_cmp_eq_u32 {sRet}, 1'); a('s_cbranch_scc1 L_epid')
    a(f's_mov_b32 {pSig}, 0')
    for x in dstores: a(x)
    a(f's_mov_b32 {DF["s0"]}, 0x40000000'); a(f's_mov_b32 {DF["s1"]}, 0x40000000')
    a.label('L_esig')
    a('s_waitcnt vmcnt(0)')
    a('s_cmp_lg_u32 s39, 0'); a('s_cbranch_scc1 L_vok')
    verify(a)
    a('s_mov_b32 s39, 1')
    a.label('L_vok')
    a('s_barrier')
    signal(a, 0, soff=pDone, srd_=WS, inc=pInc, two=True)
    a.label('L_epid')
    if wst:
        l = a.newlabel('L_ws'); a(f's_cmp_eq_u32 {pE}, 0'); a(f's_cbranch_scc1 {l}')
        a(f's_mov_b32 s57, {sT}'); a(f's_mov_b32 {sT}, s56'); wstamp(2); a(f's_mov_b32 {sT}, s57'); a.label(l)
    a(f's_mov_b32 {pE}, 0')
    for r_, l in ((1, 'L_r1'), (2, 'L_r2'), (3, 'L_next')):
        a(f's_cmp_eq_u32 {sRet}, {r_}'); a(f's_cbranch_scc1 {l}')
    for k, l in ((K_ATB, 'L_atb'), (K_BO, 'L_bo'), (K_ATA, 'L_ata'), (K_ATA4, 'L_ata4'), (K_AO, 'L_ao'), (K_AOS, 'L_aos'), (K_SWP, 'L_swp'), (K_AOF, 'L_aof')):
        a(f's_cmp_eq_u32 {sKind}, {k}'); a(f's_cbranch_scc1 {l}')
    a('s_branch L_exit')
    def tile_end(e):
        wstamp(4)
        a(f's_mov_b32 {pE}, {e}'); a(f's_mov_b32 {pOo}, {sOo}'); a(f's_mov_b32 {pSeg}, {sSeg}')
        a(f's_add_u32 {pDone}, {sDone}, {CNT:#x}'); a(f's_mov_b32 {pInc}, s98')
        if wst: a(f's_mov_b32 s56, {sT}'); a('s_waitcnt vmcnt(0)')
        a('s_cmp_lg_u32 s39, 0'); a('s_cbranch_scc1 L_got')
        a(f's_mov_b32 {sRet}, 3'); a('s_branch L_epi')
    def hk1(a_):
        if wst: wstamp(3, a_)
        l = a_.newlabel('L_hs'); a_(f's_cmp_eq_u32 {pSig}, 0'); a_(f's_cbranch_scc1 {l}')
        signal(a_, 0, soff=pDone, srd_=WS, inc=pInc, two=True)
        a_.label(l)
    a.label('L_aqkv')
    srd(a, 8, 64, 4 * MB)
    a(f's_cmp_eq_u32 {sKind}, 0'); a('s_cselect_b64 s[88:89], s[68:69], s[70:71]')
    a(f's_cmp_eq_u32 {sKind}, 2'); a('s_cselect_b64 s[88:89], s[72:73], s[88:89]')
    srd(a, 12, 88, 8 * MB)
    a(f's_lshl_b32 s91, {sXW}, 2'); a(f's_add_u32 s91, s91, {sQ_}')
    a(f's_mov_b32 {sLdw}, 8192'); a(f's_mov_b32 {sSeg}, {256*KB}')
    a(f's_lshl_b32 {sXo}, {sP}, 19'); a(f's_lshl_b32 {sWo}, s91, 9')
    a(f's_lshl_b32 {sOo}, {sKind}, 24'); a(f's_lshl_b32 s90, {sP}, 21'); a(f's_add_u32 {sOo}, {sOo}, s90')
    a('s_lshl_b32 s90, s91, 14'); a(f's_add_u32 {sOo}, {sOo}, s90')
    a(f's_lshl_b32 {sDone}, {sP}, 9'); a(f's_add_u32 {sDone}, {sDone}, {C_KV}'); a(f's_cmp_eq_u32 {sKind}, 0'); a(f's_cselect_b32 {sDone}, {C_Q}, {sDone}'); a('s_cselect_b32 s98, 1, 2')
    a(f's_mov_b32 s48, {sKind}')
    a('s_branch L_g1')
    a.label('L_bqkv')
    srd(a, 8, 78, 4 * MB); srd(a, 12, 80, 6 * MB)
    a(f's_lshl_b32 s91, {sQ_}, 2'); a(f's_add_u32 s91, s91, {sXW}')
    a(f's_mov_b32 {sLdw}, 6144'); a(f's_mov_b32 {sSeg}, {64*KB}')
    a(f's_lshl_b32 {sXo}, {sP}, 19'); a(f's_lshl_b32 {sWo}, s91, 9')
    a(f's_lshl_b32 {sOo}, {sQ_}, 22'); a(f's_lshl_b32 s90, {sP}, 19'); a(f's_add_u32 {sOo}, {sOo}, s90')
    a(f's_lshl_b32 s90, {sXW}, 14'); a(f's_add_u32 {sOo}, {sOo}, s90'); a(f's_add_u32 {sOo}, {sOo}, {BQKV:#x}')
    a(f's_mov_b32 {sDone}, {C_BQ}'); a(f's_mov_b32 s48, {sQ_}')
    a.label('L_g1')
    a(f's_lshl_b32 s90, {sP}, 9'); a(f's_add_u32 {sDone}, {sDone}, s90'); a(f's_lshl_b32 s90, {sXW}, 7'); a(f's_add_u32 {sDone}, {sDone}, s90')
    a(f's_mov_b32 {sLdx}, 2048'); a(f's_mov_b32 {sNk}, 8')
    G1.setup(a)
    a(f's_mov_b32 {sRet}, 1'); a('s_branch L_epi')
    a.label('L_r1')
    a('s_cmp_eq_u32 s48, 2'); a('s_cbranch_scc1 L_g2')
    G1.loop(a, 'g1', 'T', exp='front', hook=hk1, fin_hook=request, extra=dstores); tile_end(1)
    a.label('L_g2')
    G1.loop(a, 'g2', 'N', exp='front', hook=hk1, fin_hook=request, extra=dstores); tile_end(2)
    a.label('L_small')
    srd(a, 8, 64, 4 * MB)
    a(f's_cmp_eq_u32 {sKind}, {K_SK}'); a('s_cselect_b64 s[88:89], s[70:71], s[72:73]')
    srd(a, 12, 88, 8 * MB)
    a(f's_lshl_b32 s91, {sXW}, 3'); a(f's_add_u32 s91, s91, {sQ_}')
    a(f's_mov_b32 {sLdw}, 8192'); a(f's_mov_b32 {sSeg}, {256*KB}'); a(f's_mov_b32 {sLdx}, 2048'); a(f's_mov_b32 {sNk}, 4')
    a(f's_lshl_b32 {sXo}, {sP}, 18'); a(f's_lshl_b32 {sWo}, s91, 8')
    a(f's_sub_u32 {sOo}, {sKind}, 8'); a(f's_lshl_b32 {sOo}, {sOo}, 24'); a(f's_lshl_b32 s90, {sP}, 20'); a(f's_add_u32 {sOo}, {sOo}, s90')
    a('s_lshl_b32 s90, s91, 13'); a(f's_add_u32 {sOo}, {sOo}, s90')
    a(f's_lshl_b32 {sDone}, {sP}, 9'); a(f's_add_u32 {sDone}, {sDone}, {C_KV}'); a(f's_lshl_b32 s90, {sXW}, 7'); a(f's_add_u32 {sDone}, {sDone}, s90')
    G2.setup(a)
    a(f's_mov_b32 {sRet}, 2'); a('s_branch L_epi')
    a.label('L_r2')
    NT = 2 if sweep else 0
    if sweep: do_sweep(a, 32, ((64, 4, 's40'), (64, 4, 's41')))
    a(f's_cmp_eq_u32 {sKind}, {K_SV}'); a('s_cbranch_scc1 L_g5')
    G2.loop(a, 'g4', 'T', younger=NT, hook=hk, fin_hook=request); tile_end(3)
    a.label('L_g5')
    G2.loop(a, 'g5', 'N', younger=NT, hook=hk, fin_hook=request); tile_end(4)
    a.label('L_swp')
    a('s_barrier')
    a('v_and_b32 v1, 63, v0'); a('v_lshlrev_b32 v2, 7, v1')
    a(f's_lshl_b32 s40, {sP}, 2'); a(f's_add_u32 s40, s40, {sXW}'); a('s_lshl_b32 s40, s40, 2'); a(f's_add_u32 s40, s40, {sW_}'); a('s_lshl_b32 s40, s40, 13')
    for base, size in ((78, 4), (80, 6), (82, 2)):
        srd(a, 44, base, size * MB)
        a('s_mov_b32 s41, s40')
        for q in range(size * 8 // NSWP):
            a(f'buffer_load_dword v{4+q}, v2, s[44:47], s41 offen'); a(f's_add_u32 s41, s41, {128*KB*NSWP}')
    wstamp(2)
    a('s_branch L_next')
    a.label('L_atb')
    a(f's_lshl_b32 s90, {sXW}, 7'); a(f's_lshl_b32 s40, {sP}, 9'); a('s_add_u32 s40, s40, s90'); a(f's_max_u32 s41, {sP}, 1'); a('s_sub_u32 s41, s41, 1'); a('s_lshl_b32 s41, s41, 9'); a('s_add_u32 s41, s41, s90')
    wait([('s40', C_BQ, 3), ('s41', C_BQ, 3)])
    a(f's_lshl_b32 {sDone}, {sP}, 7'); a(f's_add_u32 {sDone}, {sDone}, {C_AB}')
    a(f's_lshl_b32 s46, {sP}, 3'); a(f's_lshl_b32 s90, {sQ_}, 1'); a('s_add_u32 s99, s46, s90'); a(f's_lshr_b32 s90, {sW_}, 1'); a('s_add_u32 s99, s99, s90')
    a('s_lshl_b32 s99, s99, 3'); a(f's_lshl_b32 s90, {sXW}, 1'); a('s_add_u32 s99, s99, s90'); a(f's_and_b32 s90, {sW_}, 1'); a('s_add_u32 s20, s99, s90')
    a('v_and_b32 v1, 63, v0')
    attn.gen_attnB(a, 's20', ld_flags='sc1', st_flags='sc1', after_loads=request)
    a('s_branch L_done')
    for lab, n_ in (('L_ata', 1), ('L_ata4', 4)):
        a.label(lab)
        a(f's_lshr_b32 s40, {sP}, 3'); a('s_lshl_b32 s40, s40, 9'); a(f's_lshl_b32 s90, {sXW}, 7'); a('s_add_u32 s40, s40, s90'); a(f's_add_u32 s41, {sP}, {n_}')
        a(f's_lshr_b32 s43, {sP}, 2'); a('s_lshl_b32 s43, s43, 9'); a('s_add_u32 s43, s43, s90'); a(f's_add_u32 s43, s43, {C_KV}')
        a(f's_lshl_b32 s42, {sXW}, 1'); a(f's_add_u32 s42, s42, {sQ_}'); a('s_lshl_b32 s42, s42, 7'); a(f's_add_u32 s42, s42, {C_FIN}')
        if n_ == 1: wait([('s40', C_Q, 4), ('s43', 0, 16)], stamp=False)
        else: wait([('s40', C_Q, 4), ('s43', 0, 16)], prog='s41')
        a(f's_mov_b32 s98, {n_}')
        a(f's_lshr_b32 {sDone}, {sP}, 2'); a(f's_lshl_b32 {sDone}, {sDone}, 7'); a(f's_add_u32 {sDone}, {sDone}, {C_AA}')
        if n_ == 1:
            assert FINE0 <= SPLIT0 and SPLIT0 >= 13
            a(f's_lshr_b32 s90, {sP}, 1'); a('s_sub_u32 s90, s90, 24'); a('s_lshl_b32 s90, s90, 2'); a(f's_add_u32 s90, s90, {sXW}'); a('s_lshl_b32 s90, s90, 1'); a(f's_add_u32 s90, s90, {sQ_}')
            a('s_lshl_b32 s90, s90, 7'); a(f's_add_u32 s90, s90, {C_AF}')
            a(f's_cmp_ge_u32 {sP}, {4*SPLIT0}'); a(f's_cselect_b32 {sDone}, s90, {sDone}')
        a(f's_lshl_b32 s20, {sP}, 5'); a(f's_lshl_b32 s90, {sXW}, 3'); a('s_add_u32 s20, s20, s90'); a(f's_lshl_b32 s90, {sQ_}, 2'); a('s_add_u32 s20, s20, s90'); a(f's_add_u32 s20, s20, {sW_}')
        a('v_and_b32 v1, 63, v0')
        attn.gen_attnA(a, 's20', ld_flags='sc1', st_flags='sc1', mid=(lambda: wait([], prog='s41', slp=3)) if n_ == 1 else None, n=n_, after_loads=request)
        a('s_branch L_done')
    a.label('L_bo')
    a(f's_lshr_b32 s40, {sP}, 1'); a('s_lshl_b32 s40, s40, 7'); a(f's_add_u32 s40, s40, {C_AB}'); a('s_mov_b32 s41, 16')
    srd(a, 12, 82, 2 * MB)
    a(f's_mov_b32 {sLdx}, {64*KB}'); a(f's_mov_b32 {sNk}, 4')
    a(f's_lshl_b32 {sXo}, {sP}, 18'); a(f's_add_u32 {sXo}, {sXo}, {OB:#x}'); a(f's_mov_b32 {sOo}, 2048')
    a('s_branch L_g3')
    a.label('L_aos')
    srd(a, 12, 74, 8 * MB)
    a(f's_and_b32 s48, {sQ_}, 7'); a(f's_lshr_b32 {sQ_}, {sQ_}, 3')
    a(f's_sub_u32 s40, {sP}, 12'); a('s_lshl_b32 s40, s40, 4'); a('s_add_u32 s40, s40, s48'); a('s_lshl_b32 s40, s40, 7'); a(f's_add_u32 s40, s40, {C_AF}'); a('s_mov_b32 s41, 2'); a('s_add_u32 s42, s40, 1024')
    a(f's_mov_b32 {sLdx}, {256*KB}'); a(f's_mov_b32 {sNk}, 2')
    a(f's_lshl_b32 {sXo}, {sP}, 20'); a(f's_add_u32 {sXo}, {sXo}, {OA:#x}'); a('s_lshl_b32 s90, s48, 15'); a(f's_add_u32 {sXo}, {sXo}, s90')
    a(f's_mov_b32 {sOo}, 0'); a('s_lshl_b32 s49, s48, 20')
    a('s_branch L_g3b')
    a.label('L_ao')
    a(f's_lshl_b32 s40, {sP}, 7'); a(f's_add_u32 s40, s40, {C_AA}'); a('s_mov_b32 s41, 32')
    srd(a, 12, 74, 8 * MB)
    a(f's_mov_b32 {sLdx}, {256*KB}'); a(f's_mov_b32 {sNk}, 16')
    a(f's_lshl_b32 {sXo}, {sP}, 20'); a(f's_add_u32 {sXo}, {sXo}, {OA:#x}'); a(f's_mov_b32 {sOo}, 0')
    a.label('L_g3')
    a('s_mov_b32 s49, 0'); a('s_mov_b32 s42, s40')
    a.label('L_g3b')
    srd(a, 8, 4, WS_BYTES)
    a(f's_lshl_b32 s91, {sXW}, 1'); a(f's_add_u32 s91, s91, {sQ_}')
    a(f's_mov_b32 {sLdw}, 2048'); a(f's_mov_b32 {sSeg}, 4096')
    a(f's_lshl_b32 {sWo}, s91, 8'); a(f's_add_u32 {sOo}, {sOo}, {sWo}'); a(f's_lshl_b32 s90, {sP}, 19'); a(f's_add_u32 {sOo}, {sOo}, s90')
    a(f's_add_u32 {sWo}, {sWo}, s49'); a('s_mov_b32 s50, s91')
    def req3(a_):
        l = a_.newlabel('L_r3'); a_(f's_cmp_eq_u32 {sKind}, {K_AOS}'); a_(f's_cbranch_scc1 {l}'); request(a_); a_.label(l)
    G3.setup(a, mid=lambda: wait([('s40', 0, 's41'), ('s42', 0, 's41')], slp=3)); G3.loop(a, 'g3', 'T', hook=hk, fin_hook=req3, xlast=True)
    a(f's_cmp_eq_u32 {sKind}, {K_AOS}'); a('s_cbranch_scc1 L_part')
    tile_end(5)
    a.label('L_part')
    wstamp(4)
    assert MS == 16
    a(f's_sub_u32 s40, {sP}, {SPLIT0}'); a('s_lshl_b32 s40, s40, 3'); a('s_add_u32 s40, s40, s50')
    a('s_lshl_b32 s41, s40, 19'); a(f's_add_u32 s41, s41, {PARTK:#x}'); a(f's_lshl_b32 s90, {sW_}, 14'); a('s_add_u32 s41, s41, s90')
    a('s_lshl_b32 s90, s48, 16'); a('s_add_u32 s42, s41, s90')
    a('v_lshlrev_b32 v2, 4, v1')
    for q in range(16):
        if q and q % 4 == 0: a('s_add_u32 s42, s42, 4096')
        a(f'buffer_store_dwordx4 {ar(4*q, 4)}, v2, {WS}, s42 offen offset:{(q&3)*1024} sc1')
    a('s_lshl_b32 s40, s40, 7')
    a(f's_add_u32 s43, s40, {CNT + C_SP:#x}')
    a('s_waitcnt vmcnt(0)'); a('s_barrier')
    signal(a, 0, soff='s43', srd_=WS)
    wait([('s40', C_SP, 8)], slp=1, stamp=False)
    request(a)
    a('s_lshl_b32 s90, s48, 11'); a('s_add_u32 s41, s41, s90')
    for p in range(8):
        for h in range(2): a(f'buffer_load_dwordx4 {vr(16 + 8*p + 4*h, 4)}, v2, {WS}, s41 offen offset:{1024*h} sc1')
        a('s_add_u32 s41, s41, 0x10000')
    lane_expr(a, 'v3', [(0, 4, 4096), (4, 2, 16)], lane='v1', tmp='v4')
    a(f's_lshr_b32 s90, {sW_}, 1'); a('s_lshl_b32 s90, s90, 18'); a(f's_add_u32 {sOo}, {sOo}, s90')
    a(f's_and_b32 s90, {sW_}, 1'); a('s_lshl_b32 s90, s90, 7'); a(f's_add_u32 {sOo}, {sOo}, s90')
    a('s_lshr_b32 s90, s48, 1'); a('s_lshl_b32 s90, s90, 16'); a(f's_add_u32 {sOo}, {sOo}, s90')
    a('s_and_b32 s90, s48, 1'); a('s_lshl_b32 s90, s90, 6'); a(f's_add_u32 {sOo}, {sOo}, s90')
    for p in range(1, 8):
        a(f's_waitcnt vmcnt({14 - 2*p})')
        for q in range(0, 8, 2): a(f'v_pk_add_f32 {vr(16+q,2)}, {vr(16+q,2)}, {vr(16+8*p+q,2)}')
    for q in range(4): a(f'v_cvt_pk_bf16_f32 v{8+q}, v{16+2*q}, v{17+2*q}')
    a(f'buffer_store_dwordx4 v[8:11], v3, {SO}, {sOo} offen')
    wstamp(2)
    a('s_branch L_got')
    a.label('L_aof')
    G5 = Gemm(64, 128, 64, 4, 'packed', perm_out=True, ld_flags='sc1', MS=16)
    srd(a, 12, 74, 8 * MB); srd(a, 8, 4, WS_BYTES)
    a(f's_and_b32 s48, {sQ_}, 15'); a(f's_lshr_b32 {sQ_}, {sQ_}, 4')
    a(f's_lshl_b32 s50, {sXW}, 1'); a(f's_add_u32 s50, s50, {sQ_}')
    a(f's_sub_u32 s40, {sP}, 24'); a('s_lshl_b32 s40, s40, 3'); a('s_lshr_b32 s90, s48, 1'); a('s_add_u32 s40, s40, s90'); a('s_lshl_b32 s40, s40, 7'); a(f's_add_u32 s40, s40, {C_AF}')
    a(f's_mov_b32 {sLdx}, {256*KB}'); a(f's_mov_b32 {sLdw}, 2048')
    a(f's_lshl_b32 {sXo}, {sP}, 19'); a(f's_add_u32 {sXo}, {sXo}, {OA:#x}'); a('s_lshl_b32 s90, s48, 14'); a(f's_add_u32 {sXo}, {sXo}, s90')
    a(f's_lshl_b32 {sWo}, s50, 8'); a(f's_lshl_b32 {sOo}, {sP}, 18'); a(f's_add_u32 {sOo}, {sOo}, {sWo}'); a('s_lshl_b32 s90, s48, 19'); a(f's_add_u32 {sWo}, {sWo}, s90')
    G5.setup(a, mid=lambda: wait([('s40', 0, 2)], slp=1)); G5.once(a, 'T')
    wstamp(4)
    a(f's_sub_u32 s40, {sP}, 28'); a('s_lshl_b32 s40, s40, 3'); a('s_add_u32 s40, s40, s50')
    a('s_lshl_b32 s41, s40, 19'); a(f's_add_u32 s41, s41, {PARTK:#x}')
    a('s_lshl_b32 s90, s48, 15'); a('s_add_u32 s42, s41, s90'); a(f's_lshl_b32 s90, {sW_}, 13'); a('s_add_u32 s42, s42, s90')
    a('v_lshlrev_b32 v2, 4, v1')
    for q in range(8):
        if q == 4: a('s_add_u32 s42, s42, 4096')
        a(f'buffer_store_dwordx4 {ar(4*q, 4)}, v2, {WS}, s42 offen offset:{(q&3)*1024} sc1')
    a('s_lshl_b32 s40, s40, 7')
    a(f's_add_u32 s43, s40, {CNT + C_SP:#x}')
    a('s_waitcnt vmcnt(0)'); a('s_barrier')
    signal(a, 0, soff='s43', srd_=WS)
    wait([('s40', C_SP, 16)], slp=1, stamp=False)
    request(a)
    a('s_lshl_b32 s90, s48, 11'); a('s_add_u32 s41, s41, s90'); a(f's_lshl_b32 s90, {sW_}, 17'); a('s_add_u32 s41, s41, s90')
    for p in range(4):
        for h in range(2): a(f'buffer_load_dwordx4 {vr(16 + 8*p + 4*h, 4)}, v2, {WS}, s41 offen offset:{1024*h} sc1')
        a('s_add_u32 s41, s41, 0x8000')
    lane_expr(a, 'v3', [(0, 4, 4096), (4, 2, 16)], lane='v1', tmp='v4')
    for sh_, mul in ((3, 17), (2, 7), (1, 16), (0, 6)):
        a(f's_lshr_b32 s90, s48, {sh_}'); a('s_and_b32 s90, s90, 1'); a(f's_lshl_b32 s90, s90, {mul}'); a(f's_add_u32 {sOo}, {sOo}, s90')
    a(f's_lshl_b32 s90, {sW_}, 11'); a('v_add_u32 v5, s90, v2')
    for p in range(1, 4):
        a(f's_waitcnt vmcnt({6 - 2*p})')
        for q in range(0, 8, 2): a(f'v_pk_add_f32 {vr(16+q,2)}, {vr(16+q,2)}, {vr(16+8*p+q,2)}')
    a('ds_write_b128 v5, v[16:19]'); a('ds_write_b128 v5, v[20:23] offset:1024')
    a('s_waitcnt lgkmcnt(0)'); a('s_barrier')
    a(f's_cmp_lg_u32 {sW_}, 0'); a('s_cbranch_scc1 L_aofd')
    for p in range(1, 4):
        for h in range(2): a(f'ds_read_b128 {vr(16 + 8*p + 4*h, 4)}, v2 offset:{2048*p + 1024*h}')
    a('s_waitcnt lgkmcnt(0)')
    for p in range(1, 4):
        for q in range(0, 8, 2): a(f'v_pk_add_f32 {vr(16+q,2)}, {vr(16+q,2)}, {vr(16+8*p+q,2)}')
    for q in range(4): a(f'v_cvt_pk_bf16_f32 v{8+q}, v{16+2*q}, v{17+2*q}')
    a(f'buffer_store_dwordx4 v[8:11], v3, {SO}, {sOo} offen')
    a.label('L_aofd')
    wstamp(2)
    a('s_branch L_got')
    a.label('L_done')
    a('s_waitcnt vmcnt(0)')
    a('s_barrier')
    a(f's_add_u32 {sDone}, {sDone}, {CNT:#x}')
    signal(a, 0, soff=sDone, srd_=WS, inc='s98')
    wstamp(2)
    a(f's_mov_b32 {pE}, 0')
    a('s_branch L_got')
    a.label('L_exit')
    a('s_endpgm')
    a.fix_hazards()
    t = a.text() + '.p2align 2\nL_table:\n' + ''.join(f'.long {x:#x}\n' for x in tl + [15, 0, 0, 0])
    return t, names

def build(**kw):
    body, names = gen(**kw)
    ref = open(os.path.join(os.path.dirname(os.path.abspath(__file__)), '..', NAME + '.s.ref')).read().split('\n')
    head = [l for l in ref if l.startswith(';') and '@launch' not in l and 'Override' not in l and 'grid=ceil' not in l][:14]
    n = NAME + '_kernel'
    t = '\n'.join(head) + '\n'
    t += f'; @launch grid=(256,1,1) block=(256,1,1) lds={LDS_X + 64}\n'
    t += '.amdgcn_target "amdgcn-amd-amdhsa--gfx950"\n.text\n'
    t += f'.globl {n}\n.p2align 8\n.type {n},@function\n{n}:\n' + body
    t += '.section .rodata,"a"\n.p2align 6\n' + kd(n, 512, 256)
    return t

if __name__ == '__main__':
    out = sys.argv[1] if len(sys.argv) > 1 else os.path.join(os.path.dirname(os.path.abspath(__file__)), '..', NAME + '.s')
    open(out, 'w').write(build(**eval('dict(%s)' % (sys.argv[2] if len(sys.argv) > 2 else ''))))
    print('written', out, os.path.getsize(out))
```

```python
from asmgen import *
from layout import *
from rec import lane_expr, srd

sXo, sWo, sOo, sLdx, sLdw, sNk, sSeg, sWv, sWstep, sM0x, sM0w = [f's{i}' for i in list(range(20, 28)) + [51, 52, 53]]
SX, SWt, SO = 's[8:11]', 's[12:15]', 's[16:19]'

class Gemm:
    def __init__(self, BM, BN, BK, NS, xmode, perm_out=False, ld_flags='', MS=32, w_flags=''):
        self.__dict__.update(locals())
        self.TM, self.TN = BM // (2 * MS), BN // (2 * MS)
        self.AR = MS * MS // 64
        self.XB, self.WB = BM * BK * 2, BN * BK * 2
        self.BUF = self.XB + self.WB
        self.NX, self.NW = self.XB // 4096, self.WB // 4096
        self.ND = self.NX + self.NW
        self.RB = BN * 2
        self.RPI = 1024 // self.RB
        self.KS = BK // (512 // MS)
        p = 2
        self.XA = p; p += self.NX
        self.WA = p; p += self.NW
        self.nxr = self.KS if xmode == 'row' else 1
        self.NWIN = -(-NS * self.BUF // 65536)
        self.XR = p; p += self.nxr * self.NWIN
        self.nwr = self.TN // 2 if (MS == 16 and perm_out) else self.TN
        self.WR = p; p += self.nwr * self.NWIN
        self.TMP = p; p += 4
        p = (p + 3) // 4 * 4
        self.FX = [p, p + 4 * self.TM]; p += 8 * self.TM
        self.FW = [p, p + 4 * self.TN]; p += 8 * self.TN
        self.END = p
        self.lds = NS * self.BUF
    def acc(self, i, j): return ar(self.AR * (i * self.TN + j), self.AR)
    def dma(self, s):
        out = []
        xs = [[f's_add_u32 m0, {sM0x}, {s*self.BUF + j*1024}', f'buffer_load_dwordx4 v{self.XA+j}, {SX}, {sXo} offen {self.ld_flags} lds'] for j in range(self.NX)]
        ws = [[f's_add_u32 m0, {sM0w}, {s*self.BUF + j*1024}', f'buffer_load_dwordx4 v{self.WA+j}, {SWt}, {sWo} offen {self.w_flags} lds'] for j in range(self.NW)]
        while xs or ws:
            if xs: out.append(xs.pop(0))
            if ws: out.append(ws.pop(0))
        return out
    def gdma(self, a, s, n=1):
        d = self.dma(s); out = []
        for i in range(0, len(d), n):
            l = a.newlabel('L_gd'); x = sum(d[i:i+n], []) + (self.adv(s) if i + n >= len(d) else [])
            out.append(x[:1] + [f's_cbranch_vccz {l}'] + x[1:] + [l + ':'])
        return out
    def adv(self, s):
        if self.xmode == 'row': x = self.BK * 2
        else:
            per = 128 // self.BK
            x = self.BK * 32 if (s + 1) % per else 8192 - (per - 1) * self.BK * 32
        return [f's_add_u32 {sXo}, {sXo}, {x}', f's_add_u32 {sWo}, {sWo}, {sWstep}']
    def setup(self, a, mid=None, rowreg=None):
        g = self; lane = 'v1'; t0, t1 = f'v{g.TMP}', f'v{g.TMP+1}'
        kw = dict(lane=lane, tmp=t1)
        a(f'v_and_b32 {lane}, 63, v0')
        a(f'v_lshrrev_b32 {t0}, 6, v0'); a('s_nop 0'); a(f'v_readfirstlane_b32 {sWv}, {t0}')
        CPR = g.BK // 8; sh = CPR.bit_length() - 1; RX = 64 // CPR
        if g.xmode == 'row':
            a(f's_mul_i32 s90, {sWv}, {RX*g.NX}')
            a(f'v_lshrrev_b32 {t0}, {sh}, {lane}'); a(f'v_add_u32 {t0}, s90, {t0}')
            a(f'v_mul_lo_u32 {t0}, {t0}, {sLdx}')
            a(f'v_lshrrev_b32 {t1}, 4, {lane}'); a(f'v_xor_b32 {t1}, {t1}, {lane}'); a(f'v_and_b32 {t1}, {CPR-1}, {t1}')
            a(f'v_lshl_add_u32 v{g.XA}, {t1}, 4, {t0}')
            a(f's_mul_i32 s91, {sLdx}, {RX}')
            for j in range(1, g.NX):
                a(f'v_add_u32 v{g.XA+j}, s91, v{g.XA+j-1}')
                if g.BK == 64: a(f'v_xor_b32 v{g.XA+j}, 64, v{g.XA+j}')
        else:
            bpt = g.BK // 32
            bps = 2 * bpt
            if g.NX % bps == 0:
                a(f's_mul_i32 s90, {sWv}, {g.NX//bps}'); a(f's_mul_i32 s90, s90, {sLdx}')
            else:
                assert g.NX == bpt
                a(f's_lshr_b32 s90, {sWv}, 1'); a(f's_mul_i32 s90, s90, {sLdx}'); a(f's_and_b32 s91, {sWv}, 1'); a('s_lshl_b32 s91, s91, 12'); a('s_add_u32 s90, s90, s91')
            for j in range(g.NX):
                if j % bps == 0 and j: a(f's_add_u32 s90, s90, {sLdx}')
                lane_expr(a, f'v{g.XA+j}', [(0, 6, 16)], const=((j // bpt) & 1) * 4096 + (j % bpt) * 1024, sadd=['s90'], **kw)
        LPR = g.RB // 16; sh = LPR.bit_length() - 1
        a(f's_mul_i32 s90, {sWv}, {g.NW*g.RPI}')
        for j in range(g.NW):
            a(f'v_lshrrev_b32 {t0}, {sh}, {lane}'); a(f'v_add_u32 {t0}, {g.RPI*j}, {t0}')
            a(f'v_add_u32 {t0}, s90, {t0}')
            if rowreg and j == 0: a(f'v_mov_b32 {rowreg}, {t0}')
            if g.MS == 32:
                a(f'v_and_b32 {t1}, 3, {t0}'); a(f'v_lshlrev_b32 {t1}, 2, {t1}')
            elif g.xmode == 'row':
                a(f'v_and_b32 {t1}, 3, {t0}'); a(f'v_lshlrev_b32 {t1}, 1, {t1}'); a(f'v_and_b32 v{g.TMP+2}, 8, {t0}'); a(f'v_or_b32 {t1}, {t1}, v{g.TMP+2}')
            else:
                a(f'v_and_b32 {t1}, 7, {t0}'); a(f'v_lshlrev_b32 {t1}, 1, {t1}')
            a(f'v_xor_b32 {t1}, {t1}, {lane}'); a(f'v_and_b32 {t1}, {LPR-1}, {t1}')
            a(f'v_mul_lo_u32 {t0}, {t0}, {sLdw}')
            a(f'v_lshl_add_u32 v{g.WA+j}, {t1}, 4, {t0}')
        a(f's_mul_i32 {sWstep}, {sLdw}, {g.BK}')
        a(f's_mul_i32 {sM0x}, {sWv}, {g.NX*1024}'); a(f's_mul_i32 {sM0w}, {sWv}, {g.NW*1024}'); a(f's_add_u32 {sM0w}, {sM0w}, {g.XB}')
        if mid is None:
            for s in range(g.NS):
                for grp in g.dma(s):
                    for x in grp: a(x)
                for x in g.adv(s): a(x)
        else:
            for part in (1, 0):
                for s in range(g.NS):
                    for grp in g.dma(s):
                        if (SWt in grp[1]) == bool(part):
                            for x in grp: a(x)
                    a(g.adv(s)[part])
                if part: mid()
        a(f's_lshr_b32 s90, {sWv}, 1'); a(f's_and_b32 s91, {sWv}, 1')
        a(f's_mul_i32 s92, s90, {g.XB//2}')
        LB = 5 if g.MS == 32 else 4
        if g.xmode == 'row':
            lane_expr(a, t0, [(0, LB, g.BK * 2)], sadd=['s92'], **kw)
            a(f'v_lshrrev_b32 {t1}, {1 if g.BK == 64 else 2}, {lane}'); a(f'v_and_b32 {t1}, {CPR-1}, {t1}')
            a(f'v_lshrrev_b32 v{g.TMP+2}, {LB}, {lane}'); a(f'v_xor_b32 {t1}, {t1}, v{g.TMP+2}')
            a(f'v_lshl_add_u32 v{g.XR}, {t1}, 4, {t0}')
            for kk in range(1, g.KS): a(f'v_xor_b32 v{g.XR+kk}, {(1024 // g.MS)*kk}, v{g.XR}')
        elif g.MS == 32:
            lane_expr(a, f'v{g.XR}', [(0, 4, 16), (4, 1, g.BK * 32), (5, 1, 256)], sadd=['s92'], **kw)
        else:
            lane_expr(a, f'v{g.XR}', [(0, 6, 16)], sadd=['s92'], **kw)
        for w in range(1, g.NWIN):
            for kk in range(g.nxr): a(f'v_add_u32 v{g.XR + w*g.nxr + kk}, {65536*w}, v{g.XR+kk}')
        hirow = 8 if g.xmode == 'row' else 4
        t2 = f'v{g.TMP+2}'
        if g.MS == 32:
            colterms = [(4, 1, 32), (0, 2, 8)] if not g.perm_out else [(0, 1, 32), (4, 1, 16), (1, 1, 8)]
            lane_expr(a, t0, [(2, 2, g.RB), (5, 1, hirow * g.RB)] + colterms, **kw)
            a(f'v_bfe_u32 {t2}, {lane}, 2, 2'); ush = 6
        else:
            colterms = [(0, 2, 8)] if not g.perm_out else [(0, 1, 16)]
            lane_expr(a, t0, [(2, 2, g.RB), (4, 2, hirow * g.RB)] + colterms, **kw)
            a(f'v_bfe_u32 {t2}, {lane}, 2, 3'); ush = 5
            if g.perm_out: a(f'v_bfe_u32 {t1}, {lane}, 1, 1'); a(f'v_xor_b32 {t2}, {t2}, {t1}')
        a(f's_mul_i32 s92, s91, {g.TN}')
        for jn in range(g.nwr):
            a(f's_add_u32 s93, s92, {jn * (g.TN // g.nwr)}')
            a(f'v_xor_b32 {t1}, s93, {t2}')
            a(f'v_lshl_add_u32 v{g.WR+jn}, {t1}, {ush}, {t0}')
            for w in range(1, g.NWIN): a(f'v_add_u32 v{g.WR + w*g.nwr + jn}, {65536*w}, v{g.WR+jn}')
    def frags(self, s, kk, f):
        g = self
        xs, wl = [], []
        for i in range(g.TM):
            off = s * g.BUF + i * g.MS * g.BK * 2 + (0 if g.xmode == 'row' else (16384 // g.MS) * kk)
            w, off = off >> 16, off & 0xffff
            xs.append(f'ds_read_b128 {vr(g.FX[f] + 4*i, 4)}, v{g.XR + w*g.nxr + (kk if g.xmode == "row" else 0)} offset:{off}')
        for jn in range(g.TN):
            for h in range(2):
                if g.MS == 32: row = 16 * kk + 4 * h if g.xmode == 'row' else 32 * (kk >> 1) + 8 * (kk & 1) + 16 * h
                else: row = 32 * kk + (4 if g.xmode == 'row' else 16) * h
                off = s * g.BUF + g.XB + row * g.RB
                jr = jn
                if g.nwr != g.TN: jr = jn >> 1; off += (jn & 1) * 8
                w, off = off >> 16, off & 0xffff
                wl.append(f'ds_read_b64_tr_b16 {vr(g.FW[f] + 4*jn + 2*h, 2)}, v{g.WR + w*g.nwr + jr} offset:{off}')
        res = []
        while xs or wl:
            if xs: res.append(xs.pop(0))
            res += wl[:2]; wl = wl[2:]
        return res
    def mfmas(self, f, orient, first=False):
        g = self; out = []
        op = 'v_mfma_f32_32x32x16_bf16' if g.MS == 32 else 'v_mfma_f32_16x16x32_bf16'
        for i in range(g.TM):
            for j in range(g.TN):
                X, W = vr(g.FX[f] + 4*i, 4), vr(g.FW[f] + 4*j, 4)
                A, B = (W, X) if orient == 'T' else (X, W)
                out.append(f'{op} {g.acc(i,j)}, {A}, {B}, {0 if first else g.acc(i,j)}')
        return out
    def loop(self, a, tag, orient, younger=0, hook=None, exp='', fin_hook=None, xlast=False, extra=(), chain=None):
        g = self; L = lambda s: f'L_{tag}_{s}'
        NS, KS, ND = g.NS, g.KS, g.ND
        a(f's_waitcnt vmcnt({min(63, (NS-1)*(g.NX if xlast else ND) + younger + (chain["w0"] if chain else 0))})'); a('s_barrier')
        for x in g.frags(0, 0, 0): a(x)
        def stage(s, pend, wait, do_dma, last=False, first=False, after=None, pre0=()):
            for kk in range(KS):
                ms = g.mfmas(kk & 1, orient, first and kk == 0)
                n = len(ms)
                a('s_waitcnt lgkmcnt(0)')
                start = 0
                if kk == 0:
                    for x in pre0: a(x)
                if kk == KS - 1:
                    if last and not do_dma:
                        for m in ms: a(m)
                        return []
                    assert not pend
                    a(ms[0]); start = 1
                    if not last: a(f's_waitcnt vmcnt({wait})')
                    a('s_barrier')
                    if after: after(a)
                    rd = g.frags((s + 1) % NS, 0, 0) if not last else []
                    if do_dma: pend = g.dma(s) + [g.adv(s)]
                    if do_dma == 2: pend = g.gdma(a, s) if not (last and chain['e1']) else []
                    quota = -(-len(pend) // KS)
                    if 'front' in exp: quota = -(-len(pend) // (KS // 2))
                else:
                    rd = g.frags(s, kk + 1, (kk + 1) & 1)
                    quota = -(-len(pend) // (KS - 1 - kk))
                    if 'front' in exp: quota = len(pend)
                slots = n - start
                per = -(-len(rd) // max(1, slots - 2 if slots > 4 else slots))
                gap = max(1, (slots - 8) // max(1, len(rd))) if slots > 16 else 1
                quota = min(quota, len(pend))
                pos = [start + (q * slots) // quota for q in range(quota)] if quota else []
                for q in range(start, n):
                    mine = [pend.pop(0) for _ in range(pos.count(q))]
                    pre = mine[0][:1] if mine else []
                    for x in pre: a(x)
                    a(ms[q])
                    for k, grp in enumerate(mine):
                        for x in (grp[1:] if k == 0 else grp): a(x)
                    if (q - start) % gap == 0:
                        for x in rd[:per]: a(x)
                        rd = rd[per:]
                assert not rd
            return pend
        W = (NS - 2) * ND
        pend = [['s_nop 0', x] for x in extra]
        younger += len(extra)
        a(f's_sub_u32 {sNk}, {sNk}, 1')
        for s in range(NS):
            w = W + younger if s < NS - 1 else W
            if xlast and s < NS - 1: w = (NS - 2 - s) * g.NX + s * ND + younger
            pend = stage(s, pend, min(63, w), True, first=(s == 0), after=hook if s == NS - 1 else None)
        p0 = [list(x) for x in pend]
        a.label(L('loop'))
        a(f's_sub_u32 {sNk}, {sNk}, 1'); a(f's_cmp_eq_u32 {sNk}, 0'); a(f's_cbranch_scc1 {L("fin")}')
        if chain: chain['req'](a); assert NS == 2 and not p0
        for s in range(NS): pend = stage(s, pend, W, True, **(dict(pre0=chain['wr'], after=chain['rd']) if chain and s == NS - 1 else {}))
        assert pend == p0
        a(f's_branch {L("loop")}')
        a.label(L('fin'))
        if fin_hook: fin_hook(a)
        pend = [list(x) for x in p0]
        for s in range(NS): pend = stage(s, pend, max(0, NS - 2 - s) * ND, 2 if chain else False, last=(s == NS - 1), **(dict(after=chain['dec'], pre0=chain['ld']) if chain and s == 0 else {}))
        assert not pend
    def once(self, a, orient):
        g = self
        steps = [(s, kk) for s in range(g.NS) for kk in range(g.KS)]
        a(f's_waitcnt vmcnt({(g.NS//2)*g.NX})'); a('s_barrier')
        for x in g.frags(0, 0, 0): a(x)
        for n, (s, kk) in enumerate(steps):
            a('s_waitcnt lgkmcnt(0)')
            if n + 1 == len(steps) // 2: a('s_waitcnt vmcnt(0)'); a('s_barrier')
            rd = g.frags(*steps[n + 1], (n + 1) & 1) if n + 1 < len(steps) else []
            for m in g.mfmas(n & 1, orient, n == 0):
                a(m)
                for x in rd[:2]: a(x)
                rd = rd[2:]
            assert not rd
    def epilogue(self, a, epi, EP, st_flags='', lane='v1', SO=SO, sOo=sOo, sSeg=sSeg, defer=None, inter=(), ipos=0):
        g = self; TM, TN = g.TM, g.TN
        t0, t1, ad = f'v{EP}', f'v{EP+1}', f'v{EP+2}'
        if defer: ad, t0 = defer['ad'], defer['ad2']
        EP += 4
        kw = dict(lane=lane, tmp=t1)
        a(f's_lshr_b32 s90, {sWv}, 1'); a(f's_and_b32 s91, {sWv}, 1')
        def rdacc(dst, i, j, regs):
            for q, r in enumerate(regs): a(f'v_accvgpr_read_b32 v{dst+q}, a{16*(i*TN+j)+r}')
        cnt = 0
        if g.MS == 16:
            def rd2(dst, t1_, t2_, inter):
                ra, rb_ = 4 * (t1_[0] * TN + t1_[1]), 4 * (t2_[0] * TN + t2_[1])
                regs = [x for q in range(4) for x in (ra + q, rb_ + q)] if inter else [ra + q for q in range(4)] + [rb_ + q for q in range(4)]
                for q, r in enumerate(regs): a(f'v_accvgpr_read_b32 v{dst+q}, a{r}')
            if epi in ('qk', 'v'):
                lane_expr(a, ad, [(0, 6, 16)], **kw); a(f'v_add_u32 {t0}, 4096, {ad}')
                a(f's_mul_i32 s92, s90, {TM//2}'); a(f's_mul_i32 s92, s92, {sSeg}'); a(f's_add_u32 s92, s92, {sOo}')
                a(f's_mul_i32 s93, s91, {8192 if TN == 8 else (2048 if epi == "qk" else 4096)}'); a('s_add_u32 s92, s92, s93')
                def unit(sg_, u, dst=None):
                    nonlocal cnt
                    e = EP + 12 * (cnt % 4); cnt += 1
                    if epi == 'qk':
                        tt, jj = u // (TN // 2), u % (TN // 2)
                        rd2(e + 4, (2*sg_ + tt, 2*jj), (2*sg_ + tt, 2*jj + 1), True); off = tt * 4096 + jj * 1024
                    else:
                        rd2(e + 4, (2*sg_, u), (2*sg_ + 1, u), False); off = u * 1024
                    d = e if dst is None else dst
                    if inter and cnt > ipos:
                        for x in inter.pop(0): a(x)
                    for q in range(4): a(f'v_cvt_pk_bf16_f32 v{d+q}, v{e+4+2*q}, v{e+5+2*q}')
                    if dst is None: a(f'buffer_store_dwordx4 {vr(e,4)}, {t0 if off >= 4096 else ad}, {SO}, s92 offen offset:{off & 4095} {st_flags}')
                nd = TM // 4 if defer else TM // 2
                for sg_ in range(nd):
                    for u in range(TN):
                        unit(sg_, u)
                        if defer: unit(sg_ + nd, u, defer['base'] + 4 * (sg_ * TN + u))
                    a(f's_add_u32 s92, s92, {sSeg}')
                assert not inter
                if defer:
                    a(f's_mov_b32 {defer["s0"]}, s92'); a(f's_add_u32 {defer["s1"]}, s92, {sSeg}')
            else:
                a(f'v_and_b32 {t0}, 15, {lane}'); a(f'v_mul_lo_u32 {t0}, {t0}, {sSeg}')
                a(f'v_lshrrev_b32 {t1}, 4, {lane}'); a(f'v_lshl_add_u32 {ad}, {t1}, 4, {t0}')
                a(f's_mul_i32 s92, s90, {TM*16}'); a(f's_mul_i32 s92, s92, {sSeg}'); a(f's_add_u32 s92, s92, {sOo}')
                a(f's_mul_i32 s93, s91, {TN*32}'); a('s_add_u32 s92, s92, s93')
                a(f's_lshl_b32 s94, {sSeg}, 4')
                for i in range(TM):
                    for jj in range(TN // 2):
                        e = EP + 12 * (cnt % 4); cnt += 1
                        rd2(e + 4, (i, 2*jj), (i, 2*jj + 1), False)
                        for q in range(4): a(f'v_cvt_pk_bf16_f32 v{e+q}, v{e+4+2*q}, v{e+5+2*q}')
                        a(f'buffer_store_dwordx4 {vr(e,4)}, {ad}, {SO}, s92 offen offset:{64*jj} {st_flags}')
                    a('s_add_u32 s92, s92, s94')
        elif epi in ('qk', 'v'):
            hs, ks = (4096, 1024) if epi == 'qk' else (1024, 2048)
            lane_expr(a, ad, [(0, 4, 16), (4, 1, hs), (5, 1, 256)], **kw)
            a(f's_mul_i32 s92, s90, {TM}'); a(f's_mul_i32 s92, s92, {sSeg}'); a(f's_add_u32 s92, s92, {sOo}')
            a(f's_mul_i32 s93, s91, {8192 if TN == 4 else TN*ks}'); a('s_add_u32 s92, s92, s93')
            for i in range(TM):
                for j in range(TN):
                    a(f's_add_u32 s93, s92, {j*ks}')
                    for ap in range(2):
                        e = EP + 12 * (cnt % 4); cnt += 1
                        if epi == 'qk': rdacc(e + 4, i, j, [4*ap + (q >> 1) + 8 * (q & 1) for q in range(8)])
                        else: rdacc(e + 4, i, j, [4*ap + q for q in range(4)] + [4*ap + 8 + q for q in range(4)])
                        for q in range(4): a(f'v_cvt_pk_bf16_f32 v{e+q}, v{e+4+2*q}, v{e+5+2*q}')
                        a(f'buffer_store_dwordx4 {vr(e,4)}, {ad}, {SO}, s93 offen offset:{512*ap} {st_flags}')
                a(f's_add_u32 s92, s92, {sSeg}')
        else:
            a(f'v_and_b32 {t0}, 31, {lane}'); a(f'v_mul_lo_u32 {t0}, {t0}, {sSeg}')
            a(f'v_lshrrev_b32 {t1}, 5, {lane}'); a(f'v_lshl_add_u32 {ad}, {t1}, 5, {t0}')
            a(f's_mul_i32 s92, s90, {TM*32}'); a(f's_mul_i32 s92, s92, {sSeg}'); a(f's_add_u32 s92, s92, {sOo}')
            a(f's_mul_i32 s93, s91, {TN*64}'); a('s_add_u32 s92, s92, s93')
            a(f's_lshl_b32 s94, {sSeg}, 5')
            for i in range(TM):
                for j in range(TN):
                    for ap in range(2):
                        e = EP + 12 * (cnt % 4); cnt += 1
                        rdacc(e + 4, i, j, [8*ap + q for q in range(8)])
                        for q in range(4): a(f'v_cvt_pk_bf16_f32 v{e+q}, v{e+4+2*q}, v{e+5+2*q}')
                        a(f'buffer_store_dwordx4 {vr(e,4)}, {ad}, {SO}, s92 offen offset:{64*j + 16*ap} {st_flags}')
                a('s_add_u32 s92, s92, s94')
        return cnt

def gen_gemm(a, tag, BM, BN, xmode, orient, epi, st_flags='', stamp=False, BK=None, NS=None, K=None, exp='', MS=32):
    BK = BK or (32 if BM * BN == 65536 else 64); NS = NS or 4
    g = Gemm(BM, BN, BK, NS, xmode, perm_out=(epi == 'out'), MS=MS)
    r = BK * NS // 128
    if r > 1: a(f's_lshr_b32 {sNk}, {sNk}, {r.bit_length()-1}')
    if stamp: a('s_memtime s[40:41]')
    g.setup(a)
    if stamp: a(f's_waitcnt vmcnt({(NS-1)*g.ND})'); a('s_barrier'); a('s_memtime s[42:43]')
    g.loop(a, tag, orient, exp=exp)
    if stamp: a('s_memtime s[44:45]')
    g.epilogue(a, epi, g.FX[0], st_flags)
    if stamp:
        a('s_memtime s[46:47]'); a('s_waitcnt vmcnt(0)'); a('s_memtime s[48:49]'); a('s_waitcnt lgkmcnt(0)')
        a('s_sub_u32 s48, s48, s46'); a('s_sub_u32 s46, s46, s44'); a('s_sub_u32 s44, s44, s42'); a('s_sub_u32 s42, s42, s40')
        a('v_mov_b32 v4, s42'); a('v_mov_b32 v5, s44'); a('v_mov_b32 v6, s46'); a('v_mov_b32 v7, s48')
        a('s_lshl_b32 s90, s2, 2'); a(f's_add_u32 s90, s90, {sWv}'); a('s_lshl_b32 s90, s90, 4'); a(f's_add_u32 s90, s90, {STAMP:#x}')
        a('v_mov_b32 v8, 0'); a('s_mov_b64 exec, 1')
        a(f'buffer_store_dwordx4 v[4:7], v8, {stamp}, s90 offen')
    return g.lds
```

```python
import math
from asmgen import *
from layout import *

SC = (128 ** -0.5) * math.log2(math.e)
import struct
def f32bits(x): return struct.unpack('<I', struct.pack('<f', x))[0]

def lane_expr(a, dst, terms, const=0, sadd=(), lane='v0', tmp='v31', stmp='s99'):
    a(f'v_mov_b32 {dst}, {const:#x}')
    for (lo, w, mult) in terms:
        a(f'v_bfe_u32 {tmp}, {lane}, {lo}, {w}')
        if mult & (mult - 1) == 0:
            a(f'v_lshl_add_u32 {dst}, {tmp}, {mult.bit_length()-1}, {dst}')
        else:
            a(f's_mov_b32 {stmp}, {mult}')
            a(f'v_mad_u32_u24 {dst}, {tmp}, {stmp}, {dst}')
    for s in sadd:
        a(f'v_add_u32 {dst}, {s}, {dst}')

def srd(a, d, base, size):
    a(f's_mov_b32 s{d}, s{base}')
    a(f's_and_b32 s{d+1}, s{base+1}, 0xffff')
    a(f's_mov_b32 s{d+2}, {size:#x}')
    a(f's_mov_b32 s{d+3}, 0x20000')

SW = 's[4:7]'
(aPartLd, aMemSt, aMemLd, aRedW, aRedRv, aRedR, aQ0, aQ1, aQkLd, aVLd, aKx, aVx0, aVx1, aOW0, aOW1, aOR,
 aPartSt, aPartStL, aE0, aE1, aWarm) = [f'v{i}' for i in range(1, 22)]
aRR = ['v6', 'v240', 'v241', 'v242']
vNeg = 'v22'
vIdx = 'v23'
NEG = 24
SEL = 24
T = 28
WACC = 32
GL = 36
GD = 40
GT = 44
SA = 36
MA = 48
QA = 64
XR = 64
WA = 48
RD = 88
VMR = 88
YY = 96
LR = 100
PA = 100
ET = 104
KXR = 116
VB = 148
VL = 180
OB_ = 212
def OT(j): return OB_ + 4 * j
OSUM = 228
PM = 232
CT = 236
ONES = 248
PUB = 112
sW, sX, sI, sG, sU, sHQ, sJ, sPol = 's32', 's33', 's34', 's35', 's36', 's37', 's38', 's39'
sStep, sSlot, sPrev, sRst, sKV, sExp, sSpin, sC = 's40', 's41', 's42', 's43', 's44', 's45', 's46', 's47'
sHalf0, sOdd, sEven = 's[48:49]', 's[50:51]', 's[52:53]'
sGuard, sKV2 = 's54', 's55'
LDS_RED = 0
RM, RW = 1088, 3264
LDS_O = 13312
SPIN_MAX = 1 << 17

class Stamps:
    def __init__(self, a, on): self.a = a; self.on = on; self.n = 0; self.names = []
    def init(self):
        if not self.on: return
        for k in range(16): self.a(f's_mov_b32 s{64+k}, 0')
        self.calib(76)
        self.a('s_memtime s[60:61]'); self.a('s_waitcnt lgkmcnt(0)')
    def calib(self, d):
        if self.on not in (2, 4): return
        if self.on == 4: d += 20
        a = self.a; l = a.newlabel('L_cal')
        a('s_memrealtime s[60:61]'); a('s_waitcnt lgkmcnt(0)')
        a.label(l)
        a('s_memrealtime s[62:63]'); a('s_memtime s[56:57]'); a('s_waitcnt lgkmcnt(0)')
        a('s_cmp_eq_u32 s60, s62'); a(f's_cbranch_scc1 {l}')
        a(f's_mov_b32 s{d}, s62'); a(f's_mov_b32 s{d+1}, s56')
    def __call__(self, name, only4=False):
        if not self.on: return
        if only4 and self.on != 4: return
        if self.on == 4 and name == 'PV': return
        if self.on == 3 and name != 'tail': return
        if name not in self.names: self.names.append(name)
        k = self.names.index(name)
        a = self.a
        if self.on == 4:
            a(f's_memtime s[{64+2*k}:{65+2*k}]'); return
        if self.on == 2:
            a('s_memtime s[62:63]'); a('s_waitcnt lgkmcnt(0)')
            a(f's_cmp_eq_u32 {sStep}, 40'); a(f's_cselect_b32 s{64+k}, s62, s{64+k}')
            return
        a('s_memtime s[62:63]'); a('s_waitcnt lgkmcnt(0)')
        a('s_sub_u32 s61, s62, s60'); a(f's_add_u32 s{64+k}, s{64+k}, s61'); a('s_mov_b32 s60, s62')

def chk(base, n=4, dst='vcc', t=None):
    t = t or f'v{T+3}'
    regs = [f'v{base+i}' for i in range(n)]
    out = [f'v_max3_u32 {t}, {regs[0]}, {regs[1]}, {regs[2]}']
    regs = regs[3:]
    while len(regs) >= 2:
        out.append(f'v_max3_u32 {t}, {t}, {regs[0]}, {regs[1]}'); regs = regs[2:]
    if regs: out.append(f'v_max_u32 {t}, {t}, {regs[0]}')
    out.append(f'v_cmp_eq_u32 {dst}, -1, {t}')
    return out

def spin_guard(c):
    c(f's_add_u32 {sSpin}, {sSpin}, 1'); c(f's_cmp_ge_u32 {sSpin}, {SPIN_MAX}'); c('s_cbranch_scc1 L_rec_abort')

sMode4 = 's100'
sBit = 's101'
vClaim = 'v247'
LDS_X = 131072
LDS_T = LDS_X + 64

def signal(a, off, soff='0', srd_='s[28:31]', inc='1', two=False):
    l = a.newlabel('L_sig')
    a(f's_cmp_lg_u32 {sW}, 0'); a(f's_cbranch_scc1 {l}')
    a(f'v_mov_b32 v254, {inc}'); a('v_mov_b32 v255, 0')
    if two:
        a('v_and_b32 v254, 3, v254')
        a('v_mbcnt_lo_u32_b32 v255, -1, 0'); a('v_lshlrev_b32 v255, 9, v255')
        a(f's_cmp_ge_u32 {inc}, 2'); a('s_cselect_b64 exec, 3, 1')
    else: a('s_mov_b64 exec, 1')
    a(f'buffer_atomic_add v254, v255, {srd_}, {soff} offen offset:{off} sc1')
    a('s_mov_b64 exec, -1')
    a.label(l)

def verify(a, want_pol=False, spin='s3', kv=False):
    lw, ld, lk = a.newlabel('L_vw'), a.newlabel('L_vd'), a.newlabel('L_vk')
    a('v_mbcnt_lo_u32_b32 v250, -1, 0'); a('v_mbcnt_hi_u32_b32 v250, -1, v250')
    a(f's_lshl_b32 s90, {sW}, 9'); a(f's_add_u32 s90, s90, {LDS_T}'); a('v_lshl_add_u32 v251, v250, 3, s90'); a('ds_write_b64 v251, v[248:249]'); a('s_waitcnt lgkmcnt(0)')
    a(f's_cmp_lg_u32 {sW}, 0'); a(f's_cbranch_scc1 {ld}')
    a('v_lshlrev_b32 v250, 2, v250')
    a(f's_cmp_lg_u32 {sMode4}, 0'); a(f's_cbranch_scc1 {lw}')
    a(f'v_readfirstlane_b32 s90, {vClaim}'); a(f's_and_b32 s90, s90, {sBit}'); a(f's_cbranch_scc0 {lw}')
    a('v_mov_b32 v251, 1'); a('s_mov_b64 exec, 1')
    a(f'buffer_store_dword v251, v250, s[28:31], 0 offen offset:{D_FAIL} sc1'); a('s_mov_b64 exec, -1')
    a.label(lw)
    a('buffer_load_dword v251, v250, s[28:31], 0 offen sc1')
    a('s_waitcnt vmcnt(0)')
    a('v_cmp_eq_u32 vcc, -1, v251')
    a(f'v_readlane_b32 s91, v251, {D_FAIL//4}'); a(f'v_readlane_b32 s92, v251, {D_POL//4}')
    a(f'v_readlane_b32 s93, v251, {D_INIT//4}'); a(f'v_readlane_b32 s90, v251, {D_INIT2//4}')
    a(f's_cmp_lg_u32 {sMode4}, 0')
    a('s_cselect_b32 s93, s90, s93'); a('s_cselect_b32 s91, 0, s91'); a('s_cselect_b32 s92, 1, s92'); a('s_cselect_b32 s90, 0xff, vcc_lo')
    a('s_cmp_lg_u32 s91, 0'); a('s_cselect_b32 s92, 3, s92'); a(f's_cbranch_scc1 {lk}')
    a(f's_add_u32 {spin}, {spin}, 1'); a(f's_cmp_ge_u32 {spin}, {SPIN_MAX}'); a('s_cselect_b32 s92, 4, s92'); a(f's_cbranch_scc1 {lk}')
    a('s_sleep 8')
    a('s_and_b32 s90, s90, 0xff'); a('s_cmp_lg_u32 s90, 0xff'); a(f's_cbranch_scc1 {lw}')
    a('s_cmp_lt_u32 s93, 128'); a(f's_cbranch_scc1 {lw}')
    if want_pol: a('s_cmp_eq_u32 s92, 0'); a(f's_cbranch_scc1 {lw}')
    a.label(lk)
    a(f'v_mov_b32 v251, s92'); a(f'v_mov_b32 v250, {LDS_X}'); a('ds_write_b32 v250, v251'); a('s_waitcnt lgkmcnt(0)')
    a.label(ld)
    a('s_barrier')
    a(f'v_mov_b32 v250, {LDS_X}'); a('ds_read_b32 v251, v250'); a('s_waitcnt lgkmcnt(0)')
    a('v_readfirstlane_b32 s92, v251')
    a('s_barrier')
    a('s_cmp_eq_u32 s92, 3'); a('s_cbranch_scc1 L_fallback')
    a('s_cmp_eq_u32 s92, 4'); a('s_cbranch_scc1 L_exit')
    if want_pol: a(f's_sub_u32 {sPol}, s92, 1'); a(f's_and_b32 {sPol}, {sPol}, 1'); a(f's_lshl_b32 {sPol}, {sPol}, 13')

def gather(a, cold, name, loads, regs, work, extra=0, thr=2, per=0):
    n = len(loads)
    done = f'L_{name}_done'
    def mix(w, pre):
        if not per: return w[:1] + pre + w[1:]
        out = []; pre = list(pre)
        for x in w:
            out.append(x)
            k = 0
            while pre and k < per:
                y = pre.pop(0); out.append(y)
                if y.startswith('v_'): k += 1
        return out + pre
    a(f's_waitcnt vmcnt({n-1+extra})')
    for x in chk(regs[0]): a(x)
    ex = [extra]
    for j in range(n):
        a(f's_cbranch_vccnz L_{name}_f{j}')
        if j + 1 < n:
            for x in mix(work[j], [f's_waitcnt vmcnt({n-2-j+ex[j]})'] + chk(regs[j+1])): a(x)
        else:
            for x in work[j]: a(x)
        ex.append(ex[j] + sum(x.startswith('buffer_') for x in work[j]))
    a.label(done)
    c = cold
    def key(S): return ''.join(map(str, S))
    def succ(S, j):
        later = [x for x in S if x > j]
        return later[0] if later else S[0]
    for j in range(n):
        S = tuple(range(j, n))
        c.label(f'L_{name}_f{j}')
        c('s_mov_b64 exec, vcc'); c(loads[j]); c('s_mov_b64 exec, -1')
        c(f's_waitcnt vmcnt({1+ex[j]})' if len(S) > 1 else f's_nop 7')
        c(f's_branch L_{name}_{key(S)}_c{succ(S, j)}')
    import itertools
    for r in range(1, n + 1):
        for S in itertools.combinations(range(n), r):
            for j in S:
                c.label(f'L_{name}_{key(S)}_c{j}')
                for x in chk(regs[j]): c(x)
                c(f's_cbranch_vccz L_{name}_{key(S)}_ok{j}')
                c.label(f'L_{name}_{key(S)}_x{j}')
                c('s_mov_b64 exec, vcc'); c(loads[j]); c('s_mov_b64 exec, -1')
            spin_guard(c)
            c(f's_waitcnt vmcnt({min(thr * len(S), 2 * thr)})')
            c(f's_branch L_{name}_{key(S)}_c{S[0]}')
            for j in S:
                c.label(f'L_{name}_{key(S)}_ok{j}')
                S2 = tuple(x for x in S if x != j)
                if not S2:
                    for x in work[j]: c(x)
                    c(f's_branch {done}')
                else:
                    nx = succ(S2, j)
                    for x in mix(work[j], chk(regs[nx])): c(x)
                    c(f's_cbranch_vccz L_{name}_{key(S2)}_ok{nx}')
                    c(f's_branch L_{name}_{key(S2)}_x{nx}')

def gather_all(a, cold, name, loads, regs, extra=0, thr=0):
    a(f's_waitcnt vmcnt({extra})')
    for x in chk(regs[0], 8): a(x)
    a(f's_cbranch_vccnz L_{name}_f')
    a.label(f'L_{name}_done')
    c = cold
    c.label(f'L_{name}_f')
    for x in chk(regs[0], 4, 's[56:57]', f'v{T+2}'): c(x)
    for x in chk(regs[1], 4, 'vcc'): c(x)
    c('s_or_b64 exec, s[56:57], 1'); c(loads[0])
    c('s_or_b64 exec, vcc, 1'); c(loads[1]); c('s_mov_b64 exec, -1')
    spin_guard(c)
    c(f's_waitcnt vmcnt({thr})')
    for x in chk(regs[0], 8): c(x)
    c(f's_cbranch_vccz L_{name}_done')
    c(f's_branch L_{name}_f')

def gen_rec(a, nsteps=64, stamps=False, local_st='', exp_st='', exit_label='L_rec_exit', no_pf=False, no_exp=False, pol=None,
            dg=0, d1=0, d2=0, thr=2, gthr=0, warm=2, npre=5, cut=0, f1=24, nv1=5, nv2=3, nA=5, nB=6, nr0=5, vat=0, allafter=0, fused=False, kvneed=16, sweep=False, wtouch=None, wfl='', rt=False, xo='', defv=1, mper=0, xper=0, zsh=0, wsp=(8, 8), spos=0, lr=1, ow2=0, zlate=0, c3=1, rw=16, kw0=0, rwu=19):
    st = Stamps(a, stamps)
    def rts(k):
        if not rt: return
        a('s_memrealtime s[60:61]'); a('s_waitcnt lgkmcnt(0)')
        a(f's_lshl_b32 s62, s2, 5'); a(f's_add_u32 s62, s62, {STAMP + 131072 + 4*k:#x}')
        a('v_mov_b32 v28, 0'); a('v_mov_b32 v29, s60'); a('s_mov_b64 exec, 1')
        a(f'buffer_store_dword v29, v28, {SW}, s62 offen'); a('s_mov_b64 exec, -1')
    cold = Asm(); cold.uid = 5000
    if cut == 1: a('s_endpgm')
    a('s_load_dwordx4 s[80:83], s[0:1], 8')
    a('s_load_dwordx4 s[84:87], s[0:1], 24')
    a('s_load_dwordx2 s[88:89], s[0:1], 40')
    a('v_lshrrev_b32 v31, 6, v0')
    a('s_nop 0')
    a(f'v_readfirstlane_b32 {sW}, v31')
    a('v_and_b32 v0, 63, v0')
    a(f's_lshr_b32 {sG}, {sI}, 4'); a(f's_lshl_b32 s90, {sX}, 1'); a(f's_add_u32 {sG}, {sG}, s90')
    a(f's_and_b32 {sU}, {sI}, 15')
    a(f's_lshr_b32 {sHQ}, {sU}, 2'); a(f's_lshl_b32 s90, {sG}, 2'); a(f's_add_u32 {sHQ}, {sHQ}, s90')
    a(f's_and_b32 {sJ}, {sU}, 3')
    a('s_waitcnt lgkmcnt(0)')
    srd(a, 24, 80, 8 * 1024 * 2)
    srd(a, 8, 82, 8 << 20); srd(a, 12, 84, 8 << 20); srd(a, 16, 86, 8 << 20); srd(a, 20, 88, 8 << 20)
    a(f's_lshl_b32 s90, {sW}, 21'); a(f's_lshl_b32 s91, {sHQ}, 8'); a(f's_add_u32 s90, s90, s91')
    a(f's_lshr_b32 s91, {sJ}, 1'); a('s_lshl_b32 s91, s91, 7'); a(f's_add_u32 s90, s90, s91')
    lane_expr(a, 'v180', [(3, 3, 8192), (0, 3, 16)], sadd=['s90'])
    a('v_xor_b32 v185, 128, v180')
    a(f's_lshl_b32 s90, {sG}, 2'); a(f's_add_u32 s90, s90, {sW}'); a('s_lshl_b32 s90, s90, 18'); a(f's_lshl_b32 s91, {sU}, 7'); a('s_add_u32 s90, s90, s91')
    lane_expr(a, 'v181', [(3, 3, 2048), (0, 3, 16)], sadd=['s90'])
    a(f's_lshl_b32 s96, {sW}, 15')
    a(f's_and_b32 s91, {sJ}, 1'); a('s_lshl_b32 s91, s91, 6'); a('s_add_u32 s91, s91, s96')
    lane_expr(a, 'v182', [(5, 1, 16 * 128), (4, 1, 8 * 128), (2, 2, 128), (0, 2, 8)], sadd=['s91'])
    a(f's_lshl_b32 s91, {sW}, 5')
    lane_expr(a, 'v183', [(4, 1, 64 * 128), (5, 1, 2 * 128), (2, 1, 8 * 128), (3, 1, 128), (0, 2, 8)], sadd=['s91'])
    a('v_add_u32 v184, 0x10000, v183')
    units = [(ks, h, m) for ks in range(4) for h in range(2) for m in (1, 2)] + [(ks, h, 0) for ks in range(4) for h in range(2)]
    def issue(u):
        for q in range(4):
            a(f's_add_u32 m0, s96, {(u % 8) * 4096 + q * 1024}')
            if u < 24:
                ks, h, m = units[u]
                a(f's_mov_b32 s90, {(64*ks + 32*h + 8*q) * 8192:#x}')
                a(f'buffer_load_dwordx4 v{185 if m == 2 else 180}, s[{8+4*m}:{11+4*m}], s90 offen {wfl} lds')
            else:
                a(f's_mov_b32 s90, {(32*(u-24) + 8*q) * 2048:#x}')
                a(f'buffer_load_dwordx4 v181, s[20:23], s90 offen {wfl} lds')
    NP = 4
    a(f's_lshl_b32 s97, {sI}, 2'); a(f's_add_u32 s97, s97, {sW}')
    a('s_lshl_b32 s98, s97, 14'); a(f's_lshl_b32 s91, {sX}, 21'); a('s_add_u32 s98, s98, s91')
    a('s_lshl_b32 s97, s97, 16'); a(f's_lshl_b32 s91, {sX}, 11'); a('s_add_u32 s97, s97, s91')
    lane_expr(a, 'v16', [(0, 4, 128), (4, 2, 8192)]); a('v_add_u32 v17, 0x8000, v16')
    a('v_lshlrev_b32 v18, 7, v0'); a('v_add_u32 v19, 0x2000, v18')
    def touch(m):
        if not wtouch: return
        for q in range(2):
            if m < 3: a(f'buffer_load_dword v{20+2*m+q}, v{16+q}, s[{8+4*m}:{11+4*m}], s97 offen')
            else: a(f'buffer_load_dword v{20+2*m+q}, v{18+q}, s[20:23], s98 offen')
    touch(1); touch(2)
    if c3:
        a(f's_lshl_b32 s97, {sI}, 2'); a(f's_add_u32 s97, s97, {sW}')
        a('s_lshl_b32 s98, s97, 14'); a(f's_lshl_b32 s91, {sX}, 21'); a('s_add_u32 s98, s98, s91')
        a('s_lshl_b32 s97, s97, 16'); a(f's_lshl_b32 s91, {sX}, 11'); a('s_add_u32 s97, s97, s91')
        lane_expr(a, 'v16', [(0, 1, 1024), (1, 3, 8192)], const=384)
        lane_expr(a, 'v17', [(0, 4, 1024)], const=384)
        a('s_mov_b64 exec, 0xffff')
        for m in ((1, 2, 0, 3) if c3 == 1 else (1, 2)):
            a(f'buffer_load_dword v{200+m}, v{16 + (m == 3)}, s[{8+4*m}:{11+4*m}], s{97 + (m == 3)} offen')
        a('s_mov_b64 exec, -1')
    POLOFF = D_POL if fused else 32
    a(f's_lshl_b32 s58, {sX}, 5'); a(f's_add_u32 s58, s58, {sI}')
    if fused:
        exp_st = 'sc1'
        a(f's_lshl_b32 s59, {sW}, 19'); a(f's_add_u32 s59, s59, {RING:#x}')
        a('s_lshl_b32 s90, s58, 11'); a('s_add_u32 s90, s90, s59')
        a('s_mul_i32 s91, s58, 3072'); a('s_add_u32 s91, s91, s59'); a(f's_add_u32 s91, s91, {RING2-RING:#x}')
        a('v_lshlrev_b32 v6, 4, v0')
        for r in range(4): a(f'v_mov_b32 v{8+r}, -1'); a(f'v_mov_b32 v{12+r}, 0')
        for q in range(2): a(f'buffer_store_dwordx4 v[8:11], v6, {SW}, s90 offen offset:{1024*q} sc1')
        for q in range(3): a(f'buffer_store_dwordx4 v[8:11], v6, {SW}, s91 offen offset:{1024*q} sc1')
    a(f's_lshl_b32 s58, s58, 2'); a(f's_add_u32 s58, s58, {sW}')
    if fused:
        lz = a.newlabel('L_nz')
        a(f's_cmp_ge_u32 s58, {CNT_BYTES // 1024}'); a(f's_cbranch_scc1 {lz}')
        a('s_lshl_b32 s90, s58, 10'); a(f's_add_u32 s90, s90, {CNT:#x}')
        a(f'buffer_store_dwordx4 v[12:15], v6, {SW}, s90 offen sc1')
        a.label(lz)
    if pol is None:
        lp = a.newlabel('L_np')
        a('s_cmp_lg_u32 s58, 3'); a(f's_cbranch_scc1 {lp}')
        lane_expr(a, 'v6', [(0, 1, 8192), (1, 1, 4096 + 256), (2, 2, 0x14000 + 512)], const=RING + 256 * KB)
        a('v_mov_b32 v7, -1')
        a('s_mov_b64 exec, 0xffff')
        a(f'buffer_store_dword v7, v6, {SW}, 0 offen sc1')
        a('s_mov_b64 exec, -1')
        a('s_waitcnt vmcnt(0)')
        a.label(lp)
    for u in range(8): issue(u)
    if cut == 2: a('s_waitcnt vmcnt(0)'); a('s_endpgm')
    if pol is None:
        lp = a.newlabel('L_np')
        a('s_cmp_lg_u32 s58, 3'); a(f's_cbranch_scc1 {lp}')
        a(f's_add_u32 s92, s94, {RING + 256 * KB:#x}'); a('s_addc_u32 s93, s95, 0')
        a('s_mov_b32 s62, -1'); a('s_mov_b32 s63, -1')
        for k in range(NP):
            for pp in range(2):
                a('s_memtime s[56:57]'); a('s_waitcnt lgkmcnt(0)')
                a(f's_load_dword s60, s[92:93], {pp*8192 + (k&1)*(4096+256) + (k>>1)*(0x14000+512):#x}'); a('s_waitcnt lgkmcnt(0)')
                a('s_memtime s[58:59]'); a('s_waitcnt lgkmcnt(0)')
                a('s_sub_u32 s58, s58, s56'); a(f's_min_u32 s{62+pp}, s{62+pp}, s58')
        a('s_cmp_lt_u32 s63, s62'); a('s_cselect_b32 s60, 2, 1')
        a('v_mov_b32 v6, s60'); a('v_mov_b32 v7, s62'); a('v_mov_b32 v8, s63'); a('v_mov_b32 v9, 0')
        a('s_mov_b64 exec, 1')
        a(f'buffer_store_dword v6, v9, s[28:31], 0 offen offset:{POLOFF} sc1' if fused else 'buffer_store_dwordx3 v[6:8], v9, s[28:31], 0 offen offset:32 sc1')
        a('s_mov_b64 exec, -1')
        a.label(lp)
    a(f's_lshl_b32 s90, {sI}, 2'); a(f's_add_u32 s90, s90, {sW}')
    a('s_lshr_b32 s91, s90, 3'); a('s_lshl_b32 s91, s91, 14'); a('s_and_b32 s92, s90, 7'); a('s_lshl_b32 s92, s92, 10')
    a('s_add_u32 s91, s91, s92')
    lane_expr(a, aPartLd, [(0, 6, 16)], sadd=['s91'])
    a('v_lshrrev_b32 v30, 4, v0'); a(f'v_cmp_eq_u32 vcc, {sX}, v30'); a(f'v_xor_b32 v29, 0x2000, {aPartLd}')
    a(f'v_cndmask_b32 {aPartLd}, {aPartLd}, v29, vcc')
    a(f's_lshl_b32 s91, {sX}, 14'); a('s_lshl_b32 s92, s90, 7'); a('s_add_u32 s91, s91, s92')
    lane_expr(a, aMemSt, [(0, 2, 4), (2, 1, 64), (4, 1, 16), (5, 1, 32), (3, 1, OOB)], const=MEM_OFF, sadd=['s91'])
    a('s_lshr_b32 s92, s90, 1'); a('s_lshl_b32 s92, s92, 5'); a('s_and_b32 s91, s90, 1'); a('s_lshl_b32 s91, s91, 13'); a('s_add_u32 s92, s92, s91')
    lane_expr(a, 'v30', [(2, 1, 2 * 2048), (4, 1, 2048), (0, 2, 8), (5, 1, 4)], sadd=['s92'])
    a(f'buffer_load_dword v{GT}, v30, s[24:27], 0 offen')
    a(f's_lshl_b32 s91, {sX}, 14'); a(f's_lshl_b32 s92, {sW}, 12'); a('s_add_u32 s91, s91, s92')
    lane_expr(a, aMemLd, [(0, 6, 16)], const=MEM_OFF, sadd=['s91'])
    a(f's_mul_i32 s91, {sW}, {RW}')
    lane_expr(a, aRedW, [(0, 6, 16)], const=LDS_RED, sadd=['s91'])
    a(f's_lshl_b32 s91, {sW}, 6')
    lane_expr(a, aRR[0], [(0, 2, 16), (2, 1, 4), (3, 1, RM), (4, 2, 256)], const=LDS_RED, sadd=['s91'])
    for w in range(1, 4): a(f'v_add_u32 {aRR[w]}, {RW*w}, {aRR[0]}')
    a(f's_lshl_b32 s93, {sHQ}, 13')
    a(f's_lshl_b32 s91, {sJ}, 10'); a('s_add_u32 s91, s91, s93'); a(f's_lshl_b32 s92, {sW}, 8'); a('s_add_u32 s91, s91, s92')
    lane_expr(a, aQ0, [(0, 6, 4)], const=QKVR_OFF, sadd=['s91'])
    a(f's_lshl_b32 s91, {sHQ}, 11'); a(f's_lshl_b32 s92, {sJ}, 9'); a('s_add_u32 s59, s91, s92')
    a(f's_lshl_b32 s92, {sW}, 7'); a('s_add_u32 s91, s59, s92')
    lane_expr(a, aE0, [(0, 3, 4), (4, 2, 32), (3, 1, OOB)], const=KM + OOB, sadd=['s91'])
    a(f's_lshl_b32 s91, {sW}, 8')
    lane_expr(a, aRedRv, [(0, 1, 128), (1, 1, 8), (2, 3, 16)], const=LDS_RED + 2 * RM, sadd=['s91'])
    a(f's_lshr_b32 s92, {sJ}, 1'); a('s_xor_b32 s92, s92, 1'); a('s_lshl_b32 s92, s92, 10'); a('s_add_u32 s91, s91, s92'); a('s_add_u32 s91, s91, s93')
    a(f's_and_b32 s92, {sJ}, 1'); a('s_lshl_b32 s92, s92, 7'); a('s_add_u32 s91, s91, s92')
    lane_expr(a, aQ1, [(0, 5, 4), (5, 1, OOB)], const=QKVR_OFF + 4096, sadd=['s91'])
    a('s_sub_u32 s91, s91, s93'); a(f's_lshl_b32 s92, {sHQ}, 11'); a('s_add_u32 s91, s91, s92')
    lane_expr(a, aE1, [(0, 5, 4), (5, 1, OOB)], const=VM, sadd=['s91'])
    a(f's_lshl_b32 s97, {sG}, 2'); a(f's_add_u32 s97, s97, {sW}'); a('s_lshl_b32 s97, s97, 13')
    lane_expr(a, aQkLd, [(0, 6, 16)], const=QKVR_OFF, sadd=['s97'])
    a(f'v_add_u32 {aVLd}, 4096, {aQkLd}')
    lane_expr(a, aKx, [(0, 2, 16), (2, 1, 128), (3, 1, 4096), (4, 2, 256)], const=KX, sadd=['s97'])
    lane_expr(a, aVx0, [(0, 3, 16), (3, 1, 2048), (4, 2, 256)], const=VX, sadd=['s97'])
    a(f'v_add_u32 {aVx1}, 4096, {aVx0}')
    a(f's_lshl_b32 s91, {sU}, 9'); a('s_add_u32 s91, s91, s97')
    a(f's_add_u32 s63, s91, {KX:#x}')
    lane_expr(a, aWarm, [(0, 2, 128), (2, 1, VX - KX)], const=KX, sadd=['s91'])
    a('v_cmp_gt_u32 vcc, 8, v0'); a(f'v_mov_b32 v30, {OOB:#x}'); a(f'v_cndmask_b32 {aWarm}, v30, {aWarm}, vcc')
    a(f's_lshl_b32 s91, {sW}, 11')
    lane_expr(a, 'v30', [(2, 1, 64), (0, 1, 32), (1, 1, 16)])
    lane_expr(a, 'v29', [(4, 2, 32)])
    a('v_xor_b32 v30, v30, v29')
    lane_expr(a, aOW0, [(0, 4, 128)], const=LDS_O, sadd=['s91'])
    a(f'v_add_u32 {aOW0}, {aOW0}, v30')
    a(f'v_xor_b32 {aOW1}, 16, {aOW0}')
    lane_expr(a, 'v30', [(5, 1, 64), (1, 1, 32), (4, 1, 16)])
    lane_expr(a, 'v29', [(2, 2, 32), (0, 1, 16)])
    a('v_xor_b32 v30, v30, v29')
    lane_expr(a, aOR, [(4, 2, 256), (1, 1, 128)], const=LDS_O)
    a(f'v_add_u32 {aOR}, {aOR}, v30')
    a(f's_lshl_b32 s98, {sU}, 14'); a(f's_lshl_b32 s92, {sG}, 7'); a('s_add_u32 s98, s98, s92')
    a(f's_lshl_b32 s92, {sW}, 11'); a('s_add_u32 s91, s98, s92')
    lane_expr(a, aPartSt, [(0, 5, 4), (5, 1, 1024)], sadd=['s91'])
    a(f'v_xor_b32 {aPartStL}, 0x2000, {aPartSt}')
    a('s_mov_b32 s48, 0x33333333'); a('s_mov_b32 s49, 0x33333333')
    a('s_mov_b32 s50, 0xffff0000'); a('s_mov_b32 s51, 0xffff0000')
    a('s_mov_b32 s52, 0x0000ffff'); a('s_mov_b32 s53, 0x0000ffff')
    a(f's_mov_b32 {sGuard}, 0xfffffffe')
    a(f's_mov_b32 {sC}, {f32bits(SC):#x}')
    a('v_mov_b32 v30, 0x4444'); a('v_mov_b32 v31, 0xeeee')
    a(f'v_cndmask_b32 {vIdx}, v31, v30, {sHalf0}')
    a(f'v_mov_b32 {vNeg}, -1')
    for r in range(4): a(f'v_mov_b32 v{PM+r}, 0')
    a(f'v_mov_b32 v{PUB}, 0'); a(f'v_mov_b32 v{PUB+1}, 0')
    def lanemask(fn):
        m = 0
        for l in range(16):
            if fn(l): m |= 1 << l
        return m * 0x00010001
    mk = lanemask(lambda r: (r >> 2) & 1)
    a(f's_mov_b32 s56, {mk:#x}'); a(f's_mov_b32 s57, {mk:#x}')
    a('v_mov_b32 v30, 0x3f80'); a('v_mov_b32 v31, 1.0'); a('v_cndmask_b32 v30, v30, v31, s[56:57]')
    for q in range(4):
        mk = lanemask(lambda r: (r & 2) == 0 and q == 2 * (r >> 3) + (r & 1))
        a(f's_mov_b32 s56, {mk:#x}'); a(f's_mov_b32 s57, {mk:#x}')
        a(f'v_cndmask_b32 v{SEL+q}, 0, v30, s[56:57]')
    a(f's_mov_b32 {sStep}, 0'); a(f's_mov_b32 {sSlot}, {RING:#x}'); a(f's_mov_b32 {sRst}, {RING + 2*SLOT:#x}')
    a(f's_mov_b32 {sKV}, 0'); a(f's_mov_b32 {sKV2}, {256*KB:#x}'); a(f's_mov_b32 {sExp}, 0')

    if fused:
        a('s_waitcnt vmcnt(33)'); a('s_barrier'); signal(a, D_INIT, soff=sMode4)
    def ringtouch():
        for sl in range(4):
            a(f's_mov_b32 s90, {RING + sl*SLOT:#x}')
            for ad_ in (aMemSt, aQ0, aQ1) + ((aPartSt, aPartStL) if rw & 32 else ()): a(f'buffer_load_dword v204, {ad_}, {SW}, s90 offen sc1')
    for u in range(24):
        a(f's_waitcnt vmcnt({4 * (min(u + 7, 27) - u)})')
        if u in (8, 16, 23) and rt: a(f's_memrealtime s[{64 + 2*(u//8 + (u == 23))}:{65 + 2*(u//8 + (u == 23))}]')
        ks, h, m = units[u]
        for t1 in range(2):
            for rl in range(2):
                d = ks * 48 + (2*m + t1) * 8 + 4*h + 2*rl
                a(f'ds_read_b64_tr_b16 {ar(d,2)}, v182 offset:{(u % 8) * 4096 + rl*512 + t1*32}')
        if u + 8 < 28:
            a('s_waitcnt lgkmcnt(0)')
            issue(u + 8)
            if rw & 48 and u == rwu: ringtouch()
            if wtouch and u == wtouch[0]: touch(0)
            if wtouch and u == wtouch[1]: touch(3)
    if fused: verify(a, want_pol=(pol is None), kv=True)
    a('s_waitcnt vmcnt(0)'); a('s_barrier')
    for kk in range(8):
        for rp in range(4):
            hd = kk >> 1
            off = (16*(rp & 1) + 32*(kk & 1) + 4*(rp >> 1)) * 128 + (hd & 1) * 32768
            a(f'ds_read_b64_tr_b16 {ar(192 + kk*8 + 2*rp, 2)}, {"v183" if hd < 2 else "v184"} offset:{off}')
        if kk & 1: a('s_waitcnt lgkmcnt(0)')
    a('s_barrier')
    a(f's_mov_b32 {sSpin}, 0')
    if cut == 3: a('s_endpgm')
    rts(2)
    if rt:
        a('v_mov_b32 v32, s66'); a('v_mov_b32 v33, s68'); a('v_mov_b32 v34, s70'); a('s_mov_b64 exec, 1')
        a(f'buffer_store_dwordx3 v[32:34], v28, {SW}, s62 offen offset:12'); a('s_mov_b64 exec, -1')
    if fused:
        if pol is not None: a(f's_mov_b32 {sPol}, {pol*8192}')
    elif pol is None:
        a('v_mov_b32 v30, 0')
        a.label('L_polwait')
        a('buffer_load_dword v31, v30, s[28:31], 0 offen offset:32 sc1')
        a('s_waitcnt vmcnt(0)')
        a(f'v_readfirstlane_b32 {sPol}, v31')
        spin_guard(a)
        a(f's_cmp_eq_u32 {sPol}, 0'); a('s_cbranch_scc1 L_polwait')
        a(f's_sub_u32 {sPol}, {sPol}, 1'); a(f's_and_b32 {sPol}, {sPol}, 1'); a(f's_lshl_b32 {sPol}, {sPol}, 13')
    else:
        a(f's_mov_b32 {sPol}, {pol*8192}')
    for r_ in (aPartLd, aPartSt, aPartStL): a(f'v_xor_b32 {r_}, {sPol}, {r_}')
    a('s_mov_b32 s12, s63')
    if rw:
        for sl in range(4):
            a(f's_mov_b32 s90, {RING + sl*SLOT:#x}')
            if rw & 1:
                for ad_ in (aPartStL, aMemSt, aQ0, aQ1): a(f'buffer_store_dword {vNeg}, {ad_}, {SW}, s90 offen {local_st}')
            if rw & 4: a(f'buffer_store_dword {vNeg}, {aPartSt}, {SW}, s90 offen sc1')
            if rw & 2: a(f'buffer_load_dword v{T}, {aPartLd}, {SW}, s90 offen sc1')
            if rw & 8:
                for ad_, n_ in ((aMemLd, 4), (aQkLd, 4), (aVLd, 2)):
                    for q in range(n_): a(f'buffer_load_dword v{T}, {ad_}, {SW}, s90 offen offset:{1024*q} sc1')
    for r in range(8): a(f'v_mov_b32 v{ONES+r}, 0x3f803f80')
    pv = [f'buffer_load_dwordx4 {vr(VL + 4*td, 4)}, {aVx0 if td < 4 else aVx1}, {SW}, {sKV} offen offset:{((td>>1)&1)*1024 + (td&1)*128}' for td in range(8)]
    pk = [f'buffer_load_dwordx4 {vr(KXR + 16*tt + 4*ks, 4)}, {aKx}, {SW}, {sKV} offen offset:{ks*1024 + tt*64}' for ks in range(4) for tt in range(2)]
    spread = [f'v_mov_b32 v{VB + 8*(td>>1) + 2*q + (td&1)}, v{VL + 4*td + q}' for td in range(8) for q in range(4)]
    def zl(b, n): return [f'v_mov_b64 {vr(b+r, 2)}, 0' for r in range(0, n, 2)]
    def emit(l):
        for x in l: a(x)
    def shadow(ms, fs):
        fs = list(fs)
        for x in ms:
            a(x)
            if fs:
                f = fs.pop(0)
                emit(f if isinstance(f, list) else [f])
        for f in fs: emit(f if isinstance(f, list) else [f])
    if fused:
        if sweep:
            a('s_load_dwordx2 s[80:81], s[0:1], 0'); a('s_load_dwordx4 s[84:87], s[0:1], 56'); a('s_load_dwordx2 s[88:89], s[0:1], 72')
            a(f's_lshl_b32 s90, {sX}, 5'); a(f's_add_u32 s90, s90, {sI}'); a('s_lshl_b32 s90, s90, 2'); a(f's_add_u32 s90, s90, {sW}')
            a('s_lshl_b32 s90, s90, 13'); a(f's_add_u32 s91, s90, {4*MB}')
            a('v_lshlrev_b32 v30, 7, v0')
            a('s_waitcnt lgkmcnt(0)')
            for n, (base, size, so) in enumerate(((80, 4, 's90'), (84, 4, 's90'), (86, 6, 's90'), (86, 6, 's91'), (88, 2, 's90'))):
                srd(a, 8, base, size * MB)
                a(f'buffer_load_dword v{MA+n}, v30, s[8:11], {so} offen')
        a(f's_cmp_lg_u32 {sW}, 0'); a('s_cbranch_scc1 L_kv0d')
        a(f's_lshl_b32 s90, {sX}, 7'); a(f's_add_u32 s90, s90, {CNT + C_KV:#x}'); a('v_mov_b32 v30, s90')
        a.label('L_kv0')
        a(f'buffer_load_dword v31, v30, {SW}, 0 offen sc1'); a('s_waitcnt vmcnt(0)')
        a('v_readfirstlane_b32 s90, v31')
        spin_guard(a)
        a('s_sleep 2')
        a(f's_cmp_lt_u32 s90, {kvneed}'); a('s_cbranch_scc1 L_kv0')
        a.label('L_kv0d')
        a('s_barrier')
        rts(3)
    emit(pv); emit(pk)
    for q in range(kw0):
        a(f's_mov_b32 s90, {(q+1)*256*KB:#x}'); a(f'buffer_load_dword v{T}, {aWarm}, {SW}, s90 offen')
    a(f's_add_u32 {sKV}, {sKV}, {256*KB:#x}')
    emit(zl(QA, 24)); emit(zl(WACC, 4)); emit(zl(OB_, 20))
    a('s_waitcnt vmcnt(0)')
    if no_pf: pv = []; pk = []
    pA, pB = pv[:nA], pk[:nB]
    rest = pv[nA:] + pk[nB:]
    pC, pD = rest[:npre], rest[npre:]
    nvD = len([x for x in pD if x in pv])
    a(f'v_min_u32 v{GT}, {sGuard}, v{GT}')
    if cut == 4: a('s_endpgm')
    if fused:
        a(f's_lshl_b32 s90, {sX}, 7'); a(f's_add_u32 s90, s90, {CNT + C_KV:#x}'); a('v_mov_b32 v244, s90')
        a(f's_lshl_b32 s90, {sI}, 2'); a(f's_add_u32 s90, s90, {sW}')
        a(f's_lshl_b32 s91, {sX}, 7'); a(f's_add_u32 s91, s91, {CNT + C_PROG:#x}')
        a('v_mbcnt_lo_u32_b32 v30, -1, 0'); a('v_mbcnt_hi_u32_b32 v30, -1, v30'); a('v_add_u32 v30, s90, v30')
        a('v_cmp_eq_u32 vcc, 0, v30'); a(f'v_mov_b32 v30, {OOB:#x}'); a('v_mov_b32 v31, s91'); a('v_cndmask_b32 v245, v30, v31, vcc')
    if warm >= 2: a('s_mov_b64 s[8:9], s[94:95]'); a('s_mov_b64 s[10:11], s[94:95]')
    st.init()
    a('s_branch L_pubmem')
    exps = [f'buffer_store_dword v{PUB}, {aE0}, {SW}, {sExp} offen {exp_st}', f'buffer_store_dword v{PUB+1}, {aE1}, {SW}, {sExp} offen {exp_st}']
    def exports(): emit(exps)
    vFlag, vZero, aProg, vProg = 'v243', 'v244', 'v245', 'v246'
    flagld = f'buffer_load_dword {vFlag}, {vZero}, {SW}, s92 offen sc1'

    a.label('L_step')
    sw_ = [f's_load_dword s{16+(n&7)}, s[{8+2*(n&1)}:{9+2*(n&1)}], {64*(n>>1)}' for n in range(16)]
    def swbase():
        a(f's_add_u32 s8, s94, {sKV2}'); a('s_addc_u32 s9, s95, 0'); a('s_add_u32 s8, s8, s12'); a('s_addc_u32 s9, s9, 0')
        a(f's_add_u32 s10, s8, {VX - KX:#x}'); a('s_addc_u32 s11, s9, 0')
    if warm >= 2: emit(sw_[wsp[0]:wsp[0]+wsp[1]])
    emit(pC)
    emit(zl(QA, 24) + zl(WACC, 4))
    a.nop(dg)
    gl = f'buffer_load_dwordx4 {vr(GL, 4)}, {aPartLd}, {SW}, {sPrev} offen sc1'
    st('G issue', True)
    a(gl)
    lrs = [f'buffer_store_dword {vNeg}, {ad_}, {SW}, s13 offen {local_st}' for ad_ in (aPartStL, aMemSt, aQ0, aQ1)] if lr else []
    post = pD + ([] if (no_exp or fused) else exps) + lrs
    emit(post)
    if 'fixkv' not in xo: a(f's_add_u32 {sKV}, {sKV}, {256*KB:#x}'); a(f's_min_u32 {sKV}, {sKV}, {63*256*KB:#x}')
    a(f's_add_u32 {sExp}, {sExp}, {64*KB:#x}')
    if fused:
        a(f's_waitcnt vmcnt({len(pC) + len(post) + (1 if spos else 3)})')
        a.label('L_kv_chk')
        a(f'v_readfirstlane_b32 s90, {vFlag}')
        a(f's_cmp_lt_u32 s90, {kvneed}'); a('s_cbranch_scc1 L_kv_f')
        cold.label('L_kv_f')
        cold('s_sleep 8'); cold(flagld); spin_guard(cold); cold('s_waitcnt vmcnt(0)'); cold('s_branch L_kv_chk')
    a(f's_waitcnt vmcnt({len(post)})')
    a.label('L_g_chk')
    emit(chk(GL))
    a(f'v_mfma_f32_16x16x32_bf16 {vr(GD,4)}, {vr(SEL,4)}, {vr(GL,4)}, 0')
    a('s_cbranch_vccnz L_g_f')
    cold.label('L_g_f')
    cold('s_mov_b64 exec, vcc'); cold(gl); cold('s_mov_b64 exec, -1')
    spin_guard(cold); cold(f's_waitcnt vmcnt({gthr})'); cold('s_branch L_g_chk')
    st('G wait')
    h = GT
    a(f'v_add_f32_dpp v{h+1}, v{GD}, v{GD} row_ror:8 row_mask:0xf bank_mask:0xf')
    a(f'v_add_f32_dpp v{h+2}, v{GD+1}, v{GD+1} row_ror:8 row_mask:0xf bank_mask:0xf')
    a(f'v_cvt_pk_bf16_f32 v{h}, v{h+1}, v{h+2}')
    a(f'v_min_u32 v{h}, {sGuard}, v{h}')
    a.label('L_pubmem')
    a(f'buffer_store_dword v{h}, {aMemSt}, {SW}, {sSlot} offen {local_st}')
    st('M pub', True)
    if warm >= 2: emit(sw_[wsp[0]+wsp[1]:])
    ml = [f'buffer_load_dwordx4 {vr(MA + 4*k, 4)}, {aMemLd}, {SW}, {sSlot} offen offset:{1024*k} sc1' for k in range(4)]
    if nvD: a(f's_waitcnt vmcnt({min(len(post) - nvD, gthr) + 1 if gthr else len(post) - nvD + 1})')
    fill = list(spread)
    emit(fill[:f1]); fill = fill[f1:]
    a.nop(d1)
    for k in range(4):
        a(ml[k]); emit(fill[:2]); fill = fill[2:]
    emit(fill)
    st('G red')
    sm = lambda t, ks: f'v_smfmac_f32_16x16x64_bf16 {vr(QA + 4*t, 4)}, {vr(MA + 4*ks, 4)}, {ar(ks*48 + t*8, 8)}, {vIdx}'
    gather(a, cold, 'm', ml, [MA + 4*k for k in range(4)], [[sm(t, ks) for t in range(4 if defv else 6)] for ks in range(4)], thr=thr, per=mper)
    st('QK')
    for t in range(4 if defv else 6):
        a(f'v_pk_add_f32 {vr(RD + 2*t, 2)}, {vr(QA + 4*t, 2)}, {vr(QA + 4*t + 2, 2)}')
        if t & 1: a(f'ds_write_b128 {aRedW}, {vr(RD + 2*t - 2, 4)} offset:{(t>>1)*RM}')
    xl = [f'buffer_load_dwordx4 {vr(XR + 4*k, 4)}, {aQkLd}, {SW}, {sSlot} offen offset:{1024*k} sc1' for k in range(4)]
    vl = [f'buffer_load_dwordx4 {vr(VMR + 4*k, 4)}, {aVLd}, {SW}, {sSlot} offen offset:{1024*k} sc1' for k in range(2)]
    def red_pub(L, dst, addr, n):
        a(f's_waitcnt lgkmcnt({n+2})')
        a(f'v_pk_add_f32 {vr(L,2)}, {vr(L,2)}, {vr(L+2,2)}')
        a(f's_waitcnt lgkmcnt({n})')
        a(f'v_pk_add_f32 {vr(L+4,2)}, {vr(L+4,2)}, {vr(L+6,2)}')
        a(f'v_pk_add_f32 {vr(L,2)}, {vr(L,2)}, {vr(L+4,2)}')
        a(f'v_cvt_pk_bf16_f32 v{dst}, v{L}, v{L+1}')
        a(f'v_min_u32 v{dst}, {sGuard}, v{dst}')
        a(f'buffer_store_dword v{dst}, {addr}, {SW}, {sSlot} offen {local_st}')
    adv1 = [f's_mov_b32 {sPrev}, {sSlot}', f's_add_u32 s90, {sStep}, 1', 's_and_b32 s90, s90, 3', 's_lshl_b32 s90, s90, 19', f's_add_u32 s91, s90, {RING:#x}',
            f's_add_u32 {sKV2}, {sKV2}, {256*KB:#x}', f's_min_u32 {sKV2}, {sKV2}, {63*256*KB:#x}', 's_nop 0']
    z32 = lambda b, n: [f'v_mov_b32 v{b+r}, 0' for r in range(n)]
    qr = [f'ds_read2_b32 {vr(LR + 2*w, 2)}, {aRR[w]} offset0:0 offset1:2' for w in range(4)]
    vrd = [f'ds_read_b64 {vr(RD + 2*w, 2)}, {aRedRv} offset:{RW*w}' for w in range(4)]
    if not defv:
        emit(pA)
        emit(zl(SA, 12))
        a('s_waitcnt lgkmcnt(0)'); a('s_barrier')
        emit(qr); emit(vrd)
        emit(zl(OB_, zsh))
        red_pub(LR, PUB, aQ0, 4)
        red_pub(RD, PUB + 1, aQ1, 0)
        st('Q pub', True)
        emit(zl(OB_ + zsh, 20 - zsh))
        a.nop(d2)
        for k in range(4):
            a(xl[k]); emit(adv1[2*k:2*k+2])
    else:
        vs = [sm(t, ks) for ks in range(4) for t in (4, 5)]
        zz = z32(SA, 12)
        pA2 = pA[nv1:]; pA = pA[:nv1]
        if defv == 3 or zlate: zz = []
        shadow(vs[:nv1], [[pA[k]] + zz[k:k+1] if k < len(pA) else zz[k:k+1] for k in range(nv1)])
        a('s_waitcnt lgkmcnt(0)'); a('s_barrier')
        emit(qr)
        shadow(vs[nv1:nv1+nv2], [[x] for x in zz[nv1:nv1+nv2]])
        emit(zz[nv1+nv2:])
        red_pub(LR, PUB, aQ0, 0)
        st('Q pub', True)
        shadow(vs[nv1+nv2:], pA2)
        if defv == 3 or zlate: emit(zl(SA, 12))
        for t in (4, 5): a(f'v_pk_add_f32 {vr(RD + 2*t, 2)}, {vr(QA + 4*t, 2)}, {vr(QA + 4*t + 2, 2)}')
        a(f'ds_write_b128 {aRedW}, {vr(RD + 8, 4)} offset:{2*RM}')
        if defv != 3: emit(zl(OB_, 20))
        a.nop(d2)
        if defv == 3:
            for k in range(4):
                a(xl[k]); emit(adv1[2*k:2*k+2])
            a('s_waitcnt lgkmcnt(0)'); a('s_barrier')
            emit(vrd)
            emit(zl(OB_, 20))
            red_pub(RD, PUB + 1, aQ1, 0)
        elif defv == 1:
            a('s_waitcnt lgkmcnt(0)'); a('s_barrier')
            for k in range(4):
                a(vrd[k]); a(xl[k]); emit(adv1[2*k:2*k+2])
            red_pub(RD, PUB + 1, aQ1, 0)
        else:
            a('s_waitcnt lgkmcnt(0)'); a('s_barrier')
            emit(vrd); emit(adv1)
            red_pub(RD, PUB + 1, aQ1, 0)
            for k in range(4):
                a(xl[k]); a('s_nop 1')
    if vat < 0: emit(vl)
    if warm >= 2:
        swbase(); emit(sw_[:wsp[0]])
    st('QK red')
    a(f's_cmp_eq_u32 {sStep}, {nsteps-1}'); a('s_cbranch_scc1 L_last')
    def sc(ks):
        X = vr(XR + 4*ks, 4)
        return [f'v_mfma_f32_16x16x32_bf16 {vr(SA + 4*tt, 4)}, {vr(KXR + 16*tt + 4*ks, 4) if tt < 2 else X}, {X}, {vr(SA + 4*tt, 4)}' for tt in (2, 0, 1)]
    gather(a, cold, 'x', xl, [XR + 4*k for k in range(4)], [sc(k) for k in range(4)], thr=thr, extra=(2 if vat < 0 else 0) + (1 if defv in (1, 3) else 0), per=xper)
    st('scores')
    if vat == 0: emit(vl)
    dq = lambda p: f'quad_perm:[{p}] row_mask:0xf bank_mask:0xf'
    m, t2, mz = f'v{T}', f'v{T+1}', f'v{T+2}'
    z0, z1 = SA + 10, SA + 11
    a(f's_mov_b64 vcc, {sHalf0}')
    a(f'v_max_f32 {mz}, v{z0}, v{z1}')
    for r in range(4): a(f'v_cndmask_b32_dpp v{YY+r}, v{SA+4+r}, v{SA+r}, vcc {dq("0,1,0,1")}')
    a(f'v_max3_f32 {t2}, v{YY}, v{YY+1}, v{YY+2}')
    a(f'v_max_f32_dpp {m}, {mz}, v{YY+3} {dq("0,1,0,1")}')
    a(f'v_max_f32 {t2}, {t2}, {m}')
    a(f'v_max_f32_dpp {m}, {t2}, {t2} {dq("2,3,0,1")}')
    for n_, sw in enumerate(('v_permlane32_swap_b32', 'v_permlane16_swap_b32')):
        a(f'v_mov_b32 {t2}, {m}')
        if vat == n_ + 1: emit(vl)
        a(f'{sw} {m}, {t2}')
        a(f'v_max_f32 {m}, {m}, {t2}')
    a(f'v_mul_f32 {m}, {sC}, {m}')
    sv = [YY, YY+1, YY+2, YY+3, z0, z1]
    for x in sv: a(f'v_fma_f32 v{x}, v{x}, {sC}, -{m}')
    for x in sv[:4]: a(f'v_exp_f32 v{x}, v{x}')
    a(f'v_cvt_pk_bf16_f32 v{CT}, v{YY}, v{YY+1}')
    a(f'v_cvt_pk_bf16_f32 v{CT+1}, v{YY+2}, v{YY+3}')
    a(f'v_exp_f32 v{z0}, v{z0}')
    a(f'v_mov_b32_dpp v{PA}, v{CT} {dq("0,1,0,1")}')
    a(f'v_mov_b32_dpp v{PA+2}, v{CT} {dq("2,3,2,3")}')
    a(f'v_mov_b32_dpp v{PA+1}, v{CT+1} {dq("0,1,0,1")}')
    a(f'v_mov_b32_dpp v{PA+3}, v{CT+1} {dq("2,3,2,3")}')
    a(f'v_exp_f32 v{z1}, v{z1}')
    st('softmax')
    P = vr(PA, 4)
    xs = lambda d, b: f'v_smfmac_f32_16x16x64_bf16 {vr(d,4)}, {P}, {vr(b,8)}, {vIdx}'
    ms = lambda d, j, b: f'v_smfmac_f32_16x16x32_bf16 {vr(d,4)}, {vr(PM + 2*(j&1), 2)}, {vr(b,4)}, {vIdx}'
    rs = T
    wl = [f'buffer_load_dword v0, {aWarm}, {SW}, {sKV2} offen'] if (warm == 1 and (not no_pf or 'keepwarm' in xo)) else []
    rsts = [f'buffer_store_dword {vNeg}, {aPartSt}, {SW}, {sRst} offen sc1', f'buffer_store_dword {vNeg}, {aPartStL}, {SW}, {sRst} offen {local_st}',
            f'buffer_store_dword {vNeg}, {aMemSt}, {SW}, {sRst} offen {local_st}', f'buffer_store_dword {vNeg}, {aQ0}, {SW}, {sRst} offen {local_st}',
            f'buffer_store_dword {vNeg}, {aQ1}, {SW}, {sRst} offen {local_st}']
    ck = chk(VMR, 8)
    g1 = lambda k: pB[k:k+1]
    slow = wl + rsts[:1]
    late = pB[4:] + (rsts[1:] if not lr else [])
    if allafter: slow, late = slow + late, []
    if fused:
        pre = [f's_add_u32 s92, {sStep}, 3', 's_min_u32 s92, s92, 63', f's_lshr_b32 s92, s92, 2', 's_lshl_b32 s92, s92, 9',
               f'v_mov_b32 {vProg}, {sStep}']
        e_ = [] if no_exp else ([x.replace(' sc1', '') for x in exps] if 'plainexp' in xo else exps)
        slow = slow + e_ + [f'buffer_store_dword {vProg}, {aProg}, {SW}, 0 offen sc1', flagld]
    shadow([xs(OSUM, ONES), xs(OT(0), VB), xs(OT(1), VB + 8), xs(OT(2), VB + 16)],
           [[f'v_cvt_pk_bf16_f32 v{CT+2}, v{z0}, v{z1}'] + g1(0),
            g1(1) + [f'v_mov_b32_dpp v{PM}, v{CT+2} {dq("0,1,0,1")}'],
            g1(2) + [f'v_mov_b32_dpp v{PM+3}, v{CT+2} {dq("0,1,0,1")}'],
            g1(3) + [f's_waitcnt vmcnt({len(pB[:4])})'] + ck[0:2]])
    shadow([ms(OSUM, 0, ONES), xs(OT(3), VB + 24)], [ck[2:5]])
    a('s_cbranch_vccnz L_v_f')
    a.label('L_v_ok')
    cold.label('L_v_f')
    for x in vl: cold(x)
    spin_guard(cold); cold('s_waitcnt vmcnt(0)')
    for x in ck: cold(x)
    cold('s_cbranch_vccnz L_v_f'); cold('s_branch L_v_ok')
    st('V wait')
    shadow([ms(OT(j), j, VMR + 4*(j>>1)) for j in range(4)],
           [late[0:2], late[2:3] + [f'v_rcp_f32 v{rs}, v{OSUM}'], late[3:4] + [f'v_rcp_f32 v{rs+1}, v{OSUM+1}'], late[4:]])
    for j in range(4):
        o = OT(j)
        a(f'v_pk_mul_f32 {vr(o,2)}, {vr(o,2)}, {vr(rs,2)}')
        a(f'v_pk_mul_f32 {vr(o+2,2)}, {vr(o+2,2)}, {vr(rs,2)}')
        for par in range(2):
            a(f'v_cvt_pk_bf16_f32 v{ET + 4*par + j}, v{o+par}, v{o+2+par}')
        if ow2 and (j & 1):
            a(f'ds_write_b64 {aOW0}, {vr(ET + j - 1, 2)} offset:{4*(j-1)}')
            a(f'ds_write_b64 {aOW1}, {vr(ET + 4 + j - 1, 2)} offset:{4*(j-1)}')
    if not ow2:
        a(f'ds_write_b128 {aOW0}, {vr(ET,4)}')
        a(f'ds_write_b128 {aOW1}, {vr(ET+4,4)}')
    st('O write', True)
    if fused: emit(pre)
    adv2 = [f's_add_u32 {sStep}, {sStep}, 1', f's_mov_b32 {sSlot}, s91', f's_xor_b32 {sRst}, s91, {2*SLOT:#x}']
    a('s_waitcnt lgkmcnt(0)'); a('s_barrier')
    st('PV')
    rd = [f'ds_read_b128 {vr(WA + 4*kk, 4)}, {aOR} offset:{1024*kk}' for kk in range(8)]
    emit(rd[:nr0])
    moved = [x.replace(sRst, 's13') for x in slow[len(slow)-spos:]] if spos else []
    if spos: slow = slow[:len(slow)-spos]
    if spos or lr: adv2 = [f's_mov_b32 s13, {sRst}'] + adv2
    emit(slow[:2]); slow = slow[2:] + adv2
    for kk in range(8):
        issued = min(8, nr0 + kk)
        a(f's_waitcnt lgkmcnt({issued - 1 - kk})')
        a(f'v_smfmac_f32_16x16x64_bf16 {vr(WACC,4)}, {vr(WA + 4*kk, 4)}, {ar(192 + 8*kk, 8)}, {vIdx}')
        emit(rd[nr0+kk:nr0+kk+1])
        emit(slow[kk:kk+1])
    emit(slow[8:])
    a(f'v_pk_add_f32 {vr(T,2)}, {vr(WACC,2)}, {vr(WACC+2,2)}')
    a(f'v_cvt_pk_bf16_f32 v{T}, v{T}, v{T+1}')
    a(f'v_min_u32 v{T}, {sGuard}, v{T}')
    a(f'buffer_store_dword v{T}, {aPartSt}, {SW}, {sPrev} offen sc1')
    a(f'buffer_store_dword v{T}, {aPartStL}, {SW}, {sPrev} offen {local_st}')
    emit(moved)
    st('tail')
    if rt == 2:
        a('s_memrealtime s[60:61]'); a('s_waitcnt lgkmcnt(0)')
        a(f's_lshl_b32 s62, {sStep}, 2'); a(f's_lshl_b32 s61, {sX}, 12'); a('s_add_u32 s62, s62, s61'); a(f's_add_u32 s62, s62, {2*MB:#x}')
        a(f'v_mov_b32 v30, s60')
        a(f'buffer_store_dword v30, {aProg}, {SW}, s62 offen')
    if nsteps > 64 and stamps != 4:
        a(f's_min_u32 {sExp}, {sExp}, {62*64*KB:#x}')
        a(f's_cmp_eq_u32 {sStep}, {nsteps-64}')
        for k in range(12): a(f's_cselect_b32 s{64+k}, 0, s{64+k}')
        a(f's_cselect_b32 {sSpin}, 0, {sSpin}')
    a('s_branch L_step')
    a.label('L_last')
    rts(4)
    exports()
    if stamps:
        a(f's_lshl_b32 s90, {sX}, 5'); a(f's_add_u32 s90, s90, {sI}'); a('s_lshl_b32 s90, s90, 2'); a(f's_add_u32 s90, s90, {sW}')
        a('s_lshl_b32 s90, s90, 6'); a(f's_add_u32 s90, s90, {STAMP:#x}')
        if stamps != 4: a(f's_mov_b32 s79, {sSpin}')
        st.calib(78)
        a('v_mov_b32 v30, 0')
        a('s_mov_b64 exec, 1')
        for k in range(16):
            a(f'v_mov_b32 v31, s{64+k if stamps != 4 else (64+2*k if k < 12 else 84+k)}')
            a(f'buffer_store_dword v31, v30, {SW}, s90 offen offset:{4*k}')
        a('s_mov_b64 exec, -1')
    a('s_waitcnt vmcnt(0)')
    if fused:
        a('s_barrier'); a(f's_lshl_b32 s90, {sG}, 7'); a(f's_add_u32 s90, s90, {CNT + C_FIN:#x}'); signal(a, 0, soff='s90', srd_=SW); a('s_waitcnt vmcnt(0)')
    a(f's_branch {exit_label}')
    a.ins += cold.ins
    a.label('L_rec_abort')
    a('s_waitcnt vmcnt(0)')
    a('s_endpgm')
    return st.names

def gen_rec_kernel(name='rec_kernel', **kw):
    a = Asm()
    a('s_load_dwordx4 s[92:95], s[0:1], 88')
    a('s_cmp_ge_u32 s2, 256'); a('s_cbranch_scc1 L_rec_exit')
    a(f's_getreg_b32 {sX}, hwreg(HW_REG_XCC_ID, 0, 4)')
    a(f's_cmp_ge_u32 {sX}, 4'); a('s_cbranch_scc1 L_rec_exit')
    a('s_waitcnt lgkmcnt(0)')
    srd(a, 4, 94, WS_BYTES); srd(a, 28, 92, 256)
    a('v_cmp_eq_u32 vcc, 0, v0')
    a('s_and_saveexec_b64 s[96:97], vcc')
    a('s_cbranch_execz L_tk')
    a(f's_lshl_b32 s90, {sX}, 6')
    a('v_mov_b32 v1, 1'); a('v_mov_b32 v2, 0')
    a('buffer_atomic_add v1, v2, s[28:31], s90 offen sc0 sc1')
    a('s_waitcnt vmcnt(0)')
    a('ds_write_b32 v2, v1')
    a('s_waitcnt lgkmcnt(0)')
    a.label('L_tk')
    a('s_mov_b64 exec, s[96:97]')
    a('s_barrier')
    a('v_mov_b32 v2, 0')
    a('ds_read_b32 v1, v2')
    a('s_waitcnt lgkmcnt(0)')
    a(f'v_readfirstlane_b32 {sI}, v1')
    a('s_barrier')
    a(f's_cmp_ge_u32 {sI}, 32'); a('s_cbranch_scc1 L_rec_exit')
    names = gen_rec(a, **kw)
    a.label('L_rec_exit')
    a('s_endpgm')
    a.fix_hazards()
    return a, names
```

```python
import sys, os
sys.path.insert(0, os.path.dirname(os.path.abspath(__file__)))
from asmgen import *
from layout import *
import rec, gemm, attn
from rec import srd, lane_expr, signal, verify, sX, sI, SPIN_MAX, sMode4, sBit, vClaim, LDS_X, LDS_T
sSpin = 's3'
from gemm import *
from build import kd, NAME
WS = 's[4:7]'
DBG = 's[28:31]'
K_AQ, K_AK, K_AV, K_BQKV, K_ATB, K_BO, K_ATA, K_AO, K_AOS, K_SK, K_SV, K_ATA4, K_SWP, K_AOF, K_AO4 = range(15)
NSMALL = 2
NSWP = 4
USE_AOF = 0
FOLLOW = 2
FEND = 62
S256 = 0
FINE0 = 10
SPLIT0 = 15
SPLIT4 = 13
def ent(kind, p, q=0): return kind | (p << 8) | (q << 16)

SIM = dict(go=21.0, step=2.17, skv1=18.0, skv2=10.0, big=23.5, atb=4.5, bo=8.5, ata=3.5, ao=25.0, aos=9.5, margin=0.0, kvlead=8.0, bstart=50.0, ata4=11.0, swp=18.0, gap=0.2, lat=3.0, early=4.0, plan='S48 K16 S16 W4 Q12 K16 Q4 B12 Q16 T8 B8 K16 T8 T8 O16 B4 U12 O6 U4 O4 U16 P10 O8 P14 T4 O8 P8', aof=5.0, aob=(7,), look=3.0, earlyA=1.0, ao4=11.5, lastA=8.0)
def task_list(verbose=False, **over):
    import heapq
    P = dict(SIM); P.update(over)
    kv = lambda rb: [ent(k, rb, c) for c in range(4) for k in (K_AK, K_AV)]
    sm = lambda hb: [ent(k, hb, c) for c in range(8) for k in (K_SK, K_SV)]
    first = sm(0) + sm(1) + sm(2) + kv(2) + sm(3)
    KVq = [e for rb in range(3, 8) for e in kv(rb)]
    Qq = [ent(K_AQ, rb, c) for rb in range(8) for c in range(4)]
    Bq = [ent(K_BQKV, rb, c) for rb in range(8) for c in range(3)]
    TBq = [ent(K_ATB, rb, c) for rb in range(8) for c in range(4)]
    BOq = [ent(K_BO, hb, c) for hb in range(16) for c in range(2)]
    TAq = [ent(K_ATA4, 4 * hb, c) for hb in range(FINE0) for c in range(2)] + [ent(K_ATA, s_, c) for s_ in (list(range(4 * FINE0, 4 * FINE0 + FOLLOW)) + list(range(FEND, 64)) if FOLLOW else range(4 * FINE0, 64)) for c in range(2)]
    first += [ent(K_SWP, c) for c in range(NSWP)]
    AOq = [e for hb in range(16) for e in ([ent(K_AO, hb, c) for c in range(2)] if hb < min(SPLIT0, SPLIT4) else [ent(K_AO4, hb, c) for c in range(8)] if hb < SPLIT0 else [ent(K_AOS, hb, c) for c in range(16)] if (hb < 15 or not USE_AOF) else [ent(K_AOF, hh, c) for hh in (30, 31) for c in range(32)])]
    if P['plan']:
        first = []
        KVq = [e for rb in range(2, 8) for e in kv(rb)]
        SWq = [ent(K_SWP, c) for c in range(NSWP)]
        Sq = sm(0) + sm(1) + ([] if S256 else sm(2) + sm(3))
        qs = dict(S=Sq, K=KVq, Q=Qq, B=Bq, W=SWq, T=TAq, O=AOq, U=TBq, P=BOq)
        for tok in P['plan'].split():
            q = qs[tok[0]]; n = int(tok[1:])
            assert len(q) >= n, tok
            first += q[:n]; del q[:n]
        assert not Sq and not SWq
    done = {}
    def fin(key, n):
        c, t = done.get(key, (0, 0.0)); return t if c >= n else 1e9
    def seg_time(s_): return P['go'] + P['step'] * (s_ + 1.9 if s_ < 62 else 63.9)
    def ready(e):
        k, p = e & 255, (e >> 8) & 255
        if k == K_ATB: return max(fin(('B', p), 3), fin(('B', max(p - 1, 0)), 3))
        if k == K_BO: return fin(('TB', p >> 1), 4)
        if k == K_ATA: return max(fin(('Q', p >> 3), 4), seg_time(p))
        if k == K_ATA4: return max(fin(('Q', p >> 3), 4), seg_time(p + 3))
        if k == K_AO:
            p = max(p, min([b for b in P['aob'] if b >= p] + [p]) if any(b >= p for b in P['aob']) else p)
            p = min([b for b in P['aob'] if b >= p], default=p)
        if k in (K_AO, K_AOS, K_AO4): return fin(('TA', p), 8 if p >= FINE0 else 2)
        if k == K_AOF: return fin(('TH', p), 4)
        return 0.0
    def dur(e, n):
        k = e & 255
        return {K_SK: P['skv1'] if n < 32 else P['skv2'], K_SV: P['skv1'] if n < 32 else P['skv2'], K_ATB: P['atb'], K_BO: P['bo'], K_ATA: P['ata'], K_ATA4: P['ata4'], K_SWP: P['swp'], K_AO: P['ao'], K_AOS: P['aos'], K_AOF: P['aof'], K_AO4: P['ao4']}.get(k, P['big'])
    def group(e):
        k, p = e & 255, (e >> 8) & 255
        return {K_AQ: ('Q', p), K_BQKV: ('B', p), K_ATB: ('TB', p), K_ATA: ('TA', p >> 2), K_ATA4: ('TA', p >> 2)}.get(k, ('x', 0))
    free = [(0.0, w) for w in range(32)] + [(P['go'] + P['step'] * 63.6, 32 + w) for w in range(32)]
    heapq.heapify(free)
    out = []; end = 0
    while first or KVq or Qq or Bq or TBq or BOq or TAq or AOq:
        t, w = heapq.heappop(free)
        ok = lambda q: q and ready(q[0]) + (P['margin'] if (q[0] & 255) not in (K_ATA, K_AOS, K_AOF, K_AO4) else -(P['early'] if (q[0] & 255) != K_ATA else (P['earlyA'] if ((q[0] >> 8) & 255) < 60 else P['lastA']))) <= t
        q = None
        if first: q = first
        elif KVq and t + 2 * P['big'] + P['kvlead'] > P['go'] + P['step'] * (8 * ((KVq[0] >> 8) & 255) - 3): q = KVq
        elif ok(TAq): q = TAq
        elif ok(AOq): q = AOq
        elif Qq and t + P['big'] + 10 > seg_time(8 * ((Qq[0] >> 8) & 255)): q = Qq
        elif Bq and t > P['bstart']: q = Bq
        elif KVq: q = KVq
        elif Qq: q = Qq
        elif TAq and (TAq[0] & 255) == K_ATA4 and ready(TAq[0]) <= t + P['look']: q = TAq
        elif AOq and (AOq[0] & 255) == K_AO and ready(AOq[0]) <= t + P['look']: q = AOq
        elif ok(TBq): q = TBq
        elif ok(BOq): q = BOq
        else:
            cand = [x for x in (AOq, TAq, BOq, TBq) if x and ready(x[0]) < 1e8]
            q = min(cand, key=lambda x: ready(x[0]))
        e = q.pop(0)
        st_ = max(t, ready(e)); en = st_ + dur(e, len(out))
        c, tt = done.get(group(e), (0, 0.0)); done[group(e)] = (c + 1, max(tt, en + (P['lat'] if (e & 255) in (K_AQ, K_BQKV) else 0.5)))
        if (e & 255) == K_ATA:
            g2 = ('TH', ((e >> 8) & 255) >> 1); c, tt = done.get(g2, (0, 0.0)); done[g2] = (c + 1, max(tt, en + 0.5))
        e2 = e
        while FOLLOW and (e & 255) == K_ATA and ((e2 >> 8) & 255) + FOLLOW < FEND:
            e2 += FOLLOW << 8; en = max(en, ready(e2)) + dur(e2, 0)
            c, tt = done.get(group(e2), (0, 0.0)); done[group(e2)] = (c + 1, max(tt, en + 0.5))
        out.append(e); end = max(end, en)
        if verbose: print(f'{t:6.1f} {st_:6.1f} {en:6.1f} kind {e & 255} p {(e >> 8) & 255} q {e >> 16}')
        heapq.heappush(free, (en + P['gap'], w))
    if verbose: print('sim end', end)
    return out

def setp(**k):
    globals().update(k)

def gen(force_slow=False, force_fb=False, sweep=True, wst=False, empty=False, codepf=True, MS=16, rot=0, gfl='', sim={}, glob={}, defer=True, chain=True, ipos=4, e1=0, ofl='sc1', **kw):
    setp(**glob)
    a = Asm()
    sW_ = 's32'; sXW, sT, sKind, sP, sQ_, sDone = 's33', 's34', 's35', 's36', 's37', 's38'
    a('s_cmp_ge_u32 s2, 256'); a('s_cbranch_scc1 L_exit')
    if empty: a('s_endpgm')
    if wst: a('s_memrealtime s[56:57]'); kw['rt'] = wst
    a('s_load_dwordx4 s[92:95], s[0:1], 88')
    a('s_load_dwordx16 s[64:79], s[0:1], 0')
    a('s_getreg_b32 s39, hwreg(HW_REG_XCC_ID, 0, 3)')
    a('v_lshrrev_b32 v2, 6, v0'); a('s_nop 0'); a(f'v_readfirstlane_b32 {sW_}, v2')
    a(f's_mov_b32 {sSpin}, 0')
    if codepf:
        a('s_getpc_b64 s[86:87]')
        a.label('L_pc0')
        a('s_lshr_b32 s90, s2, 3'); a('s_lshl_b32 s90, s90, 2'); a(f's_add_u32 s90, s90, {sW_}'); a('s_and_b32 s90, s90, 31'); a('s_lshl_b32 s90, s90, 12')
        a('v_and_b32 v1, 63, v0'); a('v_lshlrev_b32 v1, 6, v1'); a('v_add_u32 v1, s90, v1')
        a('v_min_u32 v1, L_table-L_pc0, v1')
        a('global_load_dword v199, v1, s[86:87]')
        a('v_lshlrev_b32 v1, 3, v0'); a('v_add_u32 v1, L_table-L_pc0, v1')
        a('global_load_dwordx2 v[248:249], v1, s[86:87]')
    a('s_waitcnt lgkmcnt(0)')
    srd(a, 4, 94, WS_BYTES); srd(a, 28, 92, 256)
    a(f's_mov_b32 {sMode4}, 0')
    a('s_lshr_b32 s41, s2, 3')
    if force_fb: a('s_and_b32 s41, s41, 30')
    if rot: a(f's_add_u32 s41, s41, {rot}'); a('s_and_b32 s41, s41, 31')
    a(f's_lshl_b32 {sBit}, 1, s41')
    a(f's_cmp_lg_u32 {sW_}, 0'); a('s_cbranch_scc1 L_sweep')
    a('s_lshl_b32 s90, s39, 2')
    a(f'v_mov_b32 {vClaim}, {sBit}'); a('v_mov_b32 v2, 0')
    a('s_mov_b64 exec, 1')
    a(f'buffer_atomic_or {vClaim}, v2, {DBG}, s90 offen offset:{D_OR} sc0 sc1')
    a('s_mov_b64 exec, -1')
    a.label('L_sweep')
    a('s_lshl_b32 s40, s39, 5'); a('s_add_u32 s40, s40, s41'); a('s_mov_b32 s43, 1')
    a('s_branch L_role')
    a.label('L_fallback')
    a('s_load_dwordx4 s[92:95], s[0:1], 88')
    a('s_load_dwordx16 s[64:79], s[0:1], 0')
    a('s_getreg_b32 s39, hwreg(HW_REG_XCC_ID, 0, 3)')
    a(f's_mov_b32 {sMode4}, 4')
    a('v_mbcnt_lo_u32_b32 v0, -1, 0'); a('v_mbcnt_hi_u32_b32 v0, -1, v0'); a(f's_lshl_b32 s90, {sW_}, 6'); a('v_add_u32 v0, s90, v0')
    a('s_waitcnt vmcnt(0) lgkmcnt(0)')
    a('s_barrier')
    a(f's_cmp_lg_u32 {sW_}, 0'); a('s_cbranch_scc1 L_tkd')
    a('s_lshl_b32 s90, s39, 2')
    a('v_mov_b32 v1, 1'); a('v_mov_b32 v2, 0'); a('v_lshlrev_b32 v3, 2, v0')
    a('s_mov_b64 exec, 1')
    a(f'buffer_atomic_add v1, v2, {DBG}, s90 offen offset:{D_TICK} sc0 sc1')
    a('s_mov_b64 exec, 0xff')
    a.label('L_tkw')
    a(f'buffer_load_dword v4, v3, {DBG}, 0 offen offset:{D_TICK} sc1')
    a('s_waitcnt vmcnt(0)')
    a('v_readfirstlane_b32 s40, v1')
    a('s_mov_b32 s41, 0'); a('s_mov_b32 s42, 0'); a('s_mov_b32 s43, 1')
    for x in range(8):
        a(f'v_readlane_b32 s44, v4, {x}')
        a('s_add_u32 s41, s41, s44')
        a(f's_cmp_gt_u32 s39, {x}'); a('s_cselect_b32 s45, s44, 0'); a('s_add_u32 s42, s42, s45')
        if x < 4: a('s_cmp_eq_u32 s44, 32'); a('s_cselect_b32 s43, s43, 0')
    a(f's_add_u32 {sSpin}, {sSpin}, 1'); a(f's_cmp_ge_u32 {sSpin}, {SPIN_MAX}'); a('s_cbranch_scc1 L_tkbad')
    a('s_sleep 4')
    a('s_cmp_lt_u32 s41, 256'); a('s_cbranch_scc1 L_tkw')
    a('s_add_u32 s40, s40, s42'); a('s_lshl_b32 s43, s43, 16'); a('s_or_b32 s40, s40, s43')
    a('s_branch L_tkok')
    a.label('L_tkbad')
    a('s_mov_b32 s40, 0xffff')
    a.label('L_tkok')
    a('s_mov_b64 exec, -1')
    a('v_mov_b32 v1, s40'); a(f'v_mov_b32 v2, {LDS_X}')
    a('ds_write_b32 v2, v1'); a('s_waitcnt lgkmcnt(0)')
    a.label('L_tkd')
    a('s_barrier')
    a(f'v_mov_b32 v2, {LDS_X}'); a('ds_read_b32 v1, v2'); a('s_waitcnt lgkmcnt(0)')
    a('v_readfirstlane_b32 s40, v1')
    a('s_barrier')
    a('s_lshr_b32 s43, s40, 16'); a('s_and_b32 s40, s40, 0xffff')
    a('s_cmp_ge_u32 s40, 256'); a('s_cbranch_scc1 L_exit')
    if force_slow: a('s_mov_b32 s43, 0')
    a.label('L_role')
    if wst:
        a('s_memrealtime s[58:59]'); a('s_waitcnt lgkmcnt(0)')
        a(f's_lshl_b32 s62, s2, 5'); a(f's_add_u32 s62, s62, {STAMP + 131072:#x}')
        a('v_mov_b32 v251, 0'); a('v_mov_b32 v252, s56'); a('v_mov_b32 v253, s58'); a('s_mov_b64 exec, 1')
        a(f'buffer_store_dwordx2 v[252:253], v251, s[4:7], s62 offen'); a('s_mov_b64 exec, -1')
    a('s_cmp_ge_u32 s40, 128'); a('s_cbranch_scc1 L_worker')
    a(f's_lshr_b32 {sX}, s40, 5'); a(f's_and_b32 {sI}, s40, 31')
    a('s_cmp_eq_u32 s43, 0'); a('s_cbranch_scc1 L_recslow')
    r1 = Asm(); names = rec.gen_rec(r1, fused=True, exit_label='L_join', **kw); a.absorb(r1, 'F')
    a.label('L_recslow')
    r2 = Asm(); rec.gen_rec(r2, fused=True, exit_label='L_join', local_st='sc1', pol=0); a.absorb(r2, 'S')
    a.label('L_join')
    a('s_load_dwordx16 s[64:79], s[0:1], 0')
    a('v_mbcnt_lo_u32_b32 v0, -1, 0'); a('v_mbcnt_hi_u32_b32 v0, -1, v0'); a(f's_lshl_b32 s90, {sW_}, 6'); a('v_add_u32 v0, s90, v0')
    a(f's_lshl_b32 s40, {sX}, 5'); a('s_add_u32 s40, s40, 128'); a('s_mov_b32 s39, 1')
    a('s_barrier')
    a('s_branch L_worker1')
    a.label('L_worker')
    a('s_mov_b32 s39, 0')
    a.label('L_worker1')
    a('s_load_dwordx4 s[80:83], s[0:1], 64')
    a('s_load_dwordx2 s[84:85], s[0:1], 80')
    a(f's_sub_u32 {sXW}, s40, 128'); a(f's_lshr_b32 {sXW}, {sXW}, 5')
    a(f's_and_b32 {sT}, s40, 31')
    a('s_getpc_b64 s[86:87]')
    a.label('L_pc')
    a('s_add_u32 s86, s86, L_table-L_pc'); a('s_addc_u32 s87, s87, 0')
    a('s_waitcnt lgkmcnt(0)')
    tl = task_list(**sim)
    G1 = Gemm(256, 256, 64, 2, 'row', MS=MS, ld_flags=gfl, w_flags=gfl); G3 = Gemm(128, 128, 64, 4, 'packed', perm_out=True, ld_flags='sc1', MS=MS, w_flags=gfl)
    G2 = Gemm(128, 128, 64, 4, 'row', MS=MS, ld_flags=gfl, w_flags=gfl) if not S256 else Gemm(256, 128, 64, 2, 'row', MS=MS, ld_flags=gfl, w_flags=gfl)
    pE, pOo, pSeg, pDone, pInc, sRet = 's59', 's60', 's61', 's62', 's63', 's58'
    EPI = 176
    DF = dict(ad='v172', ad2='v173', base=176, s0='s46', s1='s47')
    dstores = [f'buffer_store_dwordx4 {vr(176 + 4*n, 4)}, {DF["ad2"] if (n & 7) >= 4 else DF["ad"]}, {WS}, {DF["s1"] if n >= 8 else DF["s0"]} offen offset:{(n&3)*1024} sc1' for n in range(16)] if defer else []
    pSig = 's49'
    srd(a, 16, 84, 8 * MB); srd(a, 8, 64, 4 * MB); srd(a, 12, 70, 8 * MB)
    for r in list(range(1, 18)) + [172, 173]: a(f'v_mov_b32 v{r}, 0')
    a(f's_mov_b32 {pE}, 0')
    def request(a):
        l = a.newlabel('L_rq')
        a(f's_cmp_lg_u32 {sW_}, 0'); a(f's_cbranch_scc1 {l}')
        a('s_cmp_eq_u32 s39, 0'); a(f's_cbranch_scc1 {l}')
        a(f's_lshl_b32 s99, {sXW}, 7'); a(f's_add_u32 s99, s99, {CNT + C_QUEUE:#x}')
        a('v_mov_b32 v244, 1'); a('v_mov_b32 v245, 0')
        a('s_mov_b64 exec, 1')
        a(f'buffer_atomic_add v244, v245, {WS}, s99 offen sc0 sc1')
        a('s_mov_b64 exec, -1')
        a.label(l)
    a('s_cmp_eq_u32 s39, 0'); a('s_cbranch_scc1 L_have')
    a.label('L_next')
    request(a)
    a('s_waitcnt vmcnt(0)')
    a.label('L_got')
    a(f's_cmp_lg_u32 {sW_}, 0'); a('s_cbranch_scc1 L_nx1')
    a(f'v_mov_b32 v245, {LDS_X}'); a('s_mov_b64 exec, 1'); a('ds_write_b32 v245, v244'); a('s_mov_b64 exec, -1'); a('s_waitcnt lgkmcnt(0)')
    a.label('L_nx1')
    a('s_barrier')
    a(f'v_mov_b32 v245, {LDS_X}'); a('ds_read_b32 v246, v245'); a('s_waitcnt lgkmcnt(0)')
    tld = [f'v_min_u32 v245, {len(tl) - 32}, v246', 'v_lshlrev_b32 v245, 2, v245', f'v_add_u32 v245, {LDS_T + 128}, v245', 'ds_read_b32 v245, v245',
           f'v_readfirstlane_b32 {sT}, v246', f's_add_u32 {sT}, {sT}, 32']
    for x in tld: a(x)
    a('s_waitcnt lgkmcnt(0)'); a('v_readfirstlane_b32 s91, v245')
    a('s_branch L_have1')
    a.label('L_have')
    a(f's_lshl_b32 s90, {sT}, 2'); a('s_load_dword s91, s[86:87], s90'); a('s_waitcnt lgkmcnt(0)')
    a.label('L_have1')
    a('s_mov_b32 s98, 1')
    a(f's_and_b32 {sKind}, s91, 255'); a(f's_lshr_b32 {sP}, s91, 8'); a(f's_and_b32 {sP}, {sP}, 255'); a(f's_lshr_b32 {sQ_}, s91, 16')
    def wstamp(k, a=a):
        if not wst: return
        a('s_memrealtime s[96:97]'); a('s_memtime s[54:55]'); a('s_waitcnt lgkmcnt(0)')
        a(f's_lshl_b32 s55, {sXW}, 9'); a(f's_add_u32 s55, s55, {sT}'); a('s_lshl_b32 s55, s55, 6'); a(f's_add_u32 s55, s55, {STAMP + 262144 + 8*k:#x}')
        a('v_mov_b32 v240, 0'); a('v_mov_b32 v242, s96'); a('v_mov_b32 v243, s54'); a('s_mov_b64 exec, 1')
        a(f'buffer_store_dwordx2 v[242:243], v240, s[4:7], s55 offen'); a('s_mov_b64 exec, -1')
    hk = (lambda a_: wstamp(3, a_)) if wst else None
    def do_sweep(a, t0, lst):
        a('v_lshlrev_b32 v174, 7, v1')
        a(f's_sub_u32 s42, {sT}, {t0}'); a('s_lshl_b32 s40, s42, 2'); a(f's_add_u32 s40, s40, {sXW}'); a('s_lshl_b32 s40, s40, 2'); a(f's_add_u32 s40, s40, {sW_}')
        a('s_lshl_b32 s40, s40, 13')
        a(f's_cmp_ge_u32 s42, 16'); a('s_cselect_b32 s40, 0x40000000, s40')
        a(f's_add_u32 s41, s40, {2*MB}')
        for n, (base, size, so) in enumerate(lst):
            srd(a, 44, base, size * MB)
            a(f'buffer_load_dword v{175}, v174, s[44:47], {so} offen')
    wstamp(0)
    def wait(deps, prog=None, slp=6, stamp=True):
        l, d = a.newlabel('L_dw'), a.newlabel('L_dd')
        a(f's_cmp_lg_u32 {sW_}, 0'); a(f's_cbranch_scc1 {d}')
        [a(f'v_mov_b32 v{228+q}, {CNT + 4096*q:#x}') for q in sorted({0} | {b >> 12 for _, b, _ in deps})]
        a.label(l)
        for n, (so, base, tgt) in enumerate(deps): a(f'buffer_load_dword v{234+n}, v{228 + (base >> 12)}, {WS}, {so} offen offset:{base & 4095} sc1')
        if prog: a(f's_lshl_b32 s45, {sXW}, 7'); a(f'buffer_load_dword v238, v228, {WS}, s45 offen offset:{C_PROG} sc1'); a(f'buffer_load_dword v239, v228, {WS}, s42 offen sc1')
        a('s_waitcnt vmcnt(0)')
        a('s_mov_b32 s44, 1')
        for n, (so, base, tgt) in enumerate(deps):
            a(f'v_readfirstlane_b32 s45, v{234+n}'); a(f's_cmp_ge_u32 s45, {tgt}'); a('s_cselect_b32 s44, s44, 0')
        if prog:
            a('v_readfirstlane_b32 s45, v238'); a('v_readfirstlane_b32 s47, v239')
            a('s_cmp_ge_u32 s47, 16'); a('s_cselect_b32 s45, 64, s45')
            a(f's_cmp_ge_u32 s45, {prog}'); a('s_cselect_b32 s44, s44, 0')
        a('s_cmp_eq_u32 s44, 1'); a(f's_cbranch_scc1 {d}')
        a(f's_sleep {slp}')
        a(f's_add_u32 {sSpin}, {sSpin}, 1'); a(f's_cmp_lt_u32 {sSpin}, {SPIN_MAX}'); a(f's_cbranch_scc1 {l}')
        a.label(d)
        a('s_barrier')
        if stamp: wstamp(1)
    for k, l in ((K_AQ, 'L_aqkv'), (K_AK, 'L_aqkv'), (K_AV, 'L_aqkv'), (K_BQKV, 'L_bqkv'), (K_SK, 'L_small'), (K_SV, 'L_small')):
        a(f's_cmp_eq_u32 {sKind}, {k}'); a(f's_cbranch_scc1 {l}')
    a(f's_mov_b32 {sRet}, 0')
    a.label('L_epi')
    a(f's_mov_b32 {DF["s0"]}, 0x40000000'); a(f's_mov_b32 {DF["s1"]}, 0x40000000'); a(f's_mov_b32 {pSig}, 0')
    a(f's_cmp_eq_u32 {sRet}, 1'); a('s_cselect_b64 vcc, -1, 0')
    a(f's_cmp_eq_u32 {pE}, 0'); a('s_cbranch_scc1 L_epid')
    ekw = dict(sOo=pOo, sSeg=pSeg)
    for n_, (G, kind, so, fl) in enumerate(((G1, 'qk', WS, 'sc1'), (G1, 'v', WS, 'sc1'), (G2, 'qk', WS, 'sc1'), (G2, 'v', WS, 'sc1'), (G3, 'out', SO, ofl))):
        a(f's_cmp_lg_u32 {pE}, {n_+1}'); a(f's_cbranch_scc1 L_e{n_}')
        if G is G1 and defer:
            G.epilogue(a, kind, G1.FX[0], fl, SO=so, defer=DF, inter=G1.gdma(a, 1) if chain and e1 else (), ipos=ipos, **ekw)
            a('s_branch L_edef')
        else:
            G.epilogue(a, kind, EPI, fl, SO=so, **ekw)
            a('s_branch L_epid' if kind == 'out' else 's_branch L_esig')
        a.label(f'L_e{n_}')
    a.label('L_edef')
    a(f's_mov_b32 {pSig}, 1')
    a(f's_cmp_eq_u32 {sRet}, 1'); a('s_cbranch_scc1 L_epid')
    a(f's_mov_b32 {pSig}, 0')
    for x in dstores: a(x)
    a(f's_mov_b32 {DF["s0"]}, 0x40000000'); a(f's_mov_b32 {DF["s1"]}, 0x40000000')
    a.label('L_esig')
    a('s_waitcnt vmcnt(0)')
    a('s_cmp_lg_u32 s39, 0'); a('s_cbranch_scc1 L_vok')
    verify(a)
    a('s_mov_b32 s39, 1')
    a.label('L_vok')
    a('s_barrier')
    signal(a, 0, soff=pDone, srd_=WS, inc=pInc, two=True)
    a.label('L_epid')
    if wst:
        l = a.newlabel('L_ws'); a(f's_cmp_eq_u32 {pE}, 0'); a(f's_cbranch_scc1 {l}')
        a(f's_mov_b32 s57, {sT}'); a(f's_mov_b32 {sT}, s56'); wstamp(2); a(f's_mov_b32 {sT}, s57'); a.label(l)
    a(f's_mov_b32 {pE}, 0')
    for r_, l in ((1, 'L_r1'), (2, 'L_r2'), (3, 'L_next')):
        a(f's_cmp_eq_u32 {sRet}, {r_}'); a(f's_cbranch_scc1 {l}')
    for k, l in ((K_ATB, 'L_atb'), (K_BO, 'L_bo'), (K_ATA, 'L_ata'), (K_ATA4, 'L_ata4'), (K_AO, 'L_ao'), (K_AOS, 'L_aos'), (K_SWP, 'L_swp'), (K_AO4, 'L_ao4')) + (((K_AOF, 'L_aof'),) if USE_AOF else ()):
        a(f's_cmp_eq_u32 {sKind}, {k}'); a(f's_cbranch_scc1 {l}')
    a('s_branch L_exit')
    def tile_end(e):
        wstamp(4)
        a(f's_mov_b32 {pE}, {e}'); a(f's_mov_b32 {pOo}, {sOo}'); a(f's_mov_b32 {pSeg}, {sSeg}')
        a(f's_add_u32 {pDone}, {sDone}, {CNT:#x}'); a(f's_mov_b32 {pInc}, s98')
        if wst: a(f's_mov_b32 s56, {sT}'); a('s_waitcnt vmcnt(0)')
        a('s_cmp_lg_u32 s39, 0'); a('s_cbranch_scc1 L_got')
        a(f's_mov_b32 {sRet}, 3'); a('s_branch L_epi')
    def hk1(a_):
        if wst: wstamp(3, a_)
        l = a_.newlabel('L_hs'); a_(f's_cmp_eq_u32 {pSig}, 0'); a_(f's_cbranch_scc1 {l}')
        signal(a_, 0, soff=pDone, srd_=WS, inc=pInc, two=True)
        a_.label(l)
    def dec_a(a):
        srd(a, 8, 64, 4 * MB)
        a(f's_cmp_eq_u32 {sKind}, 0'); a('s_cselect_b64 s[88:89], s[68:69], s[70:71]')
        a(f's_cmp_eq_u32 {sKind}, 2'); a('s_cselect_b64 s[88:89], s[72:73], s[88:89]')
        srd(a, 12, 88, 8 * MB)
        a(f's_lshl_b32 s91, {sXW}, 2'); a(f's_add_u32 s91, s91, {sQ_}')
        a(f's_mov_b32 {sLdw}, 8192'); a(f's_mov_b32 {sSeg}, {256*KB}')
        a(f's_lshl_b32 {sXo}, {sP}, 19'); a(f's_lshl_b32 {sWo}, s91, 9')
        a(f's_lshl_b32 {sOo}, {sKind}, 24'); a(f's_lshl_b32 s90, {sP}, 21'); a(f's_add_u32 {sOo}, {sOo}, s90')
        a('s_lshl_b32 s90, s91, 14'); a(f's_add_u32 {sOo}, {sOo}, s90')
        a(f's_lshl_b32 {sDone}, {sP}, 9'); a(f's_add_u32 {sDone}, {sDone}, {C_KV}'); a(f's_cmp_eq_u32 {sKind}, 0'); a(f's_cselect_b32 {sDone}, {C_Q}, {sDone}'); a('s_cselect_b32 s98, 1, 2')
        a(f's_mov_b32 s48, {sKind}')
    def dec_b(a):
        srd(a, 8, 78, 4 * MB); srd(a, 12, 80, 6 * MB)
        a(f's_lshl_b32 s91, {sQ_}, 2'); a(f's_add_u32 s91, s91, {sXW}')
        a(f's_mov_b32 {sLdw}, 6144'); a(f's_mov_b32 {sSeg}, {64*KB}')
        a(f's_lshl_b32 {sXo}, {sP}, 19'); a(f's_lshl_b32 {sWo}, s91, 9')
        a(f's_lshl_b32 {sOo}, {sQ_}, 22'); a(f's_lshl_b32 s90, {sP}, 19'); a(f's_add_u32 {sOo}, {sOo}, s90')
        a(f's_lshl_b32 s90, {sXW}, 14'); a(f's_add_u32 {sOo}, {sOo}, s90'); a(f's_add_u32 {sOo}, {sOo}, {BQKV:#x}')
        a(f's_mov_b32 {sDone}, {C_BQ}'); a(f's_mov_b32 s48, {sQ_}'); a('s_mov_b32 s98, 1')
    def dec_g(a):
        a(f's_lshl_b32 s90, {sP}, 9'); a(f's_add_u32 {sDone}, {sDone}, s90'); a(f's_lshl_b32 s90, {sXW}, 7'); a(f's_add_u32 {sDone}, {sDone}, s90')
        a(f's_mov_b32 {sLdx}, 2048'); a(f's_mov_b32 {sNk}, 8')
    a.label('L_aqkv')
    dec_a(a)
    a('s_branch L_g1')
    a.label('L_bqkv')
    dec_b(a)
    a.label('L_g1')
    dec_g(a)
    G1.setup(a, rowreg='v174')
    if chain: a(f'v_mov_b32 v241, {LDS_X}'); a('v_lshrrev_b32 v175, 4, v0'); a('v_add_u32 v175, v175, v241')
    a(f's_mov_b32 {sRet}, 1'); a('s_branch L_epi')
    a.label('L_r1')
    if chain: a(f's_cmp_eq_u32 {pSig}, 1'); a('s_cbranch_scc1 L_r1c'); a(f's_waitcnt vmcnt({G1.ND})'); a.label('L_r1c'); assert defer
    a('s_cmp_eq_u32 s48, 2'); a('s_cbranch_scc1 L_g2')
    assert all((e & 255) in (K_SK, K_SV) for e in tl[:32])
    def c_ld(e):
        def f(a):
            a(f's_mov_b32 {pE}, {e}'); a(f's_mov_b32 {pOo}, {sOo}'); a(f's_mov_b32 {pSeg}, {sSeg}')
            a(f's_add_u32 {pDone}, {sDone}, {CNT:#x}'); a(f's_mov_b32 {pInc}, s98')
            if wst: a(f's_mov_b32 s56, {sT}'); wstamp(5)
        return f
    c_ld2 = tld
    def c_dec(a):
        lb, lg, ls, ld = [a.newlabel('L_cd') for _ in range(4)]
        def ost(k):
            if wst: a(f's_mov_b32 s57, {sT}'); a(f's_mov_b32 {sT}, s56'); wstamp(k); a(f's_mov_b32 {sT}, s57')
        ost(7)
        a('v_readfirstlane_b32 s91, v245')
        a(f's_and_b32 {sKind}, s91, 255'); a(f's_lshr_b32 {sP}, s91, 8'); a(f's_and_b32 {sP}, {sP}, 255'); a(f's_lshr_b32 {sQ_}, s91, 16')
        a(f's_mov_b32 s92, {sLdw}')
        a(f's_cmp_gt_u32 {sKind}, {K_BQKV}'); a(f's_cbranch_scc1 {ls}')
        a(f's_cmp_eq_u32 {sKind}, {K_BQKV}'); a(f's_cbranch_scc1 {lb}')
        dec_a(a); a(f's_branch {lg}')
        a.label(ls)
        a('s_mov_b64 vcc, 0'); a(f's_mov_b32 {sRet}, 0'); a(f's_branch {ld}')
        a.label(lb)
        dec_b(a)
        a.label(lg)
        dec_g(a)
        a('s_mov_b64 vcc, -1')
        a(f's_sub_i32 s92, {sLdw}, s92'); a(f's_lshl_b32 {sWstep}, {sLdw}, 6')
        a(f'v_mul_i32_i24 v{G1.TMP}, s92, v174'); a(f's_mul_i32 s92, s92, {G1.RPI}'); a('s_mov_b32 s93, 0')
        for j in range(G1.NW):
            a(f'v_add3_u32 v{G1.WA+j}, v{G1.WA+j}, v{G1.TMP}, s93'); a('s_add_u32 s93, s93, s92')
        a.label(ld)
        ost(6)
    for tag, ori, e in (('g1', 'T', 1), ('g2', 'N', 2)):
        if e == 2: a.label('L_g2')
        if not chain:
            G1.loop(a, tag, ori, exp='front', hook=hk1, fin_hook=lambda a_: (wstamp(5), request(a_)), extra=dstores); tile_end(e); continue
        G1.loop(a, tag, ori, exp='front', hook=hk1, fin_hook=c_ld(e), extra=dstores,
                chain=dict(req=lambda a_: None, wr=[f's_cmp_eq_u32 {sNk}, 1', f's_cbranch_scc1 L_{tag}_cw', f'L_{tag}_cwb:'],
                           rd=lambda a_: a_(f's_cmp_le_u32 {sNk}, 2\ns_cbranch_scc1 L_{tag}_cr\nL_{tag}_crb:'), dec=c_dec, ld=c_ld2, w0=16 if e1 else 0, e1=e1))
        if wst:
            a(f's_mov_b32 s57, {sT}'); a(f's_mov_b32 {sT}, s56'); wstamp(4); a(f's_mov_b32 {sT}, s57'); wstamp(0)
        a(f's_cmp_eq_u32 {sRet}, 1'); a('s_cbranch_scc1 L_epi')
        a('s_branch L_have1')
        a.label(f'L_{tag}_cw')
        a('s_mov_b64 exec, 1'); a('ds_write_b32 v175, v244'); a('s_mov_b64 exec, -1'); a(f's_branch L_{tag}_cwb')
        a.label(f'L_{tag}_cr')
        a('ds_read_b32 v246, v241')
        a(f's_cmp_eq_u32 {sNk}, 1'); a(f's_cbranch_scc1 L_{tag}_crb')
        request(a); a(f's_branch L_{tag}_crb')
    a.label('L_small')
    srd(a, 8, 64, 4 * MB)
    a(f's_cmp_eq_u32 {sKind}, {K_SK}'); a('s_cselect_b64 s[88:89], s[70:71], s[72:73]')
    srd(a, 12, 88, 8 * MB)
    a(f's_lshl_b32 s91, {sXW}, 3'); a(f's_add_u32 s91, s91, {sQ_}')
    a(f's_mov_b32 {sLdw}, 8192'); a(f's_mov_b32 {sSeg}, {256*KB}'); a(f's_mov_b32 {sLdx}, 2048'); a(f's_mov_b32 {sNk}, {16 // G2.NS}')
    a(f's_lshl_b32 {sXo}, {sP}, {18 + S256}'); a(f's_lshl_b32 {sWo}, s91, 8')
    a(f's_sub_u32 {sOo}, {sKind}, 8'); a(f's_lshl_b32 {sOo}, {sOo}, 24'); a(f's_lshl_b32 s90, {sP}, {20 + S256}'); a(f's_add_u32 {sOo}, {sOo}, s90')
    a('s_lshl_b32 s90, s91, 13'); a(f's_add_u32 {sOo}, {sOo}, s90')
    a(f's_lshl_b32 {sDone}, {sP}, {9 + S256}'); a(f's_add_u32 {sDone}, {sDone}, {C_KV}'); a(f's_lshl_b32 s90, {sXW}, 7'); a(f's_add_u32 {sDone}, {sDone}, s90')
    if S256: a('s_mov_b32 s98, 5')
    G2.setup(a)
    a(f's_mov_b32 {sRet}, 2'); a('s_branch L_epi')
    a.label('L_r2')
    NT = 2 if sweep else 0
    if sweep: do_sweep(a, 16 if S256 else 32, ((64, 4, 's40'), (64, 4, 's41')))
    a(f's_cmp_eq_u32 {sKind}, {K_SV}'); a('s_cbranch_scc1 L_g5')
    G2.loop(a, 'g4', 'T', younger=NT, hook=hk, fin_hook=request, exp='front' if S256 else ''); tile_end(3)
    a.label('L_g5')
    G2.loop(a, 'g5', 'N', younger=NT, hook=hk, fin_hook=request, exp='front' if S256 else ''); tile_end(4)
    a.label('L_swp')
    a('s_barrier')
    a('v_and_b32 v1, 63, v0'); a('v_lshlrev_b32 v2, 7, v1')
    a(f's_lshl_b32 s40, {sP}, 2'); a(f's_add_u32 s40, s40, {sXW}'); a('s_lshl_b32 s40, s40, 2'); a(f's_add_u32 s40, s40, {sW_}'); a('s_lshl_b32 s40, s40, 13')
    for base, size in ((78, 4), (80, 6), (82, 2)):
        srd(a, 44, base, size * MB)
        a('s_mov_b32 s41, s40')
        for q in range(size * 8 // NSWP):
            a(f'buffer_load_dword v{4+q}, v2, s[44:47], s41 offen'); a(f's_add_u32 s41, s41, {128*KB*NSWP}')
    wstamp(2)
    a('s_branch L_next')
    a.label('L_atb')
    a(f's_lshl_b32 s90, {sXW}, 7'); a(f's_lshl_b32 s40, {sP}, 9'); a('s_add_u32 s40, s40, s90'); a(f's_max_u32 s41, {sP}, 1'); a('s_sub_u32 s41, s41, 1'); a('s_lshl_b32 s41, s41, 9'); a('s_add_u32 s41, s41, s90')
    wait([('s40', C_BQ, 3), ('s41', C_BQ, 3)])
    a(f's_lshl_b32 {sDone}, {sP}, 7'); a(f's_add_u32 {sDone}, {sDone}, {C_AB}')
    a(f's_lshl_b32 s46, {sP}, 3'); a(f's_lshl_b32 s90, {sQ_}, 1'); a('s_add_u32 s99, s46, s90'); a(f's_lshr_b32 s90, {sW_}, 1'); a('s_add_u32 s99, s99, s90')
    a('s_lshl_b32 s99, s99, 3'); a(f's_lshl_b32 s90, {sXW}, 1'); a('s_add_u32 s99, s99, s90'); a(f's_and_b32 s90, {sW_}, 1'); a('s_add_u32 s20, s99, s90')
    a('v_and_b32 v1, 63, v0')
    attn.gen_attnB(a, 's20', ld_flags='sc1', st_flags='sc1', after_loads=request)
    a('s_branch L_done')
    def reqf(a_):
        l = a_.newlabel('L_rf'); a_(f's_cmp_lt_u32 {sP}, {FEND - FOLLOW}'); a_(f's_cbranch_scc1 {l}'); request(a_); a_.label(l)
    for lab, n_ in (('L_ata', 1), ('L_ata4', 4)):
        a.label(lab)
        if n_ == 1: a('s_mov_b32 s50, 0'); a.label('L_ata_c'); assert FINE0 >= 4
        a(f's_lshr_b32 s40, {sP}, 3'); a('s_lshl_b32 s40, s40, 9'); a(f's_lshl_b32 s90, {sXW}, 7'); a('s_add_u32 s40, s40, s90'); a(f's_add_u32 s41, {sP}, {n_}')
        a(f's_lshr_b32 s43, {sP}, 2'); a('s_lshl_b32 s43, s43, 9'); a('s_add_u32 s43, s43, s90'); a(f's_add_u32 s43, s43, {C_KV}')
        a(f's_lshl_b32 s42, {sXW}, 1'); a(f's_add_u32 s42, s42, {sQ_}'); a('s_lshl_b32 s42, s42, 7'); a(f's_add_u32 s42, s42, {C_FIN}')
        if n_ == 1:
            a(f's_cmp_ge_u32 s50, {max(FOLLOW, 1)}'); a('s_cbranch_scc1 L_ata_s')
            wait([('s40', C_Q, 4), ('s43', 0, 16)], stamp=False)
            a.label('L_ata_s')
        else: wait([('s40', C_Q, 4), ('s43', 0, 16)], prog='s41')
        a(f's_mov_b32 s98, {n_}')
        a(f's_lshr_b32 {sDone}, {sP}, 2'); a(f's_lshl_b32 {sDone}, {sDone}, 7'); a(f's_add_u32 {sDone}, {sDone}, {C_AA}')
        if n_ == 1:
            assert FINE0 <= SPLIT0 and SPLIT0 >= 13
            a(f's_lshr_b32 s90, {sP}, 1'); a('s_sub_u32 s90, s90, 24'); a('s_lshl_b32 s90, s90, 2'); a(f's_add_u32 s90, s90, {sXW}'); a('s_lshl_b32 s90, s90, 1'); a(f's_add_u32 s90, s90, {sQ_}')
            a('s_lshl_b32 s90, s90, 7'); a(f's_add_u32 s90, s90, {C_AF}')
            a(f's_cmp_ge_u32 {sP}, {4*SPLIT0}'); a(f's_cselect_b32 {sDone}, s90, {sDone}')
        a(f's_lshl_b32 s20, {sP}, 5'); a(f's_lshl_b32 s90, {sXW}, 3'); a('s_add_u32 s20, s20, s90'); a(f's_lshl_b32 s90, {sQ_}, 2'); a('s_add_u32 s20, s20, s90'); a(f's_add_u32 s20, s20, {sW_}')
        a('v_and_b32 v1, 63, v0')
        attn.gen_attnA(a, 's20', ld_flags='sc1', st_flags='sc1', mid=(lambda: wait([], prog='s41', slp=3)) if n_ == 1 else None, n=n_, after_loads=reqf if n_ == 1 and FOLLOW else request)
        a('s_branch L_done')
    a.label('L_bo')
    a(f's_lshr_b32 s40, {sP}, 1'); a('s_lshl_b32 s40, s40, 7'); a(f's_add_u32 s40, s40, {C_AB}'); a('s_mov_b32 s41, 16')
    srd(a, 12, 82, 2 * MB)
    a(f's_mov_b32 {sLdx}, {64*KB}'); a(f's_mov_b32 {sNk}, 4')
    a(f's_lshl_b32 {sXo}, {sP}, 18'); a(f's_add_u32 {sXo}, {sXo}, {OB:#x}'); a(f's_mov_b32 {sOo}, 2048')
    a('s_branch L_g3')
    a.label('L_aos')
    srd(a, 12, 74, 8 * MB)
    a(f's_and_b32 s48, {sQ_}, 7'); a(f's_lshr_b32 {sQ_}, {sQ_}, 3')
    a(f's_sub_u32 s40, {sP}, 12'); a('s_lshl_b32 s40, s40, 4'); a('s_add_u32 s40, s40, s48'); a('s_lshl_b32 s40, s40, 7'); a(f's_add_u32 s40, s40, {C_AF}'); a('s_mov_b32 s41, 2'); a('s_add_u32 s42, s40, 1024')
    a(f's_mov_b32 {sLdx}, {256*KB}'); a(f's_mov_b32 {sNk}, 2')
    a(f's_lshl_b32 {sXo}, {sP}, 20'); a(f's_add_u32 {sXo}, {sXo}, {OA:#x}'); a('s_lshl_b32 s90, s48, 15'); a(f's_add_u32 {sXo}, {sXo}, s90')
    a(f's_mov_b32 {sOo}, 0'); a('s_lshl_b32 s49, s48, 20')
    a('s_branch L_g3b')
    a.label('L_ao4')
    a(f's_lshl_b32 s40, {sP}, 7'); a(f's_add_u32 s40, s40, {C_AA}'); a('s_mov_b32 s41, 32'); a('s_mov_b32 s42, s40')
    srd(a, 12, 74, 8 * MB)
    a(f's_and_b32 s48, {sQ_}, 3'); a(f's_lshr_b32 {sQ_}, {sQ_}, 2')
    a(f's_mov_b32 {sLdx}, {256*KB}'); a(f's_mov_b32 {sNk}, 4')
    a(f's_lshl_b32 {sXo}, {sP}, 20'); a(f's_add_u32 {sXo}, {sXo}, {OA:#x}'); a('s_lshl_b32 s90, s48, 16'); a(f's_add_u32 {sXo}, {sXo}, s90')
    a(f's_mov_b32 {sOo}, 0'); a('s_lshl_b32 s49, s48, 21')
    a('s_branch L_g3b')
    a.label('L_ao')
    a(f's_lshl_b32 s40, {sP}, 7'); a(f's_add_u32 s40, s40, {C_AA}'); a('s_mov_b32 s41, 32')
    srd(a, 12, 74, 8 * MB)
    a(f's_mov_b32 {sLdx}, {256*KB}'); a(f's_mov_b32 {sNk}, 16')
    a(f's_lshl_b32 {sXo}, {sP}, 20'); a(f's_add_u32 {sXo}, {sXo}, {OA:#x}'); a(f's_mov_b32 {sOo}, 0')
    a.label('L_g3')
    a('s_mov_b32 s49, 0'); a('s_mov_b32 s42, s40')
    a.label('L_g3b')
    srd(a, 8, 4, WS_BYTES)
    a(f's_lshl_b32 s91, {sXW}, 1'); a(f's_add_u32 s91, s91, {sQ_}')
    a(f's_mov_b32 {sLdw}, 2048'); a(f's_mov_b32 {sSeg}, 4096')
    a(f's_lshl_b32 {sWo}, s91, 8'); a(f's_add_u32 {sOo}, {sOo}, {sWo}'); a(f's_lshl_b32 s90, {sP}, 19'); a(f's_add_u32 {sOo}, {sOo}, s90')
    a(f's_add_u32 {sWo}, {sWo}, s49'); a('s_mov_b32 s50, s91')
    def req3(a_):
        l = a_.newlabel('L_r3'); a_(f's_cmp_ge_u32 {sKind}, {K_AOS}'); a_(f's_cbranch_scc1 {l}'); request(a_); a_.label(l)
    G3.setup(a, mid=lambda: wait([('s40', 0, 's41'), ('s42', 0, 's41')], slp=3)); G3.loop(a, 'g3', 'T', hook=hk, fin_hook=req3, xlast=True)
    a(f's_cmp_ge_u32 {sKind}, {K_AOS}'); a('s_cbranch_scc1 L_part')
    tile_end(5)
    a.label('L_part')
    wstamp(4)
    assert MS == 16
    a(f's_sub_u32 s40, {sP}, {13 if USE_AOF else 12}'); a('s_lshl_b32 s40, s40, 3'); a('s_add_u32 s40, s40, s50')
    assert min(SPLIT0, SPLIT4) >= (13 if USE_AOF else 12)
    a('s_lshl_b32 s41, s40, 19'); a(f's_add_u32 s41, s41, {PARTK:#x}'); a(f's_lshl_b32 s90, {sW_}, 14'); a('s_add_u32 s41, s41, s90')
    a('s_lshl_b32 s90, s48, 16'); a('s_add_u32 s42, s41, s90')
    a('v_lshlrev_b32 v2, 4, v1')
    for q in range(16):
        if q and q % 4 == 0: a('s_add_u32 s42, s42, 4096')
        a(f'buffer_store_dwordx4 {ar(4*q, 4)}, v2, {WS}, s42 offen offset:{(q&3)*1024} sc1')
    a('s_lshl_b32 s40, s40, 7')
    a(f's_add_u32 s43, s40, {CNT + C_SP:#x}')
    a('s_waitcnt vmcnt(0)'); a('s_barrier')
    signal(a, 0, soff='s43', srd_=WS)
    a(f's_cmp_eq_u32 {sKind}, {K_AOS}'); a('s_cselect_b32 s43, 8, 4')
    wait([('s40', C_SP, 's43')], slp=1, stamp=False)
    request(a)
    def oaddr():
        lane_expr(a, 'v3', [(0, 4, 4096), (4, 2, 16)], lane='v1', tmp='v4')
        a(f's_lshr_b32 s90, {sW_}, 1'); a('s_lshl_b32 s90, s90, 18'); a(f's_add_u32 {sOo}, {sOo}, s90')
        a(f's_and_b32 s90, {sW_}, 1'); a('s_lshl_b32 s90, s90, 7'); a(f's_add_u32 {sOo}, {sOo}, s90')
    a(f's_cmp_eq_u32 {sKind}, {K_AO4}'); a('s_cbranch_scc1 L_part4')
    a('s_lshl_b32 s90, s48, 11'); a('s_add_u32 s41, s41, s90')
    for p in range(8):
        for h in range(2): a(f'buffer_load_dwordx4 {vr(16 + 8*p + 4*h, 4)}, v2, {WS}, s41 offen offset:{1024*h} sc1')
        a('s_add_u32 s41, s41, 0x10000')
    oaddr()
    a('s_lshr_b32 s90, s48, 1'); a('s_lshl_b32 s90, s90, 16'); a(f's_add_u32 {sOo}, {sOo}, s90')
    a('s_and_b32 s90, s48, 1'); a('s_lshl_b32 s90, s90, 6'); a(f's_add_u32 {sOo}, {sOo}, s90')
    for p in range(1, 8):
        a(f's_waitcnt vmcnt({14 - 2*p})')
        for q in range(0, 8, 2): a(f'v_pk_add_f32 {vr(16+q,2)}, {vr(16+q,2)}, {vr(16+8*p+q,2)}')
    for q in range(4): a(f'v_cvt_pk_bf16_f32 v{8+q}, v{16+2*q}, v{17+2*q}')
    a(f'buffer_store_dwordx4 v[8:11], v3, {SO}, {sOo} offen {ofl}')
    wstamp(2)
    a('s_branch L_got')
    a.label('L_part4')
    a('s_lshl_b32 s90, s48, 12'); a('s_add_u32 s41, s41, s90')
    for p in range(4):
        for h in range(4): a(f'buffer_load_dwordx4 {vr(16 + 16*p + 4*h, 4)}, v2, {WS}, s41 offen offset:{1024*h} sc1')
        a('s_add_u32 s41, s41, 0x10000')
    oaddr()
    a('s_lshl_b32 s90, s48, 16'); a(f's_add_u32 {sOo}, {sOo}, s90')
    for p in range(1, 4):
        a(f's_waitcnt vmcnt({12 - 4*p})')
        for q in range(0, 16, 2): a(f'v_pk_add_f32 {vr(16+q,2)}, {vr(16+q,2)}, {vr(16+16*p+q,2)}')
    for q in range(8): a(f'v_cvt_pk_bf16_f32 v{8+q}, v{16+2*q}, v{17+2*q}')
    for h in range(2): a(f'buffer_store_dwordx4 {vr(8+4*h, 4)}, v3, {SO}, {sOo} offen offset:{64*h} {ofl}')
    wstamp(2)
    a('s_branch L_got')
    if USE_AOF:
        a.label('L_aof')
        G5 = Gemm(64, 128, 64, 4, 'packed', perm_out=True, ld_flags='sc1', MS=16)
        srd(a, 12, 74, 8 * MB); srd(a, 8, 4, WS_BYTES)
        a(f's_and_b32 s48, {sQ_}, 15'); a(f's_lshr_b32 {sQ_}, {sQ_}, 4')
        a(f's_lshl_b32 s50, {sXW}, 1'); a(f's_add_u32 s50, s50, {sQ_}')
        a(f's_sub_u32 s40, {sP}, 24'); a('s_lshl_b32 s40, s40, 3'); a('s_lshr_b32 s90, s48, 1'); a('s_add_u32 s40, s40, s90'); a('s_lshl_b32 s40, s40, 7'); a(f's_add_u32 s40, s40, {C_AF}')
        a(f's_mov_b32 {sLdx}, {256*KB}'); a(f's_mov_b32 {sLdw}, 2048')
        a(f's_lshl_b32 {sXo}, {sP}, 19'); a(f's_add_u32 {sXo}, {sXo}, {OA:#x}'); a('s_lshl_b32 s90, s48, 14'); a(f's_add_u32 {sXo}, {sXo}, s90')
        a(f's_lshl_b32 {sWo}, s50, 8'); a(f's_lshl_b32 {sOo}, {sP}, 18'); a(f's_add_u32 {sOo}, {sOo}, {sWo}'); a('s_lshl_b32 s90, s48, 19'); a(f's_add_u32 {sWo}, {sWo}, s90')
        G5.setup(a, mid=lambda: wait([('s40', 0, 2)], slp=1)); G5.once(a, 'T')
        wstamp(4)
        a(f's_sub_u32 s40, {sP}, 28'); a('s_lshl_b32 s40, s40, 3'); a('s_add_u32 s40, s40, s50')
        a('s_lshl_b32 s41, s40, 19'); a(f's_add_u32 s41, s41, {PARTK:#x}')
        a('s_lshl_b32 s90, s48, 15'); a('s_add_u32 s42, s41, s90'); a(f's_lshl_b32 s90, {sW_}, 13'); a('s_add_u32 s42, s42, s90')
        a('v_lshlrev_b32 v2, 4, v1')
        for q in range(8):
            if q == 4: a('s_add_u32 s42, s42, 4096')
            a(f'buffer_store_dwordx4 {ar(4*q, 4)}, v2, {WS}, s42 offen offset:{(q&3)*1024} sc1')
        a('s_lshl_b32 s40, s40, 7')
        a(f's_add_u32 s43, s40, {CNT + C_SP:#x}')
        a('s_waitcnt vmcnt(0)'); a('s_barrier')
        signal(a, 0, soff='s43', srd_=WS)
        wait([('s40', C_SP, 16)], slp=1, stamp=False)
        request(a)
        a('s_lshl_b32 s90, s48, 11'); a('s_add_u32 s41, s41, s90'); a(f's_lshl_b32 s90, {sW_}, 17'); a('s_add_u32 s41, s41, s90')
        for p in range(4):
            for h in range(2): a(f'buffer_load_dwordx4 {vr(16 + 8*p + 4*h, 4)}, v2, {WS}, s41 offen offset:{1024*h} sc1')
            a('s_add_u32 s41, s41, 0x8000')
        lane_expr(a, 'v3', [(0, 4, 4096), (4, 2, 16)], lane='v1', tmp='v4')
        for sh_, mul in ((3, 17), (2, 7), (1, 16), (0, 6)):
            a(f's_lshr_b32 s90, s48, {sh_}'); a('s_and_b32 s90, s90, 1'); a(f's_lshl_b32 s90, s90, {mul}'); a(f's_add_u32 {sOo}, {sOo}, s90')
        a(f's_lshl_b32 s90, {sW_}, 11'); a('v_add_u32 v5, s90, v2')
        for p in range(1, 4):
            a(f's_waitcnt vmcnt({6 - 2*p})')
            for q in range(0, 8, 2): a(f'v_pk_add_f32 {vr(16+q,2)}, {vr(16+q,2)}, {vr(16+8*p+q,2)}')
        a('ds_write_b128 v5, v[16:19]'); a('ds_write_b128 v5, v[20:23] offset:1024')
        a('s_waitcnt lgkmcnt(0)'); a('s_barrier')
        a(f's_cmp_lg_u32 {sW_}, 0'); a('s_cbranch_scc1 L_aofd')
        for p in range(1, 4):
            for h in range(2): a(f'ds_read_b128 {vr(16 + 8*p + 4*h, 4)}, v2 offset:{2048*p + 1024*h}')
        a('s_waitcnt lgkmcnt(0)')
        for p in range(1, 4):
            for q in range(0, 8, 2): a(f'v_pk_add_f32 {vr(16+q,2)}, {vr(16+q,2)}, {vr(16+8*p+q,2)}')
        for q in range(4): a(f'v_cvt_pk_bf16_f32 v{8+q}, v{16+2*q}, v{17+2*q}')
        a(f'buffer_store_dwordx4 v[8:11], v3, {SO}, {sOo} offen {ofl}')
        a.label('L_aofd')
        wstamp(2)
        a('s_branch L_got')
    a.label('L_done')
    a('s_waitcnt vmcnt(0)')
    a('s_barrier')
    a(f's_add_u32 {sDone}, {sDone}, {CNT:#x}')
    signal(a, 0, soff=sDone, srd_=WS, inc='s98')
    wstamp(2)
    a(f's_mov_b32 {pE}, 0')
    if FOLLOW:
        a(f's_cmp_lg_u32 {sKind}, {K_ATA}'); a('s_cbranch_scc1 L_got')
        a(f's_add_u32 {sP}, {sP}, {FOLLOW}'); a(f's_and_b32 s50, {sP}, 7'); a(f's_cmp_lt_u32 {sP}, {FEND}'); a('s_cbranch_scc1 L_ata_c')
    a('s_branch L_got')
    a.label('L_exit')
    a('s_endpgm')
    a.fix_hazards()
    assert len(tl) < 508 and codepf
    t = a.text() + '.p2align 3\nL_table:\n' + ''.join(f'.long {x:#x}\n' for x in tl + [15, 0, 0, 0]) + f'.fill {508 - len(tl)}, 4, 0\n'
    return t, names

def build(**kw):
    body, names = gen(**kw)
    ref = open(os.path.join(os.path.dirname(os.path.abspath(__file__)), '..', NAME + '.s.ref')).read().split('\n')
    head = [l for l in ref if l.startswith(';') and '@launch' not in l and 'Override' not in l and 'grid=ceil' not in l][:14]
    n = NAME + '_kernel'
    t = '\n'.join(head) + '\n'
    t += f'; @launch grid=(256,1,1) block=(256,1,1) lds={LDS_T + 2048}\n'
    t += '.amdgcn_target "amdgcn-amd-amdhsa--gfx950"\n.text\n'
    t += f'.globl {n}\n.p2align 8\n.type {n},@function\n{n}:\n' + body
    t += '.section .rodata,"a"\n.p2align 6\n' + kd(n, 512, 256)
    return t

if __name__ == '__main__':
    out = sys.argv[1] if len(sys.argv) > 1 else os.path.join(os.path.dirname(os.path.abspath(__file__)), '..', NAME + '.s')
    open(out, 'w').write(build(**eval('dict(%s)' % (sys.argv[2] if len(sys.argv) > 2 else ''))))
    print('written', out, os.path.getsize(out))
```

```python
import math
from asmgen import *
from layout import *
from rec import lane_expr, f32bits, chk, SPIN_MAX
SW = 's[4:7]'
BQ, BK, BV = BQKV, BQKV + 4 * MB, BQKV + 8 * MB

def lane_masks(a, sbase, fn, nmask):
    for k in range(nmask):
        m = 0
        for l in range(64):
            if fn(k, l >> 4, l & 15): m |= 1 << l
        a(f's_mov_b32 s{sbase+2*k}, {m & 0xffffffff:#x}'); a(f's_mov_b32 s{sbase+2*k+1}, {m >> 32:#x}')

def xreduce(a, op, m, t):
    for sw in ('v_permlane32_swap_b32', 'v_permlane16_swap_b32'):
        a(f'v_mov_b32 {t}, {m}'); a(f'{sw} {m}, {t}'); a(f'{op} {m}, {m}, {t}')

def softmax(a, s, m, t, sC):
    rest = [f'v{x}' for x in s]
    a(f'v_max3_f32 {m}, {rest[0]}, {rest[1]}, {rest[2]}'); rest = rest[3:]
    while len(rest) >= 2:
        a(f'v_max3_f32 {m}, {m}, {rest[0]}, {rest[1]}'); rest = rest[2:]
    if rest: a(f'v_max_f32 {m}, {m}, {rest[0]}')
    xreduce(a, 'v_max_f32', m, t)
    a(f'v_mul_f32 {m}, {sC}, {m}')
    for x in s: a(f'v_fma_f32 v{x}, v{x}, {sC}, -{m}')
    for x in s: a(f'v_exp_f32 v{x}, v{x}')
    a(f'v_add_f32 {m}, v{s[0]}, v{s[1]}')
    for x in s[2:]: a(f'v_add_f32 {m}, {m}, v{x}')
    xreduce(a, 'v_add_f32', m, t)
    a(f'v_rcp_f32 {m}, {m}')
    for x in s: a(f'v_mul_f32 v{x}, v{x}, {m}')

def gen_attnA(a, sItem, ld_flags='', st_flags='', mid=None, n=1, after_loads=None, valid=None):
    scale = 128 ** -0.5
    kw = dict(lane='v1', tmp='v7')
    Q, K, V, KMr, VMr, O = 0, 32, 64, 96, 112, 176
    R = lambda st, b, c: vr(16 + b, c) if st == 0 else ar(b, c)
    a(f's_lshl_b32 s90, {sItem}, 13'); a(f's_lshl_b32 s91, {sItem}, 11')
    lane_expr(a, 'v2', [(0, 6, 16)], **kw); a('v_add_u32 v3, 4096, v2')
    lane_expr(a, 'v4', [(0, 1, 16), (2, 2, 32), (4, 2, 128)], const=KM, **kw)
    a(f'v_add_u32 v5, {VM:#x}, v2')
    lane_expr(a, 'v8', [(0, 3, 16), (3, 1, 2048), (4, 2, 256)], **kw); a('v_add_u32 v9, 4096, v8')
    lane_expr(a, 'v10', [(0, 4, 16), (4, 1, 256), (5, 1, 1024)], **kw); a('v_add_u32 v11, 4096, v10')
    a(f's_add_u32 s92, s90, {KX}'); a(f's_add_u32 s93, s90, {VX}'); a(f's_add_u32 s94, s90, {QX}'); a(f's_add_u32 s95, s90, {OA}')
    def loads(st, mid=None):
        for i in range(8): a(f'buffer_load_dwordx4 {R(st,Q+4*i,4)}, v{2+(i>>2)}, {SW}, s94 offen offset:{(i&3)*1024} {ld_flags}')
        for i in range(8): a(f'buffer_load_dwordx4 {R(st,K+4*i,4)}, v{2+(i>>2)}, {SW}, s92 offen offset:{(i&3)*1024} {ld_flags}')
        for i in range(8): a(f'buffer_load_dwordx4 {R(st,V+4*i,4)}, v{8+(i>>2)}, {SW}, s93 offen offset:{((i>>1)&1)*1024 + (i&1)*128} {ld_flags}')
        if mid: mid()
        mloads(st)
        if n == 1: return
        for r in (92, 93, 94): a(f's_add_u32 s{r}, s{r}, {256*KB}')
        a(f's_add_u32 s91, s91, {64*KB}')
    def mloads(st):
        for i in range(4): a(f'buffer_load_dwordx4 {R(st,KMr+4*i,4)}, v4, {SW}, s91 offen offset:{i*512} {ld_flags}')
        for i in range(2): a(f'buffer_load_dwordx4 {R(st,VMr+4*i,4)}, v5, {SW}, s91 offen offset:{i*1024} {ld_flags}')
    SS = {(0, 'm'): 136, (0, 0): 140, (1, 'm'): 144, (1, 0): 148, (1, 1): 152}
    PP = 156
    def scores(st, sel):
        for ks in range(4):
            for (qt, kt), d in SS.items():
                if not sel(kt): continue
                A = R(st, KMr + 4*ks, 4) if kt == 'm' else R(st, K + 16*kt + 4*ks, 4)
                a(f'v_mfma_f32_16x16x32_bf16 {vr(d,4)}, {A}, {R(st, Q + 16*qt + 4*ks, 4)}, {vr(d,4) if ks else 0}')
    def compute(st, refill):
        scores(st, lambda kt: kt == 'm' or not valid)
        for qt in range(2):
            for r in range(4):
                d = SS[(qt, qt)] + r; a(f'v_cndmask_b32 v{d}, v6, v{d}, s[{40+2*r}:{41+2*r}]')
            regs = [SS[(qt, 'm')] + r for r in range(2)] + [SS[(qt, kt)] + r for kt in range(qt + 1) for r in range(4)]
            softmax(a, regs, 'v12', 'v13', 's50')
            p = PP + 8 * qt
            a(f'v_cvt_pk_bf16_f32 v{p+4}, v{regs[0]}, v{regs[1]}'); a(f'v_mov_b32 v{p+5}, 0'); a(f'v_mov_b32 v{p+6}, 0'); a(f'v_mov_b32 v{p+7}, v{p+4}')
            for q in range(4):
                if 2 + 2*q < len(regs): a(f'v_cvt_pk_bf16_f32 v{p+q}, v{regs[2+2*q]}, v{regs[3+2*q]}')
                else: a(f'v_mov_b32 v{p+q}, 0')
        for qt in range(2):
            p = PP + 8 * qt; o = O + 32 * qt
            for td in range(8): a(f'v_mfma_f32_16x16x32_bf16 {vr(o+4*td,4)}, {R(st,V+4*td,4)}, {vr(p,4)}, 0')
            for td in range(8): a(f'v_mfma_f32_16x16x16_bf16 {vr(o+4*td,4)}, {R(st, VMr + (td & ~1), 2)}, {vr(p + 4 + 2*(td&1), 2)}, {vr(o+4*td,4)}')
        if refill: loads(st)
        for qt in range(2):
            o = O + 32 * qt
            for n_ in range(2):
                for q in range(2):
                    e = 136 + 4 * (2*n_ + q)
                    ta, tb = o + 4 * (4*n_ + q), o + 4 * (4*n_ + q + 2)
                    a(f'v_cvt_pk_bf16_f32 v{e}, v{ta}, v{ta+1}'); a(f'v_cvt_pk_bf16_f32 v{e+1}, v{ta+2}, v{ta+3}')
                    a(f'v_cvt_pk_bf16_f32 v{e+2}, v{tb}, v{tb+1}'); a(f'v_cvt_pk_bf16_f32 v{e+3}, v{tb+2}, v{tb+3}')
                    a(f'buffer_store_dwordx4 {vr(e,4)}, v{10+qt}, {SW}, s95 offen offset:{n_*2048 + q*512} {st_flags}')
        a(f's_add_u32 s95, s95, {256*KB}')
    loads(0, mid)
    if n > 1: loads(1)
    lane_masks(a, 40, lambda k, g, c: 4*g + k <= c, 4)
    a(f's_mov_b32 s50, {f32bits(scale * math.log2(math.e)):#x}')
    a(f'v_mov_b32 v6, {f32bits(-1e9 / scale):#x}')
    for k in range(n):
        y = (30 if k + 1 < n else 0) + (8 if k >= 1 else 0) + (8 if k >= 2 else 0)
        if valid:
            assert n == 1
            a('s_waitcnt vmcnt(6)'); scores(0, lambda kt: kt != 'm')
            a.label('L_av')
            a('s_waitcnt vmcnt(0)')
            for x in chk(16 + KMr, 24, t='v12'): a(x)
            a('s_cbranch_vccz L_avd')
            a(f's_add_u32 {valid}, {valid}, 1'); a(f's_cmp_ge_u32 {valid}, {SPIN_MAX}'); a('s_cbranch_scc1 L_avd')
            mloads(0); a('s_branch L_av')
            a.label('L_avd')
        a(f's_waitcnt vmcnt({y})')
        if k == n - 1 and after_loads: after_loads(a)
        compute(k & 1, k + 2 < n)

def gen_attnB(a, sItem, ld_flags='', st_flags='', after_loads=None):
    scale = 32 ** -0.5
    kw = dict(lane='v1', tmp='v7')
    Q, K, V = 8, 40, 88
    a(f's_lshl_b32 s90, {sItem}, 13')
    a(f's_sub_u32 s91, s90, {64*KB}'); a(f's_cmp_lt_u32 {sItem}, 8'); a('s_cselect_b32 s91, s90, s91')
    lane_expr(a, 'v2', [(0, 6, 16)], **kw); a('v_add_u32 v3, 4096, v2')
    a(f's_add_u32 s92, s90, {BQ}'); a(f's_add_u32 s93, s90, {BK}'); a(f's_add_u32 s94, s91, {BK}')
    a(f's_add_u32 s95, s90, {BV}'); a(f's_add_u32 s96, s91, {BV}'); a(f's_add_u32 s97, s90, {OB}')
    for i in range(8): a(f'buffer_load_dwordx4 {vr(Q+4*i,4)}, v{2+(i>>2)}, {SW}, s92 offen offset:{(i&3)*1024} {ld_flags}')
    for i in range(4): a(f'buffer_load_dwordx4 {vr(K+4*i,4)}, v3, {SW}, s94 offen offset:{i*1024} {ld_flags}')
    for i in range(8): a(f'buffer_load_dwordx4 {vr(K+16+4*i,4)}, v{2+(i>>2)}, {SW}, s93 offen offset:{(i&3)*1024} {ld_flags}')
    for i in range(8): a(f'buffer_load_dwordx2 {vr(V+6*i,2)}, v{2+(i>>2)}, {SW}, s96 offen offset:{(i&3)*1024+8} {ld_flags}')
    for i in range(8): a(f'buffer_load_dwordx4 {vr(V+6*i+2,4)}, v{2+(i>>2)}, {SW}, s95 offen offset:{(i&3)*1024} {ld_flags}')
    lane_masks(a, 40, lambda k, g, c: ((4*g + k >= c + 2) and (4*g + k - c) % 2 == 0) if k < 4 else ((4*g + k - 4 <= c) and (c - 4*g - k) % 2 == 0), 8)
    a(f's_cmp_lt_u32 {sItem}, 8')
    for k in range(4): a(f's_cselect_b64 s[{56+2*k}:{57+2*k}], 0, s[{40+2*k}:{41+2*k}]')
    a(f's_mov_b32 s21, {f32bits(scale * math.log2(math.e)):#x}')
    a(f'v_mov_b32 v6, {f32bits(-1e9 / scale):#x}')
    a('s_waitcnt vmcnt(16)')
    S = 136
    for qt in range(2):
        for j in range(4):
            d = S + 8 * (4*qt + j)
            for e in range(2):
                a(f'v_mfma_f32_16x16x32_bf16 {vr(d+4*e,4)}, {vr(K + 16*(qt+e) + 4*j, 4)}, {vr(Q + 16*qt + 4*j, 4)}, 0')
    for u in range(8):
        qt = u >> 2; d = S + 8 * u
        for r in range(8):
            mb = (56 + 2*r) if (qt == 0 and r < 4) else (40 + 2*r)
            a(f'v_cndmask_b32 v{d+r}, v6, v{d+r}, s[{mb}:{mb+1}]')
        softmax(a, [d + r for r in range(8)], 'v4', 'v5', 's21')
        for q in range(4): a(f'v_cvt_pk_bf16_f32 v{Q+4*u+q}, v{d+2*q}, v{d+2*q+1}')
    a('s_waitcnt vmcnt(0)')
    if after_loads: after_loads(a)
    for u in range(8):
        qt, j = u >> 2, u & 3; d = S + 8 * u
        for t1 in range(2):
            a(f'v_mfma_f32_16x16x32_bf16 {vr(d+4*t1,4)}, {vr(V + 6*(2*j+t1) + 2*qt, 4)}, {vr(Q+4*u,4)}, 0')
    for u in range(8):
        qt, j = u >> 2, u & 3; d = S + 8 * u; e = K + 4 * u
        for q in range(4): a(f'v_cvt_pk_bf16_f32 v{e+q}, v{d+2*q}, v{d+2*q+1}')
        a(f'buffer_store_dwordx4 {vr(e,4)}, v{2+qt}, {SW}, s97 offen offset:{j*1024} {st_flags}')
```

```python
from asmgen import *
from layout import *
from rec import lane_expr, srd

sXo, sWo, sOo, sLdx, sLdw, sNk, sSeg, sWv, sWstep, sM0x, sM0w = [f's{i}' for i in list(range(20, 28)) + [51, 52, 53]]
SX, SWt, SO = 's[8:11]', 's[12:15]', 's[16:19]'

class Gemm:
    def __init__(self, BM, BN, BK, NS, xmode, perm_out=False, ld_flags='', MS=32, w_flags=''):
        self.__dict__.update(locals())
        self.TM, self.TN = BM // (2 * MS), BN // (2 * MS)
        self.AR = MS * MS // 64
        self.XB, self.WB = BM * BK * 2, BN * BK * 2
        self.BUF = self.XB + self.WB
        self.NX, self.NW = self.XB // 4096, self.WB // 4096
        self.ND = self.NX + self.NW
        self.RB = BN * 2
        self.RPI = 1024 // self.RB
        self.KS = BK // (512 // MS)
        p = 2
        self.XA = p; p += self.NX
        self.WA = p; p += self.NW
        self.nxr = self.KS if xmode == 'row' else 1
        self.NWIN = -(-NS * self.BUF // 65536)
        self.XR = p; p += self.nxr * self.NWIN
        self.nwr = self.TN // 2 if (MS == 16 and perm_out) else self.TN
        self.WR = p; p += self.nwr * self.NWIN
        self.TMP = p; p += 4
        p = (p + 3) // 4 * 4
        self.FX = [p, p + 4 * self.TM]; p += 8 * self.TM
        self.FW = [p, p + 4 * self.TN]; p += 8 * self.TN
        self.END = p
        self.lds = NS * self.BUF
    def acc(self, i, j): return ar(self.AR * (i * self.TN + j), self.AR)
    def dma(self, s):
        out = []
        xs = [[f's_add_u32 m0, {sM0x}, {s*self.BUF + j*1024}', f'buffer_load_dwordx4 v{self.XA+j}, {SX}, {sXo} offen {self.ld_flags} lds'] for j in range(self.NX)]
        ws = [[f's_add_u32 m0, {sM0w}, {s*self.BUF + j*1024}', f'buffer_load_dwordx4 v{self.WA+j}, {SWt}, {sWo} offen {self.w_flags} lds'] for j in range(self.NW)]
        while xs or ws:
            if xs: out.append(xs.pop(0))
            if ws: out.append(ws.pop(0))
        return out
    def gdma(self, a, s, n=1):
        d = self.dma(s); out = []
        for i in range(0, len(d), n):
            l = a.newlabel('L_gd'); x = sum(d[i:i+n], []) + (self.adv(s) if i + n >= len(d) else [])
            out.append(x[:1] + [f's_cbranch_vccz {l}'] + x[1:] + [l + ':'])
        return out
    def adv(self, s):
        if self.xmode == 'row': x = self.BK * 2
        else:
            per = 128 // self.BK
            x = self.BK * 32 if (s + 1) % per else 8192 - (per - 1) * self.BK * 32
            if self.NS % per:
                assert per == 2
                x = 's48\ns_xor_b32 s48, s48, 4096'
        return [f's_add_u32 {sXo}, {sXo}, {x}', f's_add_u32 {sWo}, {sWo}, {sWstep}']
    def setup(self, a, mid=None, rowreg=None):
        g = self; lane = 'v1'; t0, t1 = f'v{g.TMP}', f'v{g.TMP+1}'
        kw = dict(lane=lane, tmp=t1)
        a(f'v_and_b32 {lane}, 63, v0')
        a(f'v_lshrrev_b32 {t0}, 6, v0'); a('s_nop 0'); a(f'v_readfirstlane_b32 {sWv}, {t0}')
        CPR = g.BK // 8; sh = CPR.bit_length() - 1; RX = 64 // CPR
        if g.xmode == 'row':
            a(f's_mul_i32 s90, {sWv}, {RX*g.NX}')
            a(f'v_lshrrev_b32 {t0}, {sh}, {lane}'); a(f'v_add_u32 {t0}, s90, {t0}')
            a(f'v_mul_lo_u32 {t0}, {t0}, {sLdx}')
            a(f'v_lshrrev_b32 {t1}, 4, {lane}'); a(f'v_xor_b32 {t1}, {t1}, {lane}'); a(f'v_and_b32 {t1}, {CPR-1}, {t1}')
            a(f'v_lshl_add_u32 v{g.XA}, {t1}, 4, {t0}')
            a(f's_mul_i32 s91, {sLdx}, {RX}')
            for j in range(1, g.NX):
                a(f'v_add_u32 v{g.XA+j}, s91, v{g.XA+j-1}')
                if g.BK == 64: a(f'v_xor_b32 v{g.XA+j}, 64, v{g.XA+j}')
        else:
            bpt = g.BK // 32
            bps = 2 * bpt
            if g.NX % bps == 0:
                a(f's_mul_i32 s90, {sWv}, {g.NX//bps}'); a(f's_mul_i32 s90, s90, {sLdx}')
            else:
                assert g.NX == bpt
                a(f's_lshr_b32 s90, {sWv}, 1'); a(f's_mul_i32 s90, s90, {sLdx}'); a(f's_and_b32 s91, {sWv}, 1'); a('s_lshl_b32 s91, s91, 12'); a('s_add_u32 s90, s90, s91')
            for j in range(g.NX):
                if j % bps == 0 and j: a(f's_add_u32 s90, s90, {sLdx}')
                lane_expr(a, f'v{g.XA+j}', [(0, 6, 16)], const=((j // bpt) & 1) * 4096 + (j % bpt) * 1024, sadd=['s90'], **kw)
        LPR = g.RB // 16; sh = LPR.bit_length() - 1
        a(f's_mul_i32 s90, {sWv}, {g.NW*g.RPI}')
        for j in range(g.NW):
            a(f'v_lshrrev_b32 {t0}, {sh}, {lane}'); a(f'v_add_u32 {t0}, {g.RPI*j}, {t0}')
            a(f'v_add_u32 {t0}, s90, {t0}')
            if rowreg and j == 0: a(f'v_mov_b32 {rowreg}, {t0}')
            if g.MS == 32:
                a(f'v_and_b32 {t1}, 3, {t0}'); a(f'v_lshlrev_b32 {t1}, 2, {t1}')
            elif g.xmode == 'row':
                a(f'v_and_b32 {t1}, 3, {t0}'); a(f'v_lshlrev_b32 {t1}, 1, {t1}'); a(f'v_and_b32 v{g.TMP+2}, 8, {t0}'); a(f'v_or_b32 {t1}, {t1}, v{g.TMP+2}')
            else:
                a(f'v_and_b32 {t1}, 7, {t0}'); a(f'v_lshlrev_b32 {t1}, 1, {t1}')
            a(f'v_xor_b32 {t1}, {t1}, {lane}'); a(f'v_and_b32 {t1}, {LPR-1}, {t1}')
            a(f'v_mul_lo_u32 {t0}, {t0}, {sLdw}')
            a(f'v_lshl_add_u32 v{g.WA+j}, {t1}, 4, {t0}')
        a(f's_mul_i32 {sWstep}, {sLdw}, {g.BK}')
        a(f's_mul_i32 {sM0x}, {sWv}, {g.NX*1024}'); a(f's_mul_i32 {sM0w}, {sWv}, {g.NW*1024}'); a(f's_add_u32 {sM0w}, {sM0w}, {g.XB}')
        if mid is None:
            for s in range(g.NS):
                for grp in g.dma(s):
                    for x in grp: a(x)
                for x in g.adv(s): a(x)
        else:
            for part in (1, 0):
                for s in range(g.NS):
                    for grp in g.dma(s):
                        if (SWt in grp[1]) == bool(part):
                            for x in grp: a(x)
                    a(g.adv(s)[part])
                if part: mid()
        a(f's_lshr_b32 s90, {sWv}, 1'); a(f's_and_b32 s91, {sWv}, 1')
        a(f's_mul_i32 s92, s90, {g.XB//2}')
        LB = 5 if g.MS == 32 else 4
        if g.xmode == 'row':
            lane_expr(a, t0, [(0, LB, g.BK * 2)], sadd=['s92'], **kw)
            a(f'v_lshrrev_b32 {t1}, {1 if g.BK == 64 else 2}, {lane}'); a(f'v_and_b32 {t1}, {CPR-1}, {t1}')
            a(f'v_lshrrev_b32 v{g.TMP+2}, {LB}, {lane}'); a(f'v_xor_b32 {t1}, {t1}, v{g.TMP+2}')
            a(f'v_lshl_add_u32 v{g.XR}, {t1}, 4, {t0}')
            for kk in range(1, g.KS): a(f'v_xor_b32 v{g.XR+kk}, {(1024 // g.MS)*kk}, v{g.XR}')
        elif g.MS == 32:
            lane_expr(a, f'v{g.XR}', [(0, 4, 16), (4, 1, g.BK * 32), (5, 1, 256)], sadd=['s92'], **kw)
        else:
            lane_expr(a, f'v{g.XR}', [(0, 6, 16)], sadd=['s92'], **kw)
        for w in range(1, g.NWIN):
            for kk in range(g.nxr): a(f'v_add_u32 v{g.XR + w*g.nxr + kk}, {65536*w}, v{g.XR+kk}')
        hirow = 8 if g.xmode == 'row' else 4
        t2 = f'v{g.TMP+2}'
        if g.MS == 32:
            colterms = [(4, 1, 32), (0, 2, 8)] if not g.perm_out else [(0, 1, 32), (4, 1, 16), (1, 1, 8)]
            lane_expr(a, t0, [(2, 2, g.RB), (5, 1, hirow * g.RB)] + colterms, **kw)
            a(f'v_bfe_u32 {t2}, {lane}, 2, 2'); ush = 6
        else:
            colterms = [(0, 2, 8)] if not g.perm_out else [(0, 1, 16)]
            lane_expr(a, t0, [(2, 2, g.RB), (4, 2, hirow * g.RB)] + colterms, **kw)
            a(f'v_bfe_u32 {t2}, {lane}, 2, 3'); ush = 5
            if g.perm_out: a(f'v_bfe_u32 {t1}, {lane}, 1, 1'); a(f'v_xor_b32 {t2}, {t2}, {t1}')
        a(f's_mul_i32 s92, s91, {g.TN}')
        for jn in range(g.nwr):
            a(f's_add_u32 s93, s92, {jn * (g.TN // g.nwr)}')
            a(f'v_xor_b32 {t1}, s93, {t2}')
            a(f'v_lshl_add_u32 v{g.WR+jn}, {t1}, {ush}, {t0}')
            for w in range(1, g.NWIN): a(f'v_add_u32 v{g.WR + w*g.nwr + jn}, {65536*w}, v{g.WR+jn}')
    def frags(self, s, kk, f):
        g = self
        xs, wl = [], []
        for i in range(g.TM):
            off = s * g.BUF + i * g.MS * g.BK * 2 + (0 if g.xmode == 'row' else (16384 // g.MS) * kk)
            w, off = off >> 16, off & 0xffff
            xs.append(f'ds_read_b128 {vr(g.FX[f] + 4*i, 4)}, v{g.XR + w*g.nxr + (kk if g.xmode == "row" else 0)} offset:{off}')
        for jn in range(g.TN):
            for h in range(2):
                if g.MS == 32: row = 16 * kk + 4 * h if g.xmode == 'row' else 32 * (kk >> 1) + 8 * (kk & 1) + 16 * h
                else: row = 32 * kk + (4 if g.xmode == 'row' else 16) * h
                off = s * g.BUF + g.XB + row * g.RB
                jr = jn
                if g.nwr != g.TN: jr = jn >> 1; off += (jn & 1) * 8
                w, off = off >> 16, off & 0xffff
                wl.append(f'ds_read_b64_tr_b16 {vr(g.FW[f] + 4*jn + 2*h, 2)}, v{g.WR + w*g.nwr + jr} offset:{off}')
        res = []
        while xs or wl:
            if xs: res.append(xs.pop(0))
            res += wl[:2]; wl = wl[2:]
        return res
    def mfmas(self, f, orient, first=False):
        g = self; out = []
        op = 'v_mfma_f32_32x32x16_bf16' if g.MS == 32 else 'v_mfma_f32_16x16x32_bf16'
        for i in range(g.TM):
            for j in range(g.TN):
                X, W = vr(g.FX[f] + 4*i, 4), vr(g.FW[f] + 4*j, 4)
                A, B = (W, X) if orient == 'T' else (X, W)
                out.append(f'{op} {g.acc(i,j)}, {A}, {B}, {0 if first else g.acc(i,j)}')
        return out
    def loop(self, a, tag, orient, younger=0, hook=None, exp='', fin_hook=None, xlast=False, extra=(), chain=None, ext=0):
        g = self; L = lambda s: f'L_{tag}_{s}'
        NS, KS, ND = g.NS, g.KS, g.ND
        a(f's_waitcnt vmcnt({min(63, (NS-1)*(g.NX if xlast else ND) + younger + (chain["w0"] if chain else 0))})'); a('s_barrier')
        for x in g.frags(0, 0, 0): a(x)
        def stage(s, pend, wait, do_dma, last=False, first=False, after=None, pre0=()):
            for kk in range(KS):
                ms = g.mfmas(kk & 1, orient, first and kk == 0)
                n = len(ms)
                a('s_waitcnt lgkmcnt(0)')
                start = 0
                if kk == 0:
                    for x in pre0: a(x)
                if kk == KS - 1:
                    if last and not do_dma:
                        for m in ms: a(m)
                        return []
                    assert not pend
                    a(ms[0]); start = 1
                    if not last: a(f's_waitcnt vmcnt({wait})')
                    a('s_barrier')
                    if after: after(a)
                    rd = g.frags((s + 1) % NS, 0, 0) if not last else []
                    if do_dma: pend = g.dma(s) + [g.adv(s)]
                    if do_dma == 2: pend = g.gdma(a, s) if not (last and chain['e1']) else []
                    quota = -(-len(pend) // KS)
                    if 'front' in exp: quota = -(-len(pend) // (KS // 2))
                else:
                    rd = g.frags(s, kk + 1, (kk + 1) & 1)
                    quota = -(-len(pend) // (KS - 1 - kk))
                    if 'front' in exp: quota = len(pend)
                slots = n - start
                per = -(-len(rd) // max(1, slots - 2 if slots > 4 else slots))
                gap = max(1, (slots - 8) // max(1, len(rd))) if slots > 16 else 1
                quota = min(quota, len(pend))
                pos = [start + (q * slots) // quota for q in range(quota)] if quota else []
                for q in range(start, n):
                    mine = [pend.pop(0) for _ in range(pos.count(q))]
                    pre = mine[0][:1] if mine else []
                    for x in pre: a(x)
                    a(ms[q])
                    for k, grp in enumerate(mine):
                        for x in (grp[1:] if k == 0 else grp): a(x)
                    if (q - start) % gap == 0:
                        for x in rd[:per]: a(x)
                        rd = rd[per:]
                assert not rd
            return pend
        W = (NS - 2) * ND
        pend = [['s_nop 0', x] for x in extra]
        younger += len(extra)
        a(f's_sub_u32 {sNk}, {sNk}, 1')
        for s in range(NS):
            w = W + younger if s < NS - 1 else W
            if xlast and s < NS - 1: w = (NS - 2 - s) * g.NX + s * ND + younger
            pend = stage(s, pend, min(63, w), True, first=(s == 0), after=hook if s == NS - 1 else None)
        p0 = [list(x) for x in pend]
        a.label(L('loop'))
        a(f's_sub_u32 {sNk}, {sNk}, 1'); a(f's_cmp_eq_u32 {sNk}, 0'); a(f's_cbranch_scc1 {L("fin")}')
        if chain: chain['req'](a); assert NS == 2 and not p0
        for s in range(NS): pend = stage(s, pend, W, True, **(dict(pre0=chain['wr'], after=chain['rd']) if chain and s == NS - 1 else {}))
        assert pend == p0
        a(f's_branch {L("loop")}')
        a.label(L('fin'))
        if fin_hook: fin_hook(a)
        pend = [list(x) for x in p0]
        for s in range(ext): pend = stage(s, pend, W, True)
        for s in range(NS): pend = stage((s + ext) % NS, pend, max(0, NS - 2 - s) * ND, 2 if chain else False, last=(s == NS - 1), **(dict(after=chain['dec'], pre0=chain['ld']) if chain and s == 0 else {}))
        assert not pend
    def once(self, a, orient):
        g = self
        steps = [(s, kk) for s in range(g.NS) for kk in range(g.KS)]
        a(f's_waitcnt vmcnt({(g.NS//2)*g.NX})'); a('s_barrier')
        for x in g.frags(0, 0, 0): a(x)
        for n, (s, kk) in enumerate(steps):
            a('s_waitcnt lgkmcnt(0)')
            if n + 1 == len(steps) // 2: a('s_waitcnt vmcnt(0)'); a('s_barrier')
            rd = g.frags(*steps[n + 1], (n + 1) & 1) if n + 1 < len(steps) else []
            for m in g.mfmas(n & 1, orient, n == 0):
                a(m)
                for x in rd[:2]: a(x)
                rd = rd[2:]
            assert not rd
    def epilogue(self, a, epi, EP, st_flags='', lane='v1', SO=SO, sOo=sOo, sSeg=sSeg, defer=None, inter=(), ipos=0):
        g = self; TM, TN = g.TM, g.TN
        t0, t1, ad = f'v{EP}', f'v{EP+1}', f'v{EP+2}'
        if defer: ad, t0 = defer['ad'], defer['ad2']
        EP += 4
        kw = dict(lane=lane, tmp=t1)
        a(f's_lshr_b32 s90, {sWv}, 1'); a(f's_and_b32 s91, {sWv}, 1')
        def rdacc(dst, i, j, regs):
            for q, r in enumerate(regs): a(f'v_accvgpr_read_b32 v{dst+q}, a{16*(i*TN+j)+r}')
        cnt = 0
        if g.MS == 16:
            def rd2(dst, t1_, t2_, inter):
                ra, rb_ = 4 * (t1_[0] * TN + t1_[1]), 4 * (t2_[0] * TN + t2_[1])
                regs = [x for q in range(4) for x in (ra + q, rb_ + q)] if inter else [ra + q for q in range(4)] + [rb_ + q for q in range(4)]
                for q, r in enumerate(regs): a(f'v_accvgpr_read_b32 v{dst+q}, a{r}')
            if epi in ('qk', 'v'):
                lane_expr(a, ad, [(0, 6, 16)], **kw); a(f'v_add_u32 {t0}, 4096, {ad}')
                a(f's_mul_i32 s92, s90, {TM//2}'); a(f's_mul_i32 s92, s92, {sSeg}'); a(f's_add_u32 s92, s92, {sOo}')
                a(f's_mul_i32 s93, s91, {8192 if TN == 8 else (2048 if epi == "qk" else 4096)}'); a('s_add_u32 s92, s92, s93')
                def unit(sg_, u, dst=None):
                    nonlocal cnt
                    e = EP + 12 * (cnt % 4); cnt += 1
                    if epi == 'qk':
                        tt, jj = u // (TN // 2), u % (TN // 2)
                        rd2(e + 4, (2*sg_ + tt, 2*jj), (2*sg_ + tt, 2*jj + 1), True); off = tt * 4096 + jj * 1024
                    else:
                        rd2(e + 4, (2*sg_, u), (2*sg_ + 1, u), False); off = u * 1024
                    d = e if dst is None else dst
                    if inter and cnt > ipos:
                        for x in inter.pop(0): a(x)
                    for q in range(4): a(f'v_cvt_pk_bf16_f32 v{d+q}, v{e+4+2*q}, v{e+5+2*q}')
                    if dst is None: a(f'buffer_store_dwordx4 {vr(e,4)}, {t0 if off >= 4096 else ad}, {SO}, s92 offen offset:{off & 4095} {st_flags}')
                nd = TM // 4 if defer else TM // 2
                for sg_ in range(nd):
                    for u in range(TN):
                        unit(sg_, u)
                        if defer: unit(sg_ + nd, u, defer['base'] + 4 * (sg_ * TN + u))
                    a(f's_add_u32 s92, s92, {sSeg}')
                assert not inter
                if defer:
                    a(f's_mov_b32 {defer["s0"]}, s92'); a(f's_add_u32 {defer["s1"]}, s92, {sSeg}')
            else:
                a(f'v_and_b32 {t0}, 15, {lane}'); a(f'v_mul_lo_u32 {t0}, {t0}, {sSeg}')
                a(f'v_lshrrev_b32 {t1}, 4, {lane}'); a(f'v_lshl_add_u32 {ad}, {t1}, 4, {t0}')
                a(f's_mul_i32 s92, s90, {TM*16}'); a(f's_mul_i32 s92, s92, {sSeg}'); a(f's_add_u32 s92, s92, {sOo}')
                a(f's_mul_i32 s93, s91, {TN*32}'); a('s_add_u32 s92, s92, s93')
                a(f's_lshl_b32 s94, {sSeg}, 4')
                for i in range(TM):
                    for jj in range(TN // 2):
                        e = EP + 12 * (cnt % 4); cnt += 1
                        rd2(e + 4, (i, 2*jj), (i, 2*jj + 1), False)
                        for q in range(4): a(f'v_cvt_pk_bf16_f32 v{e+q}, v{e+4+2*q}, v{e+5+2*q}')
                        a(f'buffer_store_dwordx4 {vr(e,4)}, {ad}, {SO}, s92 offen offset:{64*jj} {st_flags}')
                    a('s_add_u32 s92, s92, s94')
        elif epi in ('qk', 'v'):
            hs, ks = (4096, 1024) if epi == 'qk' else (1024, 2048)
            lane_expr(a, ad, [(0, 4, 16), (4, 1, hs), (5, 1, 256)], **kw)
            a(f's_mul_i32 s92, s90, {TM}'); a(f's_mul_i32 s92, s92, {sSeg}'); a(f's_add_u32 s92, s92, {sOo}')
            a(f's_mul_i32 s93, s91, {8192 if TN == 4 else TN*ks}'); a('s_add_u32 s92, s92, s93')
            for i in range(TM):
                for j in range(TN):
                    a(f's_add_u32 s93, s92, {j*ks}')
                    for ap in range(2):
                        e = EP + 12 * (cnt % 4); cnt += 1
                        if epi == 'qk': rdacc(e + 4, i, j, [4*ap + (q >> 1) + 8 * (q & 1) for q in range(8)])
                        else: rdacc(e + 4, i, j, [4*ap + q for q in range(4)] + [4*ap + 8 + q for q in range(4)])
                        for q in range(4): a(f'v_cvt_pk_bf16_f32 v{e+q}, v{e+4+2*q}, v{e+5+2*q}')
                        a(f'buffer_store_dwordx4 {vr(e,4)}, {ad}, {SO}, s93 offen offset:{512*ap} {st_flags}')
                a(f's_add_u32 s92, s92, {sSeg}')
        else:
            a(f'v_and_b32 {t0}, 31, {lane}'); a(f'v_mul_lo_u32 {t0}, {t0}, {sSeg}')
            a(f'v_lshrrev_b32 {t1}, 5, {lane}'); a(f'v_lshl_add_u32 {ad}, {t1}, 5, {t0}')
            a(f's_mul_i32 s92, s90, {TM*32}'); a(f's_mul_i32 s92, s92, {sSeg}'); a(f's_add_u32 s92, s92, {sOo}')
            a(f's_mul_i32 s93, s91, {TN*64}'); a('s_add_u32 s92, s92, s93')
            a(f's_lshl_b32 s94, {sSeg}, 5')
            for i in range(TM):
                for j in range(TN):
                    for ap in range(2):
                        e = EP + 12 * (cnt % 4); cnt += 1
                        rdacc(e + 4, i, j, [8*ap + q for q in range(8)])
                        for q in range(4): a(f'v_cvt_pk_bf16_f32 v{e+q}, v{e+4+2*q}, v{e+5+2*q}')
                        a(f'buffer_store_dwordx4 {vr(e,4)}, {ad}, {SO}, s92 offen offset:{64*j + 16*ap} {st_flags}')
                a('s_add_u32 s92, s92, s94')
        return cnt

def gen_gemm(a, tag, BM, BN, xmode, orient, epi, st_flags='', stamp=False, BK=None, NS=None, K=None, exp='', MS=32):
    BK = BK or (32 if BM * BN == 65536 else 64); NS = NS or 4
    g = Gemm(BM, BN, BK, NS, xmode, perm_out=(epi == 'out'), MS=MS)
    r = BK * NS // 128
    if r > 1: a(f's_lshr_b32 {sNk}, {sNk}, {r.bit_length()-1}')
    if stamp: a('s_memtime s[40:41]')
    g.setup(a)
    if stamp: a(f's_waitcnt vmcnt({(NS-1)*g.ND})'); a('s_barrier'); a('s_memtime s[42:43]')
    g.loop(a, tag, orient, exp=exp)
    if stamp: a('s_memtime s[44:45]')
    g.epilogue(a, epi, g.FX[0], st_flags)
    if stamp:
        a('s_memtime s[46:47]'); a('s_waitcnt vmcnt(0)'); a('s_memtime s[48:49]'); a('s_waitcnt lgkmcnt(0)')
        a('s_sub_u32 s48, s48, s46'); a('s_sub_u32 s46, s46, s44'); a('s_sub_u32 s44, s44, s42'); a('s_sub_u32 s42, s42, s40')
        a('v_mov_b32 v4, s42'); a('v_mov_b32 v5, s44'); a('v_mov_b32 v6, s46'); a('v_mov_b32 v7, s48')
        a('s_lshl_b32 s90, s2, 2'); a(f's_add_u32 s90, s90, {sWv}'); a('s_lshl_b32 s90, s90, 4'); a(f's_add_u32 s90, s90, {STAMP:#x}')
        a('v_mov_b32 v8, 0'); a('s_mov_b64 exec, 1')
        a(f'buffer_store_dwordx4 v[4:7], v8, {stamp}, s90 offen')
    return g.lds
```

```python
import math
from asmgen import *
from layout import *

SC = (128 ** -0.5) * math.log2(math.e)
import struct
def f32bits(x): return struct.unpack('<I', struct.pack('<f', x))[0]

def lane_expr(a, dst, terms, const=0, sadd=(), lane='v0', tmp='v31', stmp='s99'):
    a(f'v_mov_b32 {dst}, {const:#x}')
    for (lo, w, mult) in terms:
        a(f'v_bfe_u32 {tmp}, {lane}, {lo}, {w}')
        if mult & (mult - 1) == 0:
            a(f'v_lshl_add_u32 {dst}, {tmp}, {mult.bit_length()-1}, {dst}')
        else:
            a(f's_mov_b32 {stmp}, {mult}')
            a(f'v_mad_u32_u24 {dst}, {tmp}, {stmp}, {dst}')
    for s in sadd:
        a(f'v_add_u32 {dst}, {s}, {dst}')

def srd(a, d, base, size):
    a(f's_mov_b32 s{d}, s{base}')
    a(f's_and_b32 s{d+1}, s{base+1}, 0xffff')
    a(f's_mov_b32 s{d+2}, {size:#x}')
    a(f's_mov_b32 s{d+3}, 0x20000')

SW = 's[4:7]'
(aPartLd, aMemSt, aMemLd, aRedW, aRedRv, aRedR, aQ0, aQ1, aQkLd, aVLd, aKx, aVx0, aVx1, aOW0, aOW1, aOR,
 aPartSt, aPartStL, aE0, aE1, aWarm) = [f'v{i}' for i in range(1, 22)]
aRR = ['v6', 'v240', 'v241', 'v242']
vNeg = 'v22'
vIdx = 'v23'
NEG = 24
SEL = 24
T = 28
WACC = 32
GL = 36
GD = 40
GT = 44
SA = 36
MA = 48
QA = 64
XR = 64
WA = 48
RD = 88
VMR = 88
YY = 96
LR = 100
PA = 100
ET = 104
KXR = 116
VB = 148
VL = 180
OB_ = 212
def OT(j): return OB_ + 4 * j
OSUM = 228
PM = 232
CT = 236
ONES = 248
PUB = 112
sW, sX, sI, sG, sU, sHQ, sJ, sPol = 's32', 's33', 's34', 's35', 's36', 's37', 's38', 's39'
sStep, sSlot, sPrev, sRst, sKV, sExp, sSpin, sC = 's40', 's41', 's42', 's43', 's44', 's45', 's46', 's47'
sHalf0, sOdd, sEven = 's[48:49]', 's[50:51]', 's[52:53]'
sGuard, sKV2 = 's54', 's55'
LDS_RED = 0
RM, RW = 1088, 3264
LDS_O = 13312
SPIN_MAX = 1 << 17

class Stamps:
    def __init__(self, a, on): self.a = a; self.on = on; self.n = 0; self.names = []
    def init(self):
        if not self.on: return
        for k in range(16): self.a(f's_mov_b32 s{64+k}, 0')
        self.calib(76)
        self.a('s_memtime s[60:61]'); self.a('s_waitcnt lgkmcnt(0)')
    def calib(self, d):
        if self.on not in (2, 4): return
        if self.on == 4: d += 20
        a = self.a; l = a.newlabel('L_cal')
        a('s_memrealtime s[60:61]'); a('s_waitcnt lgkmcnt(0)')
        a.label(l)
        a('s_memrealtime s[62:63]'); a('s_memtime s[56:57]'); a('s_waitcnt lgkmcnt(0)')
        a('s_cmp_eq_u32 s60, s62'); a(f's_cbranch_scc1 {l}')
        a(f's_mov_b32 s{d}, s62'); a(f's_mov_b32 s{d+1}, s56')
    def __call__(self, name, only4=False):
        if not self.on: return
        if only4 and self.on != 4: return
        if self.on == 4 and name == 'PV': return
        if self.on == 3 and name != 'tail': return
        if name not in self.names: self.names.append(name)
        k = self.names.index(name)
        a = self.a
        if self.on == 4:
            a(f's_memtime s[{64+2*k}:{65+2*k}]'); return
        if self.on == 2:
            a('s_memtime s[62:63]'); a('s_waitcnt lgkmcnt(0)')
            a(f's_cmp_eq_u32 {sStep}, 40'); a(f's_cselect_b32 s{64+k}, s62, s{64+k}')
            return
        a('s_memtime s[62:63]'); a('s_waitcnt lgkmcnt(0)')
        a('s_sub_u32 s61, s62, s60'); a(f's_add_u32 s{64+k}, s{64+k}, s61'); a('s_mov_b32 s60, s62')

def chk(base, n=4, dst='vcc', t=None):
    t = t or f'v{T+3}'
    regs = [f'v{base+i}' for i in range(n)]
    out = [f'v_max3_u32 {t}, {regs[0]}, {regs[1]}, {regs[2]}']
    regs = regs[3:]
    while len(regs) >= 2:
        out.append(f'v_max3_u32 {t}, {t}, {regs[0]}, {regs[1]}'); regs = regs[2:]
    if regs: out.append(f'v_max_u32 {t}, {t}, {regs[0]}')
    out.append(f'v_cmp_eq_u32 {dst}, -1, {t}')
    return out

def spin_guard(c):
    c(f's_add_u32 {sSpin}, {sSpin}, 1'); c(f's_cmp_ge_u32 {sSpin}, {SPIN_MAX}'); c('s_cbranch_scc1 L_rec_abort')

sMode4 = 's100'
sBit = 's101'
vClaim = 'v247'
LDS_X = 147456
LDS_T = LDS_X + 64

def signal(a, off, soff='0', srd_='s[28:31]', inc='1', two=False):
    l = a.newlabel('L_sig')
    a(f's_cmp_lg_u32 {sW}, 0'); a(f's_cbranch_scc1 {l}')
    a(f'v_mov_b32 v254, {inc}'); a('v_mov_b32 v255, 0')
    if two:
        a('v_and_b32 v254, 3, v254')
        a('v_mbcnt_lo_u32_b32 v255, -1, 0'); a('v_lshlrev_b32 v255, 9, v255')
        a(f's_cmp_ge_u32 {inc}, 2'); a('s_cselect_b64 exec, 3, 1')
    else: a('s_mov_b64 exec, 1')
    a(f'buffer_atomic_add v254, v255, {srd_}, {soff} offen offset:{off} sc1')
    a('s_mov_b64 exec, -1')
    a.label(l)

def verify(a, want_pol=False, spin='s3', kv=False):
    lw, ld, lk = a.newlabel('L_vw'), a.newlabel('L_vd'), a.newlabel('L_vk')
    a('v_mbcnt_lo_u32_b32 v250, -1, 0'); a('v_mbcnt_hi_u32_b32 v250, -1, v250')
    a(f's_lshl_b32 s90, {sW}, 9'); a(f's_add_u32 s90, s90, {LDS_T}'); a('v_lshl_add_u32 v251, v250, 3, s90'); a('ds_write_b64 v251, v[248:249]'); a('s_waitcnt lgkmcnt(0)')
    a(f's_cmp_lg_u32 {sW}, 0'); a(f's_cbranch_scc1 {ld}')
    a('v_lshlrev_b32 v250, 2, v250')
    a(f's_cmp_lg_u32 {sMode4}, 0'); a(f's_cbranch_scc1 {lw}')
    a(f'v_readfirstlane_b32 s90, {vClaim}'); a(f's_and_b32 s90, s90, {sBit}'); a(f's_cbranch_scc0 {lw}')
    a('v_mov_b32 v251, 1'); a('s_mov_b64 exec, 1')
    a(f'buffer_store_dword v251, v250, s[28:31], 0 offen offset:{D_FAIL} sc1'); a('s_mov_b64 exec, -1')
    a.label(lw)
    a('buffer_load_dword v251, v250, s[28:31], 0 offen sc1')
    a('s_waitcnt vmcnt(0)')
    a('v_cmp_eq_u32 vcc, -1, v251')
    a(f'v_readlane_b32 s91, v251, {D_FAIL//4}'); a(f'v_readlane_b32 s92, v251, {D_POL//4}')
    a(f'v_readlane_b32 s93, v251, {D_INIT//4}'); a(f'v_readlane_b32 s90, v251, {D_INIT2//4}')
    a(f's_cmp_lg_u32 {sMode4}, 0')
    a('s_cselect_b32 s93, s90, s93'); a('s_cselect_b32 s91, 0, s91'); a('s_cselect_b32 s92, 1, s92'); a('s_cselect_b32 s90, 0xff, vcc_lo')
    a('s_cmp_lg_u32 s91, 0'); a('s_cselect_b32 s92, 3, s92'); a(f's_cbranch_scc1 {lk}')
    a(f's_add_u32 {spin}, {spin}, 1'); a(f's_cmp_ge_u32 {spin}, {SPIN_MAX}'); a('s_cselect_b32 s92, 4, s92'); a(f's_cbranch_scc1 {lk}')
    a('s_sleep 8')
    a('s_and_b32 s90, s90, 0xff'); a('s_cmp_lg_u32 s90, 0xff'); a(f's_cbranch_scc1 {lw}')
    a('s_cmp_lt_u32 s93, 128'); a(f's_cbranch_scc1 {lw}')
    if want_pol: a('s_cmp_eq_u32 s92, 0'); a(f's_cbranch_scc1 {lw}')
    a.label(lk)
    a(f'v_mov_b32 v251, s92'); a(f'v_mov_b32 v250, {LDS_X}'); a('ds_write_b32 v250, v251'); a('s_waitcnt lgkmcnt(0)')
    a.label(ld)
    a('s_barrier')
    a(f'v_mov_b32 v250, {LDS_X}'); a('ds_read_b32 v251, v250'); a('s_waitcnt lgkmcnt(0)')
    a('v_readfirstlane_b32 s92, v251')
    a('s_barrier')
    a('s_cmp_eq_u32 s92, 3'); a('s_cbranch_scc1 L_fallback')
    a('s_cmp_eq_u32 s92, 4'); a('s_cbranch_scc1 L_exit')
    if want_pol: a(f's_sub_u32 {sPol}, s92, 1'); a(f's_and_b32 {sPol}, {sPol}, 1'); a(f's_lshl_b32 {sPol}, {sPol}, 13')

def gather(a, cold, name, loads, regs, work, extra=0, thr=2, per=0):
    n = len(loads)
    done = f'L_{name}_done'
    def mix(w, pre):
        if not per: return w[:1] + pre + w[1:]
        out = []; pre = list(pre)
        for x in w:
            out.append(x)
            k = 0
            while pre and k < per:
                y = pre.pop(0); out.append(y)
                if y.startswith('v_'): k += 1
        return out + pre
    a(f's_waitcnt vmcnt({n-1+extra})')
    for x in chk(regs[0]): a(x)
    ex = [extra]
    for j in range(n):
        a(f's_cbranch_vccnz L_{name}_f{j}')
        if j + 1 < n:
            for x in mix(work[j], [f's_waitcnt vmcnt({n-2-j+ex[j]})'] + chk(regs[j+1])): a(x)
        else:
            for x in work[j]: a(x)
        ex.append(ex[j] + sum(x.startswith('buffer_') for x in work[j]))
    a.label(done)
    c = cold
    def key(S): return ''.join(map(str, S))
    def succ(S, j):
        later = [x for x in S if x > j]
        return later[0] if later else S[0]
    for j in range(n):
        S = tuple(range(j, n))
        c.label(f'L_{name}_f{j}')
        c('s_mov_b64 exec, vcc'); c(loads[j]); c('s_mov_b64 exec, -1')
        c(f's_waitcnt vmcnt({1+ex[j]})' if len(S) > 1 else f's_nop 7')
        c(f's_branch L_{name}_{key(S)}_c{succ(S, j)}')
    import itertools
    for r in range(1, n + 1):
        for S in itertools.combinations(range(n), r):
            for j in S:
                c.label(f'L_{name}_{key(S)}_c{j}')
                for x in chk(regs[j]): c(x)
                c(f's_cbranch_vccz L_{name}_{key(S)}_ok{j}')
                c.label(f'L_{name}_{key(S)}_x{j}')
                c('s_mov_b64 exec, vcc'); c(loads[j]); c('s_mov_b64 exec, -1')
            spin_guard(c)
            c(f's_waitcnt vmcnt({min(thr * len(S), 2 * thr)})')
            c(f's_branch L_{name}_{key(S)}_c{S[0]}')
            for j in S:
                c.label(f'L_{name}_{key(S)}_ok{j}')
                S2 = tuple(x for x in S if x != j)
                if not S2:
                    for x in work[j]: c(x)
                    c(f's_branch {done}')
                else:
                    nx = succ(S2, j)
                    for x in mix(work[j], chk(regs[nx])): c(x)
                    c(f's_cbranch_vccz L_{name}_{key(S2)}_ok{nx}')
                    c(f's_branch L_{name}_{key(S2)}_x{nx}')

def gather_all(a, cold, name, loads, regs, extra=0, thr=0):
    a(f's_waitcnt vmcnt({extra})')
    for x in chk(regs[0], 8): a(x)
    a(f's_cbranch_vccnz L_{name}_f')
    a.label(f'L_{name}_done')
    c = cold
    c.label(f'L_{name}_f')
    for x in chk(regs[0], 4, 's[56:57]', f'v{T+2}'): c(x)
    for x in chk(regs[1], 4, 'vcc'): c(x)
    c('s_or_b64 exec, s[56:57], 1'); c(loads[0])
    c('s_or_b64 exec, vcc, 1'); c(loads[1]); c('s_mov_b64 exec, -1')
    spin_guard(c)
    c(f's_waitcnt vmcnt({thr})')
    for x in chk(regs[0], 8): c(x)
    c(f's_cbranch_vccz L_{name}_done')
    c(f's_branch L_{name}_f')

def gen_rec(a, nsteps=64, stamps=False, local_st='', exp_st='', exit_label='L_rec_exit', no_pf=False, no_exp=False, pol=None,
            dg=0, d1=0, d2=0, thr=2, gthr=0, warm=2, npre=5, cut=0, f1=24, nv1=5, nv2=3, nA=5, nB=6, nr0=5, vat=0, allafter=0, fused=False, kvneed=16, sweep=False, wtouch=None, wfl='', rt=False, xo='', defv=1, mper=0, xper=0, zsh=0, wsp=(8, 8), spos=0, lr=1, ow2=0, zlate=0, c3=1, rw=16, kw0=0, rwu=19, nofin=0):
    st = Stamps(a, stamps)
    def rts(k):
        if not rt: return
        a('s_memrealtime s[60:61]'); a('s_waitcnt lgkmcnt(0)')
        a(f's_lshl_b32 s62, s2, 5'); a(f's_add_u32 s62, s62, {STAMP + 131072 + 4*k:#x}')
        a('v_mov_b32 v28, 0'); a('v_mov_b32 v29, s60'); a('s_mov_b64 exec, 1')
        a(f'buffer_store_dword v29, v28, {SW}, s62 offen'); a('s_mov_b64 exec, -1')
    cold = Asm(); cold.uid = 5000
    if cut == 1: a('s_endpgm')
    a('s_load_dwordx4 s[80:83], s[0:1], 8')
    a('s_load_dwordx4 s[84:87], s[0:1], 24')
    a('s_load_dwordx2 s[88:89], s[0:1], 40')
    a('v_lshrrev_b32 v31, 6, v0')
    a('s_nop 0')
    a(f'v_readfirstlane_b32 {sW}, v31')
    a('v_and_b32 v0, 63, v0')
    a(f's_lshr_b32 {sG}, {sI}, 4'); a(f's_lshl_b32 s90, {sX}, 1'); a(f's_add_u32 {sG}, {sG}, s90')
    a(f's_and_b32 {sU}, {sI}, 15')
    a(f's_lshr_b32 {sHQ}, {sU}, 2'); a(f's_lshl_b32 s90, {sG}, 2'); a(f's_add_u32 {sHQ}, {sHQ}, s90')
    a(f's_and_b32 {sJ}, {sU}, 3')
    a('s_waitcnt lgkmcnt(0)')
    srd(a, 24, 80, 8 * 1024 * 2)
    srd(a, 8, 82, 8 << 20); srd(a, 12, 84, 8 << 20); srd(a, 16, 86, 8 << 20); srd(a, 20, 88, 8 << 20)
    a(f's_lshl_b32 s90, {sW}, 21'); a(f's_lshl_b32 s91, {sHQ}, 8'); a(f's_add_u32 s90, s90, s91')
    a(f's_lshr_b32 s91, {sJ}, 1'); a('s_lshl_b32 s91, s91, 7'); a(f's_add_u32 s90, s90, s91')
    lane_expr(a, 'v180', [(3, 3, 8192), (0, 3, 16)], sadd=['s90'])
    a('v_xor_b32 v185, 128, v180')
    a(f's_lshl_b32 s90, {sG}, 2'); a(f's_add_u32 s90, s90, {sW}'); a('s_lshl_b32 s90, s90, 18'); a(f's_lshl_b32 s91, {sU}, 7'); a('s_add_u32 s90, s90, s91')
    lane_expr(a, 'v181', [(3, 3, 2048), (0, 3, 16)], sadd=['s90'])
    a(f's_lshl_b32 s96, {sW}, 15')
    a(f's_and_b32 s91, {sJ}, 1'); a('s_lshl_b32 s91, s91, 6'); a('s_add_u32 s91, s91, s96')
    lane_expr(a, 'v182', [(5, 1, 16 * 128), (4, 1, 8 * 128), (2, 2, 128), (0, 2, 8)], sadd=['s91'])
    a(f's_lshl_b32 s91, {sW}, 5')
    lane_expr(a, 'v183', [(4, 1, 64 * 128), (5, 1, 2 * 128), (2, 1, 8 * 128), (3, 1, 128), (0, 2, 8)], sadd=['s91'])
    a('v_add_u32 v184, 0x10000, v183')
    units = [(ks, h, m) for ks in range(4) for h in range(2) for m in (1, 2)] + [(ks, h, 0) for ks in range(4) for h in range(2)]
    def issue(u):
        for q in range(4):
            a(f's_add_u32 m0, s96, {(u % 8) * 4096 + q * 1024}')
            if u < 24:
                ks, h, m = units[u]
                a(f's_mov_b32 s90, {(64*ks + 32*h + 8*q) * 8192:#x}')
                a(f'buffer_load_dwordx4 v{185 if m == 2 else 180}, s[{8+4*m}:{11+4*m}], s90 offen {wfl} lds')
            else:
                a(f's_mov_b32 s90, {(32*(u-24) + 8*q) * 2048:#x}')
                a(f'buffer_load_dwordx4 v181, s[20:23], s90 offen {wfl} lds')
    NP = 4
    a(f's_lshl_b32 s97, {sI}, 2'); a(f's_add_u32 s97, s97, {sW}')
    a('s_lshl_b32 s98, s97, 14'); a(f's_lshl_b32 s91, {sX}, 21'); a('s_add_u32 s98, s98, s91')
    a('s_lshl_b32 s97, s97, 16'); a(f's_lshl_b32 s91, {sX}, 11'); a('s_add_u32 s97, s97, s91')
    lane_expr(a, 'v16', [(0, 4, 128), (4, 2, 8192)]); a('v_add_u32 v17, 0x8000, v16')
    a('v_lshlrev_b32 v18, 7, v0'); a('v_add_u32 v19, 0x2000, v18')
    def touch(m):
        if not wtouch: return
        for q in range(2):
            if m < 3: a(f'buffer_load_dword v{20+2*m+q}, v{16+q}, s[{8+4*m}:{11+4*m}], s97 offen')
            else: a(f'buffer_load_dword v{20+2*m+q}, v{18+q}, s[20:23], s98 offen')
    touch(1); touch(2)
    if c3:
        a(f's_lshl_b32 s97, {sI}, 2'); a(f's_add_u32 s97, s97, {sW}')
        a('s_lshl_b32 s98, s97, 14'); a(f's_lshl_b32 s91, {sX}, 21'); a('s_add_u32 s98, s98, s91')
        a('s_lshl_b32 s97, s97, 16'); a(f's_lshl_b32 s91, {sX}, 11'); a('s_add_u32 s97, s97, s91')
        lane_expr(a, 'v16', [(0, 1, 1024), (1, 3, 8192)], const=384)
        lane_expr(a, 'v17', [(0, 4, 1024)], const=384)
        a('s_mov_b64 exec, 0xffff')
        for m in ((1, 2, 0, 3) if c3 == 1 else (1, 2)):
            a(f'buffer_load_dword v{200+m}, v{16 + (m == 3)}, s[{8+4*m}:{11+4*m}], s{97 + (m == 3)} offen')
        a('s_mov_b64 exec, -1')
    POLOFF = D_POL if fused else 32
    a(f's_lshl_b32 s58, {sX}, 5'); a(f's_add_u32 s58, s58, {sI}')
    if fused:
        exp_st = 'sc1'
        a(f's_lshl_b32 s59, {sW}, 19'); a(f's_add_u32 s59, s59, {RING:#x}')
        a('s_lshl_b32 s90, s58, 11'); a('s_add_u32 s90, s90, s59')
        a('s_mul_i32 s91, s58, 3072'); a('s_add_u32 s91, s91, s59'); a(f's_add_u32 s91, s91, {RING2-RING:#x}')
        a('v_lshlrev_b32 v6, 4, v0')
        for r in range(4): a(f'v_mov_b32 v{8+r}, -1'); a(f'v_mov_b32 v{12+r}, 0')
        for q in range(2): a(f'buffer_store_dwordx4 v[8:11], v6, {SW}, s90 offen offset:{1024*q} sc1')
        for q in range(3): a(f'buffer_store_dwordx4 v[8:11], v6, {SW}, s91 offen offset:{1024*q} sc1')
    a(f's_lshl_b32 s58, s58, 2'); a(f's_add_u32 s58, s58, {sW}')
    if fused:
        lz = a.newlabel('L_nz')
        a(f's_cmp_ge_u32 s58, {CNT_BYTES // 1024}'); a(f's_cbranch_scc1 {lz}')
        a('s_lshl_b32 s90, s58, 10'); a(f's_add_u32 s90, s90, {CNT:#x}')
        a(f'buffer_store_dwordx4 v[12:15], v6, {SW}, s90 offen sc1')
        a.label(lz)
    if pol is None:
        lp = a.newlabel('L_np')
        a('s_cmp_lg_u32 s58, 3'); a(f's_cbranch_scc1 {lp}')
        lane_expr(a, 'v6', [(0, 1, 8192), (1, 1, 4096 + 256), (2, 2, 0x14000 + 512)], const=RING + 256 * KB)
        a('v_mov_b32 v7, -1')
        a('s_mov_b64 exec, 0xffff')
        a(f'buffer_store_dword v7, v6, {SW}, 0 offen sc1')
        a('s_mov_b64 exec, -1')
        a('s_waitcnt vmcnt(0)')
        a.label(lp)
    for u in range(8): issue(u)
    if cut == 2: a('s_waitcnt vmcnt(0)'); a('s_endpgm')
    if pol is None:
        lp = a.newlabel('L_np')
        a('s_cmp_lg_u32 s58, 3'); a(f's_cbranch_scc1 {lp}')
        a(f's_add_u32 s92, s94, {RING + 256 * KB:#x}'); a('s_addc_u32 s93, s95, 0')
        a('s_mov_b32 s62, -1'); a('s_mov_b32 s63, -1')
        for k in range(NP):
            for pp in range(2):
                a('s_memtime s[56:57]'); a('s_waitcnt lgkmcnt(0)')
                a(f's_load_dword s60, s[92:93], {pp*8192 + (k&1)*(4096+256) + (k>>1)*(0x14000+512):#x}'); a('s_waitcnt lgkmcnt(0)')
                a('s_memtime s[58:59]'); a('s_waitcnt lgkmcnt(0)')
                a('s_sub_u32 s58, s58, s56'); a(f's_min_u32 s{62+pp}, s{62+pp}, s58')
        a('s_cmp_lt_u32 s63, s62'); a('s_cselect_b32 s60, 2, 1')
        a('v_mov_b32 v6, s60'); a('v_mov_b32 v7, s62'); a('v_mov_b32 v8, s63'); a('v_mov_b32 v9, 0')
        a('s_mov_b64 exec, 1')
        a(f'buffer_store_dword v6, v9, s[28:31], 0 offen offset:{POLOFF} sc1' if fused else 'buffer_store_dwordx3 v[6:8], v9, s[28:31], 0 offen offset:32 sc1')
        a('s_mov_b64 exec, -1')
        a.label(lp)
    a(f's_lshl_b32 s90, {sI}, 2'); a(f's_add_u32 s90, s90, {sW}')
    a('s_lshr_b32 s91, s90, 3'); a('s_lshl_b32 s91, s91, 14'); a('s_and_b32 s92, s90, 7'); a('s_lshl_b32 s92, s92, 10')
    a('s_add_u32 s91, s91, s92')
    lane_expr(a, aPartLd, [(0, 6, 16)], sadd=['s91'])
    a('v_lshrrev_b32 v30, 4, v0'); a(f'v_cmp_eq_u32 vcc, {sX}, v30'); a(f'v_xor_b32 v29, 0x2000, {aPartLd}')
    a(f'v_cndmask_b32 {aPartLd}, {aPartLd}, v29, vcc')
    a(f's_lshl_b32 s91, {sX}, 14'); a('s_lshl_b32 s92, s90, 7'); a('s_add_u32 s91, s91, s92')
    lane_expr(a, aMemSt, [(0, 2, 4), (2, 1, 64), (4, 1, 16), (5, 1, 32), (3, 1, OOB)], const=MEM_OFF, sadd=['s91'])
    a('s_lshr_b32 s92, s90, 1'); a('s_lshl_b32 s92, s92, 5'); a('s_and_b32 s91, s90, 1'); a('s_lshl_b32 s91, s91, 13'); a('s_add_u32 s92, s92, s91')
    lane_expr(a, 'v30', [(2, 1, 2 * 2048), (4, 1, 2048), (0, 2, 8), (5, 1, 4)], sadd=['s92'])
    a(f'buffer_load_dword v{GT}, v30, s[24:27], 0 offen')
    a(f's_lshl_b32 s91, {sX}, 14'); a(f's_lshl_b32 s92, {sW}, 12'); a('s_add_u32 s91, s91, s92')
    lane_expr(a, aMemLd, [(0, 6, 16)], const=MEM_OFF, sadd=['s91'])
    a(f's_mul_i32 s91, {sW}, {RW}')
    lane_expr(a, aRedW, [(0, 6, 16)], const=LDS_RED, sadd=['s91'])
    a(f's_lshl_b32 s91, {sW}, 6')
    lane_expr(a, aRR[0], [(0, 2, 16), (2, 1, 4), (3, 1, RM), (4, 2, 256)], const=LDS_RED, sadd=['s91'])
    for w in range(1, 4): a(f'v_add_u32 {aRR[w]}, {RW*w}, {aRR[0]}')
    a(f's_lshl_b32 s93, {sHQ}, 13')
    a(f's_lshl_b32 s91, {sJ}, 10'); a('s_add_u32 s91, s91, s93'); a(f's_lshl_b32 s92, {sW}, 8'); a('s_add_u32 s91, s91, s92')
    lane_expr(a, aQ0, [(0, 6, 4)], const=QKVR_OFF, sadd=['s91'])
    a(f's_lshl_b32 s91, {sHQ}, 11'); a(f's_lshl_b32 s92, {sJ}, 9'); a('s_add_u32 s59, s91, s92')
    a(f's_lshl_b32 s92, {sW}, 7'); a('s_add_u32 s91, s59, s92')
    lane_expr(a, aE0, [(0, 3, 4), (4, 2, 32), (3, 1, OOB)], const=KM + OOB, sadd=['s91'])
    a(f's_lshl_b32 s91, {sW}, 8')
    lane_expr(a, aRedRv, [(0, 1, 128), (1, 1, 8), (2, 3, 16)], const=LDS_RED + 2 * RM, sadd=['s91'])
    a(f's_lshr_b32 s92, {sJ}, 1'); a('s_xor_b32 s92, s92, 1'); a('s_lshl_b32 s92, s92, 10'); a('s_add_u32 s91, s91, s92'); a('s_add_u32 s91, s91, s93')
    a(f's_and_b32 s92, {sJ}, 1'); a('s_lshl_b32 s92, s92, 7'); a('s_add_u32 s91, s91, s92')
    lane_expr(a, aQ1, [(0, 5, 4), (5, 1, OOB)], const=QKVR_OFF + 4096, sadd=['s91'])
    a('s_sub_u32 s91, s91, s93'); a(f's_lshl_b32 s92, {sHQ}, 11'); a('s_add_u32 s91, s91, s92')
    lane_expr(a, aE1, [(0, 5, 4), (5, 1, OOB)], const=VM, sadd=['s91'])
    a(f's_lshl_b32 s97, {sG}, 2'); a(f's_add_u32 s97, s97, {sW}'); a('s_lshl_b32 s97, s97, 13')
    lane_expr(a, aQkLd, [(0, 6, 16)], const=QKVR_OFF, sadd=['s97'])
    a(f'v_add_u32 {aVLd}, 4096, {aQkLd}')
    lane_expr(a, aKx, [(0, 2, 16), (2, 1, 128), (3, 1, 4096), (4, 2, 256)], const=KX, sadd=['s97'])
    lane_expr(a, aVx0, [(0, 3, 16), (3, 1, 2048), (4, 2, 256)], const=VX, sadd=['s97'])
    a(f'v_add_u32 {aVx1}, 4096, {aVx0}')
    a(f's_lshl_b32 s91, {sU}, 9'); a('s_add_u32 s91, s91, s97')
    a(f's_add_u32 s63, s91, {KX:#x}')
    lane_expr(a, aWarm, [(0, 2, 128), (2, 1, VX - KX)], const=KX, sadd=['s91'])
    a('v_cmp_gt_u32 vcc, 8, v0'); a(f'v_mov_b32 v30, {OOB:#x}'); a(f'v_cndmask_b32 {aWarm}, v30, {aWarm}, vcc')
    a(f's_lshl_b32 s91, {sW}, 11')
    lane_expr(a, 'v30', [(2, 1, 64), (0, 1, 32), (1, 1, 16)])
    lane_expr(a, 'v29', [(4, 2, 32)])
    a('v_xor_b32 v30, v30, v29')
    lane_expr(a, aOW0, [(0, 4, 128)], const=LDS_O, sadd=['s91'])
    a(f'v_add_u32 {aOW0}, {aOW0}, v30')
    a(f'v_xor_b32 {aOW1}, 16, {aOW0}')
    lane_expr(a, 'v30', [(5, 1, 64), (1, 1, 32), (4, 1, 16)])
    lane_expr(a, 'v29', [(2, 2, 32), (0, 1, 16)])
    a('v_xor_b32 v30, v30, v29')
    lane_expr(a, aOR, [(4, 2, 256), (1, 1, 128)], const=LDS_O)
    a(f'v_add_u32 {aOR}, {aOR}, v30')
    a(f's_lshl_b32 s98, {sU}, 14'); a(f's_lshl_b32 s92, {sG}, 7'); a('s_add_u32 s98, s98, s92')
    a(f's_lshl_b32 s92, {sW}, 11'); a('s_add_u32 s91, s98, s92')
    lane_expr(a, aPartSt, [(0, 5, 4), (5, 1, 1024)], sadd=['s91'])
    a(f'v_xor_b32 {aPartStL}, 0x2000, {aPartSt}')
    a('s_mov_b32 s48, 0x33333333'); a('s_mov_b32 s49, 0x33333333')
    a('s_mov_b32 s50, 0xffff0000'); a('s_mov_b32 s51, 0xffff0000')
    a('s_mov_b32 s52, 0x0000ffff'); a('s_mov_b32 s53, 0x0000ffff')
    a(f's_mov_b32 {sGuard}, 0xfffffffe')
    a(f's_mov_b32 {sC}, {f32bits(SC):#x}')
    a('v_mov_b32 v30, 0x4444'); a('v_mov_b32 v31, 0xeeee')
    a(f'v_cndmask_b32 {vIdx}, v31, v30, {sHalf0}')
    a(f'v_mov_b32 {vNeg}, -1')
    for r in range(4): a(f'v_mov_b32 v{PM+r}, 0')
    a(f'v_mov_b32 v{PUB}, 0'); a(f'v_mov_b32 v{PUB+1}, 0')
    def lanemask(fn):
        m = 0
        for l in range(16):
            if fn(l): m |= 1 << l
        return m * 0x00010001
    mk = lanemask(lambda r: (r >> 2) & 1)
    a(f's_mov_b32 s56, {mk:#x}'); a(f's_mov_b32 s57, {mk:#x}')
    a('v_mov_b32 v30, 0x3f80'); a('v_mov_b32 v31, 1.0'); a('v_cndmask_b32 v30, v30, v31, s[56:57]')
    for q in range(4):
        mk = lanemask(lambda r: (r & 2) == 0 and q == 2 * (r >> 3) + (r & 1))
        a(f's_mov_b32 s56, {mk:#x}'); a(f's_mov_b32 s57, {mk:#x}')
        a(f'v_cndmask_b32 v{SEL+q}, 0, v30, s[56:57]')
    a(f's_mov_b32 {sStep}, 0'); a(f's_mov_b32 {sSlot}, {RING:#x}'); a(f's_mov_b32 {sRst}, {RING + 2*SLOT:#x}')
    a(f's_mov_b32 {sKV}, 0'); a(f's_mov_b32 {sKV2}, {256*KB:#x}'); a(f's_mov_b32 {sExp}, 0')

    if fused:
        a('s_waitcnt vmcnt(33)'); a('s_barrier'); signal(a, D_INIT, soff=sMode4)
    if fused:
        for sg_ in (62, 63):
            a(f's_mov_b32 s90, {sg_*64*KB:#x}')
            for ad_ in (aE0, aE1): a(f'buffer_store_dword {vNeg}, {ad_}, {SW}, s90 offen sc1')
    def ringtouch():
        for sl in range(4):
            a(f's_mov_b32 s90, {RING + sl*SLOT:#x}')
            for ad_ in (aMemSt, aQ0, aQ1) + ((aPartSt, aPartStL) if rw & 32 else ()): a(f'buffer_load_dword v204, {ad_}, {SW}, s90 offen sc1')
    for u in range(24):
        a(f's_waitcnt vmcnt({4 * (min(u + 7, 27) - u)})')
        if u in (8, 16, 23) and rt: a(f's_memrealtime s[{64 + 2*(u//8 + (u == 23))}:{65 + 2*(u//8 + (u == 23))}]')
        ks, h, m = units[u]
        for t1 in range(2):
            for rl in range(2):
                d = ks * 48 + (2*m + t1) * 8 + 4*h + 2*rl
                a(f'ds_read_b64_tr_b16 {ar(d,2)}, v182 offset:{(u % 8) * 4096 + rl*512 + t1*32}')
        if u + 8 < 28:
            a('s_waitcnt lgkmcnt(0)')
            issue(u + 8)
            if rw & 48 and u == rwu: ringtouch()
            if wtouch and u == wtouch[0]: touch(0)
            if wtouch and u == wtouch[1]: touch(3)
    if fused: verify(a, want_pol=(pol is None), kv=True)
    a('s_waitcnt vmcnt(0)'); a('s_barrier')
    for kk in range(8):
        for rp in range(4):
            hd = kk >> 1
            off = (16*(rp & 1) + 32*(kk & 1) + 4*(rp >> 1)) * 128 + (hd & 1) * 32768
            a(f'ds_read_b64_tr_b16 {ar(192 + kk*8 + 2*rp, 2)}, {"v183" if hd < 2 else "v184"} offset:{off}')
        if kk & 1: a('s_waitcnt lgkmcnt(0)')
    a('s_barrier')
    a(f's_mov_b32 {sSpin}, 0')
    if cut == 3: a('s_endpgm')
    rts(2)
    if rt:
        a('v_mov_b32 v32, s66'); a('v_mov_b32 v33, s68'); a('v_mov_b32 v34, s70'); a('s_mov_b64 exec, 1')
        a(f'buffer_store_dwordx3 v[32:34], v28, {SW}, s62 offen offset:12'); a('s_mov_b64 exec, -1')
    if fused:
        if pol is not None: a(f's_mov_b32 {sPol}, {pol*8192}')
    elif pol is None:
        a('v_mov_b32 v30, 0')
        a.label('L_polwait')
        a('buffer_load_dword v31, v30, s[28:31], 0 offen offset:32 sc1')
        a('s_waitcnt vmcnt(0)')
        a(f'v_readfirstlane_b32 {sPol}, v31')
        spin_guard(a)
        a(f's_cmp_eq_u32 {sPol}, 0'); a('s_cbranch_scc1 L_polwait')
        a(f's_sub_u32 {sPol}, {sPol}, 1'); a(f's_and_b32 {sPol}, {sPol}, 1'); a(f's_lshl_b32 {sPol}, {sPol}, 13')
    else:
        a(f's_mov_b32 {sPol}, {pol*8192}')
    for r_ in (aPartLd, aPartSt, aPartStL): a(f'v_xor_b32 {r_}, {sPol}, {r_}')
    a('s_mov_b32 s12, s63')
    if rw:
        for sl in range(4):
            a(f's_mov_b32 s90, {RING + sl*SLOT:#x}')
            if rw & 1:
                for ad_ in (aPartStL, aMemSt, aQ0, aQ1): a(f'buffer_store_dword {vNeg}, {ad_}, {SW}, s90 offen {local_st}')
            if rw & 4: a(f'buffer_store_dword {vNeg}, {aPartSt}, {SW}, s90 offen sc1')
            if rw & 2: a(f'buffer_load_dword v{T}, {aPartLd}, {SW}, s90 offen sc1')
            if rw & 8:
                for ad_, n_ in ((aMemLd, 4), (aQkLd, 4), (aVLd, 2)):
                    for q in range(n_): a(f'buffer_load_dword v{T}, {ad_}, {SW}, s90 offen offset:{1024*q} sc1')
    for r in range(8): a(f'v_mov_b32 v{ONES+r}, 0x3f803f80')
    pv = [f'buffer_load_dwordx4 {vr(VL + 4*td, 4)}, {aVx0 if td < 4 else aVx1}, {SW}, {sKV} offen offset:{((td>>1)&1)*1024 + (td&1)*128}' for td in range(8)]
    pk = [f'buffer_load_dwordx4 {vr(KXR + 16*tt + 4*ks, 4)}, {aKx}, {SW}, {sKV} offen offset:{ks*1024 + tt*64}' for ks in range(4) for tt in range(2)]
    spread = [f'v_mov_b32 v{VB + 8*(td>>1) + 2*q + (td&1)}, v{VL + 4*td + q}' for td in range(8) for q in range(4)]
    def zl(b, n): return [f'v_mov_b64 {vr(b+r, 2)}, 0' for r in range(0, n, 2)]
    def emit(l):
        for x in l: a(x)
    def shadow(ms, fs):
        fs = list(fs)
        for x in ms:
            a(x)
            if fs:
                f = fs.pop(0)
                emit(f if isinstance(f, list) else [f])
        for f in fs: emit(f if isinstance(f, list) else [f])
    if fused:
        if sweep:
            a('s_load_dwordx2 s[80:81], s[0:1], 0'); a('s_load_dwordx4 s[84:87], s[0:1], 56'); a('s_load_dwordx2 s[88:89], s[0:1], 72')
            a(f's_lshl_b32 s90, {sX}, 5'); a(f's_add_u32 s90, s90, {sI}'); a('s_lshl_b32 s90, s90, 2'); a(f's_add_u32 s90, s90, {sW}')
            a('s_lshl_b32 s90, s90, 13'); a(f's_add_u32 s91, s90, {4*MB}')
            a('v_lshlrev_b32 v30, 7, v0')
            a('s_waitcnt lgkmcnt(0)')
            for n, (base, size, so) in enumerate(((80, 4, 's90'), (84, 4, 's90'), (86, 6, 's90'), (86, 6, 's91'), (88, 2, 's90'))):
                srd(a, 8, base, size * MB)
                a(f'buffer_load_dword v{MA+n}, v30, s[8:11], {so} offen')
        a(f's_cmp_lg_u32 {sW}, 0'); a('s_cbranch_scc1 L_kv0d')
        a(f's_lshl_b32 s90, {sX}, 7'); a(f's_add_u32 s90, s90, {CNT + C_KV:#x}'); a('v_mov_b32 v30, s90')
        a.label('L_kv0')
        a(f'buffer_load_dword v31, v30, {SW}, 0 offen sc1'); a('s_waitcnt vmcnt(0)')
        a('v_readfirstlane_b32 s90, v31')
        spin_guard(a)
        a('s_sleep 2')
        a(f's_cmp_lt_u32 s90, {kvneed}'); a('s_cbranch_scc1 L_kv0')
        a.label('L_kv0d')
        a('s_barrier')
        rts(3)
    emit(pv); emit(pk)
    for q in range(kw0):
        a(f's_mov_b32 s90, {(q+1)*256*KB:#x}'); a(f'buffer_load_dword v{T}, {aWarm}, {SW}, s90 offen')
    a(f's_add_u32 {sKV}, {sKV}, {256*KB:#x}')
    emit(zl(QA, 24)); emit(zl(WACC, 4)); emit(zl(OB_, 20))
    a('s_waitcnt vmcnt(0)')
    if no_pf: pv = []; pk = []
    pA, pB = pv[:nA], pk[:nB]
    rest = pv[nA:] + pk[nB:]
    pC, pD = rest[:npre], rest[npre:]
    nvD = len([x for x in pD if x in pv])
    a(f'v_min_u32 v{GT}, {sGuard}, v{GT}')
    if cut == 4: a('s_endpgm')
    if fused:
        a(f's_lshl_b32 s90, {sX}, 7'); a(f's_add_u32 s90, s90, {CNT + C_KV:#x}'); a('v_mov_b32 v244, s90')
        a(f's_lshl_b32 s90, {sI}, 2'); a(f's_add_u32 s90, s90, {sW}')
        a(f's_lshl_b32 s91, {sX}, 7'); a(f's_add_u32 s91, s91, {CNT + C_PROG:#x}')
        a('v_mbcnt_lo_u32_b32 v30, -1, 0'); a('v_mbcnt_hi_u32_b32 v30, -1, v30'); a('v_add_u32 v30, s90, v30')
        a('v_cmp_eq_u32 vcc, 0, v30'); a(f'v_mov_b32 v30, {OOB:#x}'); a('v_mov_b32 v31, s91'); a('v_cndmask_b32 v245, v30, v31, vcc')
    if warm >= 2: a('s_mov_b64 s[8:9], s[94:95]'); a('s_mov_b64 s[10:11], s[94:95]')
    st.init()
    a('s_branch L_pubmem')
    exps = [f'buffer_store_dword v{PUB}, {aE0}, {SW}, {sExp} offen {exp_st}', f'buffer_store_dword v{PUB+1}, {aE1}, {SW}, {sExp} offen {exp_st}']
    def exports(): emit(exps)
    vFlag, vZero, aProg, vProg = 'v243', 'v244', 'v245', 'v246'
    flagld = f'buffer_load_dword {vFlag}, {vZero}, {SW}, s92 offen sc1'

    a.label('L_step')
    sw_ = [f's_load_dword s{16+(n&7)}, s[{8+2*(n&1)}:{9+2*(n&1)}], {64*(n>>1)}' for n in range(16)]
    def swbase():
        a(f's_add_u32 s8, s94, {sKV2}'); a('s_addc_u32 s9, s95, 0'); a('s_add_u32 s8, s8, s12'); a('s_addc_u32 s9, s9, 0')
        a(f's_add_u32 s10, s8, {VX - KX:#x}'); a('s_addc_u32 s11, s9, 0')
    if warm >= 2: emit(sw_[wsp[0]:wsp[0]+wsp[1]])
    emit(pC)
    emit(zl(QA, 24) + zl(WACC, 4))
    a.nop(dg)
    gl = f'buffer_load_dwordx4 {vr(GL, 4)}, {aPartLd}, {SW}, {sPrev} offen sc1'
    st('G issue', True)
    a(gl)
    lrs = [f'buffer_store_dword {vNeg}, {ad_}, {SW}, s13 offen {local_st}' for ad_ in (aPartStL, aMemSt, aQ0, aQ1)] if lr else []
    post = pD + ([] if (no_exp or fused) else exps) + lrs
    emit(post)
    if 'fixkv' not in xo: a(f's_add_u32 {sKV}, {sKV}, {256*KB:#x}'); a(f's_min_u32 {sKV}, {sKV}, {63*256*KB:#x}')
    a(f's_add_u32 {sExp}, {sExp}, {64*KB:#x}')
    if fused:
        a(f's_waitcnt vmcnt({len(pC) + len(post) + (1 if spos else 3)})')
        a.label('L_kv_chk')
        a(f'v_readfirstlane_b32 s90, {vFlag}')
        a(f's_cmp_lt_u32 s90, {kvneed}'); a('s_cbranch_scc1 L_kv_f')
        cold.label('L_kv_f')
        cold('s_sleep 8'); cold(flagld); spin_guard(cold); cold('s_waitcnt vmcnt(0)'); cold('s_branch L_kv_chk')
    a(f's_waitcnt vmcnt({len(post)})')
    a.label('L_g_chk')
    emit(chk(GL))
    a(f'v_mfma_f32_16x16x32_bf16 {vr(GD,4)}, {vr(SEL,4)}, {vr(GL,4)}, 0')
    a('s_cbranch_vccnz L_g_f')
    cold.label('L_g_f')
    cold('s_mov_b64 exec, vcc'); cold(gl); cold('s_mov_b64 exec, -1')
    spin_guard(cold); cold(f's_waitcnt vmcnt({gthr})'); cold('s_branch L_g_chk')
    st('G wait')
    h = GT
    a(f'v_add_f32_dpp v{h+1}, v{GD}, v{GD} row_ror:8 row_mask:0xf bank_mask:0xf')
    a(f'v_add_f32_dpp v{h+2}, v{GD+1}, v{GD+1} row_ror:8 row_mask:0xf bank_mask:0xf')
    a(f'v_cvt_pk_bf16_f32 v{h}, v{h+1}, v{h+2}')
    a(f'v_min_u32 v{h}, {sGuard}, v{h}')
    a.label('L_pubmem')
    a(f'buffer_store_dword v{h}, {aMemSt}, {SW}, {sSlot} offen {local_st}')
    st('M pub', True)
    if warm >= 2: emit(sw_[wsp[0]+wsp[1]:])
    ml = [f'buffer_load_dwordx4 {vr(MA + 4*k, 4)}, {aMemLd}, {SW}, {sSlot} offen offset:{1024*k} sc1' for k in range(4)]
    if nvD: a(f's_waitcnt vmcnt({min(len(post) - nvD, gthr) + 1 if gthr else len(post) - nvD + 1})')
    fill = list(spread)
    emit(fill[:f1]); fill = fill[f1:]
    a.nop(d1)
    for k in range(4):
        a(ml[k]); emit(fill[:2]); fill = fill[2:]
    emit(fill)
    st('G red')
    sm = lambda t, ks: f'v_smfmac_f32_16x16x64_bf16 {vr(QA + 4*t, 4)}, {vr(MA + 4*ks, 4)}, {ar(ks*48 + t*8, 8)}, {vIdx}'
    gather(a, cold, 'm', ml, [MA + 4*k for k in range(4)], [[sm(t, ks) for t in range(4 if defv else 6)] for ks in range(4)], thr=thr, per=mper)
    st('QK')
    for t in range(4 if defv else 6):
        a(f'v_pk_add_f32 {vr(RD + 2*t, 2)}, {vr(QA + 4*t, 2)}, {vr(QA + 4*t + 2, 2)}')
        if t & 1: a(f'ds_write_b128 {aRedW}, {vr(RD + 2*t - 2, 4)} offset:{(t>>1)*RM}')
    xl = [f'buffer_load_dwordx4 {vr(XR + 4*k, 4)}, {aQkLd}, {SW}, {sSlot} offen offset:{1024*k} sc1' for k in range(4)]
    vl = [f'buffer_load_dwordx4 {vr(VMR + 4*k, 4)}, {aVLd}, {SW}, {sSlot} offen offset:{1024*k} sc1' for k in range(2)]
    def red_pub(L, dst, addr, n):
        a(f's_waitcnt lgkmcnt({n+2})')
        a(f'v_pk_add_f32 {vr(L,2)}, {vr(L,2)}, {vr(L+2,2)}')
        a(f's_waitcnt lgkmcnt({n})')
        a(f'v_pk_add_f32 {vr(L+4,2)}, {vr(L+4,2)}, {vr(L+6,2)}')
        a(f'v_pk_add_f32 {vr(L,2)}, {vr(L,2)}, {vr(L+4,2)}')
        a(f'v_cvt_pk_bf16_f32 v{dst}, v{L}, v{L+1}')
        a(f'v_min_u32 v{dst}, {sGuard}, v{dst}')
        a(f'buffer_store_dword v{dst}, {addr}, {SW}, {sSlot} offen {local_st}')
    adv1 = [f's_mov_b32 {sPrev}, {sSlot}', f's_add_u32 s90, {sStep}, 1', 's_and_b32 s90, s90, 3', 's_lshl_b32 s90, s90, 19', f's_add_u32 s91, s90, {RING:#x}',
            f's_add_u32 {sKV2}, {sKV2}, {256*KB:#x}', f's_min_u32 {sKV2}, {sKV2}, {63*256*KB:#x}', 's_nop 0']
    z32 = lambda b, n: [f'v_mov_b32 v{b+r}, 0' for r in range(n)]
    qr = [f'ds_read2_b32 {vr(LR + 2*w, 2)}, {aRR[w]} offset0:0 offset1:2' for w in range(4)]
    vrd = [f'ds_read_b64 {vr(RD + 2*w, 2)}, {aRedRv} offset:{RW*w}' for w in range(4)]
    if not defv:
        emit(pA)
        emit(zl(SA, 12))
        a('s_waitcnt lgkmcnt(0)'); a('s_barrier')
        emit(qr); emit(vrd)
        emit(zl(OB_, zsh))
        red_pub(LR, PUB, aQ0, 4)
        red_pub(RD, PUB + 1, aQ1, 0)
        st('Q pub', True)
        emit(zl(OB_ + zsh, 20 - zsh))
        a.nop(d2)
        for k in range(4):
            a(xl[k]); emit(adv1[2*k:2*k+2])
    else:
        vs = [sm(t, ks) for ks in range(4) for t in (4, 5)]
        zz = z32(SA, 12)
        pA2 = pA[nv1:]; pA = pA[:nv1]
        if defv == 3 or zlate: zz = []
        shadow(vs[:nv1], [[pA[k]] + zz[k:k+1] if k < len(pA) else zz[k:k+1] for k in range(nv1)])
        a('s_waitcnt lgkmcnt(0)'); a('s_barrier')
        emit(qr)
        shadow(vs[nv1:nv1+nv2], [[x] for x in zz[nv1:nv1+nv2]])
        emit(zz[nv1+nv2:])
        red_pub(LR, PUB, aQ0, 0)
        st('Q pub', True)
        shadow(vs[nv1+nv2:], pA2)
        if defv == 3 or zlate: emit(zl(SA, 12))
        for t in (4, 5): a(f'v_pk_add_f32 {vr(RD + 2*t, 2)}, {vr(QA + 4*t, 2)}, {vr(QA + 4*t + 2, 2)}')
        a(f'ds_write_b128 {aRedW}, {vr(RD + 8, 4)} offset:{2*RM}')
        if defv != 3: emit(zl(OB_, 20))
        a.nop(d2)
        if defv == 3:
            for k in range(4):
                a(xl[k]); emit(adv1[2*k:2*k+2])
            a('s_waitcnt lgkmcnt(0)'); a('s_barrier')
            emit(vrd)
            emit(zl(OB_, 20))
            red_pub(RD, PUB + 1, aQ1, 0)
        elif defv == 1:
            a('s_waitcnt lgkmcnt(0)'); a('s_barrier')
            for k in range(4):
                a(vrd[k]); a(xl[k]); emit(adv1[2*k:2*k+2])
            red_pub(RD, PUB + 1, aQ1, 0)
        else:
            a('s_waitcnt lgkmcnt(0)'); a('s_barrier')
            emit(vrd); emit(adv1)
            red_pub(RD, PUB + 1, aQ1, 0)
            for k in range(4):
                a(xl[k]); a('s_nop 1')
    if vat < 0: emit(vl)
    if warm >= 2:
        swbase(); emit(sw_[:wsp[0]])
    st('QK red')
    a(f's_cmp_eq_u32 {sStep}, {nsteps-1}'); a('s_cbranch_scc1 L_last')
    def sc(ks):
        X = vr(XR + 4*ks, 4)
        return [f'v_mfma_f32_16x16x32_bf16 {vr(SA + 4*tt, 4)}, {vr(KXR + 16*tt + 4*ks, 4) if tt < 2 else X}, {X}, {vr(SA + 4*tt, 4)}' for tt in (2, 0, 1)]
    gather(a, cold, 'x', xl, [XR + 4*k for k in range(4)], [sc(k) for k in range(4)], thr=thr, extra=(2 if vat < 0 else 0) + (1 if defv in (1, 3) else 0), per=xper)
    st('scores')
    if vat == 0: emit(vl)
    dq = lambda p: f'quad_perm:[{p}] row_mask:0xf bank_mask:0xf'
    m, t2, mz = f'v{T}', f'v{T+1}', f'v{T+2}'
    z0, z1 = SA + 10, SA + 11
    a(f's_mov_b64 vcc, {sHalf0}')
    a(f'v_max_f32 {mz}, v{z0}, v{z1}')
    for r in range(4): a(f'v_cndmask_b32_dpp v{YY+r}, v{SA+4+r}, v{SA+r}, vcc {dq("0,1,0,1")}')
    a(f'v_max3_f32 {t2}, v{YY}, v{YY+1}, v{YY+2}')
    a(f'v_max_f32_dpp {m}, {mz}, v{YY+3} {dq("0,1,0,1")}')
    a(f'v_max_f32 {t2}, {t2}, {m}')
    a(f'v_max_f32_dpp {m}, {t2}, {t2} {dq("2,3,0,1")}')
    for n_, sw in enumerate(('v_permlane32_swap_b32', 'v_permlane16_swap_b32')):
        a(f'v_mov_b32 {t2}, {m}')
        if vat == n_ + 1: emit(vl)
        a(f'{sw} {m}, {t2}')
        a(f'v_max_f32 {m}, {m}, {t2}')
    a(f'v_mul_f32 {m}, {sC}, {m}')
    sv = [YY, YY+1, YY+2, YY+3, z0, z1]
    for x in sv: a(f'v_fma_f32 v{x}, v{x}, {sC}, -{m}')
    for x in sv[:4]: a(f'v_exp_f32 v{x}, v{x}')
    a(f'v_cvt_pk_bf16_f32 v{CT}, v{YY}, v{YY+1}')
    a(f'v_cvt_pk_bf16_f32 v{CT+1}, v{YY+2}, v{YY+3}')
    a(f'v_exp_f32 v{z0}, v{z0}')
    a(f'v_mov_b32_dpp v{PA}, v{CT} {dq("0,1,0,1")}')
    a(f'v_mov_b32_dpp v{PA+2}, v{CT} {dq("2,3,2,3")}')
    a(f'v_mov_b32_dpp v{PA+1}, v{CT+1} {dq("0,1,0,1")}')
    a(f'v_mov_b32_dpp v{PA+3}, v{CT+1} {dq("2,3,2,3")}')
    a(f'v_exp_f32 v{z1}, v{z1}')
    st('softmax')
    P = vr(PA, 4)
    xs = lambda d, b: f'v_smfmac_f32_16x16x64_bf16 {vr(d,4)}, {P}, {vr(b,8)}, {vIdx}'
    ms = lambda d, j, b: f'v_smfmac_f32_16x16x32_bf16 {vr(d,4)}, {vr(PM + 2*(j&1), 2)}, {vr(b,4)}, {vIdx}'
    rs = T
    wl = [f'buffer_load_dword v0, {aWarm}, {SW}, {sKV2} offen'] if (warm == 1 and (not no_pf or 'keepwarm' in xo)) else []
    rsts = [f'buffer_store_dword {vNeg}, {aPartSt}, {SW}, {sRst} offen sc1', f'buffer_store_dword {vNeg}, {aPartStL}, {SW}, {sRst} offen {local_st}',
            f'buffer_store_dword {vNeg}, {aMemSt}, {SW}, {sRst} offen {local_st}', f'buffer_store_dword {vNeg}, {aQ0}, {SW}, {sRst} offen {local_st}',
            f'buffer_store_dword {vNeg}, {aQ1}, {SW}, {sRst} offen {local_st}']
    ck = chk(VMR, 8)
    g1 = lambda k: pB[k:k+1]
    slow = wl + rsts[:1]
    late = pB[4:] + (rsts[1:] if not lr else [])
    if allafter: slow, late = slow + late, []
    if fused:
        pre = [f's_add_u32 s92, {sStep}, 3', 's_min_u32 s92, s92, 63', f's_lshr_b32 s92, s92, 2', 's_lshl_b32 s92, s92, 9',
               f'v_mov_b32 {vProg}, {sStep}']
        e_ = [] if no_exp else ([x.replace(' sc1', '') for x in exps] if 'plainexp' in xo else exps)
        slow = slow + e_ + [f'buffer_store_dword {vProg}, {aProg}, {SW}, 0 offen sc1', flagld]
    shadow([xs(OSUM, ONES), xs(OT(0), VB), xs(OT(1), VB + 8), xs(OT(2), VB + 16)],
           [[f'v_cvt_pk_bf16_f32 v{CT+2}, v{z0}, v{z1}'] + g1(0),
            g1(1) + [f'v_mov_b32_dpp v{PM}, v{CT+2} {dq("0,1,0,1")}'],
            g1(2) + [f'v_mov_b32_dpp v{PM+3}, v{CT+2} {dq("0,1,0,1")}'],
            g1(3) + [f's_waitcnt vmcnt({len(pB[:4])})'] + ck[0:2]])
    shadow([ms(OSUM, 0, ONES), xs(OT(3), VB + 24)], [ck[2:5]])
    a('s_cbranch_vccnz L_v_f')
    a.label('L_v_ok')
    cold.label('L_v_f')
    for x in vl: cold(x)
    spin_guard(cold); cold('s_waitcnt vmcnt(0)')
    for x in ck: cold(x)
    cold('s_cbranch_vccnz L_v_f'); cold('s_branch L_v_ok')
    st('V wait')
    shadow([ms(OT(j), j, VMR + 4*(j>>1)) for j in range(4)],
           [late[0:2], late[2:3] + [f'v_rcp_f32 v{rs}, v{OSUM}'], late[3:4] + [f'v_rcp_f32 v{rs+1}, v{OSUM+1}'], late[4:]])
    for j in range(4):
        o = OT(j)
        a(f'v_pk_mul_f32 {vr(o,2)}, {vr(o,2)}, {vr(rs,2)}')
        a(f'v_pk_mul_f32 {vr(o+2,2)}, {vr(o+2,2)}, {vr(rs,2)}')
        for par in range(2):
            a(f'v_cvt_pk_bf16_f32 v{ET + 4*par + j}, v{o+par}, v{o+2+par}')
        if ow2 and (j & 1):
            a(f'ds_write_b64 {aOW0}, {vr(ET + j - 1, 2)} offset:{4*(j-1)}')
            a(f'ds_write_b64 {aOW1}, {vr(ET + 4 + j - 1, 2)} offset:{4*(j-1)}')
    if not ow2:
        a(f'ds_write_b128 {aOW0}, {vr(ET,4)}')
        a(f'ds_write_b128 {aOW1}, {vr(ET+4,4)}')
    st('O write', True)
    if fused: emit(pre)
    adv2 = [f's_add_u32 {sStep}, {sStep}, 1', f's_mov_b32 {sSlot}, s91', f's_xor_b32 {sRst}, s91, {2*SLOT:#x}']
    a('s_waitcnt lgkmcnt(0)'); a('s_barrier')
    st('PV')
    rd = [f'ds_read_b128 {vr(WA + 4*kk, 4)}, {aOR} offset:{1024*kk}' for kk in range(8)]
    emit(rd[:nr0])
    moved = [x.replace(sRst, 's13') for x in slow[len(slow)-spos:]] if spos else []
    if spos: slow = slow[:len(slow)-spos]
    if spos or lr: adv2 = [f's_mov_b32 s13, {sRst}'] + adv2
    emit(slow[:2]); slow = slow[2:] + adv2
    for kk in range(8):
        issued = min(8, nr0 + kk)
        a(f's_waitcnt lgkmcnt({issued - 1 - kk})')
        a(f'v_smfmac_f32_16x16x64_bf16 {vr(WACC,4)}, {vr(WA + 4*kk, 4)}, {ar(192 + 8*kk, 8)}, {vIdx}')
        emit(rd[nr0+kk:nr0+kk+1])
        emit(slow[kk:kk+1])
    emit(slow[8:])
    a(f'v_pk_add_f32 {vr(T,2)}, {vr(WACC,2)}, {vr(WACC+2,2)}')
    a(f'v_cvt_pk_bf16_f32 v{T}, v{T}, v{T+1}')
    a(f'v_min_u32 v{T}, {sGuard}, v{T}')
    a(f'buffer_store_dword v{T}, {aPartSt}, {SW}, {sPrev} offen sc1')
    a(f'buffer_store_dword v{T}, {aPartStL}, {SW}, {sPrev} offen {local_st}')
    emit(moved)
    st('tail')
    if rt == 2:
        a('s_memrealtime s[60:61]'); a('s_waitcnt lgkmcnt(0)')
        a(f's_lshl_b32 s62, {sStep}, 2'); a(f's_lshl_b32 s61, {sX}, 12'); a('s_add_u32 s62, s62, s61'); a(f's_add_u32 s62, s62, {2*MB:#x}')
        a(f'v_mov_b32 v30, s60')
        a(f'buffer_store_dword v30, {aProg}, {SW}, s62 offen')
    if nsteps > 64 and stamps != 4:
        a(f's_min_u32 {sExp}, {sExp}, {62*64*KB:#x}')
        a(f's_cmp_eq_u32 {sStep}, {nsteps-64}')
        for k in range(12): a(f's_cselect_b32 s{64+k}, 0, s{64+k}')
        a(f's_cselect_b32 {sSpin}, 0, {sSpin}')
    a('s_branch L_step')
    a.label('L_last')
    rts(4)
    exports()
    if stamps:
        a(f's_lshl_b32 s90, {sX}, 5'); a(f's_add_u32 s90, s90, {sI}'); a('s_lshl_b32 s90, s90, 2'); a(f's_add_u32 s90, s90, {sW}')
        a('s_lshl_b32 s90, s90, 6'); a(f's_add_u32 s90, s90, {STAMP:#x}')
        if stamps != 4: a(f's_mov_b32 s79, {sSpin}')
        st.calib(78)
        a('v_mov_b32 v30, 0')
        a('s_mov_b64 exec, 1')
        for k in range(16):
            a(f'v_mov_b32 v31, s{64+k if stamps != 4 else (64+2*k if k < 12 else 84+k)}')
            a(f'buffer_store_dword v31, v30, {SW}, s90 offen offset:{4*k}')
        a('s_mov_b64 exec, -1')
    if not nofin: a('s_waitcnt vmcnt(0)')
    if fused and not nofin:
        a('s_barrier'); a(f's_lshl_b32 s90, {sG}, 7'); a(f's_add_u32 s90, s90, {CNT + C_FIN:#x}'); signal(a, 0, soff='s90', srd_=SW); a('s_waitcnt vmcnt(0)')
    a(f's_branch {exit_label}')
    a.ins += cold.ins
    a.label('L_rec_abort')
    a('s_waitcnt vmcnt(0)')
    a('s_endpgm')
    return st.names

def gen_rec_kernel(name='rec_kernel', **kw):
    a = Asm()
    a('s_load_dwordx4 s[92:95], s[0:1], 88')
    a('s_cmp_ge_u32 s2, 256'); a('s_cbranch_scc1 L_rec_exit')
    a(f's_getreg_b32 {sX}, hwreg(HW_REG_XCC_ID, 0, 4)')
    a(f's_cmp_ge_u32 {sX}, 4'); a('s_cbranch_scc1 L_rec_exit')
    a('s_waitcnt lgkmcnt(0)')
    srd(a, 4, 94, WS_BYTES); srd(a, 28, 92, 256)
    a('v_cmp_eq_u32 vcc, 0, v0')
    a('s_and_saveexec_b64 s[96:97], vcc')
    a('s_cbranch_execz L_tk')
    a(f's_lshl_b32 s90, {sX}, 6')
    a('v_mov_b32 v1, 1'); a('v_mov_b32 v2, 0')
    a('buffer_atomic_add v1, v2, s[28:31], s90 offen sc0 sc1')
    a('s_waitcnt vmcnt(0)')
    a('ds_write_b32 v2, v1')
    a('s_waitcnt lgkmcnt(0)')
    a.label('L_tk')
    a('s_mov_b64 exec, s[96:97]')
    a('s_barrier')
    a('v_mov_b32 v2, 0')
    a('ds_read_b32 v1, v2')
    a('s_waitcnt lgkmcnt(0)')
    a(f'v_readfirstlane_b32 {sI}, v1')
    a('s_barrier')
    a(f's_cmp_ge_u32 {sI}, 32'); a('s_cbranch_scc1 L_rec_exit')
    names = gen_rec(a, **kw)
    a.label('L_rec_exit')
    a('s_endpgm')
    a.fix_hazards()
    return a, names
```

```python
import sys, os
sys.path.insert(0, os.path.dirname(os.path.abspath(__file__)))
from asmgen import *
from layout import *
import rec, gemm, attn
from rec import srd, lane_expr, signal, verify, sX, sI, SPIN_MAX, sMode4, sBit, vClaim, LDS_X, LDS_T
sSpin = 's3'
from gemm import *
from build import kd, NAME
WS = 's[4:7]'
DBG = 's[28:31]'
K_AQ, K_AK, K_AV, K_BQKV, K_ATB, K_BO, K_ATA, K_AO, K_AOS, K_SK, K_SV, K_ATA4, K_SWP, K_AOF, K_AO4 = range(15)
K_AO2, K_BO2 = 16, 17
NAO2 = 8
NBO2 = 12
NSMALL = 2
NSWP = 4
USE_AOF = 0
FOLLOW = 2
FEND = 62
S256 = 0
FINE0 = 10
SPLIT0 = 15
SPLIT4 = 13
def ent(kind, p, q=0): return kind | (p << 8) | (q << 16)

SIM = dict(go=21.0, step=2.17, skv1=18.0, skv2=10.0, big=23.5, atb=4.5, bo=8.5, ata=3.5, ao=25.0, aos=9.5, margin=0.0, kvlead=8.0, bstart=50.0, ata4=11.0, swp=18.0, gap=0.2, lat=3.0, early=4.0, plan='S48 K16 S16 W4 Q12 K16 Q4 B12 Q16 T8 B8 K16 T8 B4 T4 O8 U8 T4 U12 P4 U4 P4 O6 P2 O2 P2 O2 U8 P8 O8 T4 O8 O16', aof=5.0, aob=(7,), look=3.0, earlyA=1.0, uord=(4, 3, 0, 1, 2, 5, 6, 7), ao4=11.5, ao2=43.0, bo2=14.0, lastA=8.0)
def task_list(verbose=False, **over):
    import heapq
    P = dict(SIM); P.update(over)
    kv = lambda rb: [ent(k, rb, c) for c in range(4) for k in (K_AK, K_AV)]
    sm = lambda hb: [ent(k, hb, c) for c in range(8) for k in (K_SK, K_SV)]
    first = sm(0) + sm(1) + sm(2) + kv(2) + sm(3)
    KVq = [e for rb in range(3, 8) for e in kv(rb)]
    Qq = [ent(K_AQ, rb, c) for rb in range(8) for c in range(4)]
    Bq = [ent(K_BQKV, rb, c) for rb in range(8) for c in range(3)]
    TBq = [ent(K_ATB, rb, c) for rb in P['uord'] for c in range(4)]
    BOq = [ent(K_BO2, hb, c) for hb in range(0, NBO2, 2) for c in range(2)] + [ent(K_BO, hb, c) for hb in range(NBO2, 16) for c in range(2)]
    TAq = [ent(K_ATA4, 4 * hb, c) for hb in range(FINE0) for c in range(2)] + [ent(K_ATA, s_, c) for s_ in (list(range(4 * FINE0, 4 * FINE0 + FOLLOW)) + list(range(FEND, 64)) if FOLLOW else range(4 * FINE0, 64)) for c in range(2)]
    first += [ent(K_SWP, c) for c in range(NSWP)]
    AOq = [ent(K_AO2, hb, c) for hb in range(0, NAO2, 2) for c in range(2)] + [e for hb in range(NAO2, 16) for e in ([ent(K_AO, hb, c) for c in range(2)] if hb < min(SPLIT0, SPLIT4) else [ent(K_AO4, hb, c) for c in range(8)] if hb < SPLIT0 else [ent(K_AOS, hb, c) for c in range(16)] if (hb < 15 or not USE_AOF) else [ent(K_AOF, hh, c) for hh in (30, 31) for c in range(32)])]
    if P['plan']:
        first = []
        KVq = [e for rb in range(2, 8) for e in kv(rb)]
        SWq = [ent(K_SWP, c) for c in range(NSWP)]
        Sq = sm(0) + sm(1) + ([] if S256 else sm(2) + sm(3))
        qs = dict(S=Sq, K=KVq, Q=Qq, B=Bq, W=SWq, T=TAq, O=AOq, U=TBq, P=BOq)
        for tok in P['plan'].split():
            q = qs[tok[0]]; n = int(tok[1:])
            assert len(q) >= n, tok
            first += q[:n]; del q[:n]
        assert not Sq and not SWq
    done = {}
    def fin(key, n):
        c, t = done.get(key, (0, 0.0)); return t if c >= n else 1e9
    def seg_time(s_): return P['go'] + P['step'] * (s_ + 1.9 if s_ < 62 else 63.9)
    def ready(e):
        k, p = e & 255, (e >> 8) & 255
        if k == K_ATB: return max(fin(('B', p), 3), fin(('B', max(p - 1, 0)), 3))
        if k in (K_BO, K_BO2): return fin(('TB', p >> 1), 4)
        if k == K_AO2: return fin(('TA', p + 1), 8 if p + 1 >= FINE0 else 2)
        if k == K_ATA: return max(fin(('Q', p >> 3), 4), seg_time(p))
        if k == K_ATA4: return max(fin(('Q', p >> 3), 4), seg_time(p + 3))
        if k == K_AO:
            p = max(p, min([b for b in P['aob'] if b >= p] + [p]) if any(b >= p for b in P['aob']) else p)
            p = min([b for b in P['aob'] if b >= p], default=p)
        if k in (K_AO, K_AOS, K_AO4): return fin(('TA', p), 8 if p >= FINE0 else 2)
        if k == K_AOF: return fin(('TH', p), 4)
        return 0.0
    def dur(e, n):
        k = e & 255
        return {K_SK: P['skv1'] if n < 32 else P['skv2'], K_SV: P['skv1'] if n < 32 else P['skv2'], K_ATB: P['atb'], K_BO: P['bo'], K_ATA: P['ata'], K_ATA4: P['ata4'], K_SWP: P['swp'], K_AO: P['ao'], K_AOS: P['aos'], K_AOF: P['aof'], K_AO4: P['ao4'], K_AO2: P['ao2'], K_BO2: P['bo2']}.get(k, P['big'])
    def group(e):
        k, p = e & 255, (e >> 8) & 255
        return {K_AQ: ('Q', p), K_BQKV: ('B', p), K_ATB: ('TB', p), K_ATA: ('TA', p >> 2), K_ATA4: ('TA', p >> 2)}.get(k, ('x', 0))
    free = [(0.0, w) for w in range(32)] + [(P['go'] + P['step'] * 63.6, 32 + w) for w in range(32)]
    heapq.heapify(free)
    out = []; end = 0
    while first or KVq or Qq or Bq or TBq or BOq or TAq or AOq:
        t, w = heapq.heappop(free)
        ok = lambda q: q and ready(q[0]) + (P['margin'] if (q[0] & 255) not in (K_ATA, K_AOS, K_AOF, K_AO4) else -(P['early'] if (q[0] & 255) != K_ATA else (P['earlyA'] if ((q[0] >> 8) & 255) < 60 else P['lastA']))) <= t
        q = None
        if first: q = first
        elif KVq and t + 2 * P['big'] + P['kvlead'] > P['go'] + P['step'] * (8 * ((KVq[0] >> 8) & 255) - 3): q = KVq
        elif ok(TAq): q = TAq
        elif ok(AOq): q = AOq
        elif Qq and t + P['big'] + 10 > seg_time(8 * ((Qq[0] >> 8) & 255)): q = Qq
        elif Bq and t > P['bstart']: q = Bq
        elif KVq: q = KVq
        elif Qq: q = Qq
        elif TAq and (TAq[0] & 255) == K_ATA4 and ready(TAq[0]) <= t + P['look']: q = TAq
        elif AOq and (AOq[0] & 255) == K_AO and ready(AOq[0]) <= t + P['look']: q = AOq
        elif ok(TBq): q = TBq
        elif ok(BOq): q = BOq
        else:
            cand = [x for x in (AOq, TAq, BOq, TBq) if x and ready(x[0]) < 1e8]
            q = min(cand, key=lambda x: ready(x[0]))
        e = q.pop(0)
        st_ = max(t, ready(e)); en = st_ + dur(e, len(out))
        c, tt = done.get(group(e), (0, 0.0)); done[group(e)] = (c + 1, max(tt, en + (P['lat'] if (e & 255) in (K_AQ, K_BQKV) else 0.5)))
        if (e & 255) == K_ATA:
            g2 = ('TH', ((e >> 8) & 255) >> 1); c, tt = done.get(g2, (0, 0.0)); done[g2] = (c + 1, max(tt, en + 0.5))
        e2 = e
        while FOLLOW and (e & 255) == K_ATA and ((e2 >> 8) & 255) + FOLLOW < FEND:
            e2 += FOLLOW << 8; en = max(en, ready(e2)) + dur(e2, 0)
            c, tt = done.get(group(e2), (0, 0.0)); done[group(e2)] = (c + 1, max(tt, en + 0.5))
        out.append(e); end = max(end, en)
        if verbose: print(f'{t:6.1f} {st_:6.1f} {en:6.1f} kind {e & 255} p {(e >> 8) & 255} q {e >> 16}')
        heapq.heappush(free, (en + P['gap'], w))
    if verbose: print('sim end', end)
    return out

def setp(**k):
    globals().update(k)

def gen(force_slow=False, force_fb=False, sweep=True, wst=False, empty=False, codepf=True, MS=16, rot=0, gfl='', sim={}, glob={}, defer=True, chain=True, ipos=4, e1=0, ofl='sc1', g4exp='', dpoll=1, nlate=60, ppoll=1, pw=0, **kw):
    setp(**glob)
    a = Asm()
    sW_ = 's32'; sXW, sT, sKind, sP, sQ_, sDone = 's33', 's34', 's35', 's36', 's37', 's38'
    a('s_cmp_ge_u32 s2, 256'); a('s_cbranch_scc1 L_exit')
    if empty: a('s_endpgm')
    if wst: a('s_memrealtime s[56:57]'); kw['rt'] = wst
    a('s_load_dwordx4 s[92:95], s[0:1], 88')
    a('s_load_dwordx16 s[64:79], s[0:1], 0')
    a('s_getreg_b32 s39, hwreg(HW_REG_XCC_ID, 0, 3)')
    a('v_lshrrev_b32 v2, 6, v0'); a('s_nop 0'); a(f'v_readfirstlane_b32 {sW_}, v2')
    a(f's_mov_b32 {sSpin}, 0')
    if codepf:
        a('s_getpc_b64 s[86:87]')
        a.label('L_pc0')
        a('s_lshr_b32 s90, s2, 3'); a('s_lshl_b32 s90, s90, 2'); a(f's_add_u32 s90, s90, {sW_}'); a('s_and_b32 s90, s90, 31'); a('s_lshl_b32 s90, s90, 12')
        a('v_and_b32 v1, 63, v0'); a('v_lshlrev_b32 v1, 6, v1'); a('v_add_u32 v1, s90, v1')
        a('v_min_u32 v1, L_table-L_pc0, v1')
        a('global_load_dword v199, v1, s[86:87]')
        a('v_lshlrev_b32 v1, 3, v0'); a('v_add_u32 v1, L_table-L_pc0, v1')
        a('global_load_dwordx2 v[248:249], v1, s[86:87]')
    a('s_waitcnt lgkmcnt(0)')
    srd(a, 4, 94, WS_BYTES); srd(a, 28, 92, 256)
    a(f's_mov_b32 {sMode4}, 0')
    a('s_lshr_b32 s41, s2, 3')
    if force_fb: a('s_and_b32 s41, s41, 30')
    if rot: a(f's_add_u32 s41, s41, {rot}'); a('s_and_b32 s41, s41, 31')
    a(f's_lshl_b32 {sBit}, 1, s41')
    a(f's_cmp_lg_u32 {sW_}, 0'); a('s_cbranch_scc1 L_sweep')
    a('s_lshl_b32 s90, s39, 2')
    a(f'v_mov_b32 {vClaim}, {sBit}'); a('v_mov_b32 v2, 0')
    a('s_mov_b64 exec, 1')
    a(f'buffer_atomic_or {vClaim}, v2, {DBG}, s90 offen offset:{D_OR} sc0 sc1')
    a('s_mov_b64 exec, -1')
    a.label('L_sweep')
    a('s_lshl_b32 s40, s39, 5'); a('s_add_u32 s40, s40, s41'); a('s_mov_b32 s43, 1')
    a('s_branch L_role')
    a.label('L_fallback')
    a('s_load_dwordx4 s[92:95], s[0:1], 88')
    a('s_load_dwordx16 s[64:79], s[0:1], 0')
    a('s_getreg_b32 s39, hwreg(HW_REG_XCC_ID, 0, 3)')
    a(f's_mov_b32 {sMode4}, 4')
    a('v_mbcnt_lo_u32_b32 v0, -1, 0'); a('v_mbcnt_hi_u32_b32 v0, -1, v0'); a(f's_lshl_b32 s90, {sW_}, 6'); a('v_add_u32 v0, s90, v0')
    a('s_waitcnt vmcnt(0) lgkmcnt(0)')
    a('s_barrier')
    a(f's_cmp_lg_u32 {sW_}, 0'); a('s_cbranch_scc1 L_tkd')
    a('s_lshl_b32 s90, s39, 2')
    a('v_mov_b32 v1, 1'); a('v_mov_b32 v2, 0'); a('v_lshlrev_b32 v3, 2, v0')
    a('s_mov_b64 exec, 1')
    a(f'buffer_atomic_add v1, v2, {DBG}, s90 offen offset:{D_TICK} sc0 sc1')
    a('s_mov_b64 exec, 0xff')
    a.label('L_tkw')
    a(f'buffer_load_dword v4, v3, {DBG}, 0 offen offset:{D_TICK} sc1')
    a('s_waitcnt vmcnt(0)')
    a('v_readfirstlane_b32 s40, v1')
    a('s_mov_b32 s41, 0'); a('s_mov_b32 s42, 0'); a('s_mov_b32 s43, 1')
    for x in range(8):
        a(f'v_readlane_b32 s44, v4, {x}')
        a('s_add_u32 s41, s41, s44')
        a(f's_cmp_gt_u32 s39, {x}'); a('s_cselect_b32 s45, s44, 0'); a('s_add_u32 s42, s42, s45')
        if x < 4: a('s_cmp_eq_u32 s44, 32'); a('s_cselect_b32 s43, s43, 0')
    a(f's_add_u32 {sSpin}, {sSpin}, 1'); a(f's_cmp_ge_u32 {sSpin}, {SPIN_MAX}'); a('s_cbranch_scc1 L_tkbad')
    a('s_sleep 4')
    a('s_cmp_lt_u32 s41, 256'); a('s_cbranch_scc1 L_tkw')
    a('s_add_u32 s40, s40, s42'); a('s_lshl_b32 s43, s43, 16'); a('s_or_b32 s40, s40, s43')
    a('s_branch L_tkok')
    a.label('L_tkbad')
    a('s_mov_b32 s40, 0xffff')
    a.label('L_tkok')
    a('s_mov_b64 exec, -1')
    a('v_mov_b32 v1, s40'); a(f'v_mov_b32 v2, {LDS_X}')
    a('ds_write_b32 v2, v1'); a('s_waitcnt lgkmcnt(0)')
    a.label('L_tkd')
    a('s_barrier')
    a(f'v_mov_b32 v2, {LDS_X}'); a('ds_read_b32 v1, v2'); a('s_waitcnt lgkmcnt(0)')
    a('v_readfirstlane_b32 s40, v1')
    a('s_barrier')
    a('s_lshr_b32 s43, s40, 16'); a('s_and_b32 s40, s40, 0xffff')
    a('s_cmp_ge_u32 s40, 256'); a('s_cbranch_scc1 L_exit')
    if force_slow: a('s_mov_b32 s43, 0')
    a.label('L_role')
    if wst:
        a('s_memrealtime s[58:59]'); a('s_waitcnt lgkmcnt(0)')
        a(f's_lshl_b32 s62, s2, 5'); a(f's_add_u32 s62, s62, {STAMP + 131072:#x}')
        a('v_mov_b32 v251, 0'); a('v_mov_b32 v252, s56'); a('v_mov_b32 v253, s58'); a('s_mov_b64 exec, 1')
        a(f'buffer_store_dwordx2 v[252:253], v251, s[4:7], s62 offen'); a('s_mov_b64 exec, -1')
    a('s_cmp_ge_u32 s40, 128'); a('s_cbranch_scc1 L_worker')
    a(f's_lshr_b32 {sX}, s40, 5'); a(f's_and_b32 {sI}, s40, 31')
    a('s_cmp_eq_u32 s43, 0'); a('s_cbranch_scc1 L_recslow')
    r1 = Asm(); names = rec.gen_rec(r1, fused=True, exit_label='L_join', nofin=dpoll, **kw); a.absorb(r1, 'F')
    a.label('L_recslow')
    r2 = Asm(); rec.gen_rec(r2, fused=True, exit_label='L_join', local_st='sc1', pol=0, nofin=dpoll); a.absorb(r2, 'S')
    def request(a):
        l = a.newlabel('L_rq')
        a(f's_cmp_lg_u32 {sW_}, 0'); a(f's_cbranch_scc1 {l}')
        a('s_cmp_eq_u32 s39, 0'); a(f's_cbranch_scc1 {l}')
        a(f's_lshl_b32 s99, {sXW}, 7'); a(f's_add_u32 s99, s99, {CNT + C_QUEUE:#x}')
        a('v_mov_b32 v244, 1'); a('v_mov_b32 v245, 0')
        a('s_mov_b64 exec, 1')
        a(f'buffer_atomic_add v244, v245, {WS}, s99 offen sc0 sc1')
        a('s_mov_b64 exec, -1')
        a.label(l)
    a.label('L_join')
    a('s_load_dwordx16 s[64:79], s[0:1], 0')
    a('s_mov_b32 s39, 1'); assert sXW == sX
    request(a)
    a('v_mbcnt_lo_u32_b32 v0, -1, 0'); a('v_mbcnt_hi_u32_b32 v0, -1, v0'); a(f's_lshl_b32 s90, {sW_}, 6'); a('v_add_u32 v0, s90, v0')
    a(f's_lshl_b32 s40, {sX}, 5'); a('s_add_u32 s40, s40, 128'); a('s_mov_b32 s39, 1')
    a('s_barrier')
    a('s_branch L_worker1')
    a.label('L_worker')
    a('s_mov_b32 s39, 0')
    a.label('L_worker1')
    a('s_load_dwordx4 s[80:83], s[0:1], 64')
    a('s_load_dwordx2 s[84:85], s[0:1], 80')
    a(f's_sub_u32 {sXW}, s40, 128'); a(f's_lshr_b32 {sXW}, {sXW}, 5')
    a(f's_and_b32 {sT}, s40, 31')
    a('s_getpc_b64 s[86:87]')
    a.label('L_pc')
    a('s_add_u32 s86, s86, L_table-L_pc'); a('s_addc_u32 s87, s87, 0')
    a('s_waitcnt lgkmcnt(0)')
    tl = task_list(**sim)
    G1 = Gemm(256, 256, 64, 2, 'row', MS=MS, ld_flags=gfl, w_flags=gfl); G3 = Gemm(128, 128, 64, 4, 'packed', perm_out=True, ld_flags='sc1', MS=MS, w_flags=gfl)
    G4 = Gemm(256, 128, 64, 3, 'packed', perm_out=True, ld_flags='sc1', MS=MS, w_flags=gfl)
    G2 = Gemm(128, 128, 64, 4, 'row', MS=MS, ld_flags=gfl, w_flags=gfl) if not S256 else Gemm(256, 128, 64, 2, 'row', MS=MS, ld_flags=gfl, w_flags=gfl)
    pE, pOo, pSeg, pDone, pInc, sRet = 's59', 's60', 's61', 's62', 's63', 's58'
    EPI = 176
    DF = dict(ad='v172', ad2='v173', base=176, s0='s46', s1='s47')
    dstores = [f'buffer_store_dwordx4 {vr(176 + 4*n, 4)}, {DF["ad2"] if (n & 7) >= 4 else DF["ad"]}, {WS}, {DF["s1"] if n >= 8 else DF["s0"]} offen offset:{(n&3)*1024} sc1' for n in range(16)] if defer else []
    pSig = 's49'
    srd(a, 16, 84, 8 * MB); srd(a, 8, 64, 4 * MB); srd(a, 12, 70, 8 * MB)
    for r in list(range(1, 18)) + [172, 173]: a(f'v_mov_b32 v{r}, 0')
    a(f's_mov_b32 {pE}, 0')
    a('s_cmp_eq_u32 s39, 0'); a('s_cbranch_scc1 L_have')
    a('s_branch L_next1')
    a.label('L_next')
    request(a)
    a.label('L_next1')
    a('s_waitcnt vmcnt(0)')
    a.label('L_got')
    a(f's_cmp_lg_u32 {sW_}, 0'); a('s_cbranch_scc1 L_nx1')
    a(f'v_mov_b32 v245, {LDS_X}'); a('s_mov_b64 exec, 1'); a('ds_write_b32 v245, v244'); a('s_mov_b64 exec, -1'); a('s_waitcnt lgkmcnt(0)')
    a.label('L_nx1')
    a('s_barrier')
    a(f'v_mov_b32 v245, {LDS_X}'); a('ds_read_b32 v246, v245'); a('s_waitcnt lgkmcnt(0)')
    tld = [f'v_min_u32 v245, {len(tl) - 32}, v246', 'v_lshlrev_b32 v245, 2, v245', f'v_add_u32 v245, {LDS_T + 128}, v245', 'ds_read_b32 v245, v245',
           f'v_readfirstlane_b32 {sT}, v246', f's_add_u32 {sT}, {sT}, 32']
    for x in tld: a(x)
    a('s_waitcnt lgkmcnt(0)'); a('v_readfirstlane_b32 s91, v245')
    a('s_branch L_have1')
    a.label('L_have')
    a(f's_lshl_b32 s90, {sT}, 2'); a('s_load_dword s91, s[86:87], s90'); a('s_waitcnt lgkmcnt(0)')
    a.label('L_have1')
    a('s_mov_b32 s98, 1')
    a(f's_and_b32 {sKind}, s91, 255'); a(f's_lshr_b32 {sP}, s91, 8'); a(f's_and_b32 {sP}, {sP}, 255'); a(f's_lshr_b32 {sQ_}, s91, 16')
    def wstamp(k, a=a):
        if not wst: return
        a('s_memrealtime s[96:97]'); a('s_memtime s[54:55]'); a('s_waitcnt lgkmcnt(0)')
        a(f's_lshl_b32 s55, {sXW}, 9'); a(f's_add_u32 s55, s55, {sT}'); a('s_lshl_b32 s55, s55, 6'); a(f's_add_u32 s55, s55, {STAMP + 262144 + 8*k:#x}')
        a('v_mov_b32 v240, 0'); a('v_mov_b32 v242, s96'); a('v_mov_b32 v243, s54'); a('s_mov_b64 exec, 1')
        a(f'buffer_store_dwordx2 v[242:243], v240, s[4:7], s55 offen'); a('s_mov_b64 exec, -1')
    hk = (lambda a_: wstamp(3, a_)) if wst else None
    def do_sweep(a, t0, lst):
        a('v_lshlrev_b32 v174, 7, v1')
        a(f's_sub_u32 s42, {sT}, {t0}'); a('s_lshl_b32 s40, s42, 2'); a(f's_add_u32 s40, s40, {sXW}'); a('s_lshl_b32 s40, s40, 2'); a(f's_add_u32 s40, s40, {sW_}')
        a('s_lshl_b32 s40, s40, 13')
        a(f's_cmp_ge_u32 s42, 16'); a('s_cselect_b32 s40, 0x40000000, s40')
        a(f's_add_u32 s41, s40, {2*MB}')
        for n, (base, size, so) in enumerate(lst):
            srd(a, 44, base, size * MB)
            a(f'buffer_load_dword v{175}, v174, s[44:47], {so} offen')
    wstamp(0)
    def wait(deps, prog=None, slp=6, stamp=True):
        l, d = a.newlabel('L_dw'), a.newlabel('L_dd')
        a(f's_cmp_lg_u32 {sW_}, 0'); a(f's_cbranch_scc1 {d}')
        [a(f'v_mov_b32 v{228+q}, {CNT + 4096*q:#x}') for q in sorted({0} | {b >> 12 for _, b, _ in deps})]
        a.label(l)
        for n, (so, base, tgt) in enumerate(deps): a(f'buffer_load_dword v{234+n}, v{228 + (base >> 12)}, {WS}, {so} offen offset:{base & 4095} sc1')
        if prog: a(f's_lshl_b32 s45, {sXW}, 7'); a(f'buffer_load_dword v238, v228, {WS}, s45 offen offset:{C_PROG} sc1'); a(f'buffer_load_dword v239, v228, {WS}, s42 offen sc1')
        a('s_waitcnt vmcnt(0)')
        a('s_mov_b32 s44, 1')
        for n, (so, base, tgt) in enumerate(deps):
            a(f'v_readfirstlane_b32 s45, v{234+n}'); a(f's_cmp_ge_u32 s45, {tgt}'); a('s_cselect_b32 s44, s44, 0')
        if prog:
            a('v_readfirstlane_b32 s45, v238'); a('v_readfirstlane_b32 s47, v239')
            a('s_cmp_ge_u32 s47, 16'); a('s_cselect_b32 s45, 64, s45')
            a(f's_cmp_ge_u32 s45, {prog}'); a('s_cselect_b32 s44, s44, 0')
        a('s_cmp_eq_u32 s44, 1'); a(f's_cbranch_scc1 {d}')
        a(f's_sleep {slp}')
        a(f's_add_u32 {sSpin}, {sSpin}, 1'); a(f's_cmp_lt_u32 {sSpin}, {SPIN_MAX}'); a(f's_cbranch_scc1 {l}')
        a.label(d)
        a('s_barrier')
        if stamp: wstamp(1)
    for k, l in ((K_AQ, 'L_aqkv'), (K_AK, 'L_aqkv'), (K_AV, 'L_aqkv'), (K_BQKV, 'L_bqkv'), (K_SK, 'L_small'), (K_SV, 'L_small')):
        a(f's_cmp_eq_u32 {sKind}, {k}'); a(f's_cbranch_scc1 {l}')
    a(f's_mov_b32 {sRet}, 0')
    a.label('L_epi')
    a(f's_mov_b32 {DF["s0"]}, 0x40000000'); a(f's_mov_b32 {DF["s1"]}, 0x40000000'); a(f's_mov_b32 {pSig}, 0')
    a(f's_cmp_eq_u32 {sRet}, 1'); a('s_cselect_b64 vcc, -1, 0')
    a(f's_cmp_eq_u32 {pE}, 0'); a('s_cbranch_scc1 L_epid')
    ekw = dict(sOo=pOo, sSeg=pSeg)
    for n_, (G, kind, so, fl) in enumerate(((G1, 'qk', WS, 'sc1'), (G1, 'v', WS, 'sc1'), (G2, 'qk', WS, 'sc1'), (G2, 'v', WS, 'sc1'), (G3, 'out', SO, ofl), (G4, 'out', SO, ofl))):
        a(f's_cmp_lg_u32 {pE}, {n_+1}'); a(f's_cbranch_scc1 L_e{n_}')
        if G is G1 and defer:
            G.epilogue(a, kind, G1.FX[0], fl, SO=so, defer=DF, inter=G1.gdma(a, 1) if chain and e1 else (), ipos=ipos, **ekw)
            a('s_branch L_edef')
        else:
            G.epilogue(a, kind, EPI, fl, SO=so, **ekw)
            a('s_branch L_epid' if kind == 'out' else 's_branch L_esig')
        a.label(f'L_e{n_}')
    a.label('L_edef')
    a(f's_mov_b32 {pSig}, 1')
    a(f's_cmp_eq_u32 {sRet}, 1'); a('s_cbranch_scc1 L_epid')
    a(f's_mov_b32 {pSig}, 0')
    for x in dstores: a(x)
    a(f's_mov_b32 {DF["s0"]}, 0x40000000'); a(f's_mov_b32 {DF["s1"]}, 0x40000000')
    a.label('L_esig')
    a('s_waitcnt vmcnt(0)')
    a('s_cmp_lg_u32 s39, 0'); a('s_cbranch_scc1 L_vok')
    verify(a)
    a('s_mov_b32 s39, 1')
    a.label('L_vok')
    a('s_barrier')
    signal(a, 0, soff=pDone, srd_=WS, inc=pInc, two=True)
    a.label('L_epid')
    if wst:
        l = a.newlabel('L_ws'); a(f's_cmp_eq_u32 {pE}, 0'); a(f's_cbranch_scc1 {l}')
        a(f's_mov_b32 s57, {sT}'); a(f's_mov_b32 {sT}, s56'); wstamp(2); a(f's_mov_b32 {sT}, s57'); a.label(l)
    a(f's_mov_b32 {pE}, 0')
    for r_, l in ((1, 'L_r1'), (2, 'L_r2'), (3, 'L_next')):
        a(f's_cmp_eq_u32 {sRet}, {r_}'); a(f's_cbranch_scc1 {l}')
    for k, l in ((K_ATB, 'L_atb'), (K_BO, 'L_bo'), (K_ATA, 'L_ata'), (K_ATA4, 'L_ata4'), (K_AO, 'L_ao'), (K_AOS, 'L_aos'), (K_SWP, 'L_swp'), (K_AO4, 'L_ao4'), (K_AO2, 'L_ao'), (K_BO2, 'L_bo')) + (((K_AOF, 'L_aof'),) if USE_AOF else ()):
        a(f's_cmp_eq_u32 {sKind}, {k}'); a(f's_cbranch_scc1 {l}')
    a('s_branch L_exit')
    def early(a_):
        a_(f's_cmp_eq_u32 {sKind}, {K_AO2}'); a_(f's_cselect_b32 s90, 999, {sT}'); a_(f's_cmp_lt_u32 s90, {len(tl) - nlate if nlate else 1000}')
    def reqe(a_):
        l = a_.newlabel('L_re'); early(a_); a_(f's_cbranch_scc0 {l}'); request(a_); a_.label(l)
    def tile_end(e):
        wstamp(4)
        a(f's_mov_b32 {pE}, {e}'); a(f's_mov_b32 {pOo}, {sOo}'); a(f's_mov_b32 {pSeg}, {sSeg}')
        a(f's_add_u32 {pDone}, {sDone}, {CNT:#x}'); a(f's_mov_b32 {pInc}, s98')
        if wst: a(f's_mov_b32 s56, {sT}'); a('s_waitcnt vmcnt(0)')
        if e >= 5: early(a)
        else: a('s_cmp_lg_u32 s39, 0')
        a('s_cbranch_scc1 L_got')
        a(f's_mov_b32 {sRet}, 3'); a('s_branch L_epi')
    def hk1(a_):
        if wst: wstamp(3, a_)
        l = a_.newlabel('L_hs'); a_(f's_cmp_eq_u32 {pSig}, 0'); a_(f's_cbranch_scc1 {l}')
        signal(a_, 0, soff=pDone, srd_=WS, inc=pInc, two=True)
        a_.label(l)
    def dec_a(a):
        srd(a, 8, 64, 4 * MB)
        a(f's_cmp_eq_u32 {sKind}, 0'); a('s_cselect_b64 s[88:89], s[68:69], s[70:71]')
        a(f's_cmp_eq_u32 {sKind}, 2'); a('s_cselect_b64 s[88:89], s[72:73], s[88:89]')
        srd(a, 12, 88, 8 * MB)
        a(f's_lshl_b32 s91, {sXW}, 2'); a(f's_add_u32 s91, s91, {sQ_}')
        a(f's_mov_b32 {sLdw}, 8192'); a(f's_mov_b32 {sSeg}, {256*KB}')
        a(f's_lshl_b32 {sXo}, {sP}, 19'); a(f's_lshl_b32 {sWo}, s91, 9')
        a(f's_lshl_b32 {sOo}, {sKind}, 24'); a(f's_lshl_b32 s90, {sP}, 21'); a(f's_add_u32 {sOo}, {sOo}, s90')
        a('s_lshl_b32 s90, s91, 14'); a(f's_add_u32 {sOo}, {sOo}, s90')
        a(f's_lshl_b32 {sDone}, {sP}, 9'); a(f's_add_u32 {sDone}, {sDone}, {C_KV}'); a(f's_cmp_eq_u32 {sKind}, 0'); a(f's_cselect_b32 {sDone}, {C_Q}, {sDone}'); a('s_cselect_b32 s98, 1, 2')
        a(f's_mov_b32 s48, {sKind}')
    def dec_b(a):
        srd(a, 8, 78, 4 * MB); srd(a, 12, 80, 6 * MB)
        a(f's_lshl_b32 s91, {sQ_}, 2'); a(f's_add_u32 s91, s91, {sXW}')
        a(f's_mov_b32 {sLdw}, 6144'); a(f's_mov_b32 {sSeg}, {64*KB}')
        a(f's_lshl_b32 {sXo}, {sP}, 19'); a(f's_lshl_b32 {sWo}, s91, 9')
        a(f's_lshl_b32 {sOo}, {sQ_}, 22'); a(f's_lshl_b32 s90, {sP}, 19'); a(f's_add_u32 {sOo}, {sOo}, s90')
        a(f's_lshl_b32 s90, {sXW}, 14'); a(f's_add_u32 {sOo}, {sOo}, s90'); a(f's_add_u32 {sOo}, {sOo}, {BQKV:#x}')
        a(f's_mov_b32 {sDone}, {C_BQ}'); a(f's_mov_b32 s48, {sQ_}'); a('s_mov_b32 s98, 1')
    def dec_g(a):
        a(f's_lshl_b32 s90, {sP}, 9'); a(f's_add_u32 {sDone}, {sDone}, s90'); a(f's_lshl_b32 s90, {sXW}, 7'); a(f's_add_u32 {sDone}, {sDone}, s90')
        a(f's_mov_b32 {sLdx}, 2048'); a(f's_mov_b32 {sNk}, 8')
    a.label('L_aqkv')
    dec_a(a)
    a('s_branch L_g1')
    a.label('L_bqkv')
    dec_b(a)
    a.label('L_g1')
    dec_g(a)
    G1.setup(a, rowreg='v174')
    if chain: a(f'v_mov_b32 v241, {LDS_X}'); a('v_lshrrev_b32 v175, 4, v0'); a('v_add_u32 v175, v175, v241')
    a(f's_mov_b32 {sRet}, 1'); a('s_branch L_epi')
    a.label('L_r1')
    if chain: a(f's_cmp_eq_u32 {pSig}, 1'); a('s_cbranch_scc1 L_r1c'); a(f's_waitcnt vmcnt({G1.ND})'); a.label('L_r1c'); assert defer
    a('s_cmp_eq_u32 s48, 2'); a('s_cbranch_scc1 L_g2')
    assert all((e & 255) in (K_SK, K_SV) for e in tl[:32])
    def c_ld(e):
        def f(a):
            a(f's_mov_b32 {pE}, {e}'); a(f's_mov_b32 {pOo}, {sOo}'); a(f's_mov_b32 {pSeg}, {sSeg}')
            a(f's_add_u32 {pDone}, {sDone}, {CNT:#x}'); a(f's_mov_b32 {pInc}, s98')
            if wst: a(f's_mov_b32 s56, {sT}'); wstamp(5)
        return f
    c_ld2 = tld
    def c_dec(a):
        lb, lg, ls, ld = [a.newlabel('L_cd') for _ in range(4)]
        def ost(k):
            if wst: a(f's_mov_b32 s57, {sT}'); a(f's_mov_b32 {sT}, s56'); wstamp(k); a(f's_mov_b32 {sT}, s57')
        ost(7)
        a('v_readfirstlane_b32 s91, v245')
        a(f's_and_b32 {sKind}, s91, 255'); a(f's_lshr_b32 {sP}, s91, 8'); a(f's_and_b32 {sP}, {sP}, 255'); a(f's_lshr_b32 {sQ_}, s91, 16')
        a(f's_mov_b32 s92, {sLdw}')
        a(f's_cmp_gt_u32 {sKind}, {K_BQKV}'); a(f's_cbranch_scc1 {ls}')
        a(f's_cmp_eq_u32 {sKind}, {K_BQKV}'); a(f's_cbranch_scc1 {lb}')
        dec_a(a); a(f's_branch {lg}')
        a.label(ls)
        a('s_mov_b64 vcc, 0'); a(f's_mov_b32 {sRet}, 0'); a(f's_branch {ld}')
        a.label(lb)
        dec_b(a)
        a.label(lg)
        dec_g(a)
        a('s_mov_b64 vcc, -1')
        a(f's_sub_i32 s92, {sLdw}, s92'); a(f's_lshl_b32 {sWstep}, {sLdw}, 6')
        a(f'v_mul_i32_i24 v{G1.TMP}, s92, v174'); a(f's_mul_i32 s92, s92, {G1.RPI}'); a('s_mov_b32 s93, 0')
        for j in range(G1.NW):
            a(f'v_add3_u32 v{G1.WA+j}, v{G1.WA+j}, v{G1.TMP}, s93'); a('s_add_u32 s93, s93, s92')
        a.label(ld)
        ost(6)
    for tag, ori, e in (('g1', 'T', 1), ('g2', 'N', 2)):
        if e == 2: a.label('L_g2')
        if not chain:
            G1.loop(a, tag, ori, exp='front', hook=hk1, fin_hook=lambda a_: (wstamp(5), request(a_)), extra=dstores); tile_end(e); continue
        G1.loop(a, tag, ori, exp='front', hook=hk1, fin_hook=c_ld(e), extra=dstores,
                chain=dict(req=lambda a_: None, wr=[f's_cmp_eq_u32 {sNk}, 1', f's_cbranch_scc1 L_{tag}_cw', f'L_{tag}_cwb:'],
                           rd=lambda a_: a_(f's_cmp_le_u32 {sNk}, 2\ns_cbranch_scc1 L_{tag}_cr\nL_{tag}_crb:'), dec=c_dec, ld=c_ld2, w0=16 if e1 else 0, e1=e1))
        if wst:
            a(f's_mov_b32 s57, {sT}'); a(f's_mov_b32 {sT}, s56'); wstamp(4); a(f's_mov_b32 {sT}, s57'); wstamp(0)
        a(f's_cmp_eq_u32 {sRet}, 1'); a('s_cbranch_scc1 L_epi')
        a('s_branch L_have1')
        a.label(f'L_{tag}_cw')
        a('s_mov_b64 exec, 1'); a('ds_write_b32 v175, v244'); a('s_mov_b64 exec, -1'); a(f's_branch L_{tag}_cwb')
        a.label(f'L_{tag}_cr')
        a('ds_read_b32 v246, v241')
        a(f's_cmp_eq_u32 {sNk}, 1'); a(f's_cbranch_scc1 L_{tag}_crb')
        request(a); a(f's_branch L_{tag}_crb')
    a.label('L_small')
    srd(a, 8, 64, 4 * MB)
    a(f's_cmp_eq_u32 {sKind}, {K_SK}'); a('s_cselect_b64 s[88:89], s[70:71], s[72:73]')
    srd(a, 12, 88, 8 * MB)
    a(f's_lshl_b32 s91, {sXW}, 3'); a(f's_add_u32 s91, s91, {sQ_}')
    a(f's_mov_b32 {sLdw}, 8192'); a(f's_mov_b32 {sSeg}, {256*KB}'); a(f's_mov_b32 {sLdx}, 2048'); a(f's_mov_b32 {sNk}, {16 // G2.NS}')
    a(f's_lshl_b32 {sXo}, {sP}, {18 + S256}'); a(f's_lshl_b32 {sWo}, s91, 8')
    a(f's_sub_u32 {sOo}, {sKind}, 8'); a(f's_lshl_b32 {sOo}, {sOo}, 24'); a(f's_lshl_b32 s90, {sP}, {20 + S256}'); a(f's_add_u32 {sOo}, {sOo}, s90')
    a('s_lshl_b32 s90, s91, 13'); a(f's_add_u32 {sOo}, {sOo}, s90')
    a(f's_lshl_b32 {sDone}, {sP}, {9 + S256}'); a(f's_add_u32 {sDone}, {sDone}, {C_KV}'); a(f's_lshl_b32 s90, {sXW}, 7'); a(f's_add_u32 {sDone}, {sDone}, s90')
    if S256: a('s_mov_b32 s98, 5')
    G2.setup(a)
    a(f's_mov_b32 {sRet}, 2'); a('s_branch L_epi')
    a.label('L_r2')
    NT = 2 if sweep else 0
    if sweep: do_sweep(a, 16 if S256 else 32, ((64, 4, 's40'), (64, 4, 's41')))
    a(f's_cmp_eq_u32 {sKind}, {K_SV}'); a('s_cbranch_scc1 L_g5')
    G2.loop(a, 'g4', 'T', younger=NT, hook=hk, fin_hook=request, exp='front' if S256 else ''); tile_end(3)
    a.label('L_g5')
    G2.loop(a, 'g5', 'N', younger=NT, hook=hk, fin_hook=request, exp='front' if S256 else ''); tile_end(4)
    a.label('L_swp')
    a('s_barrier')
    a('v_and_b32 v1, 63, v0'); a('v_lshlrev_b32 v2, 7, v1')
    a(f's_lshl_b32 s40, {sP}, 2'); a(f's_add_u32 s40, s40, {sXW}'); a('s_lshl_b32 s40, s40, 2'); a(f's_add_u32 s40, s40, {sW_}'); a('s_lshl_b32 s40, s40, 13')
    for base, size in ((78, 4), (80, 6), (82, 2)):
        srd(a, 44, base, size * MB)
        a('s_mov_b32 s41, s40')
        for q in range(size * 8 // NSWP):
            a(f'buffer_load_dword v{4+q}, v2, s[44:47], s41 offen'); a(f's_add_u32 s41, s41, {128*KB*NSWP}')
    if ppoll:
        assert NSWP == 4 and SPLIT0 == 15 and not USE_AOF
        a('v_lshlrev_b32 v2, 4, v1')
        for r in range(4): a(f'v_mov_b32 v{32+r}, -1')
        a('s_lshl_b32 s41, s40, 3'); a(f's_add_u32 s41, s41, {PARTK + 12*MB:#x}'); a('s_mov_b32 s42, 16')
        a.label('L_swf')
        for q in range(4): a(f'buffer_store_dwordx4 v[32:35], v2, {WS}, s41 offen offset:{1024*q} sc1')
        a('s_add_u32 s41, s41, 4096'); a('s_sub_u32 s42, s42, 1'); a('s_cmp_lg_u32 s42, 0'); a('s_cbranch_scc1 L_swf')
        a('s_waitcnt vmcnt(0)')
        request(a)
        a(f's_mov_b32 {sDone}, {C_FIN + 1024}'); a('s_branch L_done')
    wstamp(2)
    a('s_branch L_next')
    a.label('L_atb')
    a(f's_lshl_b32 s90, {sXW}, 7'); a(f's_lshl_b32 s40, {sP}, 9'); a('s_add_u32 s40, s40, s90'); a(f's_max_u32 s41, {sP}, 1'); a('s_sub_u32 s41, s41, 1'); a('s_lshl_b32 s41, s41, 9'); a('s_add_u32 s41, s41, s90')
    wait([('s40', C_BQ, 3), ('s41', C_BQ, 3)])
    a(f's_lshl_b32 {sDone}, {sP}, 7'); a(f's_add_u32 {sDone}, {sDone}, {C_AB}')
    a(f's_lshl_b32 s46, {sP}, 3'); a(f's_lshl_b32 s90, {sQ_}, 1'); a('s_add_u32 s99, s46, s90'); a(f's_lshr_b32 s90, {sW_}, 1'); a('s_add_u32 s99, s99, s90')
    a('s_lshl_b32 s99, s99, 3'); a(f's_lshl_b32 s90, {sXW}, 1'); a('s_add_u32 s99, s99, s90'); a(f's_and_b32 s90, {sW_}, 1'); a('s_add_u32 s20, s99, s90')
    a('v_and_b32 v1, 63, v0')
    attn.gen_attnB(a, 's20', ld_flags='sc1', st_flags='sc1', after_loads=request)
    a('s_branch L_done')
    def reqf(a_):
        l = a_.newlabel('L_rf'); a_(f's_cmp_lt_u32 {sP}, {FEND - FOLLOW}'); a_(f's_cbranch_scc1 {l}'); request(a_); a_.label(l)
    for lab, n_ in (('L_ata', 1), ('L_ata4', 4)):
        a.label(lab)
        if n_ == 1: a('s_mov_b32 s50, 0'); a.label('L_ata_c'); assert FINE0 >= 4
        a(f's_lshr_b32 s40, {sP}, 3'); a('s_lshl_b32 s40, s40, 9'); a(f's_lshl_b32 s90, {sXW}, 7'); a('s_add_u32 s40, s40, s90'); a(f's_add_u32 s41, {sP}, {n_}')
        if n_ == 1 and dpoll: a('s_min_u32 s41, s41, 62')
        a(f's_lshr_b32 s43, {sP}, 2'); a('s_lshl_b32 s43, s43, 9'); a('s_add_u32 s43, s43, s90'); a(f's_add_u32 s43, s43, {C_KV}')
        a(f's_lshl_b32 s42, {sXW}, 1'); a(f's_add_u32 s42, s42, {sQ_}'); a('s_lshl_b32 s42, s42, 7'); a(f's_add_u32 s42, s42, {C_FIN}')
        if n_ == 1:
            a(f's_cmp_ge_u32 s50, {max(FOLLOW, 1)}'); a('s_cbranch_scc1 L_ata_s')
            wait([('s40', C_Q, 4), ('s43', 0, 16)], stamp=False)
            a.label('L_ata_s')
        else: wait([('s40', C_Q, 4), ('s43', 0, 16)], prog='s41')
        a(f's_mov_b32 s98, {n_}')
        a(f's_lshr_b32 {sDone}, {sP}, 2'); a(f's_lshl_b32 {sDone}, {sDone}, 7'); a(f's_add_u32 {sDone}, {sDone}, {C_AA}')
        if n_ == 1:
            assert FINE0 <= SPLIT0 and SPLIT0 >= 13
            a(f's_lshr_b32 s90, {sP}, 1'); a('s_sub_u32 s90, s90, 24'); a('s_lshl_b32 s90, s90, 2'); a(f's_add_u32 s90, s90, {sXW}'); a('s_lshl_b32 s90, s90, 1'); a(f's_add_u32 s90, s90, {sQ_}')
            a('s_lshl_b32 s90, s90, 7'); a(f's_add_u32 s90, s90, {C_AF}')
            a(f's_cmp_ge_u32 {sP}, {4*SPLIT0}'); a(f's_cselect_b32 {sDone}, s90, {sDone}')
        a(f's_lshl_b32 s20, {sP}, 5'); a(f's_lshl_b32 s90, {sXW}, 3'); a('s_add_u32 s20, s20, s90'); a(f's_lshl_b32 s90, {sQ_}, 2'); a('s_add_u32 s20, s20, s90'); a(f's_add_u32 s20, s20, {sW_}')
        a('v_and_b32 v1, 63, v0')
        pl = f'buffer_load_dword v238, v228, {WS}, s45 offen offset:{C_PROG} sc1'
        def mid1():
            a('s_waitcnt vmcnt(24)')
            a.label('L_m1')
            a('v_readfirstlane_b32 s44, v238'); a('s_cmp_ge_u32 s44, s41'); a('s_cbranch_scc1 L_m1d')
            a(f's_add_u32 {sSpin}, {sSpin}, 1'); a(f's_cmp_ge_u32 {sSpin}, {SPIN_MAX}'); a('s_cbranch_scc1 L_m1d')
            a('s_sleep 3'); a(pl); a('s_waitcnt vmcnt(0)'); a('s_branch L_m1')
            a.label('L_m1d')
            wstamp(1)
        if n_ == 1 and dpoll == 1: a(f'v_mov_b32 v228, {CNT:#x}'); a(f's_lshl_b32 s45, {sXW}, 7'); a(pl)
        attn.gen_attnA(a, 's20', ld_flags='sc1', st_flags='sc1', mid=(mid1 if dpoll == 1 else lambda: wait([], prog='s41', slp=3)) if n_ == 1 else None, n=n_, after_loads=reqf if n_ == 1 and FOLLOW else request, valid=sSpin if n_ == 1 and dpoll else None)
        a('s_branch L_done')
    a.label('L_bo')
    a(f's_lshr_b32 s40, {sP}, 1'); a('s_lshl_b32 s40, s40, 7'); a(f's_add_u32 s40, s40, {C_AB}'); a('s_mov_b32 s41, 16')
    srd(a, 12, 82, 2 * MB)
    a(f's_mov_b32 {sLdx}, {64*KB}'); a(f's_mov_b32 {sNk}, 4')
    a(f's_lshl_b32 {sXo}, {sP}, 18'); a(f's_add_u32 {sXo}, {sXo}, {OB:#x}'); a(f's_mov_b32 {sOo}, 2048')
    a('s_branch L_g3')
    a.label('L_aos')
    srd(a, 12, 74, 8 * MB)
    a(f's_and_b32 s48, {sQ_}, 7'); a(f's_lshr_b32 {sQ_}, {sQ_}, 3')
    a(f's_sub_u32 s40, {sP}, 12'); a('s_lshl_b32 s40, s40, 4'); a('s_add_u32 s40, s40, s48'); a('s_lshl_b32 s40, s40, 7'); a(f's_add_u32 s40, s40, {C_AF}'); a('s_mov_b32 s41, 2'); a('s_add_u32 s42, s40, 1024')
    a(f's_mov_b32 {sLdx}, {256*KB}'); a(f's_mov_b32 {sNk}, 2')
    a(f's_lshl_b32 {sXo}, {sP}, 20'); a(f's_add_u32 {sXo}, {sXo}, {OA:#x}'); a('s_lshl_b32 s90, s48, 15'); a(f's_add_u32 {sXo}, {sXo}, s90')
    a(f's_mov_b32 {sOo}, 0'); a('s_lshl_b32 s49, s48, 20')
    a('s_branch L_g3b')
    a.label('L_ao4')
    a(f's_lshl_b32 s40, {sP}, 7'); a(f's_add_u32 s40, s40, {C_AA}'); a('s_mov_b32 s41, 32'); a('s_mov_b32 s42, s40')
    srd(a, 12, 74, 8 * MB)
    a(f's_and_b32 s48, {sQ_}, 3'); a(f's_lshr_b32 {sQ_}, {sQ_}, 2')
    a(f's_mov_b32 {sLdx}, {256*KB}'); a(f's_mov_b32 {sNk}, 4')
    a(f's_lshl_b32 {sXo}, {sP}, 20'); a(f's_add_u32 {sXo}, {sXo}, {OA:#x}'); a('s_lshl_b32 s90, s48, 16'); a(f's_add_u32 {sXo}, {sXo}, s90')
    a(f's_mov_b32 {sOo}, 0'); a('s_lshl_b32 s49, s48, 21')
    a('s_branch L_g3b')
    a.label('L_ao')
    a(f's_lshl_b32 s40, {sP}, 7'); a(f's_add_u32 s40, s40, {C_AA}'); a('s_mov_b32 s41, 32')
    srd(a, 12, 74, 8 * MB)
    a(f's_mov_b32 {sLdx}, {256*KB}'); a(f's_mov_b32 {sNk}, 16')
    a(f's_lshl_b32 {sXo}, {sP}, 20'); a(f's_add_u32 {sXo}, {sXo}, {OA:#x}'); a(f's_mov_b32 {sOo}, 0')
    a.label('L_g3')
    a('s_mov_b32 s49, 0'); a(f's_cmp_eq_u32 {sKind}, {K_AO2}'); a('s_cselect_b32 s42, 128, 0'); a('s_add_u32 s42, s42, s40')
    a.label('L_g3b')
    srd(a, 8, 4, WS_BYTES)
    a(f's_lshl_b32 s91, {sXW}, 1'); a(f's_add_u32 s91, s91, {sQ_}')
    a(f's_mov_b32 {sLdw}, 2048'); a(f's_mov_b32 {sSeg}, 4096')
    a(f's_lshl_b32 {sWo}, s91, 8'); a(f's_add_u32 {sOo}, {sOo}, {sWo}'); a(f's_lshl_b32 s90, {sP}, 19'); a(f's_add_u32 {sOo}, {sOo}, s90')
    a(f's_add_u32 {sWo}, {sWo}, s49'); a('s_mov_b32 s50, s91')
    a(f's_cmp_lt_u32 {sKind}, {K_AO2}'); a('s_cbranch_scc1 L_g3c')
    a(f's_cmp_eq_u32 {sKind}, {K_AO2}'); a(f's_cselect_b32 {sNk}, 21, 5'); a('s_mov_b32 s48, 2048')
    G4.setup(a, mid=lambda: wait([('s40', 0, 's41'), ('s42', 0, 's41')], slp=3)); G4.loop(a, 'g6', 'T', hook=hk, fin_hook=reqe, xlast=True, ext=1, exp=g4exp)
    tile_end(6)
    a.label('L_g3c')
    def req3(a_):
        l = a_.newlabel('L_r3'); a_(f's_cmp_ge_u32 {sKind}, {K_AOS}'); a_(f's_cbranch_scc1 {l}'); reqe(a_); a_.label(l)
    G3.setup(a, mid=lambda: wait([('s40', 0, 's41'), ('s42', 0, 's41')] + ([('0', C_FIN + 1024, 16)] if ppoll else []), slp=3)); G3.loop(a, 'g3', 'T', hook=hk, fin_hook=req3, xlast=True)
    a(f's_cmp_ge_u32 {sKind}, {K_AOS}'); a('s_cbranch_scc1 L_part')
    tile_end(5)
    a.label('L_part')
    wstamp(4)
    assert MS == 16
    a(f's_sub_u32 s40, {sP}, {13 if USE_AOF else 12}'); a('s_lshl_b32 s40, s40, 3'); a('s_add_u32 s40, s40, s50')
    assert min(SPLIT0, SPLIT4) >= (13 if USE_AOF else 12)
    a('s_lshl_b32 s41, s40, 19'); a(f's_add_u32 s41, s41, {PARTK:#x}'); a(f's_lshl_b32 s90, {sW_}, 14'); a('s_add_u32 s41, s41, s90')
    a('s_lshl_b32 s90, s48, 16'); a('s_add_u32 s42, s41, s90')
    a('v_lshlrev_b32 v2, 4, v1')
    for q in range(16):
        if q and q % 4 == 0: a('s_add_u32 s42, s42, 4096')
        a(f'buffer_store_dwordx4 {ar(4*q, 4)}, v2, {WS}, s42 offen offset:{(q&3)*1024} sc1')
    a('s_lshl_b32 s40, s40, 7')
    a(f's_add_u32 s43, s40, {CNT + C_SP:#x}')
    if ppoll: a(f's_waitcnt vmcnt({pw})'); a(f's_cmp_eq_u32 {sKind}, {K_AOS}'); a('s_cbranch_scc1 L_part8')
    a('s_waitcnt vmcnt(0)'); a('s_barrier')
    signal(a, 0, soff='s43', srd_=WS)
    a(f's_cmp_eq_u32 {sKind}, {K_AOS}'); a('s_cselect_b32 s43, 8, 4')
    wait([('s40', C_SP, 's43')], slp=1, stamp=False)
    request(a)
    def oaddr():
        lane_expr(a, 'v3', [(0, 4, 4096), (4, 2, 16)], lane='v1', tmp='v4')
        a(f's_lshr_b32 s90, {sW_}, 1'); a('s_lshl_b32 s90, s90, 18'); a(f's_add_u32 {sOo}, {sOo}, s90')
        a(f's_and_b32 s90, {sW_}, 1'); a('s_lshl_b32 s90, s90, 7'); a(f's_add_u32 {sOo}, {sOo}, s90')
    a(f's_cmp_eq_u32 {sKind}, {K_AO4}'); a('s_cbranch_scc1 L_part4')
    a.label('L_part8')
    a('s_lshl_b32 s90, s48, 11'); a('s_add_u32 s42, s41, s90')
    oaddr()
    a('s_lshr_b32 s90, s48, 1'); a('s_lshl_b32 s90, s90, 16'); a(f's_add_u32 {sOo}, {sOo}, s90')
    a('s_and_b32 s90, s48, 1'); a('s_lshl_b32 s90, s90, 6'); a(f's_add_u32 {sOo}, {sOo}, s90')
    a.label('L_part8r')
    a('s_mov_b32 s41, s42')
    for p in range(8):
        for h in range(2): a(f'buffer_load_dwordx4 {vr(16 + 8*p + 4*h, 4)}, v2, {WS}, s41 offen offset:{1024*h} sc1')
        a('s_add_u32 s41, s41, 0x10000')
    if ppoll:
        a('v_mov_b32 v5, 0')
        for p in range(8):
            a(f's_waitcnt vmcnt({14 - 2*p})')
            for q in range(0, 8, 2): a(f'v_max3_u32 v5, v5, v{16+8*p+q}, v{17+8*p+q}')
        a('v_cmp_eq_u32 vcc, -1, v5')
        a(f's_add_u32 {sSpin}, {sSpin}, 1'); a(f's_cmp_ge_u32 {sSpin}, {SPIN_MAX}'); a('s_cbranch_scc1 L_part8k')
        a('s_cbranch_vccnz L_part8r')
        a.label('L_part8k')
    for p in range(1, 8):
        a(f's_waitcnt vmcnt({14 - 2*p})')
        for q in range(0, 8, 2): a(f'v_pk_add_f32 {vr(16+q,2)}, {vr(16+q,2)}, {vr(16+8*p+q,2)}')
    for q in range(4): a(f'v_cvt_pk_bf16_f32 v{8+q}, v{16+2*q}, v{17+2*q}')
    a(f'buffer_store_dwordx4 v[8:11], v3, {SO}, {sOo} offen {ofl}')
    wstamp(2)
    assert all((e & 255) == K_AOS for e in tl[-16:])
    a('s_branch L_exit' if ppoll else 's_branch L_got')
    a.label('L_part4')
    a('s_lshl_b32 s90, s48, 12'); a('s_add_u32 s41, s41, s90')
    for p in range(4):
        for h in range(4): a(f'buffer_load_dwordx4 {vr(16 + 16*p + 4*h, 4)}, v2, {WS}, s41 offen offset:{1024*h} sc1')
        a('s_add_u32 s41, s41, 0x10000')
    oaddr()
    a('s_lshl_b32 s90, s48, 16'); a(f's_add_u32 {sOo}, {sOo}, s90')
    for p in range(1, 4):
        a(f's_waitcnt vmcnt({12 - 4*p})')
        for q in range(0, 16, 2): a(f'v_pk_add_f32 {vr(16+q,2)}, {vr(16+q,2)}, {vr(16+16*p+q,2)}')
    for q in range(8): a(f'v_cvt_pk_bf16_f32 v{8+q}, v{16+2*q}, v{17+2*q}')
    for h in range(2): a(f'buffer_store_dwordx4 {vr(8+4*h, 4)}, v3, {SO}, {sOo} offen offset:{64*h} {ofl}')
    wstamp(2)
    a('s_branch L_got')
    if USE_AOF:
        a.label('L_aof')
        G5 = Gemm(64, 128, 64, 4, 'packed', perm_out=True, ld_flags='sc1', MS=16)
        srd(a, 12, 74, 8 * MB); srd(a, 8, 4, WS_BYTES)
        a(f's_and_b32 s48, {sQ_}, 15'); a(f's_lshr_b32 {sQ_}, {sQ_}, 4')
        a(f's_lshl_b32 s50, {sXW}, 1'); a(f's_add_u32 s50, s50, {sQ_}')
        a(f's_sub_u32 s40, {sP}, 24'); a('s_lshl_b32 s40, s40, 3'); a('s_lshr_b32 s90, s48, 1'); a('s_add_u32 s40, s40, s90'); a('s_lshl_b32 s40, s40, 7'); a(f's_add_u32 s40, s40, {C_AF}')
        a(f's_mov_b32 {sLdx}, {256*KB}'); a(f's_mov_b32 {sLdw}, 2048')
        a(f's_lshl_b32 {sXo}, {sP}, 19'); a(f's_add_u32 {sXo}, {sXo}, {OA:#x}'); a('s_lshl_b32 s90, s48, 14'); a(f's_add_u32 {sXo}, {sXo}, s90')
        a(f's_lshl_b32 {sWo}, s50, 8'); a(f's_lshl_b32 {sOo}, {sP}, 18'); a(f's_add_u32 {sOo}, {sOo}, {sWo}'); a('s_lshl_b32 s90, s48, 19'); a(f's_add_u32 {sWo}, {sWo}, s90')
        G5.setup(a, mid=lambda: wait([('s40', 0, 2)], slp=1)); G5.once(a, 'T')
        wstamp(4)
        a(f's_sub_u32 s40, {sP}, 28'); a('s_lshl_b32 s40, s40, 3'); a('s_add_u32 s40, s40, s50')
        a('s_lshl_b32 s41, s40, 19'); a(f's_add_u32 s41, s41, {PARTK:#x}')
        a('s_lshl_b32 s90, s48, 15'); a('s_add_u32 s42, s41, s90'); a(f's_lshl_b32 s90, {sW_}, 13'); a('s_add_u32 s42, s42, s90')
        a('v_lshlrev_b32 v2, 4, v1')
        for q in range(8):
            if q == 4: a('s_add_u32 s42, s42, 4096')
            a(f'buffer_store_dwordx4 {ar(4*q, 4)}, v2, {WS}, s42 offen offset:{(q&3)*1024} sc1')
        a('s_lshl_b32 s40, s40, 7')
        a(f's_add_u32 s43, s40, {CNT + C_SP:#x}')
        a('s_waitcnt vmcnt(0)'); a('s_barrier')
        signal(a, 0, soff='s43', srd_=WS)
        wait([('s40', C_SP, 16)], slp=1, stamp=False)
        request(a)
        a('s_lshl_b32 s90, s48, 11'); a('s_add_u32 s41, s41, s90'); a(f's_lshl_b32 s90, {sW_}, 17'); a('s_add_u32 s41, s41, s90')
        for p in range(4):
            for h in range(2): a(f'buffer_load_dwordx4 {vr(16 + 8*p + 4*h, 4)}, v2, {WS}, s41 offen offset:{1024*h} sc1')
            a('s_add_u32 s41, s41, 0x8000')
        lane_expr(a, 'v3', [(0, 4, 4096), (4, 2, 16)], lane='v1', tmp='v4')
        for sh_, mul in ((3, 17), (2, 7), (1, 16), (0, 6)):
            a(f's_lshr_b32 s90, s48, {sh_}'); a('s_and_b32 s90, s90, 1'); a(f's_lshl_b32 s90, s90, {mul}'); a(f's_add_u32 {sOo}, {sOo}, s90')
        a(f's_lshl_b32 s90, {sW_}, 11'); a('v_add_u32 v5, s90, v2')
        for p in range(1, 4):
            a(f's_waitcnt vmcnt({6 - 2*p})')
            for q in range(0, 8, 2): a(f'v_pk_add_f32 {vr(16+q,2)}, {vr(16+q,2)}, {vr(16+8*p+q,2)}')
        a('ds_write_b128 v5, v[16:19]'); a('ds_write_b128 v5, v[20:23] offset:1024')
        a('s_waitcnt lgkmcnt(0)'); a('s_barrier')
        a(f's_cmp_lg_u32 {sW_}, 0'); a('s_cbranch_scc1 L_aofd')
        for p in range(1, 4):
            for h in range(2): a(f'ds_read_b128 {vr(16 + 8*p + 4*h, 4)}, v2 offset:{2048*p + 1024*h}')
        a('s_waitcnt lgkmcnt(0)')
        for p in range(1, 4):
            for q in range(0, 8, 2): a(f'v_pk_add_f32 {vr(16+q,2)}, {vr(16+q,2)}, {vr(16+8*p+q,2)}')
        for q in range(4): a(f'v_cvt_pk_bf16_f32 v{8+q}, v{16+2*q}, v{17+2*q}')
        a(f'buffer_store_dwordx4 v[8:11], v3, {SO}, {sOo} offen {ofl}')
        a.label('L_aofd')
        wstamp(2)
        a('s_branch L_got')
    a.label('L_done')
    a('s_waitcnt vmcnt(0)')
    a('s_barrier')
    a(f's_add_u32 {sDone}, {sDone}, {CNT:#x}')
    signal(a, 0, soff=sDone, srd_=WS, inc='s98')
    wstamp(2)
    a(f's_mov_b32 {pE}, 0')
    if FOLLOW:
        a(f's_cmp_lg_u32 {sKind}, {K_ATA}'); a('s_cbranch_scc1 L_got')
        a(f's_add_u32 {sP}, {sP}, {FOLLOW}'); a(f's_and_b32 s50, {sP}, 7'); a(f's_cmp_lt_u32 {sP}, {FEND}'); a('s_cbranch_scc1 L_ata_c')
    a('s_branch L_got')
    a.label('L_exit')
    a('s_endpgm')
    a.fix_hazards()
    assert len(tl) < 508 and codepf
    t = a.text() + '.p2align 3\nL_table:\n' + ''.join(f'.long {x:#x}\n' for x in tl + [15, 0, 0, 0]) + f'.fill {508 - len(tl)}, 4, 0\n'
    return t, names

def build(**kw):
    body, names = gen(**kw)
    ref = open(os.path.join(os.path.dirname(os.path.abspath(__file__)), '..', NAME + '.s.ref')).read().split('\n')
    head = [l for l in ref if l.startswith(';') and '@launch' not in l and 'Override' not in l and 'grid=ceil' not in l][:14]
    n = NAME + '_kernel'
    t = '\n'.join(head) + '\n'
    t += f'; @launch grid=(256,1,1) block=(256,1,1) lds={LDS_T + 2048}\n'
    t += '.amdgcn_target "amdgcn-amd-amdhsa--gfx950"\n.text\n'
    t += f'.globl {n}\n.p2align 8\n.type {n},@function\n{n}:\n' + body
    t += '.section .rodata,"a"\n.p2align 6\n' + kd(n, 512, 256)
    return t

if __name__ == '__main__':
    out = sys.argv[1] if len(sys.argv) > 1 else os.path.join(os.path.dirname(os.path.abspath(__file__)), '..', NAME + '.s')
    open(out, 'w').write(build(**eval('dict(%s)' % (sys.argv[2] if len(sys.argv) > 2 else ''))))
    print('written', out, os.path.getsize(out))
```

```python
import sys, os
sys.path.insert(0, os.path.dirname(os.path.abspath(__file__)))
from asmgen import *
from layout import *
import rec, gemm, attn
from rec import srd, lane_expr, signal, verify, sX, sI, SPIN_MAX, sMode4, sBit, vClaim, LDS_X, LDS_T
sSpin = 's3'
from gemm import *
from build import kd, NAME
WS = 's[4:7]'
DBG = 's[28:31]'
K_AQ, K_AK, K_AV, K_BQKV, K_ATB, K_BO, K_ATA, K_AO, K_AOS, K_SK, K_SV, K_ATA4, K_SWP, K_AOF, K_AO4 = range(15)
K_AO2, K_BO2 = 16, 17
NAO2 = 8
NBO2 = 12
NSMALL = 2
NSWP = 4
USE_AOF = 0
FOLLOW = 2
FEND = 62
S256 = 0
FINE0 = 10
SPLIT0 = 15
SPLIT4 = 13
def ent(kind, p, q=0): return kind | (p << 8) | (q << 16)

SIM = dict(go=21.0, step=2.17, skv1=18.0, skv2=10.0, big=23.5, atb=4.5, bo=8.5, ata=3.5, ao=25.0, aos=9.5, margin=0.0, kvlead=8.0, bstart=50.0, ata4=11.0, swp=18.0, gap=0.2, lat=3.0, early=4.0, plan='S48 K16 S16 W4 Q12 K16 Q4 B12 Q16 T8 B8 K16 T8 B4 T4 O8 U8 T4 U12 P4 U4 P4 O6 P2 O2 P2 O2 U8 P8 O8 T4 O8 O16', aof=5.0, aob=(7,), look=3.0, earlyA=1.0, uord=(4, 3, 0, 1, 2, 5, 6, 7), ao4=11.5, ao2=43.0, bo2=14.0, lastA=8.0)
def task_list(verbose=False, **over):
    import heapq
    P = dict(SIM); P.update(over)
    kv = lambda rb: [ent(k, rb, c) for c in range(4) for k in (K_AK, K_AV)]
    sm = lambda hb: [ent(k, hb, c) for c in range(8) for k in (K_SK, K_SV)]
    first = sm(0) + sm(1) + sm(2) + kv(2) + sm(3)
    KVq = [e for rb in range(3, 8) for e in kv(rb)]
    Qq = [ent(K_AQ, rb, c) for rb in range(8) for c in range(4)]
    Bq = [ent(K_BQKV, rb, c) for rb in range(8) for c in range(3)]
    TBq = [ent(K_ATB, rb, c) for rb in P['uord'] for c in range(4)]
    BOq = [ent(K_BO2, hb, c) for hb in range(0, NBO2, 2) for c in range(2)] + [ent(K_BO, hb, c) for hb in range(NBO2, 16) for c in range(2)]
    TAq = [ent(K_ATA4, 4 * hb, c) for hb in range(FINE0) for c in range(2)] + [ent(K_ATA, s_, c) for s_ in (list(range(4 * FINE0, 4 * FINE0 + FOLLOW)) + list(range(FEND, 64)) if FOLLOW else range(4 * FINE0, 64)) for c in range(2)]
    first += [ent(K_SWP, c) for c in range(NSWP)]
    AOq = [ent(K_AO2, hb, c) for hb in range(0, NAO2, 2) for c in range(2)] + [e for hb in range(NAO2, 16) for e in ([ent(K_AO, hb, c) for c in range(2)] if hb < min(SPLIT0, SPLIT4) else [ent(K_AO4, hb, c) for c in range(8)] if hb < SPLIT0 else [ent(K_AOS, hb, c) for c in range(16)] if (hb < 15 or not USE_AOF) else [ent(K_AOF, hh, c) for hh in (30, 31) for c in range(32)])]
    if P['plan']:
        first = []
        KVq = [e for rb in range(2, 8) for e in kv(rb)]
        SWq = [ent(K_SWP, c) for c in range(NSWP)]
        Sq = sm(0) + sm(1) + ([] if S256 else sm(2) + sm(3))
        qs = dict(S=Sq, K=KVq, Q=Qq, B=Bq, W=SWq, T=TAq, O=AOq, U=TBq, P=BOq)
        for tok in P['plan'].split():
            q = qs[tok[0]]; n = int(tok[1:])
            assert len(q) >= n, tok
            first += q[:n]; del q[:n]
        assert not Sq and not SWq
    done = {}
    def fin(key, n):
        c, t = done.get(key, (0, 0.0)); return t if c >= n else 1e9
    def seg_time(s_): return P['go'] + P['step'] * (s_ + 1.9 if s_ < 62 else 63.9)
    def ready(e):
        k, p = e & 255, (e >> 8) & 255
        if k == K_ATB: return max(fin(('B', p), 3), fin(('B', max(p - 1, 0)), 3))
        if k in (K_BO, K_BO2): return fin(('TB', p >> 1), 4)
        if k == K_AO2: return fin(('TA', p + 1), 8 if p + 1 >= FINE0 else 2)
        if k == K_ATA: return max(fin(('Q', p >> 3), 4), seg_time(p))
        if k == K_ATA4: return max(fin(('Q', p >> 3), 4), seg_time(p + 3))
        if k == K_AO:
            p = max(p, min([b for b in P['aob'] if b >= p] + [p]) if any(b >= p for b in P['aob']) else p)
            p = min([b for b in P['aob'] if b >= p], default=p)
        if k in (K_AO, K_AOS, K_AO4): return fin(('TA', p), 8 if p >= FINE0 else 2)
        if k == K_AOF: return fin(('TH', p), 4)
        return 0.0
    def dur(e, n):
        k = e & 255
        return {K_SK: P['skv1'] if n < 32 else P['skv2'], K_SV: P['skv1'] if n < 32 else P['skv2'], K_ATB: P['atb'], K_BO: P['bo'], K_ATA: P['ata'], K_ATA4: P['ata4'], K_SWP: P['swp'], K_AO: P['ao'], K_AOS: P['aos'], K_AOF: P['aof'], K_AO4: P['ao4'], K_AO2: P['ao2'], K_BO2: P['bo2']}.get(k, P['big'])
    def group(e):
        k, p = e & 255, (e >> 8) & 255
        return {K_AQ: ('Q', p), K_BQKV: ('B', p), K_ATB: ('TB', p), K_ATA: ('TA', p >> 2), K_ATA4: ('TA', p >> 2)}.get(k, ('x', 0))
    free = [(0.0, w) for w in range(32)] + [(P['go'] + P['step'] * 63.6, 32 + w) for w in range(32)]
    heapq.heapify(free)
    out = []; end = 0
    while first or KVq or Qq or Bq or TBq or BOq or TAq or AOq:
        t, w = heapq.heappop(free)
        ok = lambda q: q and ready(q[0]) + (P['margin'] if (q[0] & 255) not in (K_ATA, K_AOS, K_AOF, K_AO4) else -(P['early'] if (q[0] & 255) != K_ATA else (P['earlyA'] if ((q[0] >> 8) & 255) < 60 else P['lastA']))) <= t
        q = None
        if first: q = first
        elif KVq and t + 2 * P['big'] + P['kvlead'] > P['go'] + P['step'] * (8 * ((KVq[0] >> 8) & 255) - 3): q = KVq
        elif ok(TAq): q = TAq
        elif ok(AOq): q = AOq
        elif Qq and t + P['big'] + 10 > seg_time(8 * ((Qq[0] >> 8) & 255)): q = Qq
        elif Bq and t > P['bstart']: q = Bq
        elif KVq: q = KVq
        elif Qq: q = Qq
        elif TAq and (TAq[0] & 255) == K_ATA4 and ready(TAq[0]) <= t + P['look']: q = TAq
        elif AOq and (AOq[0] & 255) == K_AO and ready(AOq[0]) <= t + P['look']: q = AOq
        elif ok(TBq): q = TBq
        elif ok(BOq): q = BOq
        else:
            cand = [x for x in (AOq, TAq, BOq, TBq) if x and ready(x[0]) < 1e8]
            q = min(cand, key=lambda x: ready(x[0]))
        e = q.pop(0)
        st_ = max(t, ready(e)); en = st_ + dur(e, len(out))
        c, tt = done.get(group(e), (0, 0.0)); done[group(e)] = (c + 1, max(tt, en + (P['lat'] if (e & 255) in (K_AQ, K_BQKV) else 0.5)))
        if (e & 255) == K_ATA:
            g2 = ('TH', ((e >> 8) & 255) >> 1); c, tt = done.get(g2, (0, 0.0)); done[g2] = (c + 1, max(tt, en + 0.5))
        e2 = e
        while FOLLOW and (e & 255) == K_ATA and ((e2 >> 8) & 255) + FOLLOW < FEND:
            e2 += FOLLOW << 8; en = max(en, ready(e2)) + dur(e2, 0)
            c, tt = done.get(group(e2), (0, 0.0)); done[group(e2)] = (c + 1, max(tt, en + 0.5))
        out.append(e); end = max(end, en)
        if verbose: print(f'{t:6.1f} {st_:6.1f} {en:6.1f} kind {e & 255} p {(e >> 8) & 255} q {e >> 16}')
        heapq.heappush(free, (en + P['gap'], w))
    if verbose: print('sim end', end)
    return out

def setp(**k):
    globals().update(k)

def gen(force_slow=False, force_fb=False, sweep=True, wst=False, empty=False, codepf=True, MS=16, rot=0, gfl='', sim={}, glob={}, defer=True, chain=True, ipos=4, e1=0, ofl='sc1', g4exp='', dpoll=1, nlate=60, ppoll=1, pw=0, jpf=1, **kw):
    setp(**glob)
    a = Asm()
    sW_ = 's32'; sXW, sT, sKind, sP, sQ_, sDone = 's33', 's34', 's35', 's36', 's37', 's38'
    a('s_cmp_ge_u32 s2, 256'); a('s_cbranch_scc1 L_exit')
    if empty: a('s_endpgm')
    if wst: a('s_memrealtime s[56:57]'); kw['rt'] = wst
    a('s_load_dwordx4 s[92:95], s[0:1], 88')
    a('s_load_dwordx16 s[64:79], s[0:1], 0')
    a('s_getreg_b32 s39, hwreg(HW_REG_XCC_ID, 0, 3)')
    a('v_lshrrev_b32 v2, 6, v0'); a('s_nop 0'); a(f'v_readfirstlane_b32 {sW_}, v2')
    a(f's_mov_b32 {sSpin}, 0')
    if codepf:
        a('s_getpc_b64 s[86:87]')
        a.label('L_pc0')
        a('s_lshr_b32 s90, s2, 3'); a('s_lshl_b32 s90, s90, 2'); a(f's_add_u32 s90, s90, {sW_}'); a('s_and_b32 s90, s90, 31'); a('s_lshl_b32 s90, s90, 12')
        a('v_and_b32 v1, 63, v0'); a('v_lshlrev_b32 v1, 6, v1'); a('v_add_u32 v1, s90, v1')
        a('v_min_u32 v1, L_table-L_pc0, v1')
        a('global_load_dword v199, v1, s[86:87]')
        a('v_lshlrev_b32 v1, 3, v0'); a('v_add_u32 v1, L_table-L_pc0, v1')
        a('global_load_dwordx2 v[248:249], v1, s[86:87]')
    a('s_waitcnt lgkmcnt(0)')
    srd(a, 4, 94, WS_BYTES); srd(a, 28, 92, 256)
    a(f's_mov_b32 {sMode4}, 0')
    a('s_lshr_b32 s41, s2, 3')
    if force_fb: a('s_and_b32 s41, s41, 30')
    if rot: a(f's_add_u32 s41, s41, {rot}'); a('s_and_b32 s41, s41, 31')
    a(f's_lshl_b32 {sBit}, 1, s41')
    a(f's_cmp_lg_u32 {sW_}, 0'); a('s_cbranch_scc1 L_sweep')
    a('s_lshl_b32 s90, s39, 2')
    a(f'v_mov_b32 {vClaim}, {sBit}'); a('v_mov_b32 v2, 0')
    a('s_mov_b64 exec, 1')
    a(f'buffer_atomic_or {vClaim}, v2, {DBG}, s90 offen offset:{D_OR} sc0 sc1')
    a('s_mov_b64 exec, -1')
    a.label('L_sweep')
    a('s_lshl_b32 s40, s39, 5'); a('s_add_u32 s40, s40, s41'); a('s_mov_b32 s43, 1')
    a('s_branch L_role')
    a.label('L_fallback')
    a('s_load_dwordx4 s[92:95], s[0:1], 88')
    a('s_load_dwordx16 s[64:79], s[0:1], 0')
    a('s_getreg_b32 s39, hwreg(HW_REG_XCC_ID, 0, 3)')
    a(f's_mov_b32 {sMode4}, 4')
    a('v_mbcnt_lo_u32_b32 v0, -1, 0'); a('v_mbcnt_hi_u32_b32 v0, -1, v0'); a(f's_lshl_b32 s90, {sW_}, 6'); a('v_add_u32 v0, s90, v0')
    a('s_waitcnt vmcnt(0) lgkmcnt(0)')
    a('s_barrier')
    a(f's_cmp_lg_u32 {sW_}, 0'); a('s_cbranch_scc1 L_tkd')
    a('s_lshl_b32 s90, s39, 2')
    a('v_mov_b32 v1, 1'); a('v_mov_b32 v2, 0'); a('v_lshlrev_b32 v3, 2, v0')
    a('s_mov_b64 exec, 1')
    a(f'buffer_atomic_add v1, v2, {DBG}, s90 offen offset:{D_TICK} sc0 sc1')
    a('s_mov_b64 exec, 0xff')
    a.label('L_tkw')
    a(f'buffer_load_dword v4, v3, {DBG}, 0 offen offset:{D_TICK} sc1')
    a('s_waitcnt vmcnt(0)')
    a('v_readfirstlane_b32 s40, v1')
    a('s_mov_b32 s41, 0'); a('s_mov_b32 s42, 0'); a('s_mov_b32 s43, 1')
    for x in range(8):
        a(f'v_readlane_b32 s44, v4, {x}')
        a('s_add_u32 s41, s41, s44')
        a(f's_cmp_gt_u32 s39, {x}'); a('s_cselect_b32 s45, s44, 0'); a('s_add_u32 s42, s42, s45')
        if x < 4: a('s_cmp_eq_u32 s44, 32'); a('s_cselect_b32 s43, s43, 0')
    a(f's_add_u32 {sSpin}, {sSpin}, 1'); a(f's_cmp_ge_u32 {sSpin}, {SPIN_MAX}'); a('s_cbranch_scc1 L_tkbad')
    a('s_sleep 4')
    a('s_cmp_lt_u32 s41, 256'); a('s_cbranch_scc1 L_tkw')
    a('s_add_u32 s40, s40, s42'); a('s_lshl_b32 s43, s43, 16'); a('s_or_b32 s40, s40, s43')
    a('s_branch L_tkok')
    a.label('L_tkbad')
    a('s_mov_b32 s40, 0xffff')
    a.label('L_tkok')
    a('s_mov_b64 exec, -1')
    a('v_mov_b32 v1, s40'); a(f'v_mov_b32 v2, {LDS_X}')
    a('ds_write_b32 v2, v1'); a('s_waitcnt lgkmcnt(0)')
    a.label('L_tkd')
    a('s_barrier')
    a(f'v_mov_b32 v2, {LDS_X}'); a('ds_read_b32 v1, v2'); a('s_waitcnt lgkmcnt(0)')
    a('v_readfirstlane_b32 s40, v1')
    a('s_barrier')
    a('s_lshr_b32 s43, s40, 16'); a('s_and_b32 s40, s40, 0xffff')
    a('s_cmp_ge_u32 s40, 256'); a('s_cbranch_scc1 L_exit')
    if force_slow: a('s_mov_b32 s43, 0')
    a.label('L_role')
    if wst:
        a('s_memrealtime s[58:59]'); a('s_waitcnt lgkmcnt(0)')
        a(f's_lshl_b32 s62, s2, 5'); a(f's_add_u32 s62, s62, {STAMP + 131072:#x}')
        a('v_mov_b32 v251, 0'); a('v_mov_b32 v252, s56'); a('v_mov_b32 v253, s58'); a('s_mov_b64 exec, 1')
        a(f'buffer_store_dwordx2 v[252:253], v251, s[4:7], s62 offen'); a('s_mov_b64 exec, -1')
    a('s_cmp_ge_u32 s40, 128'); a('s_cbranch_scc1 L_worker')
    a(f's_lshr_b32 {sX}, s40, 5'); a(f's_and_b32 {sI}, s40, 31')
    a('s_cmp_eq_u32 s43, 0'); a('s_cbranch_scc1 L_recslow')
    r1 = Asm(); names = rec.gen_rec(r1, fused=True, exit_label='L_join', nofin=dpoll, **kw); a.absorb(r1, 'F')
    a.label('L_recslow')
    r2 = Asm(); rec.gen_rec(r2, fused=True, exit_label='L_join', local_st='sc1', pol=0, nofin=dpoll); a.absorb(r2, 'S')
    def request(a):
        l = a.newlabel('L_rq')
        a(f's_cmp_lg_u32 {sW_}, 0'); a(f's_cbranch_scc1 {l}')
        a('s_cmp_eq_u32 s39, 0'); a(f's_cbranch_scc1 {l}')
        a(f's_lshl_b32 s99, {sXW}, 7'); a(f's_add_u32 s99, s99, {CNT + C_QUEUE:#x}')
        a('v_mov_b32 v244, 1'); a('v_mov_b32 v245, 0')
        a('s_mov_b64 exec, 1')
        a(f'buffer_atomic_add v244, v245, {WS}, s99 offen sc0 sc1')
        a('s_mov_b64 exec, -1')
        a.label(l)
    a.label('L_join')
    a('s_load_dwordx16 s[64:79], s[0:1], 0')
    a('s_mov_b32 s39, 1'); assert sXW == sX
    request(a)
    if jpf:
        a('s_getpc_b64 s[86:87]')
        a.label('L_pc1')
        a(f's_lshl_b32 s90, {sI}, 2'); a(f's_add_u32 s90, s90, {sW_}'); a('s_and_b32 s90, s90, 31'); a('s_lshl_b32 s90, s90, 12')
        a('v_mbcnt_lo_u32_b32 v1, -1, 0'); a('v_mbcnt_hi_u32_b32 v1, -1, v1'); a('v_lshlrev_b32 v1, 6, v1'); a('v_add_u32 v1, s90, v1')
        a('v_min_u32 v1, L_table-L_pc1, v1')
        a('global_load_dword v199, v1, s[86:87]')
    a('v_mbcnt_lo_u32_b32 v0, -1, 0'); a('v_mbcnt_hi_u32_b32 v0, -1, v0'); a(f's_lshl_b32 s90, {sW_}, 6'); a('v_add_u32 v0, s90, v0')
    a(f's_lshl_b32 s40, {sX}, 5'); a('s_add_u32 s40, s40, 128'); a('s_mov_b32 s39, 1')
    a('s_barrier')
    a('s_branch L_worker1')
    a.label('L_worker')
    a('s_mov_b32 s39, 0')
    a.label('L_worker1')
    a('s_load_dwordx4 s[80:83], s[0:1], 64')
    a('s_load_dwordx2 s[84:85], s[0:1], 80')
    a(f's_sub_u32 {sXW}, s40, 128'); a(f's_lshr_b32 {sXW}, {sXW}, 5')
    a(f's_and_b32 {sT}, s40, 31')
    a('s_getpc_b64 s[86:87]')
    a.label('L_pc')
    a('s_add_u32 s86, s86, L_table-L_pc'); a('s_addc_u32 s87, s87, 0')
    a('s_waitcnt lgkmcnt(0)')
    tl = task_list(**sim)
    G1 = Gemm(256, 256, 64, 2, 'row', MS=MS, ld_flags=gfl, w_flags=gfl); G3 = Gemm(128, 128, 64, 4, 'packed', perm_out=True, ld_flags='sc1', MS=MS, w_flags=gfl)
    G4 = Gemm(256, 128, 64, 3, 'packed', perm_out=True, ld_flags='sc1', MS=MS, w_flags=gfl)
    G2 = Gemm(128, 128, 64, 4, 'row', MS=MS, ld_flags=gfl, w_flags=gfl) if not S256 else Gemm(256, 128, 64, 2, 'row', MS=MS, ld_flags=gfl, w_flags=gfl)
    pE, pOo, pSeg, pDone, pInc, sRet = 's59', 's60', 's61', 's62', 's63', 's58'
    EPI = 176
    DF = dict(ad='v172', ad2='v173', base=176, s0='s46', s1='s47')
    dstores = [f'buffer_store_dwordx4 {vr(176 + 4*n, 4)}, {DF["ad2"] if (n & 7) >= 4 else DF["ad"]}, {WS}, {DF["s1"] if n >= 8 else DF["s0"]} offen offset:{(n&3)*1024} sc1' for n in range(16)] if defer else []
    pSig = 's49'
    srd(a, 16, 84, 8 * MB); srd(a, 8, 64, 4 * MB); srd(a, 12, 70, 8 * MB)
    for r in list(range(1, 18)) + [172, 173]: a(f'v_mov_b32 v{r}, 0')
    a(f's_mov_b32 {pE}, 0')
    a('s_cmp_eq_u32 s39, 0'); a('s_cbranch_scc1 L_have')
    a('s_branch L_next1')
    a.label('L_next')
    request(a)
    a.label('L_next1')
    a('s_waitcnt vmcnt(0)')
    a.label('L_got')
    a(f's_cmp_lg_u32 {sW_}, 0'); a('s_cbranch_scc1 L_nx1')
    a(f'v_mov_b32 v245, {LDS_X}'); a('s_mov_b64 exec, 1'); a('ds_write_b32 v245, v244'); a('s_mov_b64 exec, -1'); a('s_waitcnt lgkmcnt(0)')
    a.label('L_nx1')
    a('s_barrier')
    a(f'v_mov_b32 v245, {LDS_X}'); a('ds_read_b32 v246, v245'); a('s_waitcnt lgkmcnt(0)')
    tld = [f'v_min_u32 v245, {len(tl) - 32}, v246', 'v_lshlrev_b32 v245, 2, v245', f'v_add_u32 v245, {LDS_T + 128}, v245', 'ds_read_b32 v245, v245',
           f'v_readfirstlane_b32 {sT}, v246', f's_add_u32 {sT}, {sT}, 32']
    for x in tld: a(x)
    a('s_waitcnt lgkmcnt(0)'); a('v_readfirstlane_b32 s91, v245')
    a('s_branch L_have1')
    a.label('L_have')
    a(f's_lshl_b32 s90, {sT}, 2'); a('s_load_dword s91, s[86:87], s90'); a('s_waitcnt lgkmcnt(0)')
    a.label('L_have1')
    a('s_mov_b32 s98, 1')
    a(f's_and_b32 {sKind}, s91, 255'); a(f's_lshr_b32 {sP}, s91, 8'); a(f's_and_b32 {sP}, {sP}, 255'); a(f's_lshr_b32 {sQ_}, s91, 16')
    def wstamp(k, a=a):
        if not wst: return
        a('s_memrealtime s[96:97]'); a('s_memtime s[54:55]'); a('s_waitcnt lgkmcnt(0)')
        a(f's_lshl_b32 s55, {sXW}, 9'); a(f's_add_u32 s55, s55, {sT}'); a('s_lshl_b32 s55, s55, 6'); a(f's_add_u32 s55, s55, {STAMP + 262144 + 8*k:#x}')
        a('v_mov_b32 v240, 0'); a('v_mov_b32 v242, s96'); a('v_mov_b32 v243, s54'); a('s_mov_b64 exec, 1')
        a(f'buffer_store_dwordx2 v[242:243], v240, s[4:7], s55 offen'); a('s_mov_b64 exec, -1')
    hk = (lambda a_: wstamp(3, a_)) if wst else None
    def do_sweep(a, t0, lst):
        a('v_lshlrev_b32 v174, 7, v1')
        a(f's_sub_u32 s42, {sT}, {t0}'); a('s_lshl_b32 s40, s42, 2'); a(f's_add_u32 s40, s40, {sXW}'); a('s_lshl_b32 s40, s40, 2'); a(f's_add_u32 s40, s40, {sW_}')
        a('s_lshl_b32 s40, s40, 13')
        a(f's_cmp_ge_u32 s42, 16'); a('s_cselect_b32 s40, 0x40000000, s40')
        a(f's_add_u32 s41, s40, {2*MB}')
        for n, (base, size, so) in enumerate(lst):
            srd(a, 44, base, size * MB)
            a(f'buffer_load_dword v{175}, v174, s[44:47], {so} offen')
    wstamp(0)
    def wait(deps, prog=None, slp=6, stamp=True):
        l, d = a.newlabel('L_dw'), a.newlabel('L_dd')
        a(f's_cmp_lg_u32 {sW_}, 0'); a(f's_cbranch_scc1 {d}')
        [a(f'v_mov_b32 v{228+q}, {CNT + 4096*q:#x}') for q in sorted({0} | {b >> 12 for _, b, _ in deps})]
        a.label(l)
        for n, (so, base, tgt) in enumerate(deps): a(f'buffer_load_dword v{234+n}, v{228 + (base >> 12)}, {WS}, {so} offen offset:{base & 4095} sc1')
        if prog: a(f's_lshl_b32 s45, {sXW}, 7'); a(f'buffer_load_dword v238, v228, {WS}, s45 offen offset:{C_PROG} sc1'); a(f'buffer_load_dword v239, v228, {WS}, s42 offen sc1')
        a('s_waitcnt vmcnt(0)')
        a('s_mov_b32 s44, 1')
        for n, (so, base, tgt) in enumerate(deps):
            a(f'v_readfirstlane_b32 s45, v{234+n}'); a(f's_cmp_ge_u32 s45, {tgt}'); a('s_cselect_b32 s44, s44, 0')
        if prog:
            a('v_readfirstlane_b32 s45, v238'); a('v_readfirstlane_b32 s47, v239')
            a('s_cmp_ge_u32 s47, 16'); a('s_cselect_b32 s45, 64, s45')
            a(f's_cmp_ge_u32 s45, {prog}'); a('s_cselect_b32 s44, s44, 0')
        a('s_cmp_eq_u32 s44, 1'); a(f's_cbranch_scc1 {d}')
        a(f's_sleep {slp}')
        a(f's_add_u32 {sSpin}, {sSpin}, 1'); a(f's_cmp_lt_u32 {sSpin}, {SPIN_MAX}'); a(f's_cbranch_scc1 {l}')
        a.label(d)
        a('s_barrier')
        if stamp: wstamp(1)
    for k, l in ((K_AQ, 'L_aqkv'), (K_AK, 'L_aqkv'), (K_AV, 'L_aqkv'), (K_BQKV, 'L_bqkv'), (K_SK, 'L_small'), (K_SV, 'L_small')):
        a(f's_cmp_eq_u32 {sKind}, {k}'); a(f's_cbranch_scc1 {l}')
    a(f's_mov_b32 {sRet}, 0')
    a.label('L_epi')
    a(f's_mov_b32 {DF["s0"]}, 0x40000000'); a(f's_mov_b32 {DF["s1"]}, 0x40000000'); a(f's_mov_b32 {pSig}, 0')
    a(f's_cmp_eq_u32 {sRet}, 1'); a('s_cselect_b64 vcc, -1, 0')
    a(f's_cmp_eq_u32 {pE}, 0'); a('s_cbranch_scc1 L_epid')
    ekw = dict(sOo=pOo, sSeg=pSeg)
    for n_, (G, kind, so, fl) in enumerate(((G1, 'qk', WS, 'sc1'), (G1, 'v', WS, 'sc1'), (G2, 'qk', WS, 'sc1'), (G2, 'v', WS, 'sc1'), (G3, 'out', SO, ofl), (G4, 'out', SO, ofl))):
        a(f's_cmp_lg_u32 {pE}, {n_+1}'); a(f's_cbranch_scc1 L_e{n_}')
        if G is G1 and defer:
            G.epilogue(a, kind, G1.FX[0], fl, SO=so, defer=DF, inter=G1.gdma(a, 1) if chain and e1 else (), ipos=ipos, **ekw)
            a('s_branch L_edef')
        else:
            G.epilogue(a, kind, EPI, fl, SO=so, **ekw)
            a('s_branch L_epid' if kind == 'out' else 's_branch L_esig')
        a.label(f'L_e{n_}')
    a.label('L_edef')
    a(f's_mov_b32 {pSig}, 1')
    a(f's_cmp_eq_u32 {sRet}, 1'); a('s_cbranch_scc1 L_epid')
    a(f's_mov_b32 {pSig}, 0')
    for x in dstores: a(x)
    a(f's_mov_b32 {DF["s0"]}, 0x40000000'); a(f's_mov_b32 {DF["s1"]}, 0x40000000')
    a.label('L_esig')
    a('s_waitcnt vmcnt(0)')
    a('s_cmp_lg_u32 s39, 0'); a('s_cbranch_scc1 L_vok')
    verify(a)
    a('s_mov_b32 s39, 1')
    a.label('L_vok')
    a('s_barrier')
    signal(a, 0, soff=pDone, srd_=WS, inc=pInc, two=True)
    a.label('L_epid')
    if wst:
        l = a.newlabel('L_ws'); a(f's_cmp_eq_u32 {pE}, 0'); a(f's_cbranch_scc1 {l}')
        a(f's_mov_b32 s57, {sT}'); a(f's_mov_b32 {sT}, s56'); wstamp(2); a(f's_mov_b32 {sT}, s57'); a.label(l)
    a(f's_mov_b32 {pE}, 0')
    for r_, l in ((1, 'L_r1'), (2, 'L_r2'), (3, 'L_next')):
        a(f's_cmp_eq_u32 {sRet}, {r_}'); a(f's_cbranch_scc1 {l}')
    for k, l in ((K_ATB, 'L_atb'), (K_BO, 'L_bo'), (K_ATA, 'L_ata'), (K_ATA4, 'L_ata4'), (K_AO, 'L_ao'), (K_AOS, 'L_aos'), (K_SWP, 'L_swp'), (K_AO4, 'L_ao4'), (K_AO2, 'L_ao'), (K_BO2, 'L_bo')) + (((K_AOF, 'L_aof'),) if USE_AOF else ()):
        a(f's_cmp_eq_u32 {sKind}, {k}'); a(f's_cbranch_scc1 {l}')
    a('s_branch L_exit')
    def early(a_):
        a_(f's_cmp_eq_u32 {sKind}, {K_AO2}'); a_(f's_cselect_b32 s90, 999, {sT}'); a_(f's_cmp_lt_u32 s90, {len(tl) - nlate if nlate else 1000}')
    def reqe(a_):
        l = a_.newlabel('L_re'); early(a_); a_(f's_cbranch_scc0 {l}'); request(a_); a_.label(l)
    def tile_end(e):
        wstamp(4)
        a(f's_mov_b32 {pE}, {e}'); a(f's_mov_b32 {pOo}, {sOo}'); a(f's_mov_b32 {pSeg}, {sSeg}')
        a(f's_add_u32 {pDone}, {sDone}, {CNT:#x}'); a(f's_mov_b32 {pInc}, s98')
        if wst: a(f's_mov_b32 s56, {sT}'); a('s_waitcnt vmcnt(0)')
        if e >= 5: early(a)
        else: a('s_cmp_lg_u32 s39, 0')
        a('s_cbranch_scc1 L_got')
        a(f's_mov_b32 {sRet}, 3'); a('s_branch L_epi')
    def hk1(a_):
        if wst: wstamp(3, a_)
        l = a_.newlabel('L_hs'); a_(f's_cmp_eq_u32 {pSig}, 0'); a_(f's_cbranch_scc1 {l}')
        signal(a_, 0, soff=pDone, srd_=WS, inc=pInc, two=True)
        a_.label(l)
    def dec_a(a):
        srd(a, 8, 64, 4 * MB)
        a(f's_cmp_eq_u32 {sKind}, 0'); a('s_cselect_b64 s[88:89], s[68:69], s[70:71]')
        a(f's_cmp_eq_u32 {sKind}, 2'); a('s_cselect_b64 s[88:89], s[72:73], s[88:89]')
        srd(a, 12, 88, 8 * MB)
        a(f's_lshl_b32 s91, {sXW}, 2'); a(f's_add_u32 s91, s91, {sQ_}')
        a(f's_mov_b32 {sLdw}, 8192'); a(f's_mov_b32 {sSeg}, {256*KB}')
        a(f's_lshl_b32 {sXo}, {sP}, 19'); a(f's_lshl_b32 {sWo}, s91, 9')
        a(f's_lshl_b32 {sOo}, {sKind}, 24'); a(f's_lshl_b32 s90, {sP}, 21'); a(f's_add_u32 {sOo}, {sOo}, s90')
        a('s_lshl_b32 s90, s91, 14'); a(f's_add_u32 {sOo}, {sOo}, s90')
        a(f's_lshl_b32 {sDone}, {sP}, 9'); a(f's_add_u32 {sDone}, {sDone}, {C_KV}'); a(f's_cmp_eq_u32 {sKind}, 0'); a(f's_cselect_b32 {sDone}, {C_Q}, {sDone}'); a('s_cselect_b32 s98, 1, 2')
        a(f's_mov_b32 s48, {sKind}')
    def dec_b(a):
        srd(a, 8, 78, 4 * MB); srd(a, 12, 80, 6 * MB)
        a(f's_lshl_b32 s91, {sQ_}, 2'); a(f's_add_u32 s91, s91, {sXW}')
        a(f's_mov_b32 {sLdw}, 6144'); a(f's_mov_b32 {sSeg}, {64*KB}')
        a(f's_lshl_b32 {sXo}, {sP}, 19'); a(f's_lshl_b32 {sWo}, s91, 9')
        a(f's_lshl_b32 {sOo}, {sQ_}, 22'); a(f's_lshl_b32 s90, {sP}, 19'); a(f's_add_u32 {sOo}, {sOo}, s90')
        a(f's_lshl_b32 s90, {sXW}, 14'); a(f's_add_u32 {sOo}, {sOo}, s90'); a(f's_add_u32 {sOo}, {sOo}, {BQKV:#x}')
        a(f's_mov_b32 {sDone}, {C_BQ}'); a(f's_mov_b32 s48, {sQ_}'); a('s_mov_b32 s98, 1')
    def dec_g(a):
        a(f's_lshl_b32 s90, {sP}, 9'); a(f's_add_u32 {sDone}, {sDone}, s90'); a(f's_lshl_b32 s90, {sXW}, 7'); a(f's_add_u32 {sDone}, {sDone}, s90')
        a(f's_mov_b32 {sLdx}, 2048'); a(f's_mov_b32 {sNk}, 8')
    a.label('L_aqkv')
    dec_a(a)
    a('s_branch L_g1')
    a.label('L_bqkv')
    dec_b(a)
    a.label('L_g1')
    dec_g(a)
    G1.setup(a, rowreg='v174')
    if chain: a(f'v_mov_b32 v241, {LDS_X}'); a('v_lshrrev_b32 v175, 4, v0'); a('v_add_u32 v175, v175, v241')
    a(f's_mov_b32 {sRet}, 1'); a('s_branch L_epi')
    a.label('L_r1')
    if chain: a(f's_cmp_eq_u32 {pSig}, 1'); a('s_cbranch_scc1 L_r1c'); a(f's_waitcnt vmcnt({G1.ND})'); a.label('L_r1c'); assert defer
    a('s_cmp_eq_u32 s48, 2'); a('s_cbranch_scc1 L_g2')
    assert all((e & 255) in (K_SK, K_SV) for e in tl[:32])
    def c_ld(e):
        def f(a):
            a(f's_mov_b32 {pE}, {e}'); a(f's_mov_b32 {pOo}, {sOo}'); a(f's_mov_b32 {pSeg}, {sSeg}')
            a(f's_add_u32 {pDone}, {sDone}, {CNT:#x}'); a(f's_mov_b32 {pInc}, s98')
            if wst: a(f's_mov_b32 s56, {sT}'); wstamp(5)
        return f
    c_ld2 = tld
    def c_dec(a):
        lb, lg, ls, ld = [a.newlabel('L_cd') for _ in range(4)]
        def ost(k):
            if wst: a(f's_mov_b32 s57, {sT}'); a(f's_mov_b32 {sT}, s56'); wstamp(k); a(f's_mov_b32 {sT}, s57')
        ost(7)
        a('v_readfirstlane_b32 s91, v245')
        a(f's_and_b32 {sKind}, s91, 255'); a(f's_lshr_b32 {sP}, s91, 8'); a(f's_and_b32 {sP}, {sP}, 255'); a(f's_lshr_b32 {sQ_}, s91, 16')
        a(f's_mov_b32 s92, {sLdw}')
        a(f's_cmp_gt_u32 {sKind}, {K_BQKV}'); a(f's_cbranch_scc1 {ls}')
        a(f's_cmp_eq_u32 {sKind}, {K_BQKV}'); a(f's_cbranch_scc1 {lb}')
        dec_a(a); a(f's_branch {lg}')
        a.label(ls)
        a('s_mov_b64 vcc, 0'); a(f's_mov_b32 {sRet}, 0'); a(f's_branch {ld}')
        a.label(lb)
        dec_b(a)
        a.label(lg)
        dec_g(a)
        a('s_mov_b64 vcc, -1')
        a(f's_sub_i32 s92, {sLdw}, s92'); a(f's_lshl_b32 {sWstep}, {sLdw}, 6')
        a(f'v_mul_i32_i24 v{G1.TMP}, s92, v174'); a(f's_mul_i32 s92, s92, {G1.RPI}'); a('s_mov_b32 s93, 0')
        for j in range(G1.NW):
            a(f'v_add3_u32 v{G1.WA+j}, v{G1.WA+j}, v{G1.TMP}, s93'); a('s_add_u32 s93, s93, s92')
        a.label(ld)
        ost(6)
    for tag, ori, e in (('g1', 'T', 1), ('g2', 'N', 2)):
        if e == 2: a.label('L_g2')
        if not chain:
            G1.loop(a, tag, ori, exp='front', hook=hk1, fin_hook=lambda a_: (wstamp(5), request(a_)), extra=dstores); tile_end(e); continue
        G1.loop(a, tag, ori, exp='front', hook=hk1, fin_hook=c_ld(e), extra=dstores,
                chain=dict(req=lambda a_: None, wr=[f's_cmp_eq_u32 {sNk}, 1', f's_cbranch_scc1 L_{tag}_cw', f'L_{tag}_cwb:'],
                           rd=lambda a_: a_(f's_cmp_le_u32 {sNk}, 2\ns_cbranch_scc1 L_{tag}_cr\nL_{tag}_crb:'), dec=c_dec, ld=c_ld2, w0=16 if e1 else 0, e1=e1))
        if wst:
            a(f's_mov_b32 s57, {sT}'); a(f's_mov_b32 {sT}, s56'); wstamp(4); a(f's_mov_b32 {sT}, s57'); wstamp(0)
        a(f's_cmp_eq_u32 {sRet}, 1'); a('s_cbranch_scc1 L_epi')
        a('s_branch L_have1')
        a.label(f'L_{tag}_cw')
        a('s_mov_b64 exec, 1'); a('ds_write_b32 v175, v244'); a('s_mov_b64 exec, -1'); a(f's_branch L_{tag}_cwb')
        a.label(f'L_{tag}_cr')
        a('ds_read_b32 v246, v241')
        a(f's_cmp_eq_u32 {sNk}, 1'); a(f's_cbranch_scc1 L_{tag}_crb')
        request(a); a(f's_branch L_{tag}_crb')
    a.label('L_small')
    srd(a, 8, 64, 4 * MB)
    a(f's_cmp_eq_u32 {sKind}, {K_SK}'); a('s_cselect_b64 s[88:89], s[70:71], s[72:73]')
    srd(a, 12, 88, 8 * MB)
    a(f's_lshl_b32 s91, {sXW}, 3'); a(f's_add_u32 s91, s91, {sQ_}')
    a(f's_mov_b32 {sLdw}, 8192'); a(f's_mov_b32 {sSeg}, {256*KB}'); a(f's_mov_b32 {sLdx}, 2048'); a(f's_mov_b32 {sNk}, {16 // G2.NS}')
    a(f's_lshl_b32 {sXo}, {sP}, {18 + S256}'); a(f's_lshl_b32 {sWo}, s91, 8')
    a(f's_sub_u32 {sOo}, {sKind}, 8'); a(f's_lshl_b32 {sOo}, {sOo}, 24'); a(f's_lshl_b32 s90, {sP}, {20 + S256}'); a(f's_add_u32 {sOo}, {sOo}, s90')
    a('s_lshl_b32 s90, s91, 13'); a(f's_add_u32 {sOo}, {sOo}, s90')
    a(f's_lshl_b32 {sDone}, {sP}, {9 + S256}'); a(f's_add_u32 {sDone}, {sDone}, {C_KV}'); a(f's_lshl_b32 s90, {sXW}, 7'); a(f's_add_u32 {sDone}, {sDone}, s90')
    if S256: a('s_mov_b32 s98, 5')
    G2.setup(a)
    a(f's_mov_b32 {sRet}, 2'); a('s_branch L_epi')
    a.label('L_r2')
    NT = 2 if sweep else 0
    if sweep: do_sweep(a, 16 if S256 else 32, ((64, 4, 's40'), (64, 4, 's41')))
    a(f's_cmp_eq_u32 {sKind}, {K_SV}'); a('s_cbranch_scc1 L_g5')
    G2.loop(a, 'g4', 'T', younger=NT, hook=hk, fin_hook=request, exp='front' if S256 else ''); tile_end(3)
    a.label('L_g5')
    G2.loop(a, 'g5', 'N', younger=NT, hook=hk, fin_hook=request, exp='front' if S256 else ''); tile_end(4)
    a.label('L_swp')
    a('s_barrier')
    a('v_and_b32 v1, 63, v0'); a('v_lshlrev_b32 v2, 7, v1')
    a(f's_lshl_b32 s40, {sP}, 2'); a(f's_add_u32 s40, s40, {sXW}'); a('s_lshl_b32 s40, s40, 2'); a(f's_add_u32 s40, s40, {sW_}'); a('s_lshl_b32 s40, s40, 13')
    for base, size in ((78, 4), (80, 6), (82, 2)):
        srd(a, 44, base, size * MB)
        a('s_mov_b32 s41, s40')
        for q in range(size * 8 // NSWP):
            a(f'buffer_load_dword v{4+q}, v2, s[44:47], s41 offen'); a(f's_add_u32 s41, s41, {128*KB*NSWP}')
    if ppoll:
        assert NSWP == 4 and SPLIT0 == 15 and not USE_AOF
        a('v_lshlrev_b32 v2, 4, v1')
        for r in range(4): a(f'v_mov_b32 v{32+r}, -1')
        a('s_lshl_b32 s41, s40, 3'); a(f's_add_u32 s41, s41, {PARTK + 12*MB:#x}'); a('s_mov_b32 s42, 16')
        a.label('L_swf')
        for q in range(4): a(f'buffer_store_dwordx4 v[32:35], v2, {WS}, s41 offen offset:{1024*q} sc1')
        a('s_add_u32 s41, s41, 4096'); a('s_sub_u32 s42, s42, 1'); a('s_cmp_lg_u32 s42, 0'); a('s_cbranch_scc1 L_swf')
        a('s_waitcnt vmcnt(0)')
        request(a)
        a(f's_mov_b32 {sDone}, {C_FIN + 1024}'); a('s_branch L_done')
    wstamp(2)
    a('s_branch L_next')
    a.label('L_atb')
    a(f's_lshl_b32 s90, {sXW}, 7'); a(f's_lshl_b32 s40, {sP}, 9'); a('s_add_u32 s40, s40, s90'); a(f's_max_u32 s41, {sP}, 1'); a('s_sub_u32 s41, s41, 1'); a('s_lshl_b32 s41, s41, 9'); a('s_add_u32 s41, s41, s90')
    wait([('s40', C_BQ, 3), ('s41', C_BQ, 3)])
    a(f's_lshl_b32 {sDone}, {sP}, 7'); a(f's_add_u32 {sDone}, {sDone}, {C_AB}')
    a(f's_lshl_b32 s46, {sP}, 3'); a(f's_lshl_b32 s90, {sQ_}, 1'); a('s_add_u32 s99, s46, s90'); a(f's_lshr_b32 s90, {sW_}, 1'); a('s_add_u32 s99, s99, s90')
    a('s_lshl_b32 s99, s99, 3'); a(f's_lshl_b32 s90, {sXW}, 1'); a('s_add_u32 s99, s99, s90'); a(f's_and_b32 s90, {sW_}, 1'); a('s_add_u32 s20, s99, s90')
    a('v_and_b32 v1, 63, v0')
    attn.gen_attnB(a, 's20', ld_flags='sc1', st_flags='sc1', after_loads=request)
    a('s_branch L_done')
    def reqf(a_):
        l = a_.newlabel('L_rf'); a_(f's_cmp_lt_u32 {sP}, {FEND - FOLLOW}'); a_(f's_cbranch_scc1 {l}'); request(a_); a_.label(l)
    for lab, n_ in (('L_ata', 1), ('L_ata4', 4)):
        a.label(lab)
        if n_ == 1: a('s_mov_b32 s50, 0'); a.label('L_ata_c'); assert FINE0 >= 4
        a(f's_lshr_b32 s40, {sP}, 3'); a('s_lshl_b32 s40, s40, 9'); a(f's_lshl_b32 s90, {sXW}, 7'); a('s_add_u32 s40, s40, s90'); a(f's_add_u32 s41, {sP}, {n_}')
        if n_ == 1 and dpoll: a('s_min_u32 s41, s41, 62')
        a(f's_lshr_b32 s43, {sP}, 2'); a('s_lshl_b32 s43, s43, 9'); a('s_add_u32 s43, s43, s90'); a(f's_add_u32 s43, s43, {C_KV}')
        a(f's_lshl_b32 s42, {sXW}, 1'); a(f's_add_u32 s42, s42, {sQ_}'); a('s_lshl_b32 s42, s42, 7'); a(f's_add_u32 s42, s42, {C_FIN}')
        if n_ == 1:
            a(f's_cmp_ge_u32 s50, {max(FOLLOW, 1)}'); a('s_cbranch_scc1 L_ata_s')
            wait([('s40', C_Q, 4), ('s43', 0, 16)], stamp=False)
            a.label('L_ata_s')
        else: wait([('s40', C_Q, 4), ('s43', 0, 16)], prog='s41')
        a(f's_mov_b32 s98, {n_}')
        a(f's_lshr_b32 {sDone}, {sP}, 2'); a(f's_lshl_b32 {sDone}, {sDone}, 7'); a(f's_add_u32 {sDone}, {sDone}, {C_AA}')
        if n_ == 1:
            assert FINE0 <= SPLIT0 and SPLIT0 >= 13
            a(f's_lshr_b32 s90, {sP}, 1'); a('s_sub_u32 s90, s90, 24'); a('s_lshl_b32 s90, s90, 2'); a(f's_add_u32 s90, s90, {sXW}'); a('s_lshl_b32 s90, s90, 1'); a(f's_add_u32 s90, s90, {sQ_}')
            a('s_lshl_b32 s90, s90, 7'); a(f's_add_u32 s90, s90, {C_AF}')
            a(f's_cmp_ge_u32 {sP}, {4*SPLIT0}'); a(f's_cselect_b32 {sDone}, s90, {sDone}')
        a(f's_lshl_b32 s20, {sP}, 5'); a(f's_lshl_b32 s90, {sXW}, 3'); a('s_add_u32 s20, s20, s90'); a(f's_lshl_b32 s90, {sQ_}, 2'); a('s_add_u32 s20, s20, s90'); a(f's_add_u32 s20, s20, {sW_}')
        a('v_and_b32 v1, 63, v0')
        pl = f'buffer_load_dword v238, v228, {WS}, s45 offen offset:{C_PROG} sc1'
        def mid1():
            a('s_waitcnt vmcnt(24)')
            a.label('L_m1')
            a('v_readfirstlane_b32 s44, v238'); a('s_cmp_ge_u32 s44, s41'); a('s_cbranch_scc1 L_m1d')
            a(f's_add_u32 {sSpin}, {sSpin}, 1'); a(f's_cmp_ge_u32 {sSpin}, {SPIN_MAX}'); a('s_cbranch_scc1 L_m1d')
            a('s_sleep 3'); a(pl); a('s_waitcnt vmcnt(0)'); a('s_branch L_m1')
            a.label('L_m1d')
            wstamp(1)
        if n_ == 1 and dpoll == 1: a(f'v_mov_b32 v228, {CNT:#x}'); a(f's_lshl_b32 s45, {sXW}, 7'); a(pl)
        attn.gen_attnA(a, 's20', ld_flags='sc1', st_flags='sc1', mid=(mid1 if dpoll == 1 else lambda: wait([], prog='s41', slp=3)) if n_ == 1 else None, n=n_, after_loads=reqf if n_ == 1 and FOLLOW else request, valid=sSpin if n_ == 1 and dpoll else None)
        a('s_branch L_done')
    a.label('L_bo')
    a(f's_lshr_b32 s40, {sP}, 1'); a('s_lshl_b32 s40, s40, 7'); a(f's_add_u32 s40, s40, {C_AB}'); a('s_mov_b32 s41, 16')
    srd(a, 12, 82, 2 * MB)
    a(f's_mov_b32 {sLdx}, {64*KB}'); a(f's_mov_b32 {sNk}, 4')
    a(f's_lshl_b32 {sXo}, {sP}, 18'); a(f's_add_u32 {sXo}, {sXo}, {OB:#x}'); a(f's_mov_b32 {sOo}, 2048')
    a('s_branch L_g3')
    a.label('L_aos')
    srd(a, 12, 74, 8 * MB)
    a(f's_and_b32 s48, {sQ_}, 7'); a(f's_lshr_b32 {sQ_}, {sQ_}, 3')
    a(f's_sub_u32 s40, {sP}, 12'); a('s_lshl_b32 s40, s40, 4'); a('s_add_u32 s40, s40, s48'); a('s_lshl_b32 s40, s40, 7'); a(f's_add_u32 s40, s40, {C_AF}'); a('s_mov_b32 s41, 2'); a('s_add_u32 s42, s40, 1024')
    a(f's_mov_b32 {sLdx}, {256*KB}'); a(f's_mov_b32 {sNk}, 2')
    a(f's_lshl_b32 {sXo}, {sP}, 20'); a(f's_add_u32 {sXo}, {sXo}, {OA:#x}'); a('s_lshl_b32 s90, s48, 15'); a(f's_add_u32 {sXo}, {sXo}, s90')
    a(f's_mov_b32 {sOo}, 0'); a('s_lshl_b32 s49, s48, 20')
    a('s_branch L_g3b')
    a.label('L_ao4')
    a(f's_lshl_b32 s40, {sP}, 7'); a(f's_add_u32 s40, s40, {C_AA}'); a('s_mov_b32 s41, 32'); a('s_mov_b32 s42, s40')
    srd(a, 12, 74, 8 * MB)
    a(f's_and_b32 s48, {sQ_}, 3'); a(f's_lshr_b32 {sQ_}, {sQ_}, 2')
    a(f's_mov_b32 {sLdx}, {256*KB}'); a(f's_mov_b32 {sNk}, 4')
    a(f's_lshl_b32 {sXo}, {sP}, 20'); a(f's_add_u32 {sXo}, {sXo}, {OA:#x}'); a('s_lshl_b32 s90, s48, 16'); a(f's_add_u32 {sXo}, {sXo}, s90')
    a(f's_mov_b32 {sOo}, 0'); a('s_lshl_b32 s49, s48, 21')
    a('s_branch L_g3b')
    a.label('L_ao')
    a(f's_lshl_b32 s40, {sP}, 7'); a(f's_add_u32 s40, s40, {C_AA}'); a('s_mov_b32 s41, 32')
    srd(a, 12, 74, 8 * MB)
    a(f's_mov_b32 {sLdx}, {256*KB}'); a(f's_mov_b32 {sNk}, 16')
    a(f's_lshl_b32 {sXo}, {sP}, 20'); a(f's_add_u32 {sXo}, {sXo}, {OA:#x}'); a(f's_mov_b32 {sOo}, 0')
    a.label('L_g3')
    a('s_mov_b32 s49, 0'); a(f's_cmp_eq_u32 {sKind}, {K_AO2}'); a('s_cselect_b32 s42, 128, 0'); a('s_add_u32 s42, s42, s40')
    a.label('L_g3b')
    srd(a, 8, 4, WS_BYTES)
    a(f's_lshl_b32 s91, {sXW}, 1'); a(f's_add_u32 s91, s91, {sQ_}')
    a(f's_mov_b32 {sLdw}, 2048'); a(f's_mov_b32 {sSeg}, 4096')
    a(f's_lshl_b32 {sWo}, s91, 8'); a(f's_add_u32 {sOo}, {sOo}, {sWo}'); a(f's_lshl_b32 s90, {sP}, 19'); a(f's_add_u32 {sOo}, {sOo}, s90')
    a(f's_add_u32 {sWo}, {sWo}, s49'); a('s_mov_b32 s50, s91')
    a(f's_cmp_lt_u32 {sKind}, {K_AO2}'); a('s_cbranch_scc1 L_g3c')
    a(f's_cmp_eq_u32 {sKind}, {K_AO2}'); a(f's_cselect_b32 {sNk}, 21, 5'); a('s_mov_b32 s48, 2048')
    G4.setup(a, mid=lambda: wait([('s40', 0, 's41'), ('s42', 0, 's41')], slp=3)); G4.loop(a, 'g6', 'T', hook=hk, fin_hook=reqe, xlast=True, ext=1, exp=g4exp)
    tile_end(6)
    a.label('L_g3c')
    def req3(a_):
        l = a_.newlabel('L_r3'); a_(f's_cmp_ge_u32 {sKind}, {K_AOS}'); a_(f's_cbranch_scc1 {l}'); reqe(a_); a_.label(l)
    G3.setup(a, mid=lambda: wait([('s40', 0, 's41'), ('s42', 0, 's41')] + ([('0', C_FIN + 1024, 16)] if ppoll else []), slp=3)); G3.loop(a, 'g3', 'T', hook=hk, fin_hook=req3, xlast=True)
    a(f's_cmp_ge_u32 {sKind}, {K_AOS}'); a('s_cbranch_scc1 L_part')
    tile_end(5)
    a.label('L_part')
    wstamp(4)
    assert MS == 16
    a(f's_sub_u32 s40, {sP}, {13 if USE_AOF else 12}'); a('s_lshl_b32 s40, s40, 3'); a('s_add_u32 s40, s40, s50')
    assert min(SPLIT0, SPLIT4) >= (13 if USE_AOF else 12)
    a('s_lshl_b32 s41, s40, 19'); a(f's_add_u32 s41, s41, {PARTK:#x}'); a(f's_lshl_b32 s90, {sW_}, 14'); a('s_add_u32 s41, s41, s90')
    a('s_lshl_b32 s90, s48, 16'); a('s_add_u32 s42, s41, s90')
    a('v_lshlrev_b32 v2, 4, v1')
    for q in range(16):
        if q and q % 4 == 0: a('s_add_u32 s42, s42, 4096')
        a(f'buffer_store_dwordx4 {ar(4*q, 4)}, v2, {WS}, s42 offen offset:{(q&3)*1024} sc1')
    a('s_lshl_b32 s40, s40, 7')
    a(f's_add_u32 s43, s40, {CNT + C_SP:#x}')
    if ppoll: a(f's_waitcnt vmcnt({pw})'); a(f's_cmp_eq_u32 {sKind}, {K_AOS}'); a('s_cbranch_scc1 L_part8')
    a('s_waitcnt vmcnt(0)'); a('s_barrier')
    signal(a, 0, soff='s43', srd_=WS)
    a(f's_cmp_eq_u32 {sKind}, {K_AOS}'); a('s_cselect_b32 s43, 8, 4')
    wait([('s40', C_SP, 's43')], slp=1, stamp=False)
    request(a)
    def oaddr():
        lane_expr(a, 'v3', [(0, 4, 4096), (4, 2, 16)], lane='v1', tmp='v4')
        a(f's_lshr_b32 s90, {sW_}, 1'); a('s_lshl_b32 s90, s90, 18'); a(f's_add_u32 {sOo}, {sOo}, s90')
        a(f's_and_b32 s90, {sW_}, 1'); a('s_lshl_b32 s90, s90, 7'); a(f's_add_u32 {sOo}, {sOo}, s90')
    a(f's_cmp_eq_u32 {sKind}, {K_AO4}'); a('s_cbranch_scc1 L_part4')
    a.label('L_part8')
    a('s_lshl_b32 s90, s48, 11'); a('s_add_u32 s42, s41, s90')
    oaddr()
    a('s_lshr_b32 s90, s48, 1'); a('s_lshl_b32 s90, s90, 16'); a(f's_add_u32 {sOo}, {sOo}, s90')
    a('s_and_b32 s90, s48, 1'); a('s_lshl_b32 s90, s90, 6'); a(f's_add_u32 {sOo}, {sOo}, s90')
    a.label('L_part8r')
    a('s_mov_b32 s41, s42')
    for p in range(8):
        for h in range(2): a(f'buffer_load_dwordx4 {vr(16 + 8*p + 4*h, 4)}, v2, {WS}, s41 offen offset:{1024*h} sc1')
        a('s_add_u32 s41, s41, 0x10000')
    if ppoll:
        a('v_mov_b32 v5, 0')
        for p in range(8):
            a(f's_waitcnt vmcnt({14 - 2*p})')
            for q in range(0, 8, 2): a(f'v_max3_u32 v5, v5, v{16+8*p+q}, v{17+8*p+q}')
        a('v_cmp_eq_u32 vcc, -1, v5')
        a(f's_add_u32 {sSpin}, {sSpin}, 1'); a(f's_cmp_ge_u32 {sSpin}, {SPIN_MAX}'); a('s_cbranch_scc1 L_part8k')
        a('s_cbranch_vccnz L_part8r')
        a.label('L_part8k')
    for p in range(1, 8):
        a(f's_waitcnt vmcnt({14 - 2*p})')
        for q in range(0, 8, 2): a(f'v_pk_add_f32 {vr(16+q,2)}, {vr(16+q,2)}, {vr(16+8*p+q,2)}')
    for q in range(4): a(f'v_cvt_pk_bf16_f32 v{8+q}, v{16+2*q}, v{17+2*q}')
    a(f'buffer_store_dwordx4 v[8:11], v3, {SO}, {sOo} offen {ofl}')
    wstamp(2)
    assert all((e & 255) == K_AOS for e in tl[-16:])
    a('s_branch L_exit' if ppoll else 's_branch L_got')
    a.label('L_part4')
    a('s_lshl_b32 s90, s48, 12'); a('s_add_u32 s41, s41, s90')
    for p in range(4):
        for h in range(4): a(f'buffer_load_dwordx4 {vr(16 + 16*p + 4*h, 4)}, v2, {WS}, s41 offen offset:{1024*h} sc1')
        a('s_add_u32 s41, s41, 0x10000')
    oaddr()
    a('s_lshl_b32 s90, s48, 16'); a(f's_add_u32 {sOo}, {sOo}, s90')
    for p in range(1, 4):
        a(f's_waitcnt vmcnt({12 - 4*p})')
        for q in range(0, 16, 2): a(f'v_pk_add_f32 {vr(16+q,2)}, {vr(16+q,2)}, {vr(16+16*p+q,2)}')
    for q in range(8): a(f'v_cvt_pk_bf16_f32 v{8+q}, v{16+2*q}, v{17+2*q}')
    for h in range(2): a(f'buffer_store_dwordx4 {vr(8+4*h, 4)}, v3, {SO}, {sOo} offen offset:{64*h} {ofl}')
    wstamp(2)
    a('s_branch L_got')
    if USE_AOF:
        a.label('L_aof')
        G5 = Gemm(64, 128, 64, 4, 'packed', perm_out=True, ld_flags='sc1', MS=16)
        srd(a, 12, 74, 8 * MB); srd(a, 8, 4, WS_BYTES)
        a(f's_and_b32 s48, {sQ_}, 15'); a(f's_lshr_b32 {sQ_}, {sQ_}, 4')
        a(f's_lshl_b32 s50, {sXW}, 1'); a(f's_add_u32 s50, s50, {sQ_}')
        a(f's_sub_u32 s40, {sP}, 24'); a('s_lshl_b32 s40, s40, 3'); a('s_lshr_b32 s90, s48, 1'); a('s_add_u32 s40, s40, s90'); a('s_lshl_b32 s40, s40, 7'); a(f's_add_u32 s40, s40, {C_AF}')
        a(f's_mov_b32 {sLdx}, {256*KB}'); a(f's_mov_b32 {sLdw}, 2048')
        a(f's_lshl_b32 {sXo}, {sP}, 19'); a(f's_add_u32 {sXo}, {sXo}, {OA:#x}'); a('s_lshl_b32 s90, s48, 14'); a(f's_add_u32 {sXo}, {sXo}, s90')
        a(f's_lshl_b32 {sWo}, s50, 8'); a(f's_lshl_b32 {sOo}, {sP}, 18'); a(f's_add_u32 {sOo}, {sOo}, {sWo}'); a('s_lshl_b32 s90, s48, 19'); a(f's_add_u32 {sWo}, {sWo}, s90')
        G5.setup(a, mid=lambda: wait([('s40', 0, 2)], slp=1)); G5.once(a, 'T')
        wstamp(4)
        a(f's_sub_u32 s40, {sP}, 28'); a('s_lshl_b32 s40, s40, 3'); a('s_add_u32 s40, s40, s50')
        a('s_lshl_b32 s41, s40, 19'); a(f's_add_u32 s41, s41, {PARTK:#x}')
        a('s_lshl_b32 s90, s48, 15'); a('s_add_u32 s42, s41, s90'); a(f's_lshl_b32 s90, {sW_}, 13'); a('s_add_u32 s42, s42, s90')
        a('v_lshlrev_b32 v2, 4, v1')
        for q in range(8):
            if q == 4: a('s_add_u32 s42, s42, 4096')
            a(f'buffer_store_dwordx4 {ar(4*q, 4)}, v2, {WS}, s42 offen offset:{(q&3)*1024} sc1')
        a('s_lshl_b32 s40, s40, 7')
        a(f's_add_u32 s43, s40, {CNT + C_SP:#x}')
        a('s_waitcnt vmcnt(0)'); a('s_barrier')
        signal(a, 0, soff='s43', srd_=WS)
        wait([('s40', C_SP, 16)], slp=1, stamp=False)
        request(a)
        a('s_lshl_b32 s90, s48, 11'); a('s_add_u32 s41, s41, s90'); a(f's_lshl_b32 s90, {sW_}, 17'); a('s_add_u32 s41, s41, s90')
        for p in range(4):
            for h in range(2): a(f'buffer_load_dwordx4 {vr(16 + 8*p + 4*h, 4)}, v2, {WS}, s41 offen offset:{1024*h} sc1')
            a('s_add_u32 s41, s41, 0x8000')
        lane_expr(a, 'v3', [(0, 4, 4096), (4, 2, 16)], lane='v1', tmp='v4')
        for sh_, mul in ((3, 17), (2, 7), (1, 16), (0, 6)):
            a(f's_lshr_b32 s90, s48, {sh_}'); a('s_and_b32 s90, s90, 1'); a(f's_lshl_b32 s90, s90, {mul}'); a(f's_add_u32 {sOo}, {sOo}, s90')
        a(f's_lshl_b32 s90, {sW_}, 11'); a('v_add_u32 v5, s90, v2')
        for p in range(1, 4):
            a(f's_waitcnt vmcnt({6 - 2*p})')
            for q in range(0, 8, 2): a(f'v_pk_add_f32 {vr(16+q,2)}, {vr(16+q,2)}, {vr(16+8*p+q,2)}')
        a('ds_write_b128 v5, v[16:19]'); a('ds_write_b128 v5, v[20:23] offset:1024')
        a('s_waitcnt lgkmcnt(0)'); a('s_barrier')
        a(f's_cmp_lg_u32 {sW_}, 0'); a('s_cbranch_scc1 L_aofd')
        for p in range(1, 4):
            for h in range(2): a(f'ds_read_b128 {vr(16 + 8*p + 4*h, 4)}, v2 offset:{2048*p + 1024*h}')
        a('s_waitcnt lgkmcnt(0)')
        for p in range(1, 4):
            for q in range(0, 8, 2): a(f'v_pk_add_f32 {vr(16+q,2)}, {vr(16+q,2)}, {vr(16+8*p+q,2)}')
        for q in range(4): a(f'v_cvt_pk_bf16_f32 v{8+q}, v{16+2*q}, v{17+2*q}')
        a(f'buffer_store_dwordx4 v[8:11], v3, {SO}, {sOo} offen {ofl}')
        a.label('L_aofd')
        wstamp(2)
        a('s_branch L_got')
    a.label('L_done')
    a('s_waitcnt vmcnt(0)')
    a('s_barrier')
    a(f's_add_u32 {sDone}, {sDone}, {CNT:#x}')
    signal(a, 0, soff=sDone, srd_=WS, inc='s98')
    wstamp(2)
    a(f's_mov_b32 {pE}, 0')
    if FOLLOW:
        a(f's_cmp_lg_u32 {sKind}, {K_ATA}'); a('s_cbranch_scc1 L_got')
        a(f's_add_u32 {sP}, {sP}, {FOLLOW}'); a(f's_and_b32 s50, {sP}, 7'); a(f's_cmp_lt_u32 {sP}, {FEND}'); a('s_cbranch_scc1 L_ata_c')
    a('s_branch L_got')
    a.label('L_exit')
    a('s_endpgm')
    a.fix_hazards()
    assert len(tl) < 508 and codepf
    t = a.text() + '.p2align 3\nL_table:\n' + ''.join(f'.long {x:#x}\n' for x in tl + [15, 0, 0, 0]) + f'.fill {508 - len(tl)}, 4, 0\n'
    return t, names

def build(**kw):
    body, names = gen(**kw)
    ref = open(os.path.join(os.path.dirname(os.path.abspath(__file__)), '..', NAME + '.s.ref')).read().split('\n')
    head = [l for l in ref if l.startswith(';') and '@launch' not in l and 'Override' not in l and 'grid=ceil' not in l][:14]
    n = NAME + '_kernel'
    t = '\n'.join(head) + '\n'
    t += f'; @launch grid=(256,1,1) block=(256,1,1) lds={LDS_T + 2048}\n'
    t += '.amdgcn_target "amdgcn-amd-amdhsa--gfx950"\n.text\n'
    t += f'.globl {n}\n.p2align 8\n.type {n},@function\n{n}:\n' + body
    t += '.section .rodata,"a"\n.p2align 6\n' + kd(n, 512, 256)
    return t

if __name__ == '__main__':
    out = sys.argv[1] if len(sys.argv) > 1 else os.path.join(os.path.dirname(os.path.abspath(__file__)), '..', NAME + '.s')
    open(out, 'w').write(build(**eval('dict(%s)' % (sys.argv[2] if len(sys.argv) > 2 else ''))))
    print('written', out, os.path.getsize(out))
```

```python
import sys, os
sys.path.insert(0, os.path.dirname(os.path.abspath(__file__)))
from asmgen import *
from layout import *
import rec, gemm, attn
from rec import srd, lane_expr, signal, verify, sX, sI, SPIN_MAX, sMode4, sBit, vClaim, LDS_X, LDS_T
sSpin = 's3'
from gemm import *
from build import kd, NAME
WS = 's[4:7]'
DBG = 's[28:31]'
K_AQ, K_AK, K_AV, K_BQKV, K_ATB, K_BO, K_ATA, K_AO, K_AOS, K_SK, K_SV, K_ATA4, K_SWP, K_AOF, K_AO4 = range(15)
K_AO2, K_BO2 = 16, 17
NAO2 = 8
NBO2 = 12
NSMALL = 2
NSWP = 4
USE_AOF = 0
FOLLOW = 2
FEND = 62
S256 = 0
FINE0 = 10
SPLIT0 = 15
SPLIT4 = 13
def ent(kind, p, q=0): return kind | (p << 8) | (q << 16)

SIM = dict(go=21.0, step=2.17, skv1=18.0, skv2=10.0, big=23.5, atb=4.5, bo=8.5, ata=3.5, ao=25.0, aos=9.5, margin=0.0, kvlead=8.0, bstart=50.0, ata4=11.0, swp=18.0, gap=0.2, lat=3.0, early=4.0, plan='S48 K16 S16 W4 Q12 K16 Q4 B12 Q16 T8 B8 K16 T8 B4 T4 O8 U8 T4 U12 P4 U4 P4 O6 P2 O2 P2 O2 U8 P8 O8 T4 O8 O16', aof=5.0, aob=(7,), look=3.0, earlyA=1.0, uord=(4, 3, 0, 1, 2, 5, 6, 7), ao4=11.5, ao2=43.0, bo2=14.0, lastA=8.0)
def task_list(verbose=False, **over):
    import heapq
    P = dict(SIM); P.update(over)
    kv = lambda rb: [ent(k, rb, c) for c in range(4) for k in (K_AK, K_AV)]
    sm = lambda hb: [ent(k, hb, c) for c in range(8) for k in (K_SK, K_SV)]
    first = sm(0) + sm(1) + sm(2) + kv(2) + sm(3)
    KVq = [e for rb in range(3, 8) for e in kv(rb)]
    Qq = [ent(K_AQ, rb, c) for rb in range(8) for c in range(4)]
    Bq = [ent(K_BQKV, rb, c) for rb in range(8) for c in range(3)]
    TBq = [ent(K_ATB, rb, c) for rb in P['uord'] for c in range(4)]
    BOq = [ent(K_BO2, hb, c) for hb in range(0, NBO2, 2) for c in range(2)] + [ent(K_BO, hb, c) for hb in range(NBO2, 16) for c in range(2)]
    TAq = [ent(K_ATA4, 4 * hb, c) for hb in range(FINE0) for c in range(2)] + [ent(K_ATA, s_, c) for s_ in (list(range(4 * FINE0, 4 * FINE0 + FOLLOW)) + list(range(FEND, 64)) if FOLLOW else range(4 * FINE0, 64)) for c in range(2)]
    first += [ent(K_SWP, c) for c in range(NSWP)]
    AOq = [ent(K_AO2, hb, c) for hb in range(0, NAO2, 2) for c in range(2)] + [e for hb in range(NAO2, 16) for e in ([ent(K_AO, hb, c) for c in range(2)] if hb < min(SPLIT0, SPLIT4) else [ent(K_AO4, hb, c) for c in range(8)] if hb < SPLIT0 else [ent(K_AOS, hb, c) for c in range(16)] if (hb < 15 or not USE_AOF) else [ent(K_AOF, hh, c) for hh in (30, 31) for c in range(32)])]
    if P['plan']:
        first = []
        KVq = [e for rb in range(2, 8) for e in kv(rb)]
        SWq = [ent(K_SWP, c) for c in range(NSWP)]
        Sq = sm(0) + sm(1) + ([] if S256 else sm(2) + sm(3))
        qs = dict(S=Sq, K=KVq, Q=Qq, B=Bq, W=SWq, T=TAq, O=AOq, U=TBq, P=BOq)
        for tok in P['plan'].split():
            q = qs[tok[0]]; n = int(tok[1:])
            assert len(q) >= n, tok
            first += q[:n]; del q[:n]
        assert not Sq and not SWq
    done = {}
    def fin(key, n):
        c, t = done.get(key, (0, 0.0)); return t if c >= n else 1e9
    def seg_time(s_): return P['go'] + P['step'] * (s_ + 1.9 if s_ < 62 else 63.9)
    def ready(e):
        k, p = e & 255, (e >> 8) & 255
        if k == K_ATB: return max(fin(('B', p), 3), fin(('B', max(p - 1, 0)), 3))
        if k in (K_BO, K_BO2): return fin(('TB', p >> 1), 4)
        if k == K_AO2: return fin(('TA', p + 1), 8 if p + 1 >= FINE0 else 2)
        if k == K_ATA: return max(fin(('Q', p >> 3), 4), seg_time(p))
        if k == K_ATA4: return max(fin(('Q', p >> 3), 4), seg_time(p + 3))
        if k == K_AO:
            p = max(p, min([b for b in P['aob'] if b >= p] + [p]) if any(b >= p for b in P['aob']) else p)
            p = min([b for b in P['aob'] if b >= p], default=p)
        if k in (K_AO, K_AOS, K_AO4): return fin(('TA', p), 8 if p >= FINE0 else 2)
        if k == K_AOF: return fin(('TH', p), 4)
        return 0.0
    def dur(e, n):
        k = e & 255
        return {K_SK: P['skv1'] if n < 32 else P['skv2'], K_SV: P['skv1'] if n < 32 else P['skv2'], K_ATB: P['atb'], K_BO: P['bo'], K_ATA: P['ata'], K_ATA4: P['ata4'], K_SWP: P['swp'], K_AO: P['ao'], K_AOS: P['aos'], K_AOF: P['aof'], K_AO4: P['ao4'], K_AO2: P['ao2'], K_BO2: P['bo2']}.get(k, P['big'])
    def group(e):
        k, p = e & 255, (e >> 8) & 255
        return {K_AQ: ('Q', p), K_BQKV: ('B', p), K_ATB: ('TB', p), K_ATA: ('TA', p >> 2), K_ATA4: ('TA', p >> 2)}.get(k, ('x', 0))
    free = [(0.0, w) for w in range(32)] + [(P['go'] + P['step'] * 63.6, 32 + w) for w in range(32)]
    heapq.heapify(free)
    out = []; end = 0
    while first or KVq or Qq or Bq or TBq or BOq or TAq or AOq:
        t, w = heapq.heappop(free)
        ok = lambda q: q and ready(q[0]) + (P['margin'] if (q[0] & 255) not in (K_ATA, K_AOS, K_AOF, K_AO4) else -(P['early'] if (q[0] & 255) != K_ATA else (P['earlyA'] if ((q[0] >> 8) & 255) < 60 else P['lastA']))) <= t
        q = None
        if first: q = first
        elif KVq and t + 2 * P['big'] + P['kvlead'] > P['go'] + P['step'] * (8 * ((KVq[0] >> 8) & 255) - 3): q = KVq
        elif ok(TAq): q = TAq
        elif ok(AOq): q = AOq
        elif Qq and t + P['big'] + 10 > seg_time(8 * ((Qq[0] >> 8) & 255)): q = Qq
        elif Bq and t > P['bstart']: q = Bq
        elif KVq: q = KVq
        elif Qq: q = Qq
        elif TAq and (TAq[0] & 255) == K_ATA4 and ready(TAq[0]) <= t + P['look']: q = TAq
        elif AOq and (AOq[0] & 255) == K_AO and ready(AOq[0]) <= t + P['look']: q = AOq
        elif ok(TBq): q = TBq
        elif ok(BOq): q = BOq
        else:
            cand = [x for x in (AOq, TAq, BOq, TBq) if x and ready(x[0]) < 1e8]
            q = min(cand, key=lambda x: ready(x[0]))
        e = q.pop(0)
        st_ = max(t, ready(e)); en = st_ + dur(e, len(out))
        c, tt = done.get(group(e), (0, 0.0)); done[group(e)] = (c + 1, max(tt, en + (P['lat'] if (e & 255) in (K_AQ, K_BQKV) else 0.5)))
        if (e & 255) == K_ATA:
            g2 = ('TH', ((e >> 8) & 255) >> 1); c, tt = done.get(g2, (0, 0.0)); done[g2] = (c + 1, max(tt, en + 0.5))
        e2 = e
        while FOLLOW and (e & 255) == K_ATA and ((e2 >> 8) & 255) + FOLLOW < FEND:
            e2 += FOLLOW << 8; en = max(en, ready(e2)) + dur(e2, 0)
            c, tt = done.get(group(e2), (0, 0.0)); done[group(e2)] = (c + 1, max(tt, en + 0.5))
        out.append(e); end = max(end, en)
        if verbose: print(f'{t:6.1f} {st_:6.1f} {en:6.1f} kind {e & 255} p {(e >> 8) & 255} q {e >> 16}')
        heapq.heappush(free, (en + P['gap'], w))
    if verbose: print('sim end', end)
    return out

def setp(**k):
    globals().update(k)

def gen(force_slow=False, force_fb=False, sweep=True, wst=False, empty=False, codepf=True, MS=16, rot=0, gfl='', sim={}, glob={}, defer=True, chain=True, ipos=4, e1=0, ofl='sc1', g4exp='', dpoll=1, nlate=60, ppoll=1, pw=0, jpf=2, **kw):
    setp(**glob)
    a = Asm()
    sW_ = 's32'; sXW, sT, sKind, sP, sQ_, sDone = 's33', 's34', 's35', 's36', 's37', 's38'
    a('s_cmp_ge_u32 s2, 256'); a('s_cbranch_scc1 L_exit')
    if empty: a('s_endpgm')
    if wst: a('s_memrealtime s[56:57]'); kw['rt'] = wst
    a('s_load_dwordx4 s[92:95], s[0:1], 88')
    a('s_load_dwordx16 s[64:79], s[0:1], 0')
    a('s_getreg_b32 s39, hwreg(HW_REG_XCC_ID, 0, 3)')
    a('v_lshrrev_b32 v2, 6, v0'); a('s_nop 0'); a(f'v_readfirstlane_b32 {sW_}, v2')
    a(f's_mov_b32 {sSpin}, 0')
    if codepf:
        a('s_getpc_b64 s[86:87]')
        a.label('L_pc0')
        a('s_lshr_b32 s90, s2, 3'); a('s_lshl_b32 s90, s90, 2'); a(f's_add_u32 s90, s90, {sW_}'); a('s_and_b32 s90, s90, 31'); a('s_lshl_b32 s90, s90, 12')
        a('v_and_b32 v1, 63, v0'); a('v_lshlrev_b32 v1, 6, v1'); a('v_add_u32 v1, s90, v1')
        a('v_min_u32 v1, L_table-L_pc0, v1')
        a('global_load_dword v199, v1, s[86:87]')
        a('v_lshlrev_b32 v1, 3, v0'); a('v_add_u32 v1, L_table-L_pc0, v1')
        a('global_load_dwordx2 v[248:249], v1, s[86:87]')
    a('s_waitcnt lgkmcnt(0)')
    srd(a, 4, 94, WS_BYTES); srd(a, 28, 92, 256)
    a(f's_mov_b32 {sMode4}, 0')
    a('s_lshr_b32 s41, s2, 3')
    if force_fb: a('s_and_b32 s41, s41, 30')
    if rot: a(f's_add_u32 s41, s41, {rot}'); a('s_and_b32 s41, s41, 31')
    a(f's_lshl_b32 {sBit}, 1, s41')
    a(f's_cmp_lg_u32 {sW_}, 0'); a('s_cbranch_scc1 L_sweep')
    a('s_lshl_b32 s90, s39, 2')
    a(f'v_mov_b32 {vClaim}, {sBit}'); a('v_mov_b32 v2, 0')
    a('s_mov_b64 exec, 1')
    a(f'buffer_atomic_or {vClaim}, v2, {DBG}, s90 offen offset:{D_OR} sc0 sc1')
    a('s_mov_b64 exec, -1')
    a.label('L_sweep')
    a('s_lshl_b32 s40, s39, 5'); a('s_add_u32 s40, s40, s41'); a('s_mov_b32 s43, 1')
    a('s_branch L_role')
    a.label('L_fallback')
    a('s_load_dwordx4 s[92:95], s[0:1], 88')
    a('s_load_dwordx16 s[64:79], s[0:1], 0')
    a('s_getreg_b32 s39, hwreg(HW_REG_XCC_ID, 0, 3)')
    a(f's_mov_b32 {sMode4}, 4')
    a('v_mbcnt_lo_u32_b32 v0, -1, 0'); a('v_mbcnt_hi_u32_b32 v0, -1, v0'); a(f's_lshl_b32 s90, {sW_}, 6'); a('v_add_u32 v0, s90, v0')
    a('s_waitcnt vmcnt(0) lgkmcnt(0)')
    a('s_barrier')
    a(f's_cmp_lg_u32 {sW_}, 0'); a('s_cbranch_scc1 L_tkd')
    a('s_lshl_b32 s90, s39, 2')
    a('v_mov_b32 v1, 1'); a('v_mov_b32 v2, 0'); a('v_lshlrev_b32 v3, 2, v0')
    a('s_mov_b64 exec, 1')
    a(f'buffer_atomic_add v1, v2, {DBG}, s90 offen offset:{D_TICK} sc0 sc1')
    a('s_mov_b64 exec, 0xff')
    a.label('L_tkw')
    a(f'buffer_load_dword v4, v3, {DBG}, 0 offen offset:{D_TICK} sc1')
    a('s_waitcnt vmcnt(0)')
    a('v_readfirstlane_b32 s40, v1')
    a('s_mov_b32 s41, 0'); a('s_mov_b32 s42, 0'); a('s_mov_b32 s43, 1')
    for x in range(8):
        a(f'v_readlane_b32 s44, v4, {x}')
        a('s_add_u32 s41, s41, s44')
        a(f's_cmp_gt_u32 s39, {x}'); a('s_cselect_b32 s45, s44, 0'); a('s_add_u32 s42, s42, s45')
        if x < 4: a('s_cmp_eq_u32 s44, 32'); a('s_cselect_b32 s43, s43, 0')
    a(f's_add_u32 {sSpin}, {sSpin}, 1'); a(f's_cmp_ge_u32 {sSpin}, {SPIN_MAX}'); a('s_cbranch_scc1 L_tkbad')
    a('s_sleep 4')
    a('s_cmp_lt_u32 s41, 256'); a('s_cbranch_scc1 L_tkw')
    a('s_add_u32 s40, s40, s42'); a('s_lshl_b32 s43, s43, 16'); a('s_or_b32 s40, s40, s43')
    a('s_branch L_tkok')
    a.label('L_tkbad')
    a('s_mov_b32 s40, 0xffff')
    a.label('L_tkok')
    a('s_mov_b64 exec, -1')
    a('v_mov_b32 v1, s40'); a(f'v_mov_b32 v2, {LDS_X}')
    a('ds_write_b32 v2, v1'); a('s_waitcnt lgkmcnt(0)')
    a.label('L_tkd')
    a('s_barrier')
    a(f'v_mov_b32 v2, {LDS_X}'); a('ds_read_b32 v1, v2'); a('s_waitcnt lgkmcnt(0)')
    a('v_readfirstlane_b32 s40, v1')
    a('s_barrier')
    a('s_lshr_b32 s43, s40, 16'); a('s_and_b32 s40, s40, 0xffff')
    a('s_cmp_ge_u32 s40, 256'); a('s_cbranch_scc1 L_exit')
    if force_slow: a('s_mov_b32 s43, 0')
    a.label('L_role')
    if wst:
        a('s_memrealtime s[58:59]'); a('s_waitcnt lgkmcnt(0)')
        a(f's_lshl_b32 s62, s2, 5'); a(f's_add_u32 s62, s62, {STAMP + 131072:#x}')
        a('v_mov_b32 v251, 0'); a('v_mov_b32 v252, s56'); a('v_mov_b32 v253, s58'); a('s_mov_b64 exec, 1')
        a(f'buffer_store_dwordx2 v[252:253], v251, s[4:7], s62 offen'); a('s_mov_b64 exec, -1')
    a('s_cmp_ge_u32 s40, 128'); a('s_cbranch_scc1 L_worker')
    a(f's_lshr_b32 {sX}, s40, 5'); a(f's_and_b32 {sI}, s40, 31')
    a('s_cmp_eq_u32 s43, 0'); a('s_cbranch_scc1 L_recslow')
    r1 = Asm(); names = rec.gen_rec(r1, fused=True, exit_label='L_join', nofin=dpoll, **kw); a.absorb(r1, 'F')
    a.label('L_recslow')
    r2 = Asm(); rec.gen_rec(r2, fused=True, exit_label='L_join', local_st='sc1', pol=0, nofin=dpoll); a.absorb(r2, 'S')
    def request(a):
        l = a.newlabel('L_rq')
        a(f's_cmp_lg_u32 {sW_}, 0'); a(f's_cbranch_scc1 {l}')
        a('s_cmp_eq_u32 s39, 0'); a(f's_cbranch_scc1 {l}')
        a(f's_lshl_b32 s99, {sXW}, 7'); a(f's_add_u32 s99, s99, {CNT + C_QUEUE:#x}')
        a('v_mov_b32 v244, 1'); a('v_mov_b32 v245, 0')
        a('s_mov_b64 exec, 1')
        a(f'buffer_atomic_add v244, v245, {WS}, s99 offen sc0 sc1')
        a('s_mov_b64 exec, -1')
        a.label(l)
    a.label('L_join')
    a('s_load_dwordx16 s[64:79], s[0:1], 0')
    a('s_mov_b32 s39, 1'); assert sXW == sX
    request(a)
    if jpf:
        a('s_getpc_b64 s[86:87]')
        a.label('L_pc1')
        a(f's_lshl_b32 s90, {sI}, 2'); a(f's_add_u32 s90, s90, {sW_}'); a('s_and_b32 s90, s90, 31'); a('s_lshl_b32 s90, s90, 12')
        a('v_mbcnt_lo_u32_b32 v1, -1, 0'); a('v_mbcnt_hi_u32_b32 v1, -1, v1'); a('v_lshlrev_b32 v1, 6, v1'); a('v_add_u32 v1, s90, v1')
        a('v_min_u32 v1, L_table-L_pc1, v1')
        a('global_load_dword v199, v1, s[86:87]')
    a('v_mbcnt_lo_u32_b32 v0, -1, 0'); a('v_mbcnt_hi_u32_b32 v0, -1, v0'); a(f's_lshl_b32 s90, {sW_}, 6'); a('v_add_u32 v0, s90, v0')
    a(f's_lshl_b32 s40, {sX}, 5'); a('s_add_u32 s40, s40, 128'); a('s_mov_b32 s39, 1')
    a('s_barrier')
    a('s_branch L_worker1')
    a.label('L_worker')
    a('s_mov_b32 s39, 0')
    a.label('L_worker1')
    a('s_load_dwordx4 s[80:83], s[0:1], 64')
    a('s_load_dwordx2 s[84:85], s[0:1], 80')
    a(f's_sub_u32 {sXW}, s40, 128'); a(f's_lshr_b32 {sXW}, {sXW}, 5')
    a(f's_and_b32 {sT}, s40, 31')
    a('s_getpc_b64 s[86:87]')
    a.label('L_pc')
    a('s_add_u32 s86, s86, L_table-L_pc'); a('s_addc_u32 s87, s87, 0')
    a('s_waitcnt lgkmcnt(0)')
    tl = task_list(**sim)
    G1 = Gemm(256, 256, 64, 2, 'row', MS=MS, ld_flags=gfl, w_flags=gfl); G3 = Gemm(128, 128, 64, 4, 'packed', perm_out=True, ld_flags='sc1', MS=MS, w_flags=gfl)
    G4 = Gemm(256, 128, 64, 3, 'packed', perm_out=True, ld_flags='sc1', MS=MS, w_flags=gfl)
    G2 = Gemm(128, 128, 64, 4, 'row', MS=MS, ld_flags=gfl, w_flags=gfl) if not S256 else Gemm(256, 128, 64, 2, 'row', MS=MS, ld_flags=gfl, w_flags=gfl)
    pE, pOo, pSeg, pDone, pInc, sRet = 's59', 's60', 's61', 's62', 's63', 's58'
    EPI = 176
    DF = dict(ad='v172', ad2='v173', base=176, s0='s46', s1='s47')
    dstores = [f'buffer_store_dwordx4 {vr(176 + 4*n, 4)}, {DF["ad2"] if (n & 7) >= 4 else DF["ad"]}, {WS}, {DF["s1"] if n >= 8 else DF["s0"]} offen offset:{(n&3)*1024} sc1' for n in range(16)] if defer else []
    pSig = 's49'
    srd(a, 16, 84, 8 * MB); srd(a, 8, 64, 4 * MB); srd(a, 12, 70, 8 * MB)
    for r in list(range(1, 18)) + [172, 173]: a(f'v_mov_b32 v{r}, 0')
    a(f's_mov_b32 {pE}, 0')
    a('s_cmp_eq_u32 s39, 0'); a('s_cbranch_scc1 L_have')
    a('s_branch L_next1')
    a.label('L_next')
    request(a)
    a.label('L_next1')
    a('s_waitcnt vmcnt(0)')
    a.label('L_got')
    a(f's_cmp_lg_u32 {sW_}, 0'); a('s_cbranch_scc1 L_nx1')
    a(f'v_mov_b32 v245, {LDS_X}'); a('s_mov_b64 exec, 1'); a('ds_write_b32 v245, v244'); a('s_mov_b64 exec, -1'); a('s_waitcnt lgkmcnt(0)')
    a.label('L_nx1')
    a('s_barrier')
    a(f'v_mov_b32 v245, {LDS_X}'); a('ds_read_b32 v246, v245'); a('s_waitcnt lgkmcnt(0)')
    tld = [f'v_min_u32 v245, {len(tl) - 32}, v246', 'v_lshlrev_b32 v245, 2, v245', f'v_add_u32 v245, {LDS_T + 128}, v245', 'ds_read_b32 v245, v245',
           f'v_readfirstlane_b32 {sT}, v246', f's_add_u32 {sT}, {sT}, 32']
    for x in tld: a(x)
    a('s_waitcnt lgkmcnt(0)'); a('v_readfirstlane_b32 s91, v245')
    a('s_branch L_have1')
    a.label('L_have')
    a(f's_lshl_b32 s90, {sT}, 2'); a('s_load_dword s91, s[86:87], s90'); a('s_waitcnt lgkmcnt(0)')
    a.label('L_have1')
    a('s_mov_b32 s98, 1')
    a(f's_and_b32 {sKind}, s91, 255'); a(f's_lshr_b32 {sP}, s91, 8'); a(f's_and_b32 {sP}, {sP}, 255'); a(f's_lshr_b32 {sQ_}, s91, 16')
    def wstamp(k, a=a):
        if not wst: return
        a('s_memrealtime s[96:97]'); a('s_memtime s[54:55]'); a('s_waitcnt lgkmcnt(0)')
        a(f's_lshl_b32 s55, {sXW}, 9'); a(f's_add_u32 s55, s55, {sT}'); a('s_lshl_b32 s55, s55, 6'); a(f's_add_u32 s55, s55, {STAMP + 262144 + 8*k:#x}')
        a('v_mov_b32 v240, 0'); a('v_mov_b32 v242, s96'); a('v_mov_b32 v243, s54'); a('s_mov_b64 exec, 1')
        a(f'buffer_store_dwordx2 v[242:243], v240, s[4:7], s55 offen'); a('s_mov_b64 exec, -1')
    hk = (lambda a_: wstamp(3, a_)) if wst else None
    def do_sweep(a, t0, lst):
        a('v_lshlrev_b32 v174, 7, v1')
        a(f's_sub_u32 s42, {sT}, {t0}'); a('s_lshl_b32 s40, s42, 2'); a(f's_add_u32 s40, s40, {sXW}'); a('s_lshl_b32 s40, s40, 2'); a(f's_add_u32 s40, s40, {sW_}')
        a('s_lshl_b32 s40, s40, 13')
        a(f's_cmp_ge_u32 s42, 16'); a('s_cselect_b32 s40, 0x40000000, s40')
        a(f's_add_u32 s41, s40, {2*MB}')
        for n, (base, size, so) in enumerate(lst):
            srd(a, 44, base, size * MB)
            a(f'buffer_load_dword v{175}, v174, s[44:47], {so} offen')
    wstamp(0)
    def wait(deps, prog=None, slp=6, stamp=True):
        l, d = a.newlabel('L_dw'), a.newlabel('L_dd')
        a(f's_cmp_lg_u32 {sW_}, 0'); a(f's_cbranch_scc1 {d}')
        [a(f'v_mov_b32 v{228+q}, {CNT + 4096*q:#x}') for q in sorted({0} | {b >> 12 for _, b, _ in deps})]
        a.label(l)
        for n, (so, base, tgt) in enumerate(deps): a(f'buffer_load_dword v{234+n}, v{228 + (base >> 12)}, {WS}, {so} offen offset:{base & 4095} sc1')
        if prog: a(f's_lshl_b32 s45, {sXW}, 7'); a(f'buffer_load_dword v238, v228, {WS}, s45 offen offset:{C_PROG} sc1'); a(f'buffer_load_dword v239, v228, {WS}, s42 offen sc1')
        a('s_waitcnt vmcnt(0)')
        a('s_mov_b32 s44, 1')
        for n, (so, base, tgt) in enumerate(deps):
            a(f'v_readfirstlane_b32 s45, v{234+n}'); a(f's_cmp_ge_u32 s45, {tgt}'); a('s_cselect_b32 s44, s44, 0')
        if prog:
            a('v_readfirstlane_b32 s45, v238'); a('v_readfirstlane_b32 s47, v239')
            a('s_cmp_ge_u32 s47, 16'); a('s_cselect_b32 s45, 64, s45')
            a(f's_cmp_ge_u32 s45, {prog}'); a('s_cselect_b32 s44, s44, 0')
        a('s_cmp_eq_u32 s44, 1'); a(f's_cbranch_scc1 {d}')
        a(f's_sleep {slp}')
        a(f's_add_u32 {sSpin}, {sSpin}, 1'); a(f's_cmp_lt_u32 {sSpin}, {SPIN_MAX}'); a(f's_cbranch_scc1 {l}')
        a.label(d)
        a('s_barrier')
        if stamp: wstamp(1)
    for k, l in ((K_AQ, 'L_aqkv'), (K_AK, 'L_aqkv'), (K_AV, 'L_aqkv'), (K_BQKV, 'L_bqkv'), (K_SK, 'L_small'), (K_SV, 'L_small')):
        a(f's_cmp_eq_u32 {sKind}, {k}'); a(f's_cbranch_scc1 {l}')
    a(f's_mov_b32 {sRet}, 0')
    if jpf > 1:
        a('s_getpc_b64 s[88:89]')
        a.label('L_pc2')
        a(f's_lshl_b32 s90, {sT}, 2'); a(f's_add_u32 s90, s90, {sW_}'); a('s_and_b32 s90, s90, 31'); a('s_lshl_b32 s90, s90, 12')
        a('v_mbcnt_lo_u32_b32 v246, -1, 0'); a('v_mbcnt_hi_u32_b32 v246, -1, v246'); a('v_lshlrev_b32 v246, 6, v246'); a('v_add_u32 v246, s90, v246')
        a('v_min_u32 v246, L_table-L_pc2, v246')
        a('global_load_dword v247, v246, s[88:89]')
    a.label('L_epi')
    a(f's_mov_b32 {DF["s0"]}, 0x40000000'); a(f's_mov_b32 {DF["s1"]}, 0x40000000'); a(f's_mov_b32 {pSig}, 0')
    a(f's_cmp_eq_u32 {sRet}, 1'); a('s_cselect_b64 vcc, -1, 0')
    a(f's_cmp_eq_u32 {pE}, 0'); a('s_cbranch_scc1 L_epid')
    ekw = dict(sOo=pOo, sSeg=pSeg)
    for n_, (G, kind, so, fl) in enumerate(((G1, 'qk', WS, 'sc1'), (G1, 'v', WS, 'sc1'), (G2, 'qk', WS, 'sc1'), (G2, 'v', WS, 'sc1'), (G3, 'out', SO, ofl), (G4, 'out', SO, ofl))):
        a(f's_cmp_lg_u32 {pE}, {n_+1}'); a(f's_cbranch_scc1 L_e{n_}')
        if G is G1 and defer:
            G.epilogue(a, kind, G1.FX[0], fl, SO=so, defer=DF, inter=G1.gdma(a, 1) if chain and e1 else (), ipos=ipos, **ekw)
            a('s_branch L_edef')
        else:
            G.epilogue(a, kind, EPI, fl, SO=so, **ekw)
            a('s_branch L_epid' if kind == 'out' else 's_branch L_esig')
        a.label(f'L_e{n_}')
    a.label('L_edef')
    a(f's_mov_b32 {pSig}, 1')
    a(f's_cmp_eq_u32 {sRet}, 1'); a('s_cbranch_scc1 L_epid')
    a(f's_mov_b32 {pSig}, 0')
    for x in dstores: a(x)
    a(f's_mov_b32 {DF["s0"]}, 0x40000000'); a(f's_mov_b32 {DF["s1"]}, 0x40000000')
    a.label('L_esig')
    a('s_waitcnt vmcnt(0)')
    a('s_cmp_lg_u32 s39, 0'); a('s_cbranch_scc1 L_vok')
    verify(a)
    a('s_mov_b32 s39, 1')
    a.label('L_vok')
    a('s_barrier')
    signal(a, 0, soff=pDone, srd_=WS, inc=pInc, two=True)
    a.label('L_epid')
    if wst:
        l = a.newlabel('L_ws'); a(f's_cmp_eq_u32 {pE}, 0'); a(f's_cbranch_scc1 {l}')
        a(f's_mov_b32 s57, {sT}'); a(f's_mov_b32 {sT}, s56'); wstamp(2); a(f's_mov_b32 {sT}, s57'); a.label(l)
    a(f's_mov_b32 {pE}, 0')
    for r_, l in ((1, 'L_r1'), (2, 'L_r2'), (3, 'L_next')):
        a(f's_cmp_eq_u32 {sRet}, {r_}'); a(f's_cbranch_scc1 {l}')
    for k, l in ((K_ATB, 'L_atb'), (K_BO, 'L_bo'), (K_ATA, 'L_ata'), (K_ATA4, 'L_ata4'), (K_AO, 'L_ao'), (K_AOS, 'L_aos'), (K_SWP, 'L_swp'), (K_AO4, 'L_ao4'), (K_AO2, 'L_ao'), (K_BO2, 'L_bo')) + (((K_AOF, 'L_aof'),) if USE_AOF else ()):
        a(f's_cmp_eq_u32 {sKind}, {k}'); a(f's_cbranch_scc1 {l}')
    a('s_branch L_exit')
    def early(a_):
        a_(f's_cmp_eq_u32 {sKind}, {K_AO2}'); a_(f's_cselect_b32 s90, 999, {sT}'); a_(f's_cmp_lt_u32 s90, {len(tl) - nlate if nlate else 1000}')
    def reqe(a_):
        l = a_.newlabel('L_re'); early(a_); a_(f's_cbranch_scc0 {l}'); request(a_); a_.label(l)
    def tile_end(e):
        wstamp(4)
        a(f's_mov_b32 {pE}, {e}'); a(f's_mov_b32 {pOo}, {sOo}'); a(f's_mov_b32 {pSeg}, {sSeg}')
        a(f's_add_u32 {pDone}, {sDone}, {CNT:#x}'); a(f's_mov_b32 {pInc}, s98')
        if wst: a(f's_mov_b32 s56, {sT}'); a('s_waitcnt vmcnt(0)')
        if e >= 5: early(a)
        else: a('s_cmp_lg_u32 s39, 0')
        a('s_cbranch_scc1 L_got')
        a(f's_mov_b32 {sRet}, 3'); a('s_branch L_epi')
    def hk1(a_):
        if wst: wstamp(3, a_)
        l = a_.newlabel('L_hs'); a_(f's_cmp_eq_u32 {pSig}, 0'); a_(f's_cbranch_scc1 {l}')
        signal(a_, 0, soff=pDone, srd_=WS, inc=pInc, two=True)
        a_.label(l)
    def dec_a(a):
        srd(a, 8, 64, 4 * MB)
        a(f's_cmp_eq_u32 {sKind}, 0'); a('s_cselect_b64 s[88:89], s[68:69], s[70:71]')
        a(f's_cmp_eq_u32 {sKind}, 2'); a('s_cselect_b64 s[88:89], s[72:73], s[88:89]')
        srd(a, 12, 88, 8 * MB)
        a(f's_lshl_b32 s91, {sXW}, 2'); a(f's_add_u32 s91, s91, {sQ_}')
        a(f's_mov_b32 {sLdw}, 8192'); a(f's_mov_b32 {sSeg}, {256*KB}')
        a(f's_lshl_b32 {sXo}, {sP}, 19'); a(f's_lshl_b32 {sWo}, s91, 9')
        a(f's_lshl_b32 {sOo}, {sKind}, 24'); a(f's_lshl_b32 s90, {sP}, 21'); a(f's_add_u32 {sOo}, {sOo}, s90')
        a('s_lshl_b32 s90, s91, 14'); a(f's_add_u32 {sOo}, {sOo}, s90')
        a(f's_lshl_b32 {sDone}, {sP}, 9'); a(f's_add_u32 {sDone}, {sDone}, {C_KV}'); a(f's_cmp_eq_u32 {sKind}, 0'); a(f's_cselect_b32 {sDone}, {C_Q}, {sDone}'); a('s_cselect_b32 s98, 1, 2')
        a(f's_mov_b32 s48, {sKind}')
    def dec_b(a):
        srd(a, 8, 78, 4 * MB); srd(a, 12, 80, 6 * MB)
        a(f's_lshl_b32 s91, {sQ_}, 2'); a(f's_add_u32 s91, s91, {sXW}')
        a(f's_mov_b32 {sLdw}, 6144'); a(f's_mov_b32 {sSeg}, {64*KB}')
        a(f's_lshl_b32 {sXo}, {sP}, 19'); a(f's_lshl_b32 {sWo}, s91, 9')
        a(f's_lshl_b32 {sOo}, {sQ_}, 22'); a(f's_lshl_b32 s90, {sP}, 19'); a(f's_add_u32 {sOo}, {sOo}, s90')
        a(f's_lshl_b32 s90, {sXW}, 14'); a(f's_add_u32 {sOo}, {sOo}, s90'); a(f's_add_u32 {sOo}, {sOo}, {BQKV:#x}')
        a(f's_mov_b32 {sDone}, {C_BQ}'); a(f's_mov_b32 s48, {sQ_}'); a('s_mov_b32 s98, 1')
    def dec_g(a):
        a(f's_lshl_b32 s90, {sP}, 9'); a(f's_add_u32 {sDone}, {sDone}, s90'); a(f's_lshl_b32 s90, {sXW}, 7'); a(f's_add_u32 {sDone}, {sDone}, s90')
        a(f's_mov_b32 {sLdx}, 2048'); a(f's_mov_b32 {sNk}, 8')
    a.label('L_aqkv')
    dec_a(a)
    a('s_branch L_g1')
    a.label('L_bqkv')
    dec_b(a)
    a.label('L_g1')
    dec_g(a)
    G1.setup(a, rowreg='v174')
    if chain: a(f'v_mov_b32 v241, {LDS_X}'); a('v_lshrrev_b32 v175, 4, v0'); a('v_add_u32 v175, v175, v241')
    a(f's_mov_b32 {sRet}, 1'); a('s_branch L_epi')
    a.label('L_r1')
    if chain: a(f's_cmp_eq_u32 {pSig}, 1'); a('s_cbranch_scc1 L_r1c'); a(f's_waitcnt vmcnt({G1.ND})'); a.label('L_r1c'); assert defer
    a('s_cmp_eq_u32 s48, 2'); a('s_cbranch_scc1 L_g2')
    assert all((e & 255) in (K_SK, K_SV) for e in tl[:32])
    def c_ld(e):
        def f(a):
            a(f's_mov_b32 {pE}, {e}'); a(f's_mov_b32 {pOo}, {sOo}'); a(f's_mov_b32 {pSeg}, {sSeg}')
            a(f's_add_u32 {pDone}, {sDone}, {CNT:#x}'); a(f's_mov_b32 {pInc}, s98')
            if wst: a(f's_mov_b32 s56, {sT}'); wstamp(5)
        return f
    c_ld2 = tld
    def c_dec(a):
        lb, lg, ls, ld = [a.newlabel('L_cd') for _ in range(4)]
        def ost(k):
            if wst: a(f's_mov_b32 s57, {sT}'); a(f's_mov_b32 {sT}, s56'); wstamp(k); a(f's_mov_b32 {sT}, s57')
        ost(7)
        a('v_readfirstlane_b32 s91, v245')
        a(f's_and_b32 {sKind}, s91, 255'); a(f's_lshr_b32 {sP}, s91, 8'); a(f's_and_b32 {sP}, {sP}, 255'); a(f's_lshr_b32 {sQ_}, s91, 16')
        a(f's_mov_b32 s92, {sLdw}')
        a(f's_cmp_gt_u32 {sKind}, {K_BQKV}'); a(f's_cbranch_scc1 {ls}')
        a(f's_cmp_eq_u32 {sKind}, {K_BQKV}'); a(f's_cbranch_scc1 {lb}')
        dec_a(a); a(f's_branch {lg}')
        a.label(ls)
        a('s_mov_b64 vcc, 0'); a(f's_mov_b32 {sRet}, 0'); a(f's_branch {ld}')
        a.label(lb)
        dec_b(a)
        a.label(lg)
        dec_g(a)
        a('s_mov_b64 vcc, -1')
        a(f's_sub_i32 s92, {sLdw}, s92'); a(f's_lshl_b32 {sWstep}, {sLdw}, 6')
        a(f'v_mul_i32_i24 v{G1.TMP}, s92, v174'); a(f's_mul_i32 s92, s92, {G1.RPI}'); a('s_mov_b32 s93, 0')
        for j in range(G1.NW):
            a(f'v_add3_u32 v{G1.WA+j}, v{G1.WA+j}, v{G1.TMP}, s93'); a('s_add_u32 s93, s93, s92')
        a.label(ld)
        ost(6)
    for tag, ori, e in (('g1', 'T', 1), ('g2', 'N', 2)):
        if e == 2: a.label('L_g2')
        if not chain:
            G1.loop(a, tag, ori, exp='front', hook=hk1, fin_hook=lambda a_: (wstamp(5), request(a_)), extra=dstores); tile_end(e); continue
        G1.loop(a, tag, ori, exp='front', hook=hk1, fin_hook=c_ld(e), extra=dstores,
                chain=dict(req=lambda a_: None, wr=[f's_cmp_eq_u32 {sNk}, 1', f's_cbranch_scc1 L_{tag}_cw', f'L_{tag}_cwb:'],
                           rd=lambda a_: a_(f's_cmp_le_u32 {sNk}, 2\ns_cbranch_scc1 L_{tag}_cr\nL_{tag}_crb:'), dec=c_dec, ld=c_ld2, w0=16 if e1 else 0, e1=e1))
        if wst:
            a(f's_mov_b32 s57, {sT}'); a(f's_mov_b32 {sT}, s56'); wstamp(4); a(f's_mov_b32 {sT}, s57'); wstamp(0)
        a(f's_cmp_eq_u32 {sRet}, 1'); a('s_cbranch_scc1 L_epi')
        a('s_branch L_have1')
        a.label(f'L_{tag}_cw')
        a('s_mov_b64 exec, 1'); a('ds_write_b32 v175, v244'); a('s_mov_b64 exec, -1'); a(f's_branch L_{tag}_cwb')
        a.label(f'L_{tag}_cr')
        a('ds_read_b32 v246, v241')
        a(f's_cmp_eq_u32 {sNk}, 1'); a(f's_cbranch_scc1 L_{tag}_crb')
        request(a); a(f's_branch L_{tag}_crb')
    a.label('L_small')
    srd(a, 8, 64, 4 * MB)
    a(f's_cmp_eq_u32 {sKind}, {K_SK}'); a('s_cselect_b64 s[88:89], s[70:71], s[72:73]')
    srd(a, 12, 88, 8 * MB)
    a(f's_lshl_b32 s91, {sXW}, 3'); a(f's_add_u32 s91, s91, {sQ_}')
    a(f's_mov_b32 {sLdw}, 8192'); a(f's_mov_b32 {sSeg}, {256*KB}'); a(f's_mov_b32 {sLdx}, 2048'); a(f's_mov_b32 {sNk}, {16 // G2.NS}')
    a(f's_lshl_b32 {sXo}, {sP}, {18 + S256}'); a(f's_lshl_b32 {sWo}, s91, 8')
    a(f's_sub_u32 {sOo}, {sKind}, 8'); a(f's_lshl_b32 {sOo}, {sOo}, 24'); a(f's_lshl_b32 s90, {sP}, {20 + S256}'); a(f's_add_u32 {sOo}, {sOo}, s90')
    a('s_lshl_b32 s90, s91, 13'); a(f's_add_u32 {sOo}, {sOo}, s90')
    a(f's_lshl_b32 {sDone}, {sP}, {9 + S256}'); a(f's_add_u32 {sDone}, {sDone}, {C_KV}'); a(f's_lshl_b32 s90, {sXW}, 7'); a(f's_add_u32 {sDone}, {sDone}, s90')
    if S256: a('s_mov_b32 s98, 5')
    G2.setup(a)
    a(f's_mov_b32 {sRet}, 2'); a('s_branch L_epi')
    a.label('L_r2')
    NT = 2 if sweep else 0
    if sweep: do_sweep(a, 16 if S256 else 32, ((64, 4, 's40'), (64, 4, 's41')))
    a(f's_cmp_eq_u32 {sKind}, {K_SV}'); a('s_cbranch_scc1 L_g5')
    G2.loop(a, 'g4', 'T', younger=NT, hook=hk, fin_hook=request, exp='front' if S256 else ''); tile_end(3)
    a.label('L_g5')
    G2.loop(a, 'g5', 'N', younger=NT, hook=hk, fin_hook=request, exp='front' if S256 else ''); tile_end(4)
    a.label('L_swp')
    a('s_barrier')
    a('v_and_b32 v1, 63, v0'); a('v_lshlrev_b32 v2, 7, v1')
    a(f's_lshl_b32 s40, {sP}, 2'); a(f's_add_u32 s40, s40, {sXW}'); a('s_lshl_b32 s40, s40, 2'); a(f's_add_u32 s40, s40, {sW_}'); a('s_lshl_b32 s40, s40, 13')
    for base, size in ((78, 4), (80, 6), (82, 2)):
        srd(a, 44, base, size * MB)
        a('s_mov_b32 s41, s40')
        for q in range(size * 8 // NSWP):
            a(f'buffer_load_dword v{4+q}, v2, s[44:47], s41 offen'); a(f's_add_u32 s41, s41, {128*KB*NSWP}')
    if ppoll:
        assert NSWP == 4 and SPLIT0 == 15 and not USE_AOF
        a('v_lshlrev_b32 v2, 4, v1')
        for r in range(4): a(f'v_mov_b32 v{32+r}, -1')
        a('s_lshl_b32 s41, s40, 3'); a(f's_add_u32 s41, s41, {PARTK + 12*MB:#x}'); a('s_mov_b32 s42, 16')
        a.label('L_swf')
        for q in range(4): a(f'buffer_store_dwordx4 v[32:35], v2, {WS}, s41 offen offset:{1024*q} sc1')
        a('s_add_u32 s41, s41, 4096'); a('s_sub_u32 s42, s42, 1'); a('s_cmp_lg_u32 s42, 0'); a('s_cbranch_scc1 L_swf')
        a('s_waitcnt vmcnt(0)')
        request(a)
        a(f's_mov_b32 {sDone}, {C_FIN + 1024}'); a('s_branch L_done')
    wstamp(2)
    a('s_branch L_next')
    a.label('L_atb')
    a(f's_lshl_b32 s90, {sXW}, 7'); a(f's_lshl_b32 s40, {sP}, 9'); a('s_add_u32 s40, s40, s90'); a(f's_max_u32 s41, {sP}, 1'); a('s_sub_u32 s41, s41, 1'); a('s_lshl_b32 s41, s41, 9'); a('s_add_u32 s41, s41, s90')
    wait([('s40', C_BQ, 3), ('s41', C_BQ, 3)])
    a(f's_lshl_b32 {sDone}, {sP}, 7'); a(f's_add_u32 {sDone}, {sDone}, {C_AB}')
    a(f's_lshl_b32 s46, {sP}, 3'); a(f's_lshl_b32 s90, {sQ_}, 1'); a('s_add_u32 s99, s46, s90'); a(f's_lshr_b32 s90, {sW_}, 1'); a('s_add_u32 s99, s99, s90')
    a('s_lshl_b32 s99, s99, 3'); a(f's_lshl_b32 s90, {sXW}, 1'); a('s_add_u32 s99, s99, s90'); a(f's_and_b32 s90, {sW_}, 1'); a('s_add_u32 s20, s99, s90')
    a('v_and_b32 v1, 63, v0')
    attn.gen_attnB(a, 's20', ld_flags='sc1', st_flags='sc1', after_loads=request)
    a('s_branch L_done')
    def reqf(a_):
        l = a_.newlabel('L_rf'); a_(f's_cmp_lt_u32 {sP}, {FEND - FOLLOW}'); a_(f's_cbranch_scc1 {l}'); request(a_); a_.label(l)
    for lab, n_ in (('L_ata', 1), ('L_ata4', 4)):
        a.label(lab)
        if n_ == 1: a('s_mov_b32 s50, 0'); a.label('L_ata_c'); assert FINE0 >= 4
        a(f's_lshr_b32 s40, {sP}, 3'); a('s_lshl_b32 s40, s40, 9'); a(f's_lshl_b32 s90, {sXW}, 7'); a('s_add_u32 s40, s40, s90'); a(f's_add_u32 s41, {sP}, {n_}')
        if n_ == 1 and dpoll: a('s_min_u32 s41, s41, 62')
        a(f's_lshr_b32 s43, {sP}, 2'); a('s_lshl_b32 s43, s43, 9'); a('s_add_u32 s43, s43, s90'); a(f's_add_u32 s43, s43, {C_KV}')
        a(f's_lshl_b32 s42, {sXW}, 1'); a(f's_add_u32 s42, s42, {sQ_}'); a('s_lshl_b32 s42, s42, 7'); a(f's_add_u32 s42, s42, {C_FIN}')
        if n_ == 1:
            a(f's_cmp_ge_u32 s50, {max(FOLLOW, 1)}'); a('s_cbranch_scc1 L_ata_s')
            wait([('s40', C_Q, 4), ('s43', 0, 16)], stamp=False)
            a.label('L_ata_s')
        else: wait([('s40', C_Q, 4), ('s43', 0, 16)], prog='s41')
        a(f's_mov_b32 s98, {n_}')
        a(f's_lshr_b32 {sDone}, {sP}, 2'); a(f's_lshl_b32 {sDone}, {sDone}, 7'); a(f's_add_u32 {sDone}, {sDone}, {C_AA}')
        if n_ == 1:
            assert FINE0 <= SPLIT0 and SPLIT0 >= 13
            a(f's_lshr_b32 s90, {sP}, 1'); a('s_sub_u32 s90, s90, 24'); a('s_lshl_b32 s90, s90, 2'); a(f's_add_u32 s90, s90, {sXW}'); a('s_lshl_b32 s90, s90, 1'); a(f's_add_u32 s90, s90, {sQ_}')
            a('s_lshl_b32 s90, s90, 7'); a(f's_add_u32 s90, s90, {C_AF}')
            a(f's_cmp_ge_u32 {sP}, {4*SPLIT0}'); a(f's_cselect_b32 {sDone}, s90, {sDone}')
        a(f's_lshl_b32 s20, {sP}, 5'); a(f's_lshl_b32 s90, {sXW}, 3'); a('s_add_u32 s20, s20, s90'); a(f's_lshl_b32 s90, {sQ_}, 2'); a('s_add_u32 s20, s20, s90'); a(f's_add_u32 s20, s20, {sW_}')
        a('v_and_b32 v1, 63, v0')
        pl = f'buffer_load_dword v238, v228, {WS}, s45 offen offset:{C_PROG} sc1'
        def mid1():
            a('s_waitcnt vmcnt(24)')
            a.label('L_m1')
            a('v_readfirstlane_b32 s44, v238'); a('s_cmp_ge_u32 s44, s41'); a('s_cbranch_scc1 L_m1d')
            a(f's_add_u32 {sSpin}, {sSpin}, 1'); a(f's_cmp_ge_u32 {sSpin}, {SPIN_MAX}'); a('s_cbranch_scc1 L_m1d')
            a('s_sleep 3'); a(pl); a('s_waitcnt vmcnt(0)'); a('s_branch L_m1')
            a.label('L_m1d')
            wstamp(1)
        if n_ == 1 and dpoll == 1: a(f'v_mov_b32 v228, {CNT:#x}'); a(f's_lshl_b32 s45, {sXW}, 7'); a(pl)
        attn.gen_attnA(a, 's20', ld_flags='sc1', st_flags='sc1', mid=(mid1 if dpoll == 1 else lambda: wait([], prog='s41', slp=3)) if n_ == 1 else None, n=n_, after_loads=reqf if n_ == 1 and FOLLOW else request, valid=sSpin if n_ == 1 and dpoll else None)
        a('s_branch L_done')
    a.label('L_bo')
    a(f's_lshr_b32 s40, {sP}, 1'); a('s_lshl_b32 s40, s40, 7'); a(f's_add_u32 s40, s40, {C_AB}'); a('s_mov_b32 s41, 16')
    srd(a, 12, 82, 2 * MB)
    a(f's_mov_b32 {sLdx}, {64*KB}'); a(f's_mov_b32 {sNk}, 4')
    a(f's_lshl_b32 {sXo}, {sP}, 18'); a(f's_add_u32 {sXo}, {sXo}, {OB:#x}'); a(f's_mov_b32 {sOo}, 2048')
    a('s_branch L_g3')
    a.label('L_aos')
    srd(a, 12, 74, 8 * MB)
    a(f's_and_b32 s48, {sQ_}, 7'); a(f's_lshr_b32 {sQ_}, {sQ_}, 3')
    a(f's_sub_u32 s40, {sP}, 12'); a('s_lshl_b32 s40, s40, 4'); a('s_add_u32 s40, s40, s48'); a('s_lshl_b32 s40, s40, 7'); a(f's_add_u32 s40, s40, {C_AF}'); a('s_mov_b32 s41, 2'); a('s_add_u32 s42, s40, 1024')
    a(f's_mov_b32 {sLdx}, {256*KB}'); a(f's_mov_b32 {sNk}, 2')
    a(f's_lshl_b32 {sXo}, {sP}, 20'); a(f's_add_u32 {sXo}, {sXo}, {OA:#x}'); a('s_lshl_b32 s90, s48, 15'); a(f's_add_u32 {sXo}, {sXo}, s90')
    a(f's_mov_b32 {sOo}, 0'); a('s_lshl_b32 s49, s48, 20')
    a('s_branch L_g3b')
    a.label('L_ao4')
    a(f's_lshl_b32 s40, {sP}, 7'); a(f's_add_u32 s40, s40, {C_AA}'); a('s_mov_b32 s41, 32'); a('s_mov_b32 s42, s40')
    srd(a, 12, 74, 8 * MB)
    a(f's_and_b32 s48, {sQ_}, 3'); a(f's_lshr_b32 {sQ_}, {sQ_}, 2')
    a(f's_mov_b32 {sLdx}, {256*KB}'); a(f's_mov_b32 {sNk}, 4')
    a(f's_lshl_b32 {sXo}, {sP}, 20'); a(f's_add_u32 {sXo}, {sXo}, {OA:#x}'); a('s_lshl_b32 s90, s48, 16'); a(f's_add_u32 {sXo}, {sXo}, s90')
    a(f's_mov_b32 {sOo}, 0'); a('s_lshl_b32 s49, s48, 21')
    a('s_branch L_g3b')
    a.label('L_ao')
    a(f's_lshl_b32 s40, {sP}, 7'); a(f's_add_u32 s40, s40, {C_AA}'); a('s_mov_b32 s41, 32')
    srd(a, 12, 74, 8 * MB)
    a(f's_mov_b32 {sLdx}, {256*KB}'); a(f's_mov_b32 {sNk}, 16')
    a(f's_lshl_b32 {sXo}, {sP}, 20'); a(f's_add_u32 {sXo}, {sXo}, {OA:#x}'); a(f's_mov_b32 {sOo}, 0')
    a.label('L_g3')
    a('s_mov_b32 s49, 0'); a(f's_cmp_eq_u32 {sKind}, {K_AO2}'); a('s_cselect_b32 s42, 128, 0'); a('s_add_u32 s42, s42, s40')
    a.label('L_g3b')
    srd(a, 8, 4, WS_BYTES)
    a(f's_lshl_b32 s91, {sXW}, 1'); a(f's_add_u32 s91, s91, {sQ_}')
    a(f's_mov_b32 {sLdw}, 2048'); a(f's_mov_b32 {sSeg}, 4096')
    a(f's_lshl_b32 {sWo}, s91, 8'); a(f's_add_u32 {sOo}, {sOo}, {sWo}'); a(f's_lshl_b32 s90, {sP}, 19'); a(f's_add_u32 {sOo}, {sOo}, s90')
    a(f's_add_u32 {sWo}, {sWo}, s49'); a('s_mov_b32 s50, s91')
    a(f's_cmp_lt_u32 {sKind}, {K_AO2}'); a('s_cbranch_scc1 L_g3c')
    a(f's_cmp_eq_u32 {sKind}, {K_AO2}'); a(f's_cselect_b32 {sNk}, 21, 5'); a('s_mov_b32 s48, 2048')
    G4.setup(a, mid=lambda: wait([('s40', 0, 's41'), ('s42', 0, 's41')], slp=3)); G4.loop(a, 'g6', 'T', hook=hk, fin_hook=reqe, xlast=True, ext=1, exp=g4exp)
    tile_end(6)
    a.label('L_g3c')
    def req3(a_):
        l = a_.newlabel('L_r3'); a_(f's_cmp_ge_u32 {sKind}, {K_AOS}'); a_(f's_cbranch_scc1 {l}'); reqe(a_); a_.label(l)
    G3.setup(a, mid=lambda: wait([('s40', 0, 's41'), ('s42', 0, 's41')] + ([('0', C_FIN + 1024, 16)] if ppoll else []), slp=3)); G3.loop(a, 'g3', 'T', hook=hk, fin_hook=req3, xlast=True)
    a(f's_cmp_ge_u32 {sKind}, {K_AOS}'); a('s_cbranch_scc1 L_part')
    tile_end(5)
    a.label('L_part')
    wstamp(4)
    assert MS == 16
    a(f's_sub_u32 s40, {sP}, {13 if USE_AOF else 12}'); a('s_lshl_b32 s40, s40, 3'); a('s_add_u32 s40, s40, s50')
    assert min(SPLIT0, SPLIT4) >= (13 if USE_AOF else 12)
    a('s_lshl_b32 s41, s40, 19'); a(f's_add_u32 s41, s41, {PARTK:#x}'); a(f's_lshl_b32 s90, {sW_}, 14'); a('s_add_u32 s41, s41, s90')
    a('s_lshl_b32 s90, s48, 16'); a('s_add_u32 s42, s41, s90')
    a('v_lshlrev_b32 v2, 4, v1')
    for q in range(16):
        if q and q % 4 == 0: a('s_add_u32 s42, s42, 4096')
        a(f'buffer_store_dwordx4 {ar(4*q, 4)}, v2, {WS}, s42 offen offset:{(q&3)*1024} sc1')
    a('s_lshl_b32 s40, s40, 7')
    a(f's_add_u32 s43, s40, {CNT + C_SP:#x}')
    if ppoll: a(f's_waitcnt vmcnt({pw})'); a(f's_cmp_eq_u32 {sKind}, {K_AOS}'); a('s_cbranch_scc1 L_part8')
    a('s_waitcnt vmcnt(0)'); a('s_barrier')
    signal(a, 0, soff='s43', srd_=WS)
    a(f's_cmp_eq_u32 {sKind}, {K_AOS}'); a('s_cselect_b32 s43, 8, 4')
    wait([('s40', C_SP, 's43')], slp=1, stamp=False)
    request(a)
    def oaddr():
        lane_expr(a, 'v3', [(0, 4, 4096), (4, 2, 16)], lane='v1', tmp='v4')
        a(f's_lshr_b32 s90, {sW_}, 1'); a('s_lshl_b32 s90, s90, 18'); a(f's_add_u32 {sOo}, {sOo}, s90')
        a(f's_and_b32 s90, {sW_}, 1'); a('s_lshl_b32 s90, s90, 7'); a(f's_add_u32 {sOo}, {sOo}, s90')
    a(f's_cmp_eq_u32 {sKind}, {K_AO4}'); a('s_cbranch_scc1 L_part4')
    a.label('L_part8')
    a('s_lshl_b32 s90, s48, 11'); a('s_add_u32 s42, s41, s90')
    oaddr()
    a('s_lshr_b32 s90, s48, 1'); a('s_lshl_b32 s90, s90, 16'); a(f's_add_u32 {sOo}, {sOo}, s90')
    a('s_and_b32 s90, s48, 1'); a('s_lshl_b32 s90, s90, 6'); a(f's_add_u32 {sOo}, {sOo}, s90')
    a.label('L_part8r')
    a('s_mov_b32 s41, s42')
    for p in range(8):
        for h in range(2): a(f'buffer_load_dwordx4 {vr(16 + 8*p + 4*h, 4)}, v2, {WS}, s41 offen offset:{1024*h} sc1')
        a('s_add_u32 s41, s41, 0x10000')
    if ppoll:
        a('v_mov_b32 v5, 0')
        for p in range(8):
            a(f's_waitcnt vmcnt({14 - 2*p})')
            for q in range(0, 8, 2): a(f'v_max3_u32 v5, v5, v{16+8*p+q}, v{17+8*p+q}')
        a('v_cmp_eq_u32 vcc, -1, v5')
        a(f's_add_u32 {sSpin}, {sSpin}, 1'); a(f's_cmp_ge_u32 {sSpin}, {SPIN_MAX}'); a('s_cbranch_scc1 L_part8k')
        a('s_cbranch_vccnz L_part8r')
        a.label('L_part8k')
    for p in range(1, 8):
        a(f's_waitcnt vmcnt({14 - 2*p})')
        for q in range(0, 8, 2): a(f'v_pk_add_f32 {vr(16+q,2)}, {vr(16+q,2)}, {vr(16+8*p+q,2)}')
    for q in range(4): a(f'v_cvt_pk_bf16_f32 v{8+q}, v{16+2*q}, v{17+2*q}')
    a(f'buffer_store_dwordx4 v[8:11], v3, {SO}, {sOo} offen {ofl}')
    wstamp(2)
    assert all((e & 255) == K_AOS for e in tl[-16:])
    a('s_branch L_exit' if ppoll else 's_branch L_got')
    a.label('L_part4')
    a('s_lshl_b32 s90, s48, 12'); a('s_add_u32 s41, s41, s90')
    for p in range(4):
        for h in range(4): a(f'buffer_load_dwordx4 {vr(16 + 16*p + 4*h, 4)}, v2, {WS}, s41 offen offset:{1024*h} sc1')
        a('s_add_u32 s41, s41, 0x10000')
    oaddr()
    a('s_lshl_b32 s90, s48, 16'); a(f's_add_u32 {sOo}, {sOo}, s90')
    for p in range(1, 4):
        a(f's_waitcnt vmcnt({12 - 4*p})')
        for q in range(0, 16, 2): a(f'v_pk_add_f32 {vr(16+q,2)}, {vr(16+q,2)}, {vr(16+16*p+q,2)}')
    for q in range(8): a(f'v_cvt_pk_bf16_f32 v{8+q}, v{16+2*q}, v{17+2*q}')
    for h in range(2): a(f'buffer_store_dwordx4 {vr(8+4*h, 4)}, v3, {SO}, {sOo} offen offset:{64*h} {ofl}')
    wstamp(2)
    a('s_branch L_got')
    if USE_AOF:
        a.label('L_aof')
        G5 = Gemm(64, 128, 64, 4, 'packed', perm_out=True, ld_flags='sc1', MS=16)
        srd(a, 12, 74, 8 * MB); srd(a, 8, 4, WS_BYTES)
        a(f's_and_b32 s48, {sQ_}, 15'); a(f's_lshr_b32 {sQ_}, {sQ_}, 4')
        a(f's_lshl_b32 s50, {sXW}, 1'); a(f's_add_u32 s50, s50, {sQ_}')
        a(f's_sub_u32 s40, {sP}, 24'); a('s_lshl_b32 s40, s40, 3'); a('s_lshr_b32 s90, s48, 1'); a('s_add_u32 s40, s40, s90'); a('s_lshl_b32 s40, s40, 7'); a(f's_add_u32 s40, s40, {C_AF}')
        a(f's_mov_b32 {sLdx}, {256*KB}'); a(f's_mov_b32 {sLdw}, 2048')
        a(f's_lshl_b32 {sXo}, {sP}, 19'); a(f's_add_u32 {sXo}, {sXo}, {OA:#x}'); a('s_lshl_b32 s90, s48, 14'); a(f's_add_u32 {sXo}, {sXo}, s90')
        a(f's_lshl_b32 {sWo}, s50, 8'); a(f's_lshl_b32 {sOo}, {sP}, 18'); a(f's_add_u32 {sOo}, {sOo}, {sWo}'); a('s_lshl_b32 s90, s48, 19'); a(f's_add_u32 {sWo}, {sWo}, s90')
        G5.setup(a, mid=lambda: wait([('s40', 0, 2)], slp=1)); G5.once(a, 'T')
        wstamp(4)
        a(f's_sub_u32 s40, {sP}, 28'); a('s_lshl_b32 s40, s40, 3'); a('s_add_u32 s40, s40, s50')
        a('s_lshl_b32 s41, s40, 19'); a(f's_add_u32 s41, s41, {PARTK:#x}')
        a('s_lshl_b32 s90, s48, 15'); a('s_add_u32 s42, s41, s90'); a(f's_lshl_b32 s90, {sW_}, 13'); a('s_add_u32 s42, s42, s90')
        a('v_lshlrev_b32 v2, 4, v1')
        for q in range(8):
            if q == 4: a('s_add_u32 s42, s42, 4096')
            a(f'buffer_store_dwordx4 {ar(4*q, 4)}, v2, {WS}, s42 offen offset:{(q&3)*1024} sc1')
        a('s_lshl_b32 s40, s40, 7')
        a(f's_add_u32 s43, s40, {CNT + C_SP:#x}')
        a('s_waitcnt vmcnt(0)'); a('s_barrier')
        signal(a, 0, soff='s43', srd_=WS)
        wait([('s40', C_SP, 16)], slp=1, stamp=False)
        request(a)
        a('s_lshl_b32 s90, s48, 11'); a('s_add_u32 s41, s41, s90'); a(f's_lshl_b32 s90, {sW_}, 17'); a('s_add_u32 s41, s41, s90')
        for p in range(4):
            for h in range(2): a(f'buffer_load_dwordx4 {vr(16 + 8*p + 4*h, 4)}, v2, {WS}, s41 offen offset:{1024*h} sc1')
            a('s_add_u32 s41, s41, 0x8000')
        lane_expr(a, 'v3', [(0, 4, 4096), (4, 2, 16)], lane='v1', tmp='v4')
        for sh_, mul in ((3, 17), (2, 7), (1, 16), (0, 6)):
            a(f's_lshr_b32 s90, s48, {sh_}'); a('s_and_b32 s90, s90, 1'); a(f's_lshl_b32 s90, s90, {mul}'); a(f's_add_u32 {sOo}, {sOo}, s90')
        a(f's_lshl_b32 s90, {sW_}, 11'); a('v_add_u32 v5, s90, v2')
        for p in range(1, 4):
            a(f's_waitcnt vmcnt({6 - 2*p})')
            for q in range(0, 8, 2): a(f'v_pk_add_f32 {vr(16+q,2)}, {vr(16+q,2)}, {vr(16+8*p+q,2)}')
        a('ds_write_b128 v5, v[16:19]'); a('ds_write_b128 v5, v[20:23] offset:1024')
        a('s_waitcnt lgkmcnt(0)'); a('s_barrier')
        a(f's_cmp_lg_u32 {sW_}, 0'); a('s_cbranch_scc1 L_aofd')
        for p in range(1, 4):
            for h in range(2): a(f'ds_read_b128 {vr(16 + 8*p + 4*h, 4)}, v2 offset:{2048*p + 1024*h}')
        a('s_waitcnt lgkmcnt(0)')
        for p in range(1, 4):
            for q in range(0, 8, 2): a(f'v_pk_add_f32 {vr(16+q,2)}, {vr(16+q,2)}, {vr(16+8*p+q,2)}')
        for q in range(4): a(f'v_cvt_pk_bf16_f32 v{8+q}, v{16+2*q}, v{17+2*q}')
        a(f'buffer_store_dwordx4 v[8:11], v3, {SO}, {sOo} offen {ofl}')
        a.label('L_aofd')
        wstamp(2)
        a('s_branch L_got')
    a.label('L_done')
    a('s_waitcnt vmcnt(0)')
    a('s_barrier')
    a(f's_add_u32 {sDone}, {sDone}, {CNT:#x}')
    signal(a, 0, soff=sDone, srd_=WS, inc='s98')
    wstamp(2)
    a(f's_mov_b32 {pE}, 0')
    if FOLLOW:
        a(f's_cmp_lg_u32 {sKind}, {K_ATA}'); a('s_cbranch_scc1 L_got')
        a(f's_add_u32 {sP}, {sP}, {FOLLOW}'); a(f's_and_b32 s50, {sP}, 7'); a(f's_cmp_lt_u32 {sP}, {FEND}'); a('s_cbranch_scc1 L_ata_c')
    a('s_branch L_got')
    a.label('L_exit')
    a('s_endpgm')
    a.fix_hazards()
    assert len(tl) < 508 and codepf
    t = a.text() + '.p2align 3\nL_table:\n' + ''.join(f'.long {x:#x}\n' for x in tl + [15, 0, 0, 0]) + f'.fill {508 - len(tl)}, 4, 0\n'
    return t, names

def build(**kw):
    body, names = gen(**kw)
    ref = open(os.path.join(os.path.dirname(os.path.abspath(__file__)), '..', NAME + '.s.ref')).read().split('\n')
    head = [l for l in ref if l.startswith(';') and '@launch' not in l and 'Override' not in l and 'grid=ceil' not in l][:14]
    n = NAME + '_kernel'
    t = '\n'.join(head) + '\n'
    t += f'; @launch grid=(256,1,1) block=(256,1,1) lds={LDS_T + 2048}\n'
    t += '.amdgcn_target "amdgcn-amd-amdhsa--gfx950"\n.text\n'
    t += f'.globl {n}\n.p2align 8\n.type {n},@function\n{n}:\n' + body
    t += '.section .rodata,"a"\n.p2align 6\n' + kd(n, 512, 256)
    return t

if __name__ == '__main__':
    out = sys.argv[1] if len(sys.argv) > 1 else os.path.join(os.path.dirname(os.path.abspath(__file__)), '..', NAME + '.s')
    open(out, 'w').write(build(**eval('dict(%s)' % (sys.argv[2] if len(sys.argv) > 2 else ''))))
    print('written', out, os.path.getsize(out))
```
